```python
import torch

def _softmax(x, axis=-1):
    return torch.softmax(x, dim=axis)
def _gelu(x):
    return torch.nn.functional.gelu(x, approximate="tanh")
def _silu(x):
    return torch.nn.functional.silu(x)
def _sigmoid(x):
    return torch.sigmoid(x)
def _layernorm(x, axis=-1, eps=1e-5):
    m = x.mean(dim=axis, keepdim=True)
    v = x.var(dim=axis, keepdim=True, unbiased=False)
    return (x - m) / torch.sqrt(v + eps)
def _scatter_add(tgt, idx, src, axis=0):
    return tgt.clone().index_add_(axis, idx, src)
def _segment_sum(src, seg, n):
    out = torch.zeros((n,) + src.shape[1:], dtype=src.dtype)
    return out.index_add_(0, seg, src)
def _pad(x, pw):
    flat = tuple(v for pair in reversed(pw) for v in pair)
    return torch.nn.functional.pad(x, flat)

kernel_name = 'standalone__seq2seq_rnn_t_joint__speech'

def setup_inputs():

    _w = (lambda a: (lambda t: t.to(torch.bfloat16) if t.is_floating_point() else t)(torch.as_tensor(a)))
    B, T, D, K = 2, 1000, 512, 3
    U = 8
    sc = (1.0 / (K * D)) ** 0.5
    sd = (1.0 / D) ** 0.5
    return {
        "x": _w((lambda *s: torch.randn(*s, dtype=torch.bfloat16) * 0.4)(B, T, D) * 0.5),
        "w1": _w((lambda *s: torch.randn(*s, dtype=torch.bfloat16) * 3.2)(K, D, D) * sc),
        "w2": _w((lambda *s: torch.randn(*s, dtype=torch.bfloat16) * 3.2)(K, D, D) * sc),
        "g": _w((lambda *s: torch.randn(*s, dtype=torch.bfloat16) * 3.2)(B, U, D) * 0.5),
        "w_f": _w((lambda *s: torch.randn(*s, dtype=torch.bfloat16) * 3.2)(D, D) * sd),
        "w_g": _w((lambda *s: torch.randn(*s, dtype=torch.bfloat16) * 3.2)(D, D) * sd),
        "w_o": _w((lambda *s: torch.randn(*s, dtype=torch.bfloat16) * 3.2)(D, D) * sd),
    }

def reference(x, w1, w2, g, w_f, w_g, w_o):
    B, T, D = x.shape
    K = w1.shape[0]
    pad = K // 2
    xp = _pad(x, ((0,0),(pad,pad),(0,0)))
    h = torch.zeros_like(x)
    for i in range(K):
        h = h + torch.einsum("btc,cd->btd", xp[:, i:i+T, :], w1[i])
    h = _gelu(h)[:, ::2, :]
    T1 = h.shape[1]
    hp = _pad(h, ((0,0),(pad,pad),(0,0)))
    f = torch.zeros_like(h)
    for i in range(K):
        f = f + torch.einsum("btc,cd->btd", hp[:, i:i+T1, :], w2[i])
    f = _gelu(f)[:, ::2, :]
    fe = torch.einsum("btd,de->bte", f, w_f)
    ge = torch.einsum("bud,de->bue", g, w_g)
    j = torch.tanh(fe[:, :, None, :] + ge[:, None, :, :])
    return torch.einsum("btud,dv->btuv", j, w_o)
```

```python
class K:
    def __init__(self):
        self.L = []
        self.vm = []
        self.lg = []
        self.nlab = 0
        self.nvm = 0

    def e(self, s):
        for l in s.split("\n"):
            l = l.strip()
            if l:
                self.L.append(l if l.endswith(":") else "    " + l)

    def label(self, stem):
        self.nlab += 1
        return f"L_{stem}_{self.nlab}"

    def vmem(self, s, tag=None):
        self.e(s)
        self.vm.append(tag)
        self.nvm += 1

    def ds(self, s, tag=None):
        self.e(s)
        self.lg.append(tag)

    def _n(self, q, tag, cap):
        idx = [i for i, t in enumerate(q) if t == tag]
        if not idx:
            return None, q
        i = idx[-1]
        n = len(q) - 1 - i
        if n > cap:
            return cap, q[len(q) - cap:]
        return n, q[i + 1:]

    def wait(self, vm=None, lg=None):
        parts = []
        if vm is not None:
            if vm == "all":
                n, self.vm = 0, []
            else:
                n, self.vm = self._n(self.vm, vm, 63)
            if n is not None:
                parts.append(f"vmcnt({n})")
        if lg is not None:
            if lg == "all":
                n, self.lg = 0, []
            else:
                n, self.lg = self._n(self.lg, lg, 15)
            if n is not None:
                parts.append(f"lgkmcnt({n})")
        if parts:
            self.e("s_waitcnt " + " ".join(parts))

    def nop(self, states):
        while states > 0:
            n = min(states, 8)
            self.e(f"s_nop {n - 1}")
            states -= n

    def text(self):
        return "\n".join(self.L) + "\n"


def vr(b, n=1, p="v"):
    return f"{p}{b}" if n == 1 else f"{p}[{b}:{b + n - 1}]"


def ar(b, n=1):
    return vr(b, n, "a")


def sr(b, n=1):
    return vr(b, n, "s")


def f32(x):
    import struct
    return "0x%08x" % struct.unpack("<I", struct.pack("<f", x))[0]
```

```python
import math
import sys
from kb import K, vr, ar, sr, f32

NAME = "standalone__seq2seq_rnn_t_joint__speech_kernel"

KSTR = 4096
H_OFF = 0
F_OFF = 1 << 20
FE_OFF = F_OFF + (1 << 19)
GE_OFF = 2 << 20
WS_REC = 4 << 20
STAMP_OFF = 8 << 20
OOB = 0x80000000
SPIN_MAX = 4096

T_BASE = 131072
CA_BASE = T_BASE + 24576
LDS_BYTES = 163840

SX, SW1, SW2, SG, SWF, SWG, SWO, SOUT, SDBG, SWS = 24, 28, 32, 36, 40, 44, 48, 52, 56, 60
sW, sM, sN, sB, sMT, sRW, sTW = 64, 65, 66, 67, 68, 69, 70
sHB, sFB = 71, 72
sT0, sT1, sT2, sT3 = 73, 74, 75, 76
sSPIN = 77
STAMP0 = 78
sHL, sFL, sFE, sGST, sGL, sSUB, sHALF = 4, 5, 6, 7, 8, 9, 10

vL, vNL, vHH, vWR, vTRT, vTRR, vLINT = 1, 2, 3, 4, 5, 6, 7
vX = 8
vXT = 16
vB0, vB1, vN0, vN1, vDEL = 17, 18, 19, 20, 21
vC, vCM, vPR, vT0, vT1, vT2 = 22, 23, 24, 25, 26, 27
vONES = 28
vKC3, vPR2, vST32 = 8, 9, 10

C1 = 2 * math.log2(math.e) * math.sqrt(2 / math.pi)
C3 = C1 * 0.044715
CT = 2 * math.log2(math.e)


DEFAULT_STAMPS = ("start", "issued", "s1mfma", "hst", "hpoll", "s2mfma", "fst", "s3mfma", "fest", "fepoll", "s4mfma", "end")
S1_STAMPS = ("start", "karg", "iss0", "pro2", "issued", "w10", "x0", "u0", "u1", "u2", "s1mfma", "hst")


class Gen:
    def __init__(self, stop_after=None, stamps=True, opts=None):
        self.k = K()
        self.stop_after = stop_after
        self.stamps = stamps
        self.nst = 0
        self.names = []
        self.o = dict(prefetch=True)
        self.o.update(opts or {})
        self.rot = 0

    def stamp(self, name):
        if not self.stamps or name not in self.o.get("stamps", DEFAULT_STAMPS):
            return
        assert self.nst < 12
        r = STAMP0 + 2 * self.nst
        self.k.e(f"s_memrealtime s[{r}:{r + 1}]")
        self.names.append(name)
        self.nst += 1

    def stmp(self):
        self.rot = (self.rot + 1) % 4
        return sT0 + self.rot

    def srd(self, d, ptr, off_expr_reg, nrec):
        k = self.k
        if off_expr_reg is None:
            k.e(f"s_mov_b32 s{d}, s{ptr}\ns_mov_b32 s{d + 1}, s{ptr + 1}")
        else:
            k.e(f"s_add_u32 s{d}, s{ptr}, s{off_expr_reg}\ns_addc_u32 s{d + 1}, s{ptr + 1}, 0")
        k.e(f"s_mov_b32 s{d + 2}, {nrec}\ns_mov_b32 s{d + 3}, 0x20000")

    def load_w(self, srd, dst_a, soff, tag):
        t = self.stmp()
        self.k.e(f"s_mov_b32 s{t}, {soff}")
        self.k.vmem(f"buffer_load_dwordx4 {ar(dst_a, 4)}, v{vWR}, {sr(srd, 4)}, s{t} offen", tag)

    def dma_w(self, srd, lds_off, soff, imm, tag):
        t = self.stmp()
        k = self.k
        k.e(f"s_add_u32 m0, s{sRW}, {lds_off - imm}")
        k.e(f"s_mov_b32 s{t}, {soff}")
        o = f" offset:{imm}" if imm else ""
        k.vmem(f"buffer_load_dwordx4 v{vWR}, {sr(srd, 4)}, s{t} offen{o} lds", tag)

    def tr_frag(self, addr, off, dst_a, tag):
        k = self.k
        k.ds(f"ds_read_b64_tr_b16 {ar(dst_a, 2)}, v{addr} offset:{off}", tag)
        k.ds(f"ds_read_b64_tr_b16 {ar(dst_a + 2, 2)}, v{addr} offset:{off + 256}", tag)

    def mfma(self, d, a, b, first, a_kind="a"):
        c = "0" if first else vr(d, 16)
        self.k.e(f"v_mfma_f32_32x32x16_bf16 {vr(d, 16)}, {vr(a, 4, a_kind)}, {vr(b, 4)}, {c}")

    def gelu(self, xs, tmp, kc3):
        k = self.k
        n = len(xs)
        ts = [tmp + i for i in range(n)]
        for x, t in zip(xs, ts):
            k.e(f"v_mul_f32 v{t}, v{x}, v{x}")
        for x, t in zip(xs, ts):
            k.e(f"v_fmaak_f32 v{t}, v{t}, v{kc3}, {f32(-C1)}")
        for x, t in zip(xs, ts):
            k.e(f"v_mul_f32 v{t}, v{t}, v{x}")
        for x, t in zip(xs, ts):
            k.e(f"v_exp_f32 v{t}, v{t}")
        for x, t in zip(xs, ts):
            k.e(f"v_add_f32 v{t}, 1.0, v{t}")
        for x, t in zip(xs, ts):
            k.e(f"v_rcp_f32 v{t}, v{t}")
        for x, t in zip(xs, ts):
            k.e(f"v_mul_f32 v{x}, v{x}, v{t}")

    def spin_check(self, done_label):
        self.k.e(f"s_add_u32 s{sSPIN}, s{sSPIN}, 1\ns_cmp_ge_u32 s{sSPIN}, {SPIN_MAX}\ns_cbranch_scc1 {done_label}")

    def prologue(self):
        k = self.k
        k.e(f"""
        s_cmp_ge_u32 s2, 256
        s_cbranch_scc1 L_end
        s_load_dwordx16 s[4:19], s[0:1], 0
        s_load_dwordx4 s[20:23], s[0:1], 64
        """)
        self.stamp("start")
        k.e(f"""
        v_lshrrev_b32 v{vT0}, 6, v0
        v_and_b32 v{vL}, 63, v0
        v_readfirstlane_b32 s{sW}, v{vT0}
        v_and_b32 v{vNL}, 31, v0
        v_bfe_u32 v{vHH}, v0, 5, 1
        s_and_b32 s{sT0}, s2, 7
        s_lshr_b32 s{sT1}, s2, 3
        s_lshr_b32 s{sM}, s{sT0}, 1
        s_lshl_b32 s{sM}, s{sM}, 2
        s_lshr_b32 s{sT2}, s{sT1}, 3
        s_add_u32 s{sM}, s{sM}, s{sT2}
        s_and_b32 s{sN}, s{sT0}, 1
        s_lshl_b32 s{sN}, s{sN}, 3
        s_and_b32 s{sT2}, s{sT1}, 7
        s_add_u32 s{sN}, s{sN}, s{sT2}
        s_lshr_b32 s{sB}, s{sM}, 3
        s_and_b32 s{sMT}, s{sM}, 7
        s_lshl_b32 s{sRW}, s{sW}, 15
        s_lshl_b32 s{sTW}, s{sW}, 13
        s_add_u32 s{sTW}, s{sTW}, {T_BASE}
        v_mul_u32_u24 v{vC}, {KSTR}, v{vHH}
        v_lshl_add_u32 v{vC}, v{vNL}, 4, v{vC}
        v_lshrrev_b32 v{vT0}, 2, v{vL}
        v_and_b32 v{vT1}, 3, v{vL}
        v_lshlrev_b32 v{vWR}, 10, v{vT0}
        v_lshl_add_u32 v{vWR}, v{vT1}, 4, v{vWR}
        v_lshrrev_b32 v{vT2}, 4, v{vL}
        v_and_b32 v{vT2}, 3, v{vT2}
        v_xor_b32 v{vT2}, v{vT2}, v{vT1}
        v_lshlrev_b32 v{vT2}, 4, v{vT2}
        v_lshl_add_u32 v{vT2}, v{vT0}, 12, v{vT2}
        v_mov_b32 v{vONES}, -1
        v_mov_b32 v{vONES + 1}, -1
        v_mov_b32 v{vONES + 2}, -1
        v_mov_b32 v{vONES + 3}, -1
        """)
        for j, r in enumerate([1, 65, 2, 66, 3, 67, 0, 64]):
            if r == 0:
                k.e(f"v_mov_b32 v{vX + j}, v{vT2}")
            else:
                k.e(f"v_add_u32 v{vX + j}, {r * 1024}, v{vT2}")
        k.e(f"""
        s_cmp_eq_u32 s{sMT}, 0
        s_cselect_b32 s{sT0}, {OOB}, 0
        v_mov_b32 v{vT0}, s{sT0}
        v_cmp_gt_u32 vcc, 4, v{vL}
        v_lshlrev_b32 v{vXT}, 4, v{vL}
        v_add_u32 v{vXT}, {128 * 1024}, v{vXT}
        v_cndmask_b32 v{vT0}, 0, v{vT0}, vcc
        v_add_u32 v{vX + 6}, v{vX + 6}, v{vT0}
        """)
        k.e(f"""
        s_lshl_b32 s{sT0}, s{sB}, 6
        s_lshl_b32 s{sT1}, s{sN}, 2
        s_add_u32 s{sT2}, s{sT0}, s{sT1}
        s_add_u32 s{sT3}, s{sT2}, s{sT0}
        s_mul_i32 s{sT2}, s{sT2}, {KSTR}
        s_mul_i32 s{sT3}, s{sT3}, {KSTR}
        s_lshl_b32 s{sT0}, s{sMT}, 9
        s_add_u32 s{sHB}, s{sT3}, s{sT0}
        s_add_u32 s{sFB}, s{sT2}, s{sT0}
        s_add_u32 s{sFB}, s{sFB}, {F_OFF}
        s_waitcnt lgkmcnt(0)
        """)
        self.stamp("karg")
        self.srd(SWS, 22, None, WS_REC)
        l1, l2, l3, lj = k.label("c1"), k.label("c2"), k.label("c3"), k.label("cj")
        k.e(f"s_cmp_lg_u32 s{sW}, 0\ns_cbranch_scc1 {l1}")
        for p in range(2):
            for a in range(2):
                k.e(f"s_add_u32 s{sT0}, s{sHB}, {(p * 64 + 2 * a) * KSTR}")
                k.e(f"buffer_store_dwordx4 {vr(vONES, 4)}, v{vC}, {sr(SWS, 4)}, s{sT0} offen sc1")
        k.e(f"s_branch {lj}\n{l1}:\ns_cmp_lg_u32 s{sW}, 1\ns_cbranch_scc1 {l2}")
        for d in (0, FE_OFF - F_OFF):
            for j in range(2):
                k.e(f"s_add_u32 s{sT0}, s{sFB}, {d + 2 * j * KSTR}")
                k.e(f"buffer_store_dwordx4 {vr(vONES, 4)}, v{vC}, {sr(SWS, 4)}, s{sT0} offen sc1")
        k.e(f"s_branch {lj}\n{l2}:\ns_cmp_lg_u32 s{sW}, 2\ns_cbranch_scc1 {l3}")
        k.e(f"""
        s_lshl_b32 s{sT0}, s{sM}, 6
        s_lshl_b32 s{sT1}, s{sN}, 2
        s_add_u32 s{sT0}, s{sT0}, s{sT1}
        s_lshl_b32 s{sT0}, s{sT0}, 7
        s_add_u32 s{sT0}, s{sT0}, {GE_OFF}
        v_lshlrev_b32 v{vT0}, 4, v{vL}
        v_cmp_gt_u32 vcc, 32, v{vL}
        v_mov_b32 v{vT1}, {OOB}
        s_nop 0
        v_cndmask_b32 v{vT0}, v{vT1}, v{vT0}, vcc
        buffer_store_dwordx4 {vr(vONES, 4)}, v{vT0}, {sr(SWS, 4)}, s{sT0} offen sc1
        s_branch {lj}
        {l3}:
        """)
        if self.o["prefetch"]:
            k.e(f"""
            s_getpc_b64 s[{sT0 + 1}:{sT0 + 2}]
            L_pc:
            v_lshlrev_b32 v{vT0}, 7, v{vL}
            v_min_u32 v{vT1}, L_last-L_pc, v{vT0}
            global_load_dword v{vDEL}, v{vT1}, s[{sT0 + 1}:{sT0 + 2}]
            v_add_u32 v{vT0}, 8192, v{vT0}
            v_min_u32 v{vT1}, L_last-L_pc, v{vT0}
            global_load_dword v{vDEL}, v{vT1}, s[{sT0 + 1}:{sT0 + 2}]
            v_add_u32 v{vT0}, 8192, v{vT0}
            v_min_u32 v{vT1}, L_last-L_pc, v{vT0}
            global_load_dword v{vDEL}, v{vT1}, s[{sT0 + 1}:{sT0 + 2}]
            """)
        k.e(f"{lj}:")
        k.e(f"""
        s_lshl_b32 s{sT0}, s{sW}, 17
        s_lshl_b32 s{sT1}, s{sN}, 6
        s_add_u32 s3, s{sT0}, s{sT1}
        s_sub_u32 s{sT1}, 1572864, s3
        """)
        self.srd(SW1, 6, 3, f"s{sT1}")
        k.e(f"""
        s_mul_i32 s{sT0}, s{sB}, 1000
        s_lshl_b32 s{sT1}, s{sMT}, 7
        s_add_u32 s{sT0}, s{sT0}, s{sT1}
        s_sub_u32 s{sT0}, s{sT0}, 1
        s_lshl_b32 s{sT0}, s{sT0}, 10
        s_lshl_b32 s{sT2}, s{sW}, 8
        s_add_u32 s{sT0}, s{sT0}, s{sT2}
        s_ashr_i32 s{sT3}, s{sT0}, 31
        s_add_u32 s{SX}, s4, s{sT0}
        s_addc_u32 s{SX + 1}, s5, s{sT3}
        s_sub_u32 s{sT1}, 1001, s{sT1}
        s_lshl_b32 s{sT1}, s{sT1}, 10
        s_sub_u32 s{SX + 2}, s{sT1}, s{sT2}
        s_mov_b32 s{SX + 3}, 0x20000
        """)

    def prologue2(self):
        k = self.k
        k.e(f"s_sub_u32 s{sT1}, 1572864, s3")
        self.srd(SW2, 8, 3, f"s{sT1}")
        k.e(f"s_sub_u32 s{sT1}, 524288, s3")
        self.srd(SWF, 12, 3, f"s{sT1}")
        self.srd(SWG, 14, 3, f"s{sT1}")
        k.e(f"""
        s_lshl_b32 s{sT0}, s{sB}, 13
        s_lshl_b32 s{sT1}, s{sW}, 8
        s_add_u32 s{sT0}, s{sT0}, s{sT1}
        s_sub_u32 s{sT1}, 8192, s{sT1}
        """)
        self.srd(SG, 10, sT0, f"s{sT1}")
        k.e(f"""
        s_lshr_b32 s{sT2}, s{sN}, 3
        s_lshl_b32 s{sT0}, s{sT2}, 9
        s_lshl_b32 s{sT1}, s{sW}, 7
        s_add_u32 s{sT0}, s{sT0}, s{sT1}
        s_sub_u32 s{sT1}, 524288, s{sT0}
        """)
        self.srd(SWO, 16, sT0, f"s{sT1}")
        k.e(f"s_mul_i32 s{sT0}, s{sB}, 2048000")
        self.srd(SOUT, 18, sT0, 2048000)
        self.srd(SDBG, 20, None, 256)
        k.e(f"""
        v_bfe_u32 v{vT0}, v{vL}, 2, 2
        v_lshl_add_u32 v{vT0}, v{vHH}, 3, v{vT0}
        v_lshlrev_b32 v{vT0}, 6, v{vT0}
        v_bfe_u32 v{vT1}, v{vL}, 4, 1
        v_lshl_add_u32 v{vT0}, v{vT1}, 5, v{vT0}
        v_and_b32 v{vT1}, 1, v{vL}
        v_lshl_add_u32 v{vT0}, v{vT1}, 4, v{vT0}
        v_bfe_u32 v{vT1}, v{vL}, 1, 1
        v_lshl_add_u32 v{vT0}, v{vT1}, 3, v{vT0}
        v_add_u32 v{vTRT}, s{sTW}, v{vT0}
        v_add_u32 v{vTRR}, s{sRW}, v{vT0}
        v_lshlrev_b32 v{vT0}, 4, v{vL}
        v_add_u32 v{vLINT}, s{sTW}, v{vT0}
        """)
        k.e(f"""
        v_bfe_u32 v{vT0}, v{vNL}, 2, 2
        v_xor_b32 v{vT0}, v{vT0}, v{vHH}
        v_lshlrev_b32 v{vT0}, 4, v{vT0}
        v_lshl_add_u32 v{vT0}, v{vNL}, 6, v{vT0}
        v_add_u32 v{vB0}, s{sRW}, v{vT0}
        v_xor_b32 v{vB1}, 32, v{vB0}
        v_add_u32 v{vT1}, 1, v{vNL}
        v_bfe_u32 v{vT0}, v{vT1}, 2, 2
        v_xor_b32 v{vT0}, v{vT0}, v{vHH}
        v_lshlrev_b32 v{vT0}, 4, v{vT0}
        v_lshl_add_u32 v{vT0}, v{vT1}, 6, v{vT0}
        v_add_u32 v{vT0}, 6144, v{vT0}
        v_add_u32 v{vN0}, s{sRW}, v{vT0}
        v_xor_b32 v{vN1}, 32, v{vN0}
        v_lshlrev_b32 v{vT0}, 4, v{vHH}
        v_add_u32 v{vT0}, 6144, v{vT0}
        v_add_u32 v{vT0}, s{sTW}, v{vT0}
        v_add_u32 v{vT1}, 32, v{vT0}
        v_cmp_eq_u32 vcc, 31, v{vNL}
        v_mov_b32 v{vT2}, {(64 - 8192) & 0xffffffff}
        v_mov_b32 v{vPR}, 0
        v_cndmask_b32 v{vN0}, v{vN0}, v{vT0}, vcc
        v_cndmask_b32 v{vN1}, v{vN1}, v{vT1}, vcc
        v_cndmask_b32 v{vPR}, v{vPR}, v{vT2}, vcc
        """)
        self.vdel_src = vPR

    def issue_w1(self, u):
        ops = []
        for sl in range(2):
            s = 2 * u + sl
            for i in range(3):
                ops.append(lambda s=s, i=i: self.load_w(SW1, 4 * (3 * s + i), i * 524288 + s * 16384, ("w1", u)))
        return ops

    def issue_x(self, u):
        k = self.k
        ops = []
        for j in range(8):
            def op(j=j):
                k.e(f"s_add_u32 m0, s{sRW}, {u * 8192 + j * 1024 - u * 64}")
                k.e("s_nop 0")
                o = f" offset:{u * 64}" if u else ""
                k.vmem(f"buffer_load_dwordx4 v{vX + j}, {sr(SX, 4)}, 0 offen{o} lds", ("x", u))
            ops.append(op)
        return ops

    def issue_tail(self):
        k = self.k
        k.e(f"s_add_u32 m0, s{sTW}, 6144\ns_mov_b64 exec, 0xffff")
        k.vmem(f"buffer_load_dwordx4 v{vXT}, {sr(SX, 4)}, 0 offen lds", ("x", 0))
        k.e("s_mov_b64 exec, -1")

    def issue_w2(self, tap):
        return [lambda s=s: self.dma_w(SW2, (8 * tap + s) * 1024, tap * 524288 + s * 16384, 0, ("w2", tap))
                for s in range(8)]

    def stage1(self):
        k = self.k
        BUF = [32, 52]
        ACC0, ACC1 = 72, 88
        for op in self.issue_w1(0) + self.issue_x(0):
            op()
        self.issue_tail()
        self.stamp("iss0")
        self.prologue2()
        self.stamp("pro2")
        for op in self.issue_w1(1) + self.issue_x(1):
            op()
        self.stamp("issued")
        fill = {0: self.issue_w1(2) + self.issue_x(2), 1: self.issue_w1(3) + self.issue_x(3),
                2: self.issue_w2(0) + self.issue_w2(1), 3: self.issue_w2(2)}
        for u in range(4):
            k.wait(vm=("w1", u))
            if u == 0:
                self.stamp("w10")
                k.e(f"v_mov_b32 v{vDEL}, v{self.vdel_src}")
                lab = k.label("hs")
                k.e(f"""
                s_cmp_lg_u32 s{sW}, 0
                s_cbranch_scc1 {lab}
                s_and_b32 s{sT0}, s2, 3
                s_lshl_b32 s{sT0}, s{sT0}, 6
                v_mov_b32 v{vT0}, s{sT0}
                v_mov_b32 v{vT1}, 1
                s_mov_b64 exec, 1
                buffer_atomic_add v{vT1}, v{vT0}, {sr(SDBG, 4)}, 0 offen sc1
                s_mov_b64 exec, -1
                {lab}:
                """)
            for f in range(6):
                k.ds(f"ds_write_b128 v{vLINT}, {ar(4 * (6 * u + f), 4)} offset:{f * 1024}")
            for f in range(6):
                self.tr_frag(vTRT, f * 1024, 4 * (6 * u + f), ("tr", u))
            k.wait(vm=("x", u))
            if u == 0:
                self.stamp("x0")
            for sl in range(2):
                b = BUF[sl]
                vb, vn = (vB0, vN0) if sl == 0 else (vB1, vN1)
                for c in range(4):
                    k.ds(f"ds_read_b128 {vr(b + 4 * c, 4)}, v{vb} offset:{u * 8192 + c * 2048}", ("b", u, sl))
                k.ds(f"ds_read_b128 {vr(b + 16, 4)}, v{vn} offset:{u * 8192}", ("b", u, sl))
            if u < 3:
                k.e(f"v_add_u32 v{vN0}, v{vN0}, v{vDEL}\nv_add_u32 v{vN1}, v{vN1}, v{vDEL}")
            ops = list(fill[u])
            per = (len(ops) + 11) // 12
            for sl in range(2):
                k.wait(lg=("b", u, sl))
                b = BUF[sl]
                s = 2 * u + sl
                seq = [(ACC0, 0, 12), (ACC1, 0, 4), (ACC0, 1, 0), (ACC1, 1, 8), (ACC0, 2, 4), (ACC1, 2, 16)]
                for idx, (acc, i, bo) in enumerate(seq):
                    first = (u == 0 and sl == 0 and idx < 2)
                    self.mfma(acc, 4 * (3 * s + i), b + bo, first)
                    for _ in range(per):
                        if ops:
                            ops.pop(0)()
            while ops:
                ops.pop(0)()
            self.stamp(f"u{u}")
        self.stamp("s1mfma")
        for s in range(8):
            self.dma_w(SWF, 24576 + s * 1024, s * 16384, 0, "wf")
        for s in range(8):
            self.load_w(SWG, 96 + 4 * s, s * 16384, "wg")
        for p, acc in enumerate((ACC0, ACC1)):
            for a in range(2):
                for j in range(2):
                    k.ds(f"ds_write_b128 v{vLINT}, {vr(acc + 8 * a + 4 * j, 4)} offset:{(2 * p + a) * 2048 + j * 1024}")
        k.e(f"""
        s_lshl_b32 s{sT0}, s{sW}, 11
        s_add_u32 s{sT0}, s{sT0}, {T_BASE}
        v_lshlrev_b32 v{vT0}, 4, v{vL}
        v_add_u32 v{vPR}, s{sT0}, v{vT0}
        v_mov_b32 v{vKC3}, {f32(-C3)}
        """)
        k.wait(lg="all")
        k.e("s_barrier")
        R = 104
        for sw in range(4):
            for j in range(2):
                k.ds(f"ds_read_b128 {vr(R + 8 * sw + 4 * j, 4)}, v{vPR} offset:{sw * 8192 + j * 1024}", ("r", sw))
        k.wait(lg=("r", 1))
        for i in range(8):
            k.e(f"v_add_f32 v{R + i}, v{R + i}, v{R + 8 + i}")
        k.wait(lg=("r", 3))
        for i in range(8):
            k.e(f"v_add_f32 v{R + 16 + i}, v{R + 16 + i}, v{R + 24 + i}")
        for i in range(8):
            k.e(f"v_add_f32 v{R + i}, v{R + i}, v{R + 16 + i}")
        self.gelu([R + i for i in range(8)], R + 8, vKC3)
        for i in range(4):
            k.e(f"v_cvt_pk_bf16_f32 v{R + 16 + i}, v{R + 2 * i}, v{R + 2 * i + 1}")
        k.e(f"""
        s_lshr_b32 s{sT0}, s{sW}, 1
        s_mul_i32 s{sT0}, s{sT0}, {64 * KSTR}
        s_and_b32 s{sT1}, s{sW}, 1
        s_mul_i32 s{sT1}, s{sT1}, {2 * KSTR}
        s_add_u32 s{sT0}, s{sT0}, s{sT1}
        s_add_u32 s{sT0}, s{sT0}, s{sHB}
        """)
        k.vmem(f"buffer_store_dwordx4 {vr(R + 16, 4)}, v{vC}, {sr(SWS, 4)}, s{sT0} offen sc1", "hst")
        self.stamp("hst")
        k.e("s_barrier")

    def reduce32(self, acc, region, act, vst, sst, tag):
        k = self.k
        k.nop(12)
        for blk in range(4):
            k.ds(f"ds_write_b128 v{vLINT}, {vr(acc + 4 * blk, 4)} offset:{region + blk * 1024}")
        k.wait(lg="all")
        k.e("s_barrier")
        R = 144
        for sw in range(4):
            k.ds(f"ds_read_b128 {vr(R + 4 * sw, 4)}, v{vPR2} offset:{sw * 8192 + region}", ("r", sw))
        k.wait(lg=("r", 1))
        for i in range(4):
            k.e(f"v_add_f32 v{R + i}, v{R + i}, v{R + 4 + i}")
        k.wait(lg=("r", 3))
        for i in range(4):
            k.e(f"v_add_f32 v{R + 8 + i}, v{R + 8 + i}, v{R + 12 + i}")
        for i in range(4):
            k.e(f"v_add_f32 v{R + i}, v{R + i}, v{R + 8 + i}")
        if act:
            self.gelu([R + i for i in range(4)], R + 4, vKC3)
        k.e(f"v_cvt_pk_bf16_f32 v{R + 8}, v{R}, v{R + 1}")
        k.e(f"v_cvt_pk_bf16_f32 v{R + 9}, v{R + 2}, v{R + 3}")
        k.nop(2)
        k.e(f"v_permlane32_swap_b32 v{R + 8}, v{R + 10}")
        k.e(f"v_permlane32_swap_b32 v{R + 9}, v{R + 11}")
        k.vmem(f"buffer_store_dwordx4 {vr(R + 8, 4)}, v{vst}, {sr(SWS, 4)}, s{sst} offen sc1", tag)

    def setup2(self):
        k = self.k
        k.e(f"""
        s_lshr_b32 s{sT0}, s{sW}, 1
        s_lshl_b32 s{sT0}, s{sT0}, 11
        s_and_b32 s{sT1}, s{sW}, 1
        s_lshl_b32 s{sT1}, s{sT1}, 9
        s_add_u32 s{sT0}, s{sT0}, s{sT1}
        s_add_u32 s{sT0}, s{sT0}, {T_BASE}
        v_lshlrev_b32 v{vT0}, 10, v{vHH}
        v_lshl_add_u32 v{vT0}, v{vNL}, 4, v{vT0}
        v_add_u32 v{vPR2}, s{sT0}, v{vT0}
        v_lshlrev_b32 v{vT0}, 4, v{vNL}
        v_mov_b32 v{vT1}, {OOB}
        v_cmp_eq_u32 vcc, 0, v{vHH}
        s_cmp_eq_u32 s{sMT}, 0
        s_cselect_b32 s{sT0}, {OOB}, 0
        v_cndmask_b32 v{vST32}, v{vT1}, v{vT0}, vcc
        v_mov_b32 v{vT0}, s{sT0}
        v_cmp_eq_u32 vcc, 0, v{vNL}
        s_nop 1
        v_cndmask_b32 v{vT0}, 0, v{vT0}, vcc
        v_add_u32 v{vCM}, v{vC}, v{vT0}
        """)
        k.e(f"""
        s_lshl_b32 s{sT0}, s{sB}, 6
        s_lshl_b32 s{sT1}, s{sW}, 4
        s_add_u32 s{sT2}, s{sT0}, s{sT1}
        s_add_u32 s{sT3}, s{sT2}, s{sT0}
        s_mul_i32 s{sT2}, s{sT2}, {KSTR}
        s_mul_i32 s{sT3}, s{sT3}, {KSTR}
        s_lshl_b32 s{sT0}, s{sMT}, 9
        s_add_u32 s{sHL}, s{sT3}, s{sT0}
        s_add_u32 s{sFL}, s{sT2}, s{sT0}
        s_add_u32 s{sFL}, s{sFL}, {F_OFF}
        s_and_b32 s{sSUB}, s{sN}, 7
        s_lshr_b32 s{sHALF}, s{sN}, 3
        s_lshl_b32 s{sT0}, s{sSUB}, 6
        s_add_u32 s{sFE}, s{sFL}, s{sT0}
        s_add_u32 s{sFE}, s{sFE}, {FE_OFF - F_OFF}
        s_lshl_b32 s{sT0}, s{sM}, 6
        s_lshl_b32 s{sT1}, s{sN}, 2
        s_add_u32 s{sT1}, s{sT1}, s{sW}
        s_add_u32 s{sT1}, s{sT1}, s{sT0}
        s_lshl_b32 s{sT1}, s{sT1}, 7
        s_add_u32 s{sGST}, s{sT1}, {GE_OFF}
        s_lshl_b32 s{sT1}, s{sW}, 1
        s_add_u32 s{sT1}, s{sT1}, s{sT0}
        s_lshl_b32 s{sT1}, s{sT1}, 7
        s_add_u32 s{sGL}, s{sT1}, {GE_OFF}
        """)

    def stage_ge(self):
        k = self.k
        GF, ACC = 64, 128
        k.e(f"v_lshlrev_b32 v{vT0}, 10, v{vNL}\nv_lshl_add_u32 v{vT0}, v{vHH}, 4, v{vT0}")
        for s in range(8):
            o = f" offset:{s * 32}" if s else ""
            k.vmem(f"buffer_load_dwordx4 {vr(GF + 4 * s, 4)}, v{vT0}, {sr(SG, 4)}, 0 offen{o}", "g")
        k.wait(vm="wg")
        for s in range(8):
            k.ds(f"ds_write_b128 v{vLINT}, {ar(96 + 4 * s, 4)} offset:{s * 1024}")
        for s in range(8):
            self.tr_frag(vTRT, s * 1024, 96 + 4 * s, "trg")
        k.wait(vm="g", lg="trg")
        for s in range(8):
            self.mfma(ACC, 96 + 4 * s, GF + 4 * s, s == 0)
        k.e(f"""
        v_lshlrev_b32 v{vT0}, 4, v{vL}
        v_mov_b32 v{vT1}, {OOB}
        v_cmp_gt_u32 vcc, 8, v{vL}
        s_nop 1
        v_cndmask_b32 v{vT2}, v{vT1}, v{vT0}, vcc
        """)
        self.reduce32(ACC, 4096, False, vT2, sGST, "gest")

    def tr_w2_wf(self):
        k = self.k
        for tap in range(3):
            k.wait(vm=("w2", tap))
            for s in range(8):
                f = 8 * tap + s
                self.tr_frag(vTRR, f * 1024, 128 + 4 * f, "trw2")
        k.wait(vm="wf")
        for s in range(8):
            self.tr_frag(vTRR, 24576 + s * 1024, 224 + 4 * s, "trwf")

    def issue_wo(self, piece, slot_off):
        ops = []
        for sl in range(8):
            for ct in range(2):
                s = 8 * piece + sl
                ops.append(lambda s=s, sl=sl, ct=ct: self.dma_w(
                    SWO, slot_off + (2 * sl + ct) * 1024, s * 16384, ct * 64, ("wo", piece)))
        return ops

    def tr_wo(self, piece, slot_off):
        self.k.wait(vm=("wo", piece))
        for sl in range(8):
            for ct in range(2):
                s = 8 * piece + sl
                self.tr_frag(vTRR, slot_off + (2 * sl + ct) * 1024, 8 * s + 4 * ct, ("trwo", piece))

    def handshake_wait(self):
        k = self.k
        top, done = k.label("hsw"), k.label("hsd")
        k.e(f"""
        v_and_b32 v{vT0}, 3, v{vL}
        v_lshlrev_b32 v{vT0}, 6, v{vT0}
        s_mov_b32 s{sSPIN}, 0
        {top}:
        buffer_load_dword v{vT1}, v{vT0}, {sr(SDBG, 4)}, 0 offen sc1
        s_waitcnt vmcnt(0)
        v_cmp_ne_u32 vcc, 64, v{vT1}
        s_cbranch_vccz {done}
        """)
        self.spin_check(done)
        k.e(f"s_branch {top}\n{done}:")
        k.vm = []

    def stage2(self):
        k = self.k
        HF, ACC = 32, 128
        top, done = k.label("hp"), k.label("hpd")
        k.e(f"""
        v_and_b32 v{vT0}, 15, v{vL}
        v_mul_u32_u24 v{vT0}, {KSTR}, v{vT0}
        v_lshrrev_b32 v{vT1}, 4, v{vL}
        v_cmp_eq_u32 vcc, 1, v{vT1}
        v_add_u32 v{vT2}, {64 * KSTR + 31 * 16}, v{vT0}
        v_add_u32 v11, {31 * 16}, v{vT0}
        v_cndmask_b32 v11, v11, v{vT2}, vcc
        v_cmp_eq_u32 vcc, 2, v{vT1}
        s_cmp_eq_u32 s{sMT}, 0
        s_mov_b32 s{sT1}, {64 * KSTR - 16}
        s_cselect_b32 s{sT0}, {OOB}, s{sT1}
        v_add_u32 v{vT2}, s{sT0}, v{vT0}
        v_cndmask_b32 v11, v11, v{vT2}, vcc
        v_cmp_eq_u32 vcc, 3, v{vT1}
        s_mov_b32 s{sSPIN}, 0
        s_nop 0
        v_cndmask_b32 v11, v11, v{vT0}, vcc
        {top}:
        buffer_load_dwordx4 v[12:15], v11, {sr(SWS, 4)}, s{sHL} offen sc1
        s_waitcnt vmcnt(0)
        v_cmp_eq_u32 vcc, -1, v15
        s_cbranch_vccz {done}
        """)
        self.spin_check(done)
        k.e(f"s_branch {top}\n{done}:")
        k.vm = []
        self.stamp("hpoll")

        def loads(counted):
            for s in range(8):
                for i in range(3):
                    off = 2 * s * KSTR + (0 if i == 1 else 64 * KSTR) - (16 if i == 0 else 0)
                    t = self.stmp()
                    k.e(f"s_add_u32 s{t}, s{sHL}, {off}")
                    ins = (f"buffer_load_dwordx4 {vr(HF + 4 * (3 * s + i), 4)}, v{vCM if i == 0 else vC}, "
                           f"{sr(SWS, 4)}, s{t} offen sc1")
                    if counted:
                        k.vmem(ins, ("h", s))
                    else:
                        k.e(ins)
        k.e(f"s_mov_b32 s{sSPIN}, 0")
        loads(True)
        if self.o.get("wo0_after_h", True):
            for op in self.issue_wo(0, 0):
                op()
        mf, retry, ok = k.label("s2m"), k.label("s2r"), k.label("s2k")
        k.e(f"{mf}:")
        for s in range(8):
            k.wait(vm=("h", s))
            f = HF + 12 * s
            if s == 0:
                k.e(f"v_max3_u32 v{vT0}, v{f + 3}, v{f + 7}, v{f + 11}")
            else:
                k.e(f"v_max3_u32 v{vT0}, v{vT0}, v{f + 3}, v{f + 7}")
                k.e(f"v_max_u32 v{vT0}, v{vT0}, v{f + 11}")
            for i in range(3):
                self.mfma(ACC, 128 + 4 * (8 * i + s), f + 4 * i, s == 0 and i == 0)
        k.e(f"v_cmp_eq_u32 vcc, -1, v{vT0}\ns_cbranch_vccnz {retry}\n{ok}:")
        self.ool.append((retry, ok, mf, loads))
        self.stamp("s2mfma")
        k.e(f"s_add_u32 s{sT0 }, s{sW}, 0\ns_mul_i32 s{sT0}, s{sT0}, {KSTR}\ns_add_u32 s11, s{sT0}, s{sFB}")
        self.reduce32(ACC, 0, True, vST32, 11, "fst")
        self.stamp("fst")

    def stage3(self):
        k = self.k
        FF, ACC = 32, 128

        def loads(counted):
            for s in range(8):
                t = self.stmp()
                k.e(f"s_add_u32 s{t}, s{sFL}, {2 * s * KSTR}")
                ins = f"buffer_load_dwordx4 {vr(FF + 4 * s, 4)}, v{vC}, {sr(SWS, 4)}, s{t} offen sc1"
                if counted:
                    k.vmem(ins, ("f", s // 2))
                else:
                    k.e(ins)
        k.e(f"s_mov_b32 s{sSPIN}, 0")
        loads(True)
        mf, retry, ok = k.label("s3m"), k.label("s3r"), k.label("s3k")
        k.e(f"{mf}:")
        for s in range(8):
            f = FF + 4 * s
            if s % 2 == 0:
                k.wait(vm=("f", s // 2))
                if s == 0:
                    k.e(f"v_max_u32 v{vT0}, v{f + 3}, v{f + 7}")
                else:
                    k.e(f"v_max3_u32 v{vT0}, v{vT0}, v{f + 3}, v{f + 7}")
            self.mfma(ACC, 224 + 4 * s, f, s == 0)
        k.e(f"v_cmp_eq_u32 vcc, -1, v{vT0}\ns_cbranch_vccnz {retry}\n{ok}:")
        self.ool.append((retry, ok, mf, loads))
        self.stamp("s3mfma")
        k.e(f"s_add_u32 s11, s11, {FE_OFF - F_OFF}")
        self.reduce32(ACC, 4096, False, vST32, 11, "fest")
        self.stamp("fest")
        k.e("s_barrier")

    def load_cb(self):
        k = self.k
        RAW, CB = 160, 32
        top, done = k.label("gp"), k.label("gpd")
        k.e(f"""
        v_and_b32 v{vT0}, 7, v{vNL}
        v_lshlrev_b32 v{vT0}, 4, v{vT0}
        v_lshl_add_u32 v{vT1}, v{vHH}, 7, v{vT0}
        s_add_u32 s{sT0}, s{sGL}, 4096
        s_mov_b32 s{sSPIN}, 0
        {top}:
        """)
        for r in range(8):
            o = f" offset:{(r & 3) * 1024}" if r & 3 else ""
            k.e(f"buffer_load_dwordx4 {vr(RAW + 4 * r, 4)}, v{vT1}, {sr(SWS, 4)}, s{sGL if r < 4 else sT0} offen{o} sc1")
        k.e("s_waitcnt vmcnt(0)")
        k.vm = []
        k.e(f"v_max3_u32 v{vT0}, v{RAW + 3}, v{RAW + 7}, v{RAW + 11}")
        k.e(f"v_max3_u32 v{vT0}, v{vT0}, v{RAW + 15}, v{RAW + 19}")
        k.e(f"v_max3_u32 v{vT0}, v{vT0}, v{RAW + 23}, v{RAW + 27}")
        k.e(f"v_max_u32 v{vT0}, v{vT0}, v{RAW + 31}")
        k.e(f"v_cmp_eq_u32 vcc, -1, v{vT0}\ns_cbranch_vccz {done}")
        self.spin_check(done)
        k.e(f"s_branch {top}\n{done}:")
        k.e(f"s_mov_b32 s{sT0}, {f32(CT)}")
        for r in range(8):
            for i in range(4):
                src = RAW + 4 * r + i
                k.e(f"v_lshlrev_b32 v{CB + 8 * r + 2 * i}, 16, v{src}")
                k.e(f"v_and_b32 v{CB + 8 * r + 2 * i + 1}, 0xffff0000, v{src}")
        for i in range(64):
            k.e(f"v_mul_f32 v{CB + i}, s{sT0}, v{CB + i}")

    def stage4(self):
        k = self.k
        CB, CA, ACC, BF, Z = 32, 96, 160, 192, 224
        top, done = k.label("fp"), k.label("fpd")
        k.e(f"""
        v_lshrrev_b32 v{vT0}, 2, v{vL}
        v_and_b32 v{vT1}, 3, v{vL}
        v_mul_u32_u24 v{vT2}, {KSTR}, v{vT0}
        v_lshl_add_u32 v{vT2}, v{vT1}, 4, v{vT2}
        v_lshlrev_b32 v12, 7, v{vT0}
        v_lshl_add_u32 v12, v{vT1}, 4, v12
        s_lshl_b32 s{sT0}, s{sW}, 11
        s_add_u32 s{sT0}, s{sT0}, {CA_BASE}
        v_add_u32 v12, s{sT0}, v12
        s_mov_b32 s{sSPIN}, 0
        {top}:
        buffer_load_dwordx4 {vr(Z, 4)}, v{vT2}, {sr(SWS, 4)}, s{sFE} offen sc1
        s_waitcnt vmcnt(0)
        v_cmp_eq_u32 vcc, -1, v{Z + 3}
        s_cbranch_vccz {done}
        """)
        self.spin_check(done)
        k.e(f"s_branch {top}\n{done}:")
        k.vm = []
        self.stamp("fepoll")
        k.e(f"s_mov_b32 s{sT0}, {f32(CT)}")
        for i in range(4):
            k.e(f"v_lshlrev_b32 v{Z + 4 + 2 * i}, 16, v{Z + i}")
            k.e(f"v_and_b32 v{Z + 5 + 2 * i}, 0xffff0000, v{Z + i}")
        for i in range(8):
            k.e(f"v_mul_f32 v{Z + 4 + i}, s{sT0}, v{Z + 4 + i}")
        k.ds(f"ds_write_b128 v12, {vr(Z + 4, 4)}")
        k.ds(f"ds_write_b128 v12, {vr(Z + 8, 4)} offset:64")
        k.e(f"""
        s_lshl_b32 s{sT0}, s{sW}, 8
        s_add_u32 s{sT0}, s{sT0}, {CA_BASE}
        v_lshrrev_b32 v{vT0}, 3, v{vNL}
        v_lshlrev_b32 v{vT0}, 4, v{vT0}
        v_lshl_add_u32 v{vT0}, v{vHH}, 7, v{vT0}
        v_add_u32 v13, s{sT0}, v{vT0}
        v_lshlrev_b32 v{vT0}, 4, v{vL}
        v_add_u32 v15, {T_BASE}, v{vT0}
        s_lshl_b32 s{sT0}, s{sW}, 10
        v_add_u32 v14, s{sT0}, v15
        """)
        k.wait(lg="all")
        k.e("s_barrier")
        for r in range(8):
            for j in range(2):
                k.ds(f"ds_read_b128 {vr(CA + 8 * r + 4 * j, 4)}, v13 offset:{r * 1024 + j * 64}", ("ca", r))

        def make_j(r):
            k.wait(lg=("ca", r))
            for i in range(8):
                k.e(f"v_add_f32 v{Z + i}, v{CA + 8 * r + i}, v{CB + 8 * r + i}")
            for i in range(8):
                k.e(f"v_exp_f32 v{Z + i}, v{Z + i}")
            for i in range(8):
                k.e(f"v_add_f32 v{Z + i}, 1.0, v{Z + i}")
            for i in range(8):
                k.e(f"v_rcp_f32 v{Z + i}, v{Z + i}")
            for i in range(8):
                k.e(f"v_fma_f32 v{Z + i}, v{Z + i}, -2.0, 1.0")
            for i in range(4):
                k.e(f"v_cvt_pk_bf16_f32 v{Z + 8 + i}, v{Z + 2 * i}, v{Z + 2 * i + 1}")
            k.ds(f"ds_write_b128 v14, {vr(Z + 8, 4)} offset:{r * 4096}", ("jw", r))
        k.wait(lg=("ca", 7))
        make_j(0)
        for r in range(8):
            k.wait(lg=("jw", r))
            k.e("s_barrier")
            b = BF + 16 * (r & 1)
            for jj in range(4):
                k.ds(f"ds_read_b128 {vr(b + 4 * jj, 4)}, v15 offset:{(4 * r + jj) * 1024}", ("jr", r))
            if r < 7:
                make_j(r + 1)
            k.wait(lg=("jr", r))
            for jj in range(4):
                s = 4 * r + jj
                for ct in range(2):
                    self.mfma(ACC + 16 * ct, 8 * s + 4 * ct, b + 4 * jj, r == 0 and jj == 0)
        self.stamp("s4mfma")
        k.e(f"""
        s_lshl_b32 s{sT0}, s{sMT}, 8
        s_lshl_b32 s{sT1}, s{sSUB}, 5
        s_add_u32 s{sT0}, s{sT0}, s{sT1}
        s_lshl_b32 s{sT0}, s{sT0}, 10
        s_lshl_b32 s{sT1}, s{sHALF}, 9
        s_add_u32 s{sT0}, s{sT0}, s{sT1}
        s_lshl_b32 s{sT1}, s{sW}, 7
        s_add_u32 s{sT0}, s{sT0}, s{sT1}
        v_lshlrev_b32 v{vT0}, 10, v{vNL}
        v_lshl_add_u32 v{vT0}, v{vHH}, 4, v{vT0}
        v_add_u32 v{vT0}, s{sT0}, v{vT0}
        """)
        k.nop(4)
        for ct in range(2):
            for a in range(2):
                src = ACC + 16 * ct + 8 * a
                dst = BF + 8 * ct + 4 * a
                for i in range(4):
                    k.e(f"v_cvt_pk_bf16_f32 v{dst + i}, v{src + 2 * i}, v{src + 2 * i + 1}")
                o = ct * 64 + a * 32
                os_ = f" offset:{o}" if o else ""
                k.vmem(f"buffer_store_dwordx4 {vr(dst, 4)}, v{vT0}, {sr(SOUT, 4)}, 0 offen{os_}", "out")

    def epilogue(self):
        k = self.k
        if self.stamps:
            self.stamp("end")
            n = self.nst
            k.e("s_waitcnt vmcnt(0) lgkmcnt(0)")
            for i in range(n):
                k.e(f"v_writelane_b32 v{vT1}, s{STAMP0 + 2 * i}, {i}")
            k.e(f"""
            s_lshl_b32 s{sT0}, s2, 2
            s_add_u32 s{sT0}, s{sT0}, s{sW}
            s_lshl_b32 s{sT0}, s{sT0}, 6
            s_add_u32 s{sT0}, s{sT0}, {STAMP_OFF}
            s_mov_b32 s{SWS + 2}, {STAMP_OFF + (1 << 20)}
            v_lshlrev_b32 v{vT0}, 2, v{vL}
            s_mov_b64 exec, 0xffff
            buffer_store_dword v{vT1}, v{vT0}, {sr(SWS, 4)}, s{sT0} offen
            """)
        k.e("s_waitcnt vmcnt(0)\nL_end:\ns_endpgm")
        for retry, ok, mf, loads in self.ool:
            k.e(f"{retry}:")
            self.spin_check(ok)
            loads(False)
            k.e(f"s_waitcnt vmcnt(0)\ns_branch {mf}")
        k.e("L_last:\ns_endpgm")

    def build(self):
        k = self.k
        self.ool = []
        stop = self.stop_after
        self.prologue()
        self.stage1()
        if stop != "s1":
            self.setup2()
            self.tr_w2_wf()
            self.stage_ge()
            k.wait(lg="all")
            if stop != "ge":
                self.handshake_wait()
                self.stage2()
                if stop != "s2":
                    k.wait(lg="all")
                    self.tr_wo(0, 0)
                    for op in self.issue_wo(1, 16384):
                        op()
                    self.stage3()
                    if stop != "s3":
                        self.tr_wo(1, 16384)
                        k.wait(lg="all")
                        for op in self.issue_wo(2, 0) + self.issue_wo(3, 16384):
                            op()
                        self.load_cb()
                        self.tr_wo(2, 0)
                        self.tr_wo(3, 16384)
                        k.wait(lg="all")
                        self.stage4()
        self.epilogue()
        return self.text()

    def text(self):
        head = f"""; RNN-T joint network: two stride-2 conv stems, w_f / w_g projections, tanh, w_o.
; @launch grid=(256,1,1) block=(256,1,1) lds={LDS_BYTES}
.amdgcn_target "amdgcn-amd-amdhsa--gfx950"
.text
.globl {NAME}
.p2align 8
.type {NAME},@function
{NAME}:
"""
        tail = f"""
.section .rodata,"a"
.p2align 6
.amdhsa_kernel {NAME}
  .amdhsa_next_free_vgpr 512
  .amdhsa_next_free_sgpr 102
  .amdhsa_accum_offset 256
  .amdhsa_group_segment_fixed_size 0
  .amdhsa_kernarg_size 80
  .amdhsa_user_sgpr_count 2
  .amdhsa_user_sgpr_kernarg_segment_ptr 1
  .amdhsa_system_sgpr_workgroup_id_x 1
.end_amdhsa_kernel
"""
        return head + self.k.text() + tail


if __name__ == "__main__":
    out = sys.argv[1] if len(sys.argv) > 1 else "cdna_kernels/" + NAME.replace("_kernel", "") + ".s"
    g = Gen(stamps=False)
    open(out, "w").write(g.build())
    print("wrote", out)
```

```python
import math
import sys
from kb import K, vr, ar, sr, f32

NAME = "standalone__seq2seq_rnn_t_joint__speech_kernel"

H_OFF = 65536
F_OFF = H_OFF + (1 << 20)
FE_OFF = F_OFF + (1 << 19)
GE_OFF = FE_OFF + (1 << 19)
WS_REC = 4 << 20
STAMP_OFF = 8 << 20
OOB = 0x80000000
SPIN_MAX = 4096

RW = 40960
RB = 17408
LDS_BYTES = 163840
T4 = [RB + 4096 * t for t in range(5)]
XS = [4096 * t for t in range(4)]

SX, SW1, SW2, SG, SWF, SWG, SWO, SOUT, SDBG, SWS = 24, 28, 32, 36, 40, 44, 48, 52, 56, 60
sW, sM, sN, sB, sMT, sRW, sML, sJN = 64, 65, 66, 67, 68, 69, 70, 71
sKI, sKC = 72, 3
sT0, sT1, sT2, sT3 = 73, 74, 75, 76
sSPIN = 77
STAMP0 = 78
sH, sFL, sFS, sFE, sGL, sGS, sHS, sA, sB2 = 4, 5, 6, 7, 8, 9, 10, 11, 12
sR4 = [13, 14, 15, 16]
sNH = 17

vL, vT0, vT1, vT2, vT3, vLIN, vRD = 1, 2, 3, 4, 5, 6, 7
vXW = 8
vXA, vXZ, vQ0 = 12, 13, 14
vWA0, vWA1, vTR0, vTR1 = 15, 16, 17, 18
vXB = 19
vBA = 22
vW2 = 24
vT16 = 28
vONES = 32
vHS = 36
AF, BFR, ACC1, R1 = 40, 56, 64, 96
vLIN16, vH0, vSMP, vST, vRD2, vKC3, vSV, vFSM = 8, 9, 10, 11, 12, 13, 14, 19
HB, ACC2, R2 = 128, 176, 192

C1 = 2 * math.log2(math.e) * math.sqrt(2 / math.pi)
C3 = C1 * 0.044715
CT = 2 * math.log2(math.e)

DEFAULT_STAMPS = ("start", "iss", "x0", "s1mfma", "hst", "w2done", "hpoll", "s2mfma", "fst", "s3mfma", "fest", "end")
S1_STAMPS = ("start", "karg", "iss0", "iss", "x0", "u5", "u11", "u17", "s1mfma", "hst", "w2done", "end")
S4_STAMPS = ("start", "hst", "s2mfma", "fst", "fpoll", "s3mfma", "fest", "cb", "fepoll", "s4r3", "s4mfma", "end")


class Gen2:
    def __init__(self, stop_after=None, stamps=True, opts=None):
        self.k = K()
        self.stop_after = stop_after
        self.stamps = stamps
        self.nst = 0
        self.names = []
        self.o = dict(prefetch=False, rot=True, hplain=True, fplain=False)
        self.o.update(opts or {})
        self.rot = 0
        self.ool = []

    def stamp(self, name):
        if not self.stamps or name not in self.o.get("stamps", DEFAULT_STAMPS):
            return
        assert self.nst < 12
        r = STAMP0 + 2 * self.nst
        self.k.e(f"s_memrealtime s[{r}:{r + 1}]")
        self.names.append(name)
        self.nst += 1

    def tmp(self):
        self.rot = (self.rot + 1) % 4
        return sT0 + self.rot

    def srd(self, d, ptr, off, nrec):
        k = self.k
        if off is None:
            k.e(f"s_mov_b32 s{d}, s{ptr}\ns_mov_b32 s{d + 1}, s{ptr + 1}")
        else:
            k.e(f"s_add_u32 s{d}, s{ptr}, s{off}\ns_addc_u32 s{d + 1}, s{ptr + 1}, 0")
        k.e(f"s_mov_b32 s{d + 2}, {nrec}\ns_mov_b32 s{d + 3}, 0x20000")

    def dma2k(self, srd, lds_off, soff, tag):
        k = self.k
        k.e(f"s_add_u32 m0, s{sRW}, {lds_off}")
        k.e("s_nop 0")
        k.vmem(f"buffer_load_dwordx4 v{vWA0}, {sr(srd, 4)}, {soff} offen lds", tag)
        k.vmem(f"buffer_load_dwordx4 v{vWA1}, {sr(srd, 4)}, {soff} offen offset:1024 lds", tag)

    def dma4k_ops(self, srd, lds_off, soff_fn, tag):
        k = self.k
        st = {}

        def op(q):
            if q == 0:
                st["s"] = soff_fn()
                k.e(f"s_add_u32 m0, s{sRW}, {lds_off}")
                k.e("s_nop 0")
            o = f" offset:{q * 1024}" if q else ""
            k.vmem(f"buffer_load_dwordx4 v{vW2 + q}, {sr(srd, 4)}, {st['s']} offen{o} lds", tag)
        return [lambda q=q: op(q) for q in range(4)]

    def dma4k(self, srd, lds_off, soff_fn, tag):
        for op in self.dma4k_ops(srd, lds_off, soff_fn, tag):
            op()

    def tr32(self, lds_off, dst, kind, tag):
        k = self.k
        for ct, a in enumerate((vTR0, vTR1)):
            k.ds(f"ds_read_b64_tr_b16 {vr(dst + 4 * ct, 2, kind)}, v{a} offset:{lds_off}", tag)
            k.ds(f"ds_read_b64_tr_b16 {vr(dst + 4 * ct + 2, 2, kind)}, v{a} offset:{lds_off + 512}", tag)

    def tr16(self, lds_off, dst, kind, tag):
        k = self.k
        for ct in range(4):
            k.ds(f"ds_read_b64_tr_b16 {vr(dst + 4 * ct, 2, kind)}, v{vT16 + ct} offset:{lds_off}", tag)
            k.ds(f"ds_read_b64_tr_b16 {vr(dst + 4 * ct + 2, 2, kind)}, v{vT16 + ct} offset:{lds_off + 512}", tag)

    def mfma32(self, d, a, b, first, ak="v"):
        c = "0" if first else vr(d, 16)
        self.k.e(f"v_mfma_f32_32x32x16_bf16 {vr(d, 16)}, {vr(a, 4, ak)}, {vr(b, 4)}, {c}")

    def mfma16(self, d, a, b, first, ak="a"):
        c = "0" if first else vr(d, 4)
        self.k.e(f"v_mfma_f32_16x16x32_bf16 {vr(d, 4)}, {vr(a, 4, ak)}, {vr(b, 4)}, {c}")

    def gelu(self, xs, tmp, kc3):
        k = self.k
        ts = [tmp + i for i in range(len(xs))]
        for x, t in zip(xs, ts):
            k.e(f"v_mul_f32 v{t}, v{x}, v{x}")
        for x, t in zip(xs, ts):
            k.e(f"v_fmaak_f32 v{t}, v{t}, v{kc3}, {f32(-C1)}")
        for x, t in zip(xs, ts):
            k.e(f"v_mul_f32 v{t}, v{t}, v{x}")
        for x, t in zip(xs, ts):
            k.e(f"v_exp_f32 v{t}, v{t}")
        for x, t in zip(xs, ts):
            k.e(f"v_add_f32 v{t}, 1.0, v{t}")
        for x, t in zip(xs, ts):
            k.e(f"v_rcp_f32 v{t}, v{t}")
        for x, t in zip(xs, ts):
            k.e(f"v_mul_f32 v{x}, v{x}, v{t}")

    def spin_check(self, done_label):
        self.k.e(f"s_add_u32 s{sSPIN}, s{sSPIN}, 1\ns_cmp_ge_u32 s{sSPIN}, {SPIN_MAX}\ns_cbranch_scc1 {done_label}")

    def prologue(self):
        k = self.k
        rot = self.o["rot"]
        k.e("""
        s_cmp_ge_u32 s2, 256
        s_cbranch_scc1 L_end
        s_load_dwordx16 s[4:19], s[0:1], 0
        s_load_dwordx4 s[20:23], s[0:1], 64
        """)
        self.stamp("start")
        k.e(f"""
        v_lshrrev_b32 v{vT0}, 6, v0
        v_and_b32 v{vL}, 63, v0
        v_readfirstlane_b32 s{sW}, v{vT0}
        s_and_b32 s{sT0}, s2, 7
        s_lshr_b32 s{sT1}, s2, 3
        s_and_b32 s{sJN}, s{sT1}, 3
        s_lshr_b32 s{sML}, s{sT1}, 2
        s_and_b32 s{sT2}, s{sT0}, 1
        s_lshl_b32 s{sN}, s{sT2}, 2
        s_add_u32 s{sN}, s{sN}, s{sJN}
        s_lshr_b32 s{sT0}, s{sT0}, 1
        s_lshl_b32 s{sM}, s{sT0}, 3
        s_add_u32 s{sM}, s{sM}, s{sML}
        s_lshr_b32 s{sB}, s{sM}, 4
        s_and_b32 s{sMT}, s{sM}, 15
        s_mul_i32 s{sRW}, s{sW}, {RW}
        v_lshrrev_b32 v{vT0}, 4, v{vL}
        v_lshrrev_b32 v{vT1}, 5, v{vL}
        v_and_b32 v{vT2}, 15, v{vL}
        v_xor_b32 v{vT2}, v{vT2}, v{vT1}
        v_lshlrev_b32 v{vT2}, 4, v{vT2}
        v_lshl_add_u32 v{vXW}, v{vT0}, 10, v{vT2}
        """)
        for e in range(1, 4):
            k.e(f"v_xor_b32 v{vXW + e}, {e * 32}, v{vXW}")
            k.e(f"v_add_u32 v{vXW + e}, {e * 3072}, v{vXW + e}")
        k.e(f"""
        v_cmp_gt_u32 vcc, 16, v{vL}
        v_bfrev_b32 v{vT0}, 1
        v_lshrrev_b32 v{vT1}, 3, v{vL}
        v_cndmask_b32 v{vQ0}, 0, v{vT0}, vcc
        v_bfe_u32 v{vT2}, v{vT1}, 1, 1
        v_lshlrev_b32 v{vT2}, 2, v{vT2}
        v_and_b32 v{vT3}, 7, v{vL}
        v_xor_b32 v{vT2}, v{vT2}, v{vT3}
        v_lshlrev_b32 v{vT2}, 4, v{vT2}
        v_lshl_add_u32 v{vWA0}, v{vT1}, 10, v{vT2}
        v_add_u32 v{vWA1}, 7168, v{vWA0}
        s_lshl_b32 s{sT0}, s{sW}, 17
        s_lshl_b32 s{sT1}, s{sN}, 7
        s_add_u32 s3, s{sT0}, s{sT1}
        s_mul_i32 s{sT0}, s{sB}, 1000
        s_lshl_b32 s{sT1}, s{sMT}, 6
        s_add_u32 s{sT0}, s{sT0}, s{sT1}
        s_sub_u32 s{sT0}, s{sT0}, 1
        s_lshl_b32 s{sT0}, s{sT0}, 10
        s_lshl_b32 s{sT2}, s{sW}, 8
        s_add_u32 s{sT0}, s{sT0}, s{sT2}
        s_ashr_i32 s{sT3}, s{sT0}, 31
        s_sub_u32 s{sT1}, 1001, s{sT1}
        s_lshl_b32 s{sT1}, s{sT1}, 10
        s_sub_u32 s{SX + 2}, s{sT1}, s{sT2}
        s_mov_b32 s{SX + 3}, 0x20000
        s_sub_u32 s{SW1 + 2}, 1572864, s3
        s_mov_b32 s{SW1 + 3}, 0x20000
        """)
        if rot:
            k.e(f"s_lshl_b32 s{sKI}, s{sML}, 14")
        else:
            k.e(f"s_mov_b32 s{sKI}, 0")
        k.e("s_waitcnt lgkmcnt(0)")
        self.stamp("karg")
        k.e(f"""
        s_add_u32 s{SX}, s4, s{sT0}
        s_addc_u32 s{SX + 1}, s5, s{sT3}
        s_add_u32 s{SW1}, s6, s3
        s_addc_u32 s{SW1 + 1}, s7, 0
        """)

    def x_quarter(self, qq):
        k = self.k
        a, z = sT0, sT1
        if self.o["rot"]:
            k.e(f"s_add_u32 s{a}, s{sJN}, {qq}\ns_and_b32 s{a}, s{a}, 3")
        else:
            k.e(f"s_mov_b32 s{a}, {qq}")
        k.e(f"""
        s_lshl_b32 s{sT2}, s{a}, 12
        s_add_u32 m0, s{sT2}, s{sRW}
        s_or_b32 s{z}, s{a}, s{sMT}
        s_cmp_eq_u32 s{z}, 0
        s_cselect_b32 s{z}, -1, 0
        s_and_b32 s{sT3}, s{a}, 1
        s_lshl_b32 s{sT3}, s{sT3}, 7
        s_lshl_b32 s{a}, s{a}, 14
        s_or_b32 s{a}, s{a}, s{sT3}
        """)
        for e in range(4):
            t = vXA if e % 2 == 0 else vXZ
            k.e(f"v_xor_b32 v{t}, s{a}, v{vXW + e}")
            if e == 0:
                k.e(f"v_and_or_b32 v{t}, v{vQ0}, s{z}, v{t}")
            o = f" offset:{e * 1024}" if e else ""
            k.vmem(f"buffer_load_dwordx4 v{t}, {sr(SX, 4)}, 0 offen{o} lds", "x")

    def x_tail(self):
        k = self.k
        k.e(f"""
        v_lshlrev_b32 v{vXA}, 4, v{vL}
        v_add_u32 v{vXA}, 65536, v{vXA}
        s_add_u32 m0, s{sRW}, 16384
        s_mov_b64 exec, 0xffff
        """)
        k.vmem(f"buffer_load_dwordx4 v{vXA}, {sr(SX, 4)}, 0 offen lds", "x")
        k.e("s_mov_b64 exec, -1")

    def w1_issue(self, u):
        k = self.k
        i = u % 3
        if i == 0 and u:
            k.e(f"s_add_u32 s{sKI}, s{sKI}, 16384\ns_and_b32 s{sKI}, s{sKI}, 0x1c000")
        if i:
            t = self.tmp()
            k.e(f"s_add_u32 s{t}, s{sKI}, {i * 524288}")
            so = f"s{t}"
        else:
            so = f"s{sKI}"
        self.dma2k(SW1, RB + 2048 * (u % 10), so, ("w1", u))

    def rot4(self):
        k = self.k
        for j in range(4):
            if self.o["rot"]:
                k.e(f"s_add_u32 s{sR4[j]}, s{sML}, {j}\ns_and_b32 s{sR4[j]}, s{sR4[j]}, 3\ns_lshl_b32 s{sR4[j]}, s{sR4[j]}, 10")
            else:
                k.e(f"s_mov_b32 s{sR4[j]}, {j * 1024}")

    def w32_soff(self, j, tap):
        def fn():
            t = self.tmp()
            self.k.e(f"s_lshl_b32 s{t}, s{sR4[j]}, 5")
            if tap:
                self.k.e(f"s_add_u32 s{t}, s{t}, {tap * 524288}")
            return f"s{t}"
        return fn

    def w2_slot(self, v):
        return [T4[2], T4[3], T4[4], T4[0], T4[1], XS[0], XS[1], XS[2], XS[3], T4[2], T4[3], T4[4]][v]

    def w2_ops(self, v):
        return self.dma4k_ops(SW2, self.w2_slot(v), self.w32_soff(v // 3, v % 3), ("w2", v))

    def clears(self):
        k = self.k
        self.srd(SWS, 22, None, WS_REC)
        k.e(f"""
        v_mov_b32 v{vONES}, -1
        v_mov_b32 v{vONES + 1}, -1
        v_mov_b32 v{vONES + 2}, -1
        v_mov_b32 v{vONES + 3}, -1
        v_lshlrev_b32 v{vT0}, 4, v{vL}
        s_lshl_b32 s{sT0}, s{sM}, 14
        s_lshl_b32 s{sT1}, s{sN}, 11
        s_add_u32 s{sT0}, s{sT0}, s{sT1}
        s_lshl_b32 s{sT2}, s{sW}, 9
        s_add_u32 s{sT2}, s{sT2}, s{sT0}
        s_add_u32 s{sT2}, s{sT2}, {F_OFF}
        s_add_u32 s{sT3}, s{sT2}, {FE_OFF - F_OFF}
        s_mov_b32 exec_hi, 0
        """)
        k.vmem(f"buffer_store_dwordx4 {vr(vONES, 4)}, v{vT0}, {sr(SWS, 4)}, s{sT2} offen sc1", "clr")
        k.vmem(f"buffer_store_dwordx4 {vr(vONES, 4)}, v{vT0}, {sr(SWS, 4)}, s{sT3} offen sc1", "clr")
        lab = k.label("c0")
        k.e(f"""
        s_mov_b64 exec, -1
        s_cmp_lg_u32 s{sW}, 0
        s_cbranch_scc1 {lab}
        s_lshl_b32 s{sT0}, s{sM}, 15
        s_lshl_b32 s{sT1}, s{sN}, 11
        s_add_u32 s{sT0}, s{sT0}, s{sT1}
        s_add_u32 s{sT0}, s{sT0}, {H_OFF}
        s_add_u32 s{sT1}, s{sT0}, 16384
        buffer_store_dwordx4 {vr(vONES, 4)}, v{vT0}, {sr(SWS, 4)}, s{sT0} offen sc1
        buffer_store_dwordx4 {vr(vONES, 4)}, v{vT0}, {sr(SWS, 4)}, s{sT0} offen offset:1024 sc1
        buffer_store_dwordx4 {vr(vONES, 4)}, v{vT0}, {sr(SWS, 4)}, s{sT1} offen sc1
        buffer_store_dwordx4 {vr(vONES, 4)}, v{vT0}, {sr(SWS, 4)}, s{sT1} offen offset:1024 sc1
        s_cmp_lg_u32 s{sMT}, 15
        s_cbranch_scc1 {lab}
        s_lshl_b32 s{sT0}, s{sB}, 13
        s_lshl_b32 s{sT1}, s{sN}, 10
        s_add_u32 s{sT0}, s{sT0}, s{sT1}
        s_add_u32 s{sT0}, s{sT0}, {GE_OFF}
        buffer_store_dwordx4 {vr(vONES, 4)}, v{vT0}, {sr(SWS, 4)}, s{sT0} offen sc1
        {lab}:
        """)

    def prologue2(self):
        k = self.k
        k.e(f"s_sub_u32 s{sT1}, 1572864, s3")
        self.srd(SW2, 8, 3, f"s{sT1}")
        k.e(f"s_sub_u32 s{sT1}, 524288, s3")
        self.srd(SWF, 12, 3, f"s{sT1}")
        self.srd(SWG, 14, 3, f"s{sT1}")
        k.e(f"""
        s_lshl_b32 s{sT0}, s{sB}, 13
        s_lshl_b32 s{sT1}, s{sW}, 8
        s_add_u32 s{sT0}, s{sT0}, s{sT1}
        s_sub_u32 s{sT1}, 8192, s{sT1}
        """)
        self.srd(SG, 10, sT0, f"s{sT1}")
        k.e(f"""
        s_lshr_b32 s{sT2}, s{sN}, 2
        s_lshl_b32 s{sT0}, s{sT2}, 9
        s_lshl_b32 s{sT1}, s{sW}, 7
        s_add_u32 s{sT0}, s{sT0}, s{sT1}
        s_sub_u32 s{sT1}, 524288, s{sT0}
        """)
        self.srd(SWO, 16, sT0, f"s{sT1}")
        k.e(f"s_mul_i32 s{sT0}, s{sB}, 2048000")
        self.srd(SOUT, 18, sT0, 2048000)
        self.srd(SDBG, 20, None, 256)
        k.e(f"s_lshr_b32 s{sNH}, s{sN}, 2")
        self.rot4()
        k.e(f"""
        v_lshlrev_b32 v{vT0}, 4, v{vL}
        v_add_u32 v{vLIN}, s{sRW}, v{vT0}
        v_bfe_u32 v{vT0}, v{vL}, 2, 2
        v_lshrrev_b32 v{vT1}, 5, v{vL}
        v_lshl_add_u32 v{vT1}, v{vT1}, 3, v{vT0}
        v_lshlrev_b32 v{vT1}, 7, v{vT1}
        v_lshrrev_b32 v{vT2}, 1, v{vT0}
        v_lshl_add_u32 v{vT1}, v{vT2}, 6, v{vT1}
        v_bfe_u32 v{vT2}, v{vL}, 4, 1
        v_lshl_add_u32 v{vT1}, v{vT2}, 5, v{vT1}
        v_and_b32 v{vT2}, 3, v{vL}
        v_lshl_add_u32 v{vT1}, v{vT2}, 3, v{vT1}
        v_add_u32 v{vTR0}, s{sRW}, v{vT1}
        v_xor_b32 v{vT1}, 64, v{vT1}
        v_add_u32 v{vTR1}, s{sRW}, v{vT1}
        """)
        k.e(f"""
        v_and_b32 v{vT0}, 31, v{vL}
        v_lshrrev_b32 v{vT1}, 5, v{vL}
        v_and_b32 v{vT2}, 15, v{vT0}
        v_xor_b32 v{vT2}, v{vT2}, v{vT1}
        v_lshlrev_b32 v{vT2}, 4, v{vT2}
        v_lshl_add_u32 v{vT2}, v{vT0}, 9, v{vT2}
        v_add_u32 v{vXB}, s{sRW}, v{vT2}
        v_add_u32 v{vXB + 1}, 256, v{vXB}
        v_add_u32 v{vT2}, 1, v{vT0}
        v_and_b32 v{vT2}, 15, v{vT2}
        v_xor_b32 v{vT2}, v{vT2}, v{vT1}
        v_lshlrev_b32 v{vT2}, 4, v{vT2}
        v_lshl_add_u32 v{vT2}, v{vT0}, 9, v{vT2}
        v_add_u32 v{vT2}, 512, v{vT2}
        v_add_u32 v{vXB + 2}, s{sRW}, v{vT2}
        """)
        k.e(f"""
        v_lshrrev_b32 v{vT0}, 3, v{vL}
        v_bfe_u32 v{vT1}, v{vT0}, 1, 1
        v_lshlrev_b32 v{vT1}, 1, v{vT1}
        v_and_b32 v{vT2}, 7, v{vL}
        v_xor_b32 v{vT1}, v{vT1}, v{vT2}
        v_lshlrev_b32 v{vT1}, 4, v{vT1}
        v_lshl_add_u32 v{vW2}, v{vT0}, 10, v{vT1}
        v_xor_b32 v{vT1}, 64, v{vW2}
        v_add_u32 v{vW2 + 1}, 7168, v{vT1}
        v_add_u32 v{vW2 + 2}, {2 * 7168}, v{vW2}
        v_add_u32 v{vW2 + 3}, {3 * 7168}, v{vT1}
        v_lshrrev_b32 v{vT0}, 4, v{vL}
        v_bfe_u32 v{vT1}, v{vL}, 2, 2
        v_lshl_add_u32 v{vT2}, v{vT0}, 3, v{vT1}
        v_lshlrev_b32 v{vT2}, 7, v{vT2}
        v_lshrrev_b32 v{vT1}, 1, v{vT1}
        v_and_b32 v{vT0}, 1, v{vT0}
        v_lshl_add_u32 v{vT1}, v{vT0}, 1, v{vT1}
        v_lshl_add_u32 v{vT2}, v{vT1}, 5, v{vT2}
        v_and_b32 v{vT1}, 3, v{vL}
        v_lshl_add_u32 v{vT2}, v{vT1}, 3, v{vT2}
        v_add_u32 v{vT16}, s{sRW}, v{vT2}
        """)
        for ct in range(1, 4):
            k.e(f"v_xor_b32 v{vT0}, {ct * 32}, v{vT2}\nv_add_u32 v{vT16 + ct}, s{sRW}, v{vT0}")
        k.e(f"""
        v_and_b32 v{vT0}, 15, v{vL}
        v_bfe_u32 v{vT1}, v{vL}, 4, 1
        v_lshl_add_u32 v{vT0}, v{vT0}, 1, v{vT1}
        v_lshlrev_b32 v{vT0}, 4, v{vT0}
        v_lshrrev_b32 v{vT1}, 5, v{vL}
        v_lshl_add_u32 v{vT0}, v{vT1}, 10, v{vT0}
        s_lshl_b32 s{sT0}, s{sW}, 11
        v_add_u32 v{vRD}, s{sT0}, v{vT0}
        """)
        if self.o["rot"]:
            k.e(f"s_lshl_b32 s{sKC}, s{sML}, 5")
        else:
            k.e(f"s_mov_b32 s{sKC}, 0")

    def stage1(self):
        k = self.k
        self.x_quarter(0)
        for u in range(3):
            self.w1_issue(u)
        self.clears()
        for qq in range(1, 4):
            self.x_quarter(qq)
        self.x_tail()
        self.stamp("iss0")
        self.prologue2()
        for u in range(3, 10):
            self.w1_issue(u)
        self.stamp("iss")
        k.wait(vm="x")
        self.stamp("x0")
        lab = k.label("hs")
        k.e(f"""
        s_cmp_lg_u32 s{sW}, 0
        s_cbranch_scc1 {lab}
        s_and_b32 s{sT0}, s2, 3
        s_lshl_b32 s{sT0}, s{sT0}, 6
        v_mov_b32 v{vT0}, s{sT0}
        v_mov_b32 v{vT1}, 1
        s_mov_b64 exec, 1
        buffer_atomic_add v{vT1}, v{vT0}, {sr(SDBG, 4)}, 0 offen sc1
        s_mov_b64 exec, -1
        {lab}:
        """)

        def mm(u):
            a, b = AF + 8 * (u & 1), BFR + 4 * (u & 1)
            self.mfma32(ACC1, a, b, u == 0)
            self.mfma32(ACC1 + 16, a + 4, b, u == 0)

        def refill(u):
            if u + 10 < 24:
                self.w1_issue(u + 10)
            elif u >= 15 and u % 2 == 1:
                for op in self.w2_ops((u - 15) // 2):
                    op()
            if u == 17:
                k.e(f"v_and_b32 v{vT0}, 3, v{vL}\nv_lshlrev_b32 v{vT0}, 6, v{vT0}")
                k.vmem(f"buffer_load_dword v{vHS}, v{vT0}, {sr(SDBG, 4)}, 0 offen sc1", "hs")

        for u in range(24):
            i = u % 3
            if i == 0 and u:
                k.e(f"s_add_u32 s{sKC}, s{sKC}, 32\ns_and_b32 s{sKC}, s{sKC}, 0xe0")
            k.e(f"v_xor_b32 v{vBA + (u & 1)}, s{sKC}, v{vXB + i}")
            k.wait(vm=("w1", u))
            self.tr32(RB + 2048 * (u % 10), AF + 8 * (u & 1), "v", ("u", u))
            k.ds(f"ds_read_b128 {vr(BFR + 4 * (u & 1), 4)}, v{vBA + (u & 1)}", ("u", u))
            if u:
                k.wait(lg=("u", u - 1))
                mm(u - 1)
                refill(u - 1)
            if u in (5, 11, 17):
                self.stamp(f"u{u}")
        k.wait(lg=("u", 23))
        mm(23)
        refill(23)
        self.stamp("s1mfma")
        k.e(f"v_mov_b32 v{vKC3}, {f32(-C3)}")
        k.e(f"v_add_u32 v{vT3}, {2 * RW}, v{vRD}")
        k.nop(10)
        for blk in range(8):
            k.ds(f"ds_write_b128 v{vLIN}, {vr(ACC1 + 4 * blk, 4)} offset:{blk * 1024}")
        k.wait(lg="all")
        k.e("s_barrier")
        for sw in range(4):
            a = vRD if sw < 2 else vT3
            for j in range(2):
                k.ds(f"ds_read_b128 {vr(R1 + 8 * sw + 4 * j, 4)}, v{a} offset:{(sw & 1) * RW + j * 512}", ("r", sw))
        k.wait(lg=("r", 1))
        for i in range(8):
            k.e(f"v_add_f32 v{R1 + i}, v{R1 + i}, v{R1 + 8 + i}")
        k.wait(lg=("r", 3))
        for i in range(8):
            k.e(f"v_add_f32 v{R1 + 16 + i}, v{R1 + 16 + i}, v{R1 + 24 + i}")
        for i in range(8):
            k.e(f"v_add_f32 v{R1 + i}, v{R1 + i}, v{R1 + 16 + i}")
        self.gelu([R1 + i for i in range(8)], R1 + 8, vKC3)
        for i in range(4):
            k.e(f"v_cvt_pk_bf16_f32 v{R1 + 16 + i}, v{R1 + 2 * i}, v{R1 + 2 * i + 1}")
        k.e(f"""
        v_and_b32 v{vT0}, 15, v{vL}
        v_lshlrev_b32 v{vT0}, 4, v{vT0}
        v_bfe_u32 v{vT1}, v{vL}, 4, 1
        v_lshl_add_u32 v{vT0}, v{vT1}, 14, v{vT0}
        v_lshrrev_b32 v{vT1}, 5, v{vL}
        v_lshl_add_u32 v{vT0}, v{vT1}, 8, v{vT0}
        s_lshl_b32 s{sT0}, s{sM}, 15
        s_lshl_b32 s{sT1}, s{sN}, 11
        s_add_u32 s{sT0}, s{sT0}, s{sT1}
        s_lshl_b32 s{sT1}, s{sW}, 9
        s_add_u32 s{sT0}, s{sT0}, s{sT1}
        s_add_u32 s{sT0}, s{sT0}, {H_OFF}
        """)
        k.vmem(f"buffer_store_dwordx4 {vr(R1 + 16, 4)}, v{vT0}, {sr(SWS, 4)}, s{sT0} offen sc1", "hst")
        self.stamp("hst")
        k.e("s_barrier")

    def setup2(self):
        k = self.k
        k.e(f"""
        v_lshlrev_b32 v{vLIN16}, 4, v{vL}
        v_and_b32 v{vT0}, 15, v{vL}
        v_lshrrev_b32 v{vT1}, 4, v{vL}
        v_add_u32 v{vH0}, {32768 - 16}, v{vLIN16}
        v_lshlrev_b32 v{vT2}, 8, v{vT1}
        v_add_u32 v{vT2}, 240, v{vT2}
        s_cmp_eq_u32 s{sMT}, 0
        s_cselect_b32 s{sT0}, {OOB}, 0
        v_add_u32 v{vT2}, s{sT0}, v{vT2}
        v_cmp_eq_u32 vcc, 0, v{vT0}
        v_and_b32 v{vT3}, 7, v{vL}
        v_lshlrev_b32 v{vT3}, 9, v{vT3}
        v_cndmask_b32 v{vH0}, v{vH0}, v{vT2}, vcc
        v_add_u32 v{vFSM}, {256 + 240 + 12}, v{vT3}
        v_add_u32 v{vSMP}, 16384, v{vFSM}
        v_add_u32 v{vT2}, 32768, v{vSMP}
        v_add_u32 v{vT3}, s{sT0}, v{vSMP}
        v_cmp_gt_u32 vcc, 8, v{vL}
        v_bfrev_b32 v{vSV}, 1
        s_nop 0
        v_cndmask_b32 v{vSMP}, v{vT3}, v{vT2}, vcc
        v_cndmask_b32 v{vFSM}, v{vSV}, v{vFSM}, vcc
        v_cmp_gt_u32 vcc, 16, v{vL}
        v_lshrrev_b32 v{vT2}, 1, v{vT1}
        v_lshlrev_b32 v{vT2}, 8, v{vT2}
        v_cndmask_b32 v{vSMP}, v{vSV}, v{vSMP}, vcc
        v_lshl_add_u32 v{vT2}, v{vT0}, 4, v{vT2}
        v_and_b32 v{vT1}, 1, v{vT1}
        v_lshl_add_u32 v{vST}, v{vT1}, 3, v{vT2}
        s_lshl_b32 s{sT0}, s{sW}, 10
        v_add_u32 v{vRD2}, s{sT0}, v{vLIN16}
        s_lshl_b32 s{sT0}, s{sM}, 15
        s_lshl_b32 s{sT1}, s{sW}, 12
        s_add_u32 s{sH}, s{sT0}, s{sT1}
        s_add_u32 s{sH}, s{sH}, {H_OFF}
        s_sub_u32 s{sHS}, s{sH}, 32768
        s_lshl_b32 s{sT0}, s{sM}, 14
        s_add_u32 s{sFL}, s{sT0}, s{sT1}
        s_add_u32 s{sFL}, s{sFL}, {F_OFF}
        s_lshl_b32 s{sT1}, s{sN}, 11
        s_add_u32 s{sFS}, s{sT0}, s{sT1}
        s_lshl_b32 s{sT1}, s{sW}, 9
        s_add_u32 s{sFS}, s{sFS}, s{sT1}
        s_add_u32 s{sFS}, s{sFS}, {F_OFF}
        """)

    def w2_finish(self):
        k = self.k
        for v in range(5, 9):
            for op in self.w2_ops(v):
                op()
        self.setup2()
        for v in range(3):
            k.wait(vm=("w2", v))
            self.tr16(self.w2_slot(v), 16 * v, "a", ("t2", v))
        for v in range(3):
            k.wait(lg=("t2", v))
            for op in self.w2_ops(9 + v):
                op()
        top, done = k.label("hsw"), k.label("hsd")
        k.e(f"""
        v_cmp_gt_u32 vcc, 64, v{vHS}
        s_cbranch_vccnz {top}
        {done}:
        """)
        self.ool.append(("hs", top, done))
        k.vmem(f"buffer_load_dword v{vHS}, v{vSMP}, {sr(SWS, 4)}, s{sHS} offen sc1", "smp")
        for v in range(3, 12):
            k.wait(vm=("w2", v))
            self.tr16(self.w2_slot(v), 16 * v, "a", ("t2", v))
        self.stamp("w2done")

    def poll_sample(self, stem, vaddr, sbase):
        k = self.k
        top, done = k.label(stem + "p"), k.label(stem + "d")
        k.wait(vm="smp")
        k.e(f"""
        v_cmp_eq_u32 vcc, -1, v{vHS}
        s_cbranch_vccnz {top}
        {done}:
        """)
        self.ool.append(("smp", top, done, vaddr, sbase))

    def reduce16(self, acc, act, vst, sst, tag, mid=None):
        k = self.k
        k.e(f"v_add_u32 v{vT3}, {2 * RW}, v{vRD2}")
        k.nop(8)
        for ct in range(4):
            k.ds(f"ds_write_b128 v{vLIN}, {vr(acc + 4 * ct, 4)} offset:{ct * 1024}")
        k.wait(lg="all")
        k.e("s_barrier")
        for sw in range(4):
            a = vRD2 if sw < 2 else vT3
            k.ds(f"ds_read_b128 {vr(R2 + 4 * sw, 4)}, v{a} offset:{(sw & 1) * RW}", ("r", sw))
        if mid:
            mid()
        k.wait(lg=("r", 1))
        for i in range(4):
            k.e(f"v_add_f32 v{R2 + i}, v{R2 + i}, v{R2 + 4 + i}")
        k.wait(lg=("r", 3))
        for i in range(4):
            k.e(f"v_add_f32 v{R2 + 8 + i}, v{R2 + 8 + i}, v{R2 + 12 + i}")
        for i in range(4):
            k.e(f"v_add_f32 v{R2 + i}, v{R2 + i}, v{R2 + 8 + i}")
        if act:
            self.gelu([R2 + i for i in range(4)], R2 + 4, vKC3)
        k.e(f"v_cvt_pk_bf16_f32 v{R2 + 8}, v{R2}, v{R2 + 1}")
        k.e(f"v_cvt_pk_bf16_f32 v{R2 + 9}, v{R2 + 2}, v{R2 + 3}")
        k.vmem(f"buffer_store_dwordx2 {vr(R2 + 8, 2)}, v{vst}, {sr(SWS, 4)}, s{sst} offen sc1", tag)

    def stage2(self):
        k = self.k
        self.poll_sample("h", vSMP, sHS)
        self.stamp("hpoll")

        def loads(counted, sc):
            for v in range(12):
                j, i = v // 3, v % 3
                t = self.tmp()
                k.e(f"s_add_u32 s{t}, s{sH}, s{sR4[j]}")
                if i == 0:
                    k.e(f"s_sub_u32 s{t}, s{t}, 16384")
                elif i == 2:
                    k.e(f"s_add_u32 s{t}, s{t}, 16384")
                ins = (f"buffer_load_dwordx4 {vr(HB + 4 * v, 4)}, v{vH0 if i == 0 else vLIN16}, "
                       f"{sr(SWS, 4)}, s{t} offen" + (" sc1" if sc else ""))
                if counted:
                    k.vmem(ins, ("h", v))
                else:
                    k.e(ins)
        k.e(f"s_mov_b32 s{sSPIN}, 0")
        loads(True, not self.o["hplain"])
        k.wait(lg="all")
        fill = []
        for j in range(4):
            fill += self.dma4k_ops(SWF, T4[j], self.w32_soff(j, 0), ("wf", j))
        for _ in range(4):
            fill.pop(0)()
        mf, retry, ok = k.label("s2m"), k.label("s2r"), k.label("s2k")
        k.e(f"{mf}:")
        first_pass_fill = fill
        for v in range(12):
            k.wait(vm=("h", v))
            f = HB + 4 * v
            if v == 0:
                k.e(f"v_mov_b32 v{vT0}, v{f + 3}")
            elif v % 2 == 0:
                k.e(f"v_max3_u32 v{vT0}, v{vT0}, v{f - 1}, v{f + 3}")
            for ct in range(4):
                self.mfma16(ACC2 + 4 * ct, 16 * v + 4 * ct, f, v == 0)
        k.e(f"v_max_u32 v{vT0}, v{vT0}, v{HB + 47}")
        k.e(f"v_cmp_eq_u32 vcc, -1, v{vT0}\ns_cbranch_vccnz {retry}\n{ok}:")
        self.ool.append(("bulk", retry, ok, mf, loads))
        self.stamp("s2mfma")
        while first_pass_fill:
            first_pass_fill.pop(0)()

    def wo_slot(self, bb, e):
        if bb % 2 == 0:
            base = [T4[4], XS[1], XS[2], XS[3]]
        else:
            base = [T4[0], T4[1], T4[2], T4[3]]
        return base[e // 2] + 2048 * (e & 1)

    def wo_issue(self, bb):
        k = self.k
        for e in range(8):
            q = 8 * bb + e
            t = self.tmp()
            if self.o["rot"]:
                k.e(f"s_lshl_b32 s{t}, s{sML}, 2\ns_add_u32 s{t}, s{t}, {q}\ns_and_b32 s{t}, s{t}, 31\ns_lshl_b32 s{t}, s{t}, 14")
            else:
                k.e(f"s_mov_b32 s{t}, {q * 16384}")
            self.dma2k(SWO, self.wo_slot(bb, e), f"s{t}", ("wo", bb))

    def wo_tr(self, bb):
        k = self.k
        k.wait(vm=("wo", bb))
        for e in range(8):
            self.tr32(self.wo_slot(bb, e), 8 * (8 * bb + e), "a", ("two", bb))

    def stage2_tail(self):
        k = self.k
        self.reduce16(ACC2, True, vST, sFS, "fst", mid=lambda: self.wo_issue(0))
        self.stamp("fst")
        k.e("s_barrier")
        k.e(f"""
        v_bfe_u32 v{vT0}, v{vL}, 2, 2
        v_lshrrev_b32 v{vT1}, 5, v{vL}
        v_lshl_add_u32 v{vT1}, v{vT1}, 3, v{vT0}
        v_lshlrev_b32 v{vT1}, 7, v{vT1}
        v_lshrrev_b32 v{vT2}, 1, v{vT0}
        v_lshl_add_u32 v{vT1}, v{vT2}, 6, v{vT1}
        v_bfe_u32 v{vT2}, v{vL}, 4, 1
        v_lshl_add_u32 v{vT1}, v{vT2}, 5, v{vT1}
        v_and_b32 v{vT2}, 1, v{vL}
        v_lshl_add_u32 v{vT1}, v{vT2}, 4, v{vT1}
        v_bfe_u32 v{vT2}, v{vL}, 1, 1
        v_lshl_add_u32 v{vT1}, v{vT2}, 3, v{vT1}
        v_add_u32 v{vTR0}, s{sRW}, v{vT1}
        v_xor_b32 v{vT1}, 64, v{vT1}
        v_add_u32 v{vTR1}, s{sRW}, v{vT1}
        """)

    def stage_ge(self):
        k = self.k
        GF, WT = HB, 40
        skip = k.label("noge")
        k.wait(vm=("wf", 3))
        for j in range(4):
            self.tr16(T4[j], 192 + 16 * j, "a", "twf")
        k.wait(lg="all")
        saved = list(k.vm)
        k.e(f"s_cmp_lg_u32 s{sMT}, 15\ns_cbranch_scc1 {skip}")
        for j in range(4):
            self.dma4k(SWG, T4[j], self.w32_soff(j, 0), ("wg", j))
        k.e(f"""
        v_and_b32 v{vT0}, 15, v{vL}
        v_lshlrev_b32 v{vT0}, 10, v{vT0}
        v_lshrrev_b32 v{vT1}, 4, v{vL}
        v_lshl_add_u32 v{vT0}, v{vT1}, 4, v{vT0}
        """)
        for j in range(4):
            t = self.tmp()
            k.e(f"s_lshr_b32 s{t}, s{sR4[j]}, 4")
            k.e(f"v_add_u32 v{vT1}, s{t}, v{vT0}")
            k.vmem(f"buffer_load_dwordx4 {vr(GF + 4 * j, 4)}, v{vT1}, {sr(SG, 4)}, 0 offen", "g")
        for j in range(4):
            k.wait(vm=("wg", j))
            self.tr16(T4[j], WT + 16 * j, "v", ("twg", j))
        k.wait(vm="g")
        for j in range(4):
            k.wait(lg=("twg", j))
            for ct in range(4):
                self.mfma16(ACC2 + 4 * ct, WT + 16 * j + 4 * ct, GF + 4 * j, j == 0, ak="v")
        k.e(f"""
        v_and_b32 v{vT0}, 15, v{vL}
        v_lshrrev_b32 v{vT1}, 4, v{vL}
        v_lshrrev_b32 v{vT2}, 1, v{vT1}
        v_lshlrev_b32 v{vT2}, 7, v{vT2}
        v_lshl_add_u32 v{vT2}, v{vT0}, 4, v{vT2}
        v_and_b32 v{vT1}, 1, v{vT1}
        v_lshl_add_u32 v{vT2}, v{vT1}, 3, v{vT2}
        v_cmp_gt_u32 vcc, 8, v{vT0}
        v_bfrev_b32 v{vT1}, 1
        s_lshl_b32 s{sGS}, s{sB}, 13
        s_lshl_b32 s{sT0}, s{sN}, 10
        v_cndmask_b32 v{vT2}, v{vT1}, v{vT2}, vcc
        s_add_u32 s{sGS}, s{sGS}, s{sT0}
        s_lshl_b32 s{sT0}, s{sW}, 8
        s_add_u32 s{sGS}, s{sGS}, s{sT0}
        s_add_u32 s{sGS}, s{sGS}, {GE_OFF}
        """)
        self.reduce16(ACC2, False, vT2, sGS, "gest")
        k.e("s_barrier")
        k.e(f"{skip}:")
        k.vm = saved
        k.lg = []

    def stage3(self):
        k = self.k
        FB = HB

        def loads(counted, sc):
            for j in range(4):
                t = self.tmp()
                k.e(f"s_add_u32 s{t}, s{sFL}, s{sR4[j]}")
                ins = (f"buffer_load_dwordx4 {vr(FB + 4 * j, 4)}, v{vLIN16}, {sr(SWS, 4)}, s{t} offen"
                       + (" sc1" if sc else ""))
                if counted:
                    k.vmem(ins, ("f", j))
                else:
                    k.e(ins)
        self.wo_issue(1)
        k.e(f"s_mov_b32 s{sSPIN}, 0")
        if self.o.get("fsample", True):
            k.vmem(f"buffer_load_dword v{vHS}, v{vFSM}, {sr(SWS, 4)}, s{sFL} offen sc1", "smp")
            self.wo_tr(0)
            self.poll_sample("f", vFSM, sFL)
            self.stamp("fpoll")
            k.e(f"s_mov_b32 s{sSPIN}, 0")
            loads(True, not self.o["fplain"])
        else:
            loads(True, not self.o["fplain"])
            self.wo_tr(0)
        k.wait(lg="all")
        mf, retry, ok = k.label("s3m"), k.label("s3r"), k.label("s3k")
        self.wo_issue(2)
        k.e(f"{mf}:")
        for j in range(4):
            k.wait(vm=("f", j))
            f = FB + 4 * j
            if j == 0:
                k.e(f"v_max_u32 v{vT0}, v{f + 1}, v{f + 3}")
            else:
                k.e(f"v_max3_u32 v{vT0}, v{vT0}, v{f + 1}, v{f + 3}")
            for ct in range(4):
                self.mfma16(ACC2 + 4 * ct, 192 + 16 * j + 4 * ct, f, j == 0)
        k.e(f"v_cmp_eq_u32 vcc, -1, v{vT0}\ns_cbranch_vccnz {retry}\n{ok}:")
        self.ool.append(("bulk", retry, ok, mf, loads))
        self.stamp("s3mfma")
        k.e(f"s_add_u32 s{sFE}, s{sFS}, {FE_OFF - F_OFF}")
        self.reduce16(ACC2, False, vST, sFE, "fest")
        self.stamp("fest")
        k.e("s_barrier")

    def stage4(self):
        k = self.k
        CB, FR, Z, JP, BF, ACC, OUT = 32, 96, 128, 144, 160, 192, 224
        vGA, vFA, vJ0, vJ2 = 8, 9, 10, 11
        RAW = 160
        k.e(f"""
        v_and_b32 v{vT0}, 7, v{vL}
        v_lshlrev_b32 v{vT0}, 4, v{vT0}
        v_lshrrev_b32 v{vT1}, 5, v{vL}
        v_lshl_add_u32 v{vGA}, v{vT1}, 7, v{vT0}
        v_bfe_u32 v{vT0}, v{vL}, 3, 2
        v_lshlrev_b32 v{vT0}, 4, v{vT0}
        v_lshl_add_u32 v{vFA}, v{vT1}, 8, v{vT0}
        v_lshlrev_b32 v{vJ0}, 4, v{vL}
        v_add_u32 v{vJ2}, {2 * RW}, v{vJ0}
        s_lshl_b32 s{sGL}, s{sB}, 13
        s_lshl_b32 s{sT0}, s{sW}, 8
        s_add_u32 s{sGL}, s{sGL}, s{sT0}
        s_add_u32 s{sGL}, s{sGL}, {GE_OFF}
        s_lshl_b32 s{sFE}, s{sM}, 14
        s_lshl_b32 s{sT0}, s{sW}, 9
        s_add_u32 s{sFE}, s{sFE}, s{sT0}
        s_lshl_b32 s{sT0}, s{sJN}, 6
        s_add_u32 s{sFE}, s{sFE}, s{sT0}
        s_add_u32 s{sFE}, s{sFE}, {FE_OFF}
        """)

        def np_off(r, shift):
            t = self.tmp()
            if self.o["rot"]:
                k.e(f"s_add_u32 s{t}, s{sML}, {r}\ns_and_b32 s{t}, s{t}, 7\ns_lshl_b32 s{t}, s{t}, {shift}")
            else:
                k.e(f"s_mov_b32 s{t}, {r << shift}")
            return t

        def ge_loads(counted):
            for r in range(8):
                t = np_off(r, 10)
                k.e(f"s_add_u32 s{t}, s{t}, s{sGL}")
                ins = f"buffer_load_dwordx4 {vr(RAW + 4 * r, 4)}, v{vGA}, {sr(SWS, 4)}, s{t} offen sc1"
                if counted:
                    k.vmem(ins, "ge")
                else:
                    k.e(ins)

        def fe_loads(counted):
            for r in range(8):
                t = np_off(r, 11)
                k.e(f"s_add_u32 s{t}, s{t}, s{sFE}")
                ins = f"buffer_load_dwordx4 {vr(FR + 4 * r, 4)}, v{vFA}, {sr(SWS, 4)}, s{t} offen sc1"
                if counted:
                    k.vmem(ins, ("fe", r))
                else:
                    k.e(ins)

        def check(base, n, dst):
            k.e(f"v_max_u32 v{dst}, v{base + 1}, v{base + 3}")
            for r in range(1, n):
                k.e(f"v_max3_u32 v{dst}, v{dst}, v{base + 4 * r + 1}, v{base + 4 * r + 3}")

        ge_loads(True)
        self.wo_tr(1)
        k.wait(lg="all")
        self.wo_issue(3)
        self.wo_tr(2)
        k.e(f"s_mov_b32 s{sSPIN}, 0")
        k.wait(vm="ge")
        retry, ok = k.label("ger"), k.label("gek")
        again = k.label("gea")
        k.e(f"{again}:")
        check(RAW, 8, vT0)
        k.e(f"v_cmp_eq_u32 vcc, -1, v{vT0}\ns_cbranch_vccnz {retry}\n{ok}:")
        self.ool.append(("poll", retry, ok, again, ge_loads))
        k.e(f"s_mov_b32 s{sA}, {f32(CT)}")
        fe_loads(True)
        for r in range(8):
            for i in range(4):
                src = RAW + 4 * r + i
                k.e(f"v_lshlrev_b32 v{CB + 8 * r + 2 * i}, 16, v{src}")
                k.e(f"v_and_b32 v{CB + 8 * r + 2 * i + 1}, 0xffff0000, v{src}")
        for i in range(64):
            k.e(f"v_mul_f32 v{CB + i}, s{sA}, v{CB + i}")
        self.stamp("cb")
        k.wait(lg="all")
        self.wo_tr(3)
        k.e(f"s_mov_b32 s{sSPIN}, 0")
        k.wait(vm=("fe", 7))
        retry, ok = k.label("fer"), k.label("fek")
        again = k.label("fea")
        k.e(f"{again}:")
        check(FR, 8, vT0)
        k.e(f"v_cmp_eq_u32 vcc, -1, v{vT0}\ns_cbranch_vccnz {retry}\n{ok}:")
        self.ool.append(("poll", retry, ok, again, fe_loads))
        self.stamp("fepoll")

        def j_ops(r):
            ops = []
            z = Z + 8 * (r & 1)
            jp = JP + 4 * (r & 1)
            for i in range(4):
                ops.append(f"v_lshlrev_b32 v{z + 2 * i}, 16, v{FR + 4 * r + i}")
                ops.append(f"v_and_b32 v{z + 2 * i + 1}, 0xffff0000, v{FR + 4 * r + i}")
            for i in range(8):
                ops.append(f"v_fma_f32 v{z + i}, v{z + i}, s{sA}, v{CB + 8 * r + i}")
            for i in range(8):
                ops.append(f"v_exp_f32 v{z + i}, v{z + i}")
            for i in range(0, 8, 2):
                ops.append(f"v_pk_add_f32 {vr(z + i, 2)}, {vr(z + i, 2)}, 1.0 op_sel_hi:[1,0]")
            for i in range(8):
                ops.append(f"v_rcp_f32 v{z + i}, v{z + i}")
            for i in range(8):
                ops.append(f"v_fma_f32 v{z + i}, v{z + i}, -2.0, 1.0")
            for i in range(4):
                ops.append(f"v_cvt_pk_bf16_f32 v{jp + i}, v{z + 2 * i}, v{z + 2 * i + 1}")
            ops.append(("ds", f"ds_write_b128 v{vLIN}, {vr(jp, 4)} offset:{r * 1024}", ("jw", r)))
            return ops

        def emit(op):
            if isinstance(op, tuple):
                k.ds(op[1], op[2])
            else:
                k.e(op)

        def reads(r):
            b = BF + 16 * (r & 1)
            for jj in range(4):
                a = vJ0 if jj < 2 else vJ2
                k.ds(f"ds_read_b128 {vr(b + 4 * jj, 4)}, v{a} offset:{(jj & 1) * RW + r * 1024}", ("jr", r))

        k.wait(lg="all")
        for op in j_ops(0):
            emit(op)
        for op in j_ops(1):
            emit(op)
        k.wait(lg=("jw", 0))
        k.e("s_barrier")
        reads(0)
        for r in range(8):
            ops = j_ops(r + 2) if r + 2 < 8 else []
            if r + 1 < 8:
                k.wait(lg=("jw", r + 1))
                k.e("s_barrier")
                reads(r + 1)
            k.wait(lg=("jr", r))
            b = BF + 16 * (r & 1)
            per = (len(ops) + 7) // 8
            for jj in range(4):
                q = 4 * r + jj
                for ct in range(2):
                    self.mfma32(ACC + 16 * ct, 8 * q + 4 * ct, b + 4 * jj, r == 0 and jj == 0, ak="a")
                    for _ in range(per):
                        if ops:
                            emit(ops.pop(0))
            while ops:
                emit(ops.pop(0))
            if r == 3:
                self.stamp("s4r3")
        self.stamp("s4mfma")
        k.e(f"""
        s_lshl_b32 s{sT0}, s{sMT}, 7
        s_lshl_b32 s{sT1}, s{sJN}, 5
        s_add_u32 s{sT0}, s{sT0}, s{sT1}
        s_lshl_b32 s{sT0}, s{sT0}, 10
        s_lshl_b32 s{sT1}, s{sNH}, 9
        s_add_u32 s{sT0}, s{sT0}, s{sT1}
        s_lshl_b32 s{sT1}, s{sW}, 7
        s_add_u32 s{sT0}, s{sT0}, s{sT1}
        v_and_b32 v{vT0}, 31, v{vL}
        v_lshlrev_b32 v{vT0}, 10, v{vT0}
        v_lshrrev_b32 v{vT1}, 5, v{vL}
        v_lshl_add_u32 v{vT0}, v{vT1}, 4, v{vT0}
        v_add_u32 v{vT0}, s{sT0}, v{vT0}
        """)
        k.nop(2)
        for ct in range(2):
            for a in range(2):
                src = ACC + 16 * ct + 8 * a
                dst = OUT + 8 * ct + 4 * a
                for i in range(4):
                    k.e(f"v_cvt_pk_bf16_f32 v{dst + i}, v{src + 2 * i}, v{src + 2 * i + 1}")
                o = ct * 64 + a * 32
                os_ = f" offset:{o}" if o else ""
                k.vmem(f"buffer_store_dwordx4 {vr(dst, 4)}, v{vT0}, {sr(SOUT, 4)}, 0 offen{os_}", "out")

    def epilogue(self):
        k = self.k
        if self.stamps:
            self.stamp("end")
            n = self.nst
            k.e("s_waitcnt vmcnt(0) lgkmcnt(0)")
            for i in range(n):
                k.e(f"v_writelane_b32 v{vT1}, s{STAMP0 + 2 * i}, {i}")
            k.e(f"""
            s_lshl_b32 s{sT0}, s2, 2
            s_add_u32 s{sT0}, s{sT0}, s{sW}
            s_lshl_b32 s{sT0}, s{sT0}, 6
            s_add_u32 s{sT0}, s{sT0}, {STAMP_OFF}
            s_mov_b32 s{SWS + 2}, {STAMP_OFF + (1 << 20)}
            v_lshlrev_b32 v{vT0}, 2, v{vL}
            s_mov_b64 exec, 0xffff
            buffer_store_dword v{vT1}, v{vT0}, {sr(SWS, 4)}, s{sT0} offen
            """)
        k.e("s_waitcnt vmcnt(0)\nL_end:\ns_endpgm")
        for item in self.ool:
            if item[0] == "hs":
                _, top, done = item
                k.e(f"""
                {top}:
                s_mov_b32 s{sSPIN}, 0
                v_and_b32 v{vT0}, 3, v{vL}
                v_lshlrev_b32 v{vT0}, 6, v{vT0}
                {top}_l:
                """)
                self.spin_check(done)
                k.e(f"""
                buffer_load_dword v{vHS}, v{vT0}, {sr(SDBG, 4)}, 0 offen sc1
                s_waitcnt vmcnt(0)
                v_cmp_gt_u32 vcc, 64, v{vHS}
                s_cbranch_vccnz {top}_l
                s_branch {done}
                """)
            elif item[0] == "smp":
                _, top, done, vaddr, sbase = item
                k.e(f"{top}:\ns_mov_b32 s{sSPIN}, 0\n{top}_l:")
                self.spin_check(done)
                k.e(f"""
                buffer_load_dword v{vHS}, v{vaddr}, {sr(SWS, 4)}, s{sbase} offen sc1
                s_waitcnt vmcnt(0)
                v_cmp_eq_u32 vcc, -1, v{vHS}
                s_cbranch_vccnz {top}_l
                s_branch {done}
                """)
            else:
                kind, retry, ok, back, loads = item
                k.e(f"{retry}:")
                self.spin_check(ok)
                if kind == "bulk":
                    loads(False, True)
                else:
                    loads(False)
                k.e(f"s_waitcnt vmcnt(0)\ns_branch {back}")
        k.e("L_last:\ns_endpgm")

    def build(self):
        k = self.k
        stop = self.stop_after
        self.prologue()
        self.stage1()
        self.w2_finish()
        if stop != "s1":
            self.stage2()
            self.stage2_tail()
            if stop != "s2":
                self.stage_ge()
                if stop != "ge":
                    self.stage3()
                    if stop != "s3":
                        self.stage4()
        self.epilogue()
        return self.text()

    def text(self):
        head = f"""; RNN-T joint network: two stride-2 conv stems, w_f / w_g projections, tanh, w_o.
; @launch grid=(256,1,1) block=(256,1,1) lds={LDS_BYTES}
.amdgcn_target "amdgcn-amd-amdhsa--gfx950"
.text
.globl {NAME}
.p2align 8
.type {NAME},@function
{NAME}:
"""
        tail = f"""
.section .rodata,"a"
.p2align 6
.amdhsa_kernel {NAME}
  .amdhsa_next_free_vgpr 512
  .amdhsa_next_free_sgpr 102
  .amdhsa_accum_offset 256
  .amdhsa_group_segment_fixed_size 0
  .amdhsa_kernarg_size 80
  .amdhsa_user_sgpr_count 2
  .amdhsa_user_sgpr_kernarg_segment_ptr 1
  .amdhsa_system_sgpr_workgroup_id_x 1
.end_amdhsa_kernel
"""
        return head + self.k.text() + tail


if __name__ == "__main__":
    out = sys.argv[1] if len(sys.argv) > 1 else "cdna_kernels/" + NAME.replace("_kernel", "") + ".s"
    g = Gen2(stamps=False)
    open(out, "w").write(g.build())
    print("wrote", out)
```

```python
import math
import sys
from kb import K, vr, ar, sr, f32

NAME = "standalone__seq2seq_rnn_t_joint__speech_kernel"

H_OFF = 65536
F_OFF = H_OFF + (1 << 20)
FE_OFF = F_OFF + (1 << 19)
GE_OFF = FE_OFF + (1 << 19)
WS_REC = 4 << 20
STAMP_OFF = 8 << 20
OOB = 0x80000000
SPIN_MAX = 4096

RW = 40960
RB = 17408
LDS_BYTES = 163840
T4 = [RB + 4096 * t for t in range(5)]
XS = [4096 * t for t in range(4)]

SX, SW1, SW2, SG, SWF, SWG, SWO, SOUT, SDBG, SWS = 24, 28, 32, 36, 40, 44, 48, 52, 56, 60
sW, sM, sN, sB, sMT, sRW, sML, sJN = 64, 65, 66, 67, 68, 69, 70, 71
sKI, sKC = 72, 3
sT0, sT1, sT2, sT3 = 73, 74, 75, 76
sSPIN = 77
STAMP0 = 78
sH, sFL, sFS, sFE, sGL, sGS, sHS, sA, sB2 = 4, 5, 6, 7, 8, 9, 10, 11, 12
sR4 = [13, 14, 15, 16]
sNH = 17
sFES, sWQ = 18, 19

vL, vT0, vT1, vT2, vT3, vLIN, vRD = 1, 2, 3, 4, 5, 6, 7
vXW = 8
vXA, vXZ, vQ0 = 12, 13, 14
vWA0, vWA1, vTR0, vTR1 = 15, 16, 17, 18
vXB = 19
vBA = 22
vW2 = 24
vT16 = 28
vONES = 32
vHS = 36
AF, BFR, ACC1, R1 = 40, 56, 64, 96
vLIN16, vH0, vSMP, vST, vRD2, vKC3, vSV, vFSM, vGST = 8, 9, 10, 11, 12, 13, 14, 19, 20
HB, ACC2, R2 = 128, 176, 192
vPF = 37

C1 = 2 * math.log2(math.e) * math.sqrt(2 / math.pi)
C3 = C1 * 0.044715
CT = 2 * math.log2(math.e)

DEFAULT_STAMPS = ("start", "iss", "x0", "s1mfma", "hst", "w2done", "hpoll", "s2mfma", "fst", "s3mfma", "fest", "end")
S1_STAMPS = ("start", "karg", "iss0", "iss", "x0", "u5", "u11", "u17", "s1mfma", "hst", "w2done", "end")
R4_STAMPS = ("start", "fepoll", "j01", "s4r0", "s4r1", "s4r2", "s4r3", "s4r4", "s4r5", "s4r6", "s4r7", "end")
R5_STAMPS = ("start", "fepoll2", "j01", "s4r0", "s4r1", "s4r2", "s4r3", "s4r4", "s4r5", "s4r6", "s4r7", "end")
G_STAMPS = ("start", "hst", "g0", "gdma", "gw2", "gwg", "gld", "gmf", "gend", "w2done", "hpoll", "end")
S2_STAMPS = ("start", "s1mfma", "hst", "w2done", "hpoll", "s2mfma", "fst", "fpoll", "s3mfma", "fest", "fepoll", "end")
S4_STAMPS = ("start", "hst", "s2mfma", "fst", "fpoll", "s3mfma", "fest", "cb", "fepoll", "s4r3", "s4mfma", "end")


class Gen2:
    def __init__(self, stop_after=None, stamps=True, opts=None):
        self.k = K()
        self.stop_after = stop_after
        self.stamps = stamps
        self.nst = 0
        self.names = []
        self.o = dict(prefetch=False, rot=True, hplain=True, fplain=False, x2=0, x3=0,
                      b1B=0, b2C=0, trb3="loop", s4bar=1)
        self.o.update(opts or {})
        self.rot = 0
        self.ool = []

    def stamp(self, name):
        names = self.o.get("stamps", DEFAULT_STAMPS)
        if not self.stamps or name not in names:
            return
        self.names = list(names)
        self.nst = len(names)
        r = STAMP0 + 2 * names.index(name)
        self.k.e(f"{'s_memtime' if self.o.get('memtime') else 's_memrealtime'} s[{r}:{r + 1}]")

    def tmp(self):
        self.rot = (self.rot + 1) % 4
        return sT0 + self.rot

    def tile(self, key, dst):
        self.k.e(f"s_xor_b32 s{dst}, s{sN}, {self.o[key]}")

    def srd(self, d, ptr, off, nrec):
        k = self.k
        if off is None:
            k.e(f"s_mov_b32 s{d}, s{ptr}\ns_mov_b32 s{d + 1}, s{ptr + 1}")
        else:
            k.e(f"s_add_u32 s{d}, s{ptr}, s{off}\ns_addc_u32 s{d + 1}, s{ptr + 1}, 0")
        k.e(f"s_mov_b32 s{d + 2}, {nrec}\ns_mov_b32 s{d + 3}, 0x20000")

    def nt(self, srd):
        key = {SW1: "ntw1", SW2: "ntw2", SWF: "ntwf", SWG: "ntwg", SWO: "ntwo", SX: "ntx"}[srd]
        return " nt" if self.o.get(key) else ""

    def dma2k(self, srd, lds_off, soff, tag):
        k = self.k
        nt = self.nt(srd)
        k.e(f"s_add_u32 m0, s{sRW}, {lds_off}")
        k.e("s_nop 0")
        k.vmem(f"buffer_load_dwordx4 v{vWA0}, {sr(srd, 4)}, {soff} offen{nt} lds", tag)
        k.vmem(f"buffer_load_dwordx4 v{vWA1}, {sr(srd, 4)}, {soff} offen offset:1024{nt} lds", tag)

    def dma4k_ops(self, srd, lds_off, soff_fn, tag):
        k = self.k
        st = {}

        def op(q):
            if q == 0:
                st["s"] = soff_fn()
                k.e(f"s_add_u32 m0, s{sRW}, {lds_off}")
                k.e("s_nop 0")
            o = f" offset:{q * 1024}" if q else ""
            k.vmem(f"buffer_load_dwordx4 v{vW2 + q}, {sr(srd, 4)}, {st['s']} offen{o}{self.nt(srd)} lds", tag)
        return [lambda q=q: op(q) for q in range(4)]

    def dma4k(self, srd, lds_off, soff_fn, tag):
        for op in self.dma4k_ops(srd, lds_off, soff_fn, tag):
            op()

    def tr32(self, lds_off, dst, kind, tag):
        k = self.k
        for ct, a in enumerate((vTR0, vTR1)):
            k.ds(f"ds_read_b64_tr_b16 {vr(dst + 4 * ct, 2, kind)}, v{a} offset:{lds_off}", tag)
            k.ds(f"ds_read_b64_tr_b16 {vr(dst + 4 * ct + 2, 2, kind)}, v{a} offset:{lds_off + 512}", tag)

    def tr16(self, lds_off, dst, kind, tag):
        k = self.k
        for ct in range(4):
            k.ds(f"ds_read_b64_tr_b16 {vr(dst + 4 * ct, 2, kind)}, v{vT16 + ct} offset:{lds_off}", tag)
            k.ds(f"ds_read_b64_tr_b16 {vr(dst + 4 * ct + 2, 2, kind)}, v{vT16 + ct} offset:{lds_off + 512}", tag)

    def mfma32(self, d, a, b, first, ak="v"):
        c = "0" if first else vr(d, 16)
        self.k.e(f"v_mfma_f32_32x32x16_bf16 {vr(d, 16)}, {vr(a, 4, ak)}, {vr(b, 4)}, {c}")

    def mfma16(self, d, a, b, first, ak="a"):
        c = "0" if first else vr(d, 4)
        self.k.e(f"v_mfma_f32_16x16x32_bf16 {vr(d, 4)}, {vr(a, 4, ak)}, {vr(b, 4)}, {c}")

    def gelu(self, xs, tmp, kc3):
        k = self.k
        ts = [tmp + i for i in range(len(xs))]
        for x, t in zip(xs, ts):
            k.e(f"v_mul_f32 v{t}, v{x}, v{x}")
        for x, t in zip(xs, ts):
            k.e(f"v_fmaak_f32 v{t}, v{t}, v{kc3}, {f32(-C1)}")
        for x, t in zip(xs, ts):
            k.e(f"v_mul_f32 v{t}, v{t}, v{x}")
        for x, t in zip(xs, ts):
            k.e(f"v_exp_f32 v{t}, v{t}")
        for x, t in zip(xs, ts):
            k.e(f"v_add_f32 v{t}, 1.0, v{t}")
        for x, t in zip(xs, ts):
            k.e(f"v_rcp_f32 v{t}, v{t}")
        for x, t in zip(xs, ts):
            k.e(f"v_mul_f32 v{x}, v{x}, v{t}")

    def spin_check(self, done_label):
        self.k.e(f"s_add_u32 s{sSPIN}, s{sSPIN}, 1\ns_cmp_ge_u32 s{sSPIN}, {SPIN_MAX}\ns_cbranch_scc1 {done_label}")

    def prologue(self):
        k = self.k
        rot = self.o["rot"]
        k.e("""
        s_cmp_ge_u32 s2, 256
        s_cbranch_scc1 L_end
        s_load_dwordx16 s[4:19], s[0:1], 0
        s_load_dwordx4 s[20:23], s[0:1], 64
        """)
        self.stamp("start")
        k.e(f"""
        v_lshrrev_b32 v{vT0}, 6, v0
        v_and_b32 v{vL}, 63, v0
        v_readfirstlane_b32 s{sW}, v{vT0}
        s_and_b32 s{sT0}, s2, 7
        s_lshr_b32 s{sT1}, s2, 3
        s_add_u32 s{sJN}, s{sT1}, {self.o.get("jnrot", 0)}
        s_and_b32 s{sJN}, s{sJN}, 3
        s_lshr_b32 s{sML}, s{sT1}, 2
        s_and_b32 s{sT2}, s{sT0}, 1
        s_lshl_b32 s{sN}, s{sT2}, 2
        s_add_u32 s{sN}, s{sN}, s{sJN}
        s_lshr_b32 s{sT0}, s{sT0}, 1
        s_lshl_b32 s{sM}, s{sT0}, 3
        s_add_u32 s{sM}, s{sM}, s{sML}
        s_lshr_b32 s{sB}, s{sM}, 4
        s_and_b32 s{sMT}, s{sM}, 15
        s_mul_i32 s{sRW}, s{sW}, {RW}
        v_lshrrev_b32 v{vT0}, 4, v{vL}
        v_lshrrev_b32 v{vT1}, 5, v{vL}
        v_and_b32 v{vT2}, 15, v{vL}
        v_xor_b32 v{vT2}, v{vT2}, v{vT1}
        v_lshlrev_b32 v{vT2}, 4, v{vT2}
        v_lshl_add_u32 v{vXW}, v{vT0}, 10, v{vT2}
        """)
        for e in range(1, 4):
            k.e(f"v_xor_b32 v{vXW + e}, {e * 32}, v{vXW}")
            k.e(f"v_add_u32 v{vXW + e}, {e * 3072}, v{vXW + e}")
        k.e(f"""
        v_cmp_gt_u32 vcc, 16, v{vL}
        v_bfrev_b32 v{vT0}, 1
        v_lshrrev_b32 v{vT1}, 3, v{vL}
        v_cndmask_b32 v{vQ0}, 0, v{vT0}, vcc
        v_bfe_u32 v{vT2}, v{vT1}, 1, 1
        v_lshlrev_b32 v{vT2}, 2, v{vT2}
        v_and_b32 v{vT3}, 7, v{vL}
        v_xor_b32 v{vT2}, v{vT2}, v{vT3}
        v_lshlrev_b32 v{vT2}, 4, v{vT2}
        v_lshl_add_u32 v{vWA0}, v{vT1}, 10, v{vT2}
        v_add_u32 v{vWA1}, 7168, v{vWA0}
        s_lshl_b32 s{sT0}, s{sW}, 17
        s_lshl_b32 s{sT1}, s{sN}, 7
        s_add_u32 s3, s{sT0}, s{sT1}
        s_mul_i32 s{sT0}, s{sB}, 1000
        s_lshl_b32 s{sT1}, s{sMT}, 6
        s_add_u32 s{sT0}, s{sT0}, s{sT1}
        s_sub_u32 s{sT0}, s{sT0}, 1
        s_lshl_b32 s{sT0}, s{sT0}, 10
        s_lshl_b32 s{sT2}, s{sW}, 8
        s_add_u32 s{sT0}, s{sT0}, s{sT2}
        s_ashr_i32 s{sT3}, s{sT0}, 31
        s_sub_u32 s{sT1}, 1001, s{sT1}
        s_lshl_b32 s{sT1}, s{sT1}, 10
        s_sub_u32 s{SX + 2}, s{sT1}, s{sT2}
        s_mov_b32 s{SX + 3}, 0x20000
        s_sub_u32 s{SW1 + 2}, 1572864, s3
        s_mov_b32 s{SW1 + 3}, 0x20000
        """)
        if rot:
            k.e(f"s_lshl_b32 s{sKI}, s{sML}, 14")
        else:
            k.e(f"s_mov_b32 s{sKI}, 0")
        k.e("s_waitcnt lgkmcnt(0)")
        self.stamp("karg")
        k.e(f"""
        s_add_u32 s{SX}, s4, s{sT0}
        s_addc_u32 s{SX + 1}, s5, s{sT3}
        s_add_u32 s{SW1}, s6, s3
        s_addc_u32 s{SW1 + 1}, s7, 0
        """)

    def code_prefetch(self):
        k = self.k
        mode = self.o.get("cpf", 0)
        if not mode:
            return
        lab = k.label("pf")
        k.e(f"""
        s_cmp_lg_u32 s{sW}, {self.o.get("cpfw", 3)}
        s_cbranch_scc1 {lab}
        s_getpc_b64 s[{sT0 + 1}:{sT0 + 2}]
        L_pc:
        s_lshr_b32 s{sT0}, s2, 3
        s_lshl_b32 s{sT0}, s{sT0}, 10
        v_lshlrev_b32 v{vT0}, 7, v{vL}
        v_add_u32 v{vT0}, s{sT0}, v{vT0}
        v_min_u32 v{vT0}, L_last-L_pc, v{vT0}
        s_mov_b64 exec, 0xff
        global_load_dword v{vPF}, v{vT0}, s[{sT0 + 1}:{sT0 + 2}]
        s_mov_b64 exec, -1
        {lab}:
        """)

    def g_prefetch(self):
        k = self.k
        k.e(f"""
        s_lshr_b32 s{sT0}, s2, 3
        s_lshl_b32 s{sT1}, s{sT0}, 12
        v_lshlrev_b32 v{vT0}, 10, v{vL}
        v_add_u32 v{vT0}, s{sT1}, v{vT0}
        s_lshr_b32 s{sT1}, s{sT0}, 1
        s_lshl_b32 s{sT1}, s{sT1}, 10
        s_and_b32 s{sT0}, s{sT0}, 1
        s_lshl_b32 s{sT0}, s{sT0}, 7
        s_add_u32 s{sT0}, s{sT0}, s{sT1}
        v_mov_b32 v{vT1}, s{sT0}
        s_mov_b64 exec, 15
        """)
        k.vmem(f"buffer_load_dword v{vPF}, v{vT0}, {sr(SWG, 4)}, 0 offen", "pf")
        k.e("s_mov_b64 exec, 1")
        k.vmem(f"buffer_load_dword v{vPF + 1}, v{vT1}, {sr(SG, 4)}, 0 offen", "pf")
        k.e("s_mov_b64 exec, -1")

    def x_quarter(self, qq):
        k = self.k
        a, z = sT0, sT1
        if self.o["rot"]:
            k.e(f"s_add_u32 s{a}, s{sJN}, {qq}\ns_and_b32 s{a}, s{a}, 3")
        else:
            k.e(f"s_mov_b32 s{a}, {qq}")
        k.e(f"""
        s_lshl_b32 s{sT2}, s{a}, 12
        s_add_u32 m0, s{sT2}, s{sRW}
        s_or_b32 s{z}, s{a}, s{sMT}
        s_cmp_eq_u32 s{z}, 0
        s_cselect_b32 s{z}, -1, 0
        s_and_b32 s{sT3}, s{a}, 1
        s_lshl_b32 s{sT3}, s{sT3}, 7
        s_lshl_b32 s{a}, s{a}, 14
        s_or_b32 s{a}, s{a}, s{sT3}
        """)
        for e in range(4):
            t = vXA if e % 2 == 0 else vXZ
            k.e(f"v_xor_b32 v{t}, s{a}, v{vXW + e}")
            if e == 0:
                k.e(f"v_and_or_b32 v{t}, v{vQ0}, s{z}, v{t}")
            o = f" offset:{e * 1024}" if e else ""
            k.vmem(f"buffer_load_dwordx4 v{t}, {sr(SX, 4)}, 0 offen{o}{self.nt(SX)} lds", "x")

    def x_tail(self):
        k = self.k
        k.e(f"""
        v_lshlrev_b32 v{vXA}, 4, v{vL}
        v_add_u32 v{vXA}, 65536, v{vXA}
        s_add_u32 m0, s{sRW}, 16384
        s_mov_b64 exec, 0xffff
        """)
        k.vmem(f"buffer_load_dwordx4 v{vXA}, {sr(SX, 4)}, 0 offen{self.nt(SX)} lds", "x")
        k.e("s_mov_b64 exec, -1")

    def w1_issue(self, u):
        k = self.k
        i = u % 3
        if i == 0 and u:
            k.e(f"s_add_u32 s{sKI}, s{sKI}, 16384\ns_and_b32 s{sKI}, s{sKI}, 0x1c000")
        if i:
            t = self.tmp()
            k.e(f"s_add_u32 s{t}, s{sKI}, {i * 524288}")
            so = f"s{t}"
        else:
            so = f"s{sKI}"
        self.dma2k(SW1, RB + 2048 * (u % 10), so, ("w1", u))

    def rot4(self):
        k = self.k
        for j in range(4):
            if self.o["rot"]:
                k.e(f"s_add_u32 s{sR4[j]}, s{sML}, {j}\ns_and_b32 s{sR4[j]}, s{sR4[j]}, 3\ns_lshl_b32 s{sR4[j]}, s{sR4[j]}, 10")
            else:
                k.e(f"s_mov_b32 s{sR4[j]}, {j * 1024}")

    def w32_soff(self, j, tap):
        def fn():
            t = self.tmp()
            self.k.e(f"s_lshl_b32 s{t}, s{sR4[j]}, 5")
            if tap:
                self.k.e(f"s_add_u32 s{t}, s{t}, {tap * 524288}")
            return f"s{t}"
        return fn

    def w2_slot(self, v):
        return [T4[2], T4[3], T4[4], T4[0], T4[1], XS[0], XS[1], XS[2], XS[3], T4[2], T4[3], T4[4]][v]

    def w2_ops(self, v):
        return self.dma4k_ops(SW2, self.w2_slot(v), self.w32_soff(v // 3, v % 3), ("w2", v))

    def clears(self):
        k = self.k
        self.srd(SWS, 22, None, WS_REC)
        k.e(f"""
        v_mov_b32 v{vONES}, -1
        v_mov_b32 v{vONES + 1}, -1
        v_mov_b32 v{vONES + 2}, -1
        v_mov_b32 v{vONES + 3}, -1
        v_lshlrev_b32 v{vT0}, 4, v{vL}
        s_lshl_b32 s{sT0}, s{sM}, 14
        s_lshl_b32 s{sT2}, s{sW}, 9
        s_add_u32 s{sT0}, s{sT0}, s{sT2}
        """)
        self.tile("x2", sT1)
        k.e(f"""
        s_lshl_b32 s{sT1}, s{sT1}, 11
        s_add_u32 s{sT2}, s{sT0}, {F_OFF}
        s_add_u32 s{sT2}, s{sT2}, s{sT1}
        """)
        self.tile("x3", sT1)
        k.e(f"""
        s_lshl_b32 s{sT1}, s{sT1}, 11
        s_add_u32 s{sT3}, s{sT0}, {FE_OFF}
        s_add_u32 s{sT3}, s{sT3}, s{sT1}
        s_mov_b32 exec_hi, 0
        """)
        k.vmem(f"buffer_store_dwordx4 {vr(vONES, 4)}, v{vT0}, {sr(SWS, 4)}, s{sT2} offen sc1", "clr")
        k.vmem(f"buffer_store_dwordx4 {vr(vONES, 4)}, v{vT0}, {sr(SWS, 4)}, s{sT3} offen sc1", "clr")
        lab = k.label("c0")
        k.e(f"""
        s_mov_b64 exec, -1
        s_cmp_lg_u32 s{sW}, 0
        s_cbranch_scc1 {lab}
        s_lshl_b32 s{sT0}, s{sM}, 15
        s_lshl_b32 s{sT1}, s{sN}, 11
        s_add_u32 s{sT0}, s{sT0}, s{sT1}
        s_add_u32 s{sT0}, s{sT0}, {H_OFF}
        s_add_u32 s{sT1}, s{sT0}, 16384
        buffer_store_dwordx4 {vr(vONES, 4)}, v{vT0}, {sr(SWS, 4)}, s{sT0} offen sc1
        buffer_store_dwordx4 {vr(vONES, 4)}, v{vT0}, {sr(SWS, 4)}, s{sT0} offen offset:1024 sc1
        buffer_store_dwordx4 {vr(vONES, 4)}, v{vT0}, {sr(SWS, 4)}, s{sT1} offen sc1
        buffer_store_dwordx4 {vr(vONES, 4)}, v{vT0}, {sr(SWS, 4)}, s{sT1} offen offset:1024 sc1
        s_cmp_ge_u32 s2, 8
        s_cbranch_scc1 {lab}
        s_lshl_b32 s{sT0}, s2, 10
        s_add_u32 s{sT0}, s{sT0}, {GE_OFF}
        s_add_u32 s{sT1}, s{sT0}, 8192
        buffer_store_dwordx4 {vr(vONES, 4)}, v{vT0}, {sr(SWS, 4)}, s{sT0} offen sc1
        buffer_store_dwordx4 {vr(vONES, 4)}, v{vT0}, {sr(SWS, 4)}, s{sT1} offen sc1
        {lab}:
        """)

    def prologue2(self):
        k = self.k
        for key, d, ptr, size in (("x2", SW2, 8, 1572864), ("x3", SWF, 12, 524288), (None, SWG, 14, 524288)):
            if key:
                self.tile(key, sT0)
            else:
                k.e(f"s_and_b32 s{sT0}, s2, 7")
            k.e(f"""
            s_lshl_b32 s{sT0}, s{sT0}, 7
            s_lshl_b32 s{sT1}, s{sW}, 17
            s_add_u32 s{sT0}, s{sT0}, s{sT1}
            s_sub_u32 s{sT1}, {size}, s{sT0}
            """)
            self.srd(d, ptr, sT0, f"s{sT1}")
        k.e(f"""
        s_lshl_b32 s{sT0}, s{sW}, 8
        s_sub_u32 s{sT1}, 16384, s{sT0}
        """)
        self.srd(SG, 10, sT0, f"s{sT1}")
        k.e(f"""
        s_lshr_b32 s{sT2}, s{sN}, 2
        s_lshl_b32 s{sT0}, s{sT2}, 9
        s_lshl_b32 s{sT1}, s{sW}, 7
        s_add_u32 s{sT0}, s{sT0}, s{sT1}
        s_sub_u32 s{sT1}, 524288, s{sT0}
        """)
        self.srd(SWO, 16, sT0, f"s{sT1}")
        k.e(f"s_mul_i32 s{sT0}, s{sB}, 2048000")
        self.srd(SOUT, 18, sT0, 2048000)
        self.srd(SDBG, 20, None, 256)
        k.e(f"s_lshr_b32 s{sNH}, s{sN}, 2")
        self.rot4()
        k.e(f"""
        v_lshlrev_b32 v{vT0}, 4, v{vL}
        v_add_u32 v{vLIN}, s{sRW}, v{vT0}
        v_bfe_u32 v{vT0}, v{vL}, 2, 2
        v_lshrrev_b32 v{vT1}, 5, v{vL}
        v_lshl_add_u32 v{vT1}, v{vT1}, 3, v{vT0}
        v_lshlrev_b32 v{vT1}, 7, v{vT1}
        v_lshrrev_b32 v{vT2}, 1, v{vT0}
        v_lshl_add_u32 v{vT1}, v{vT2}, 6, v{vT1}
        v_bfe_u32 v{vT2}, v{vL}, 4, 1
        v_lshl_add_u32 v{vT1}, v{vT2}, 5, v{vT1}
        v_and_b32 v{vT2}, 3, v{vL}
        v_lshl_add_u32 v{vT1}, v{vT2}, 3, v{vT1}
        v_add_u32 v{vTR0}, s{sRW}, v{vT1}
        v_xor_b32 v{vT1}, 64, v{vT1}
        v_add_u32 v{vTR1}, s{sRW}, v{vT1}
        """)
        k.e(f"""
        v_and_b32 v{vT0}, 31, v{vL}
        v_lshrrev_b32 v{vT1}, 5, v{vL}
        v_and_b32 v{vT2}, 15, v{vT0}
        v_xor_b32 v{vT2}, v{vT2}, v{vT1}
        v_lshlrev_b32 v{vT2}, 4, v{vT2}
        v_lshl_add_u32 v{vT2}, v{vT0}, 9, v{vT2}
        v_add_u32 v{vXB}, s{sRW}, v{vT2}
        v_add_u32 v{vXB + 1}, 256, v{vXB}
        v_add_u32 v{vT2}, 1, v{vT0}
        v_and_b32 v{vT2}, 15, v{vT2}
        v_xor_b32 v{vT2}, v{vT2}, v{vT1}
        v_lshlrev_b32 v{vT2}, 4, v{vT2}
        v_lshl_add_u32 v{vT2}, v{vT0}, 9, v{vT2}
        v_add_u32 v{vT2}, 512, v{vT2}
        v_add_u32 v{vXB + 2}, s{sRW}, v{vT2}
        """)
        k.e(f"""
        v_lshrrev_b32 v{vT0}, 3, v{vL}
        v_bfe_u32 v{vT1}, v{vT0}, 1, 1
        v_lshlrev_b32 v{vT1}, 1, v{vT1}
        v_and_b32 v{vT2}, 7, v{vL}
        v_xor_b32 v{vT1}, v{vT1}, v{vT2}
        v_lshlrev_b32 v{vT1}, 4, v{vT1}
        v_lshl_add_u32 v{vW2}, v{vT0}, 10, v{vT1}
        v_xor_b32 v{vT1}, 64, v{vW2}
        v_add_u32 v{vW2 + 1}, 7168, v{vT1}
        v_add_u32 v{vW2 + 2}, {2 * 7168}, v{vW2}
        v_add_u32 v{vW2 + 3}, {3 * 7168}, v{vT1}
        v_lshrrev_b32 v{vT0}, 4, v{vL}
        v_bfe_u32 v{vT1}, v{vL}, 2, 2
        v_lshl_add_u32 v{vT2}, v{vT0}, 3, v{vT1}
        v_lshlrev_b32 v{vT2}, 7, v{vT2}
        v_lshrrev_b32 v{vT1}, 1, v{vT1}
        v_and_b32 v{vT0}, 1, v{vT0}
        v_lshl_add_u32 v{vT1}, v{vT0}, 1, v{vT1}
        v_lshl_add_u32 v{vT2}, v{vT1}, 5, v{vT2}
        v_and_b32 v{vT1}, 3, v{vL}
        v_lshl_add_u32 v{vT2}, v{vT1}, 3, v{vT2}
        v_add_u32 v{vT16}, s{sRW}, v{vT2}
        """)
        for ct in range(1, 4):
            k.e(f"v_xor_b32 v{vT0}, {ct * 32}, v{vT2}\nv_add_u32 v{vT16 + ct}, s{sRW}, v{vT0}")
        k.e(f"""
        v_and_b32 v{vT0}, 15, v{vL}
        v_bfe_u32 v{vT1}, v{vL}, 4, 1
        v_lshl_add_u32 v{vT0}, v{vT0}, 1, v{vT1}
        v_lshlrev_b32 v{vT0}, 4, v{vT0}
        v_lshrrev_b32 v{vT1}, 5, v{vL}
        v_lshl_add_u32 v{vT0}, v{vT1}, 10, v{vT0}
        s_lshl_b32 s{sT0}, s{sW}, 11
        v_add_u32 v{vRD}, s{sT0}, v{vT0}
        """)
        if self.o["rot"]:
            k.e(f"s_lshl_b32 s{sKC}, s{sML}, 5")
        else:
            k.e(f"s_mov_b32 s{sKC}, 0")

    def stage1(self):
        k = self.k
        if self.o.get("cpf") == 1:
            self.code_prefetch()
        self.x_quarter(0)
        for u in range(3):
            self.w1_issue(u)
        if self.o.get("cpf") == 2:
            self.code_prefetch()
        self.clears()
        for qq in range(1, 4):
            self.x_quarter(qq)
        self.x_tail()
        self.stamp("iss0")
        self.prologue2()
        if self.o.get("gpf", 1):
            self.g_prefetch()
        for u in range(3, 10):
            self.w1_issue(u)
        self.stamp("iss")
        k.wait(vm="x")
        self.stamp("x0")
        lab = k.label("hs")
        k.e(f"""
        s_cmp_lg_u32 s{sW}, 0
        s_cbranch_scc1 {lab}
        s_and_b32 s{sT0}, s2, 3
        s_lshl_b32 s{sT0}, s{sT0}, 6
        v_mov_b32 v{vT0}, s{sT0}
        v_mov_b32 v{vT1}, 1
        s_mov_b64 exec, 1
        buffer_atomic_add v{vT1}, v{vT0}, {sr(SDBG, 4)}, 0 offen sc1
        s_mov_b64 exec, -1
        {lab}:
        """)

        def mm(u):
            a, b = AF + 8 * (u & 1), BFR + 4 * (u & 1)
            self.mfma32(ACC1, a, b, u == 0)
            self.mfma32(ACC1 + 16, a + 4, b, u == 0)

        def refill(u):
            if u + 10 < 24:
                self.w1_issue(u + 10)
            elif u >= 15 and u % 2 == 1:
                for op in self.w2_ops((u - 15) // 2):
                    op()
            if u == 17:
                k.e(f"v_and_b32 v{vT0}, 3, v{vL}\nv_lshlrev_b32 v{vT0}, 6, v{vT0}")
                k.vmem(f"buffer_load_dword v{vHS}, v{vT0}, {sr(SDBG, 4)}, 0 offen sc1", "hs")

        for u in range(24):
            i = u % 3
            if i == 0 and u:
                k.e(f"s_add_u32 s{sKC}, s{sKC}, 32\ns_and_b32 s{sKC}, s{sKC}, 0xe0")
            k.e(f"v_xor_b32 v{vBA + (u & 1)}, s{sKC}, v{vXB + i}")
            k.wait(vm=("w1", u))
            self.tr32(RB + 2048 * (u % 10), AF + 8 * (u & 1), "v", ("u", u))
            k.ds(f"ds_read_b128 {vr(BFR + 4 * (u & 1), 4)}, v{vBA + (u & 1)}", ("u", u))
            if u:
                k.wait(lg=("u", u - 1))
                mm(u - 1)
                refill(u - 1)
            if u in (5, 11, 17):
                self.stamp(f"u{u}")
        k.wait(lg=("u", 23))
        mm(23)
        refill(23)
        self.stamp("s1mfma")
        k.e(f"v_mov_b32 v{vKC3}, {f32(-C3)}")
        k.e(f"v_add_u32 v{vT3}, {2 * RW}, v{vRD}")
        k.nop(10)
        for blk in range(8):
            k.ds(f"ds_write_b128 v{vLIN}, {vr(ACC1 + 4 * blk, 4)} offset:{blk * 1024}")
        k.wait(lg="all")
        k.e("s_barrier")
        for sw in range(4):
            a = vRD if sw < 2 else vT3
            for j in range(2):
                k.ds(f"ds_read_b128 {vr(R1 + 8 * sw + 4 * j, 4)}, v{a} offset:{(sw & 1) * RW + j * 512}", ("r", sw))
        k.wait(lg=("r", 1))
        for i in range(8):
            k.e(f"v_add_f32 v{R1 + i}, v{R1 + i}, v{R1 + 8 + i}")
        k.wait(lg=("r", 3))
        for i in range(8):
            k.e(f"v_add_f32 v{R1 + 16 + i}, v{R1 + 16 + i}, v{R1 + 24 + i}")
        for i in range(8):
            k.e(f"v_add_f32 v{R1 + i}, v{R1 + i}, v{R1 + 16 + i}")
        self.gelu([R1 + i for i in range(8)], R1 + 8, vKC3)
        for i in range(4):
            k.e(f"v_cvt_pk_bf16_f32 v{R1 + 16 + i}, v{R1 + 2 * i}, v{R1 + 2 * i + 1}")
        k.e(f"""
        v_and_b32 v{vT0}, 15, v{vL}
        v_lshlrev_b32 v{vT0}, 4, v{vT0}
        v_bfe_u32 v{vT1}, v{vL}, 4, 1
        v_lshl_add_u32 v{vT0}, v{vT1}, 14, v{vT0}
        v_lshrrev_b32 v{vT1}, 5, v{vL}
        v_lshl_add_u32 v{vT0}, v{vT1}, 8, v{vT0}
        s_lshl_b32 s{sT0}, s{sM}, 15
        s_lshl_b32 s{sT1}, s{sN}, 11
        s_add_u32 s{sT0}, s{sT0}, s{sT1}
        s_lshl_b32 s{sT1}, s{sW}, 9
        s_add_u32 s{sT0}, s{sT0}, s{sT1}
        s_add_u32 s{sT0}, s{sT0}, {H_OFF}
        """)
        k.vmem(f"buffer_store_dwordx4 {vr(R1 + 16, 4)}, v{vT0}, {sr(SWS, 4)}, s{sT0} offen sc1", "hst")
        self.stamp("hst")
        k.e("s_barrier")

    def setup2(self):
        k = self.k
        k.e(f"""
        v_lshlrev_b32 v{vLIN16}, 4, v{vL}
        v_and_b32 v{vT0}, 15, v{vL}
        v_lshrrev_b32 v{vT1}, 4, v{vL}
        v_add_u32 v{vH0}, {32768 - 16}, v{vLIN16}
        v_lshlrev_b32 v{vT2}, 8, v{vT1}
        v_add_u32 v{vT2}, 240, v{vT2}
        s_cmp_eq_u32 s{sMT}, 0
        s_cselect_b32 s{sT0}, {OOB}, 0
        v_add_u32 v{vT2}, s{sT0}, v{vT2}
        v_cmp_eq_u32 vcc, 0, v{vT0}
        v_and_b32 v{vT3}, 7, v{vL}
        v_lshlrev_b32 v{vT3}, 9, v{vT3}
        v_cndmask_b32 v{vH0}, v{vH0}, v{vT2}, vcc
        v_add_u32 v{vFSM}, {256 + 240 + 12}, v{vT3}
        v_add_u32 v{vSMP}, 16384, v{vFSM}
        v_add_u32 v{vT2}, 32768, v{vSMP}
        v_add_u32 v{vT3}, s{sT0}, v{vSMP}
        v_cmp_gt_u32 vcc, 8, v{vL}
        v_bfrev_b32 v{vSV}, 1
        s_nop 0
        v_cndmask_b32 v{vSMP}, v{vT3}, v{vT2}, vcc
        v_cndmask_b32 v{vFSM}, v{vSV}, v{vFSM}, vcc
        v_cmp_gt_u32 vcc, 16, v{vL}
        v_lshrrev_b32 v{vT2}, 1, v{vT1}
        v_lshlrev_b32 v{vT2}, 8, v{vT2}
        v_cndmask_b32 v{vSMP}, v{vSV}, v{vSMP}, vcc
        v_lshl_add_u32 v{vT2}, v{vT0}, 4, v{vT2}
        v_and_b32 v{vT1}, 1, v{vT1}
        v_lshl_add_u32 v{vST}, v{vT1}, 3, v{vT2}
        s_lshl_b32 s{sT0}, s{sW}, 10
        v_add_u32 v{vRD2}, s{sT0}, v{vLIN16}
        s_lshl_b32 s{sT0}, s{sM}, 15
        s_lshl_b32 s{sT1}, s{sW}, 12
        s_add_u32 s{sH}, s{sT0}, s{sT1}
        s_add_u32 s{sH}, s{sH}, {H_OFF}
        s_sub_u32 s{sHS}, s{sH}, 32768
        s_lshl_b32 s{sT0}, s{sM}, 14
        s_add_u32 s{sFL}, s{sT0}, s{sT1}
        s_add_u32 s{sFL}, s{sFL}, {F_OFF}
        s_lshl_b32 s{sT1}, s{sW}, 9
        s_add_u32 s{sT0}, s{sT0}, s{sT1}
        s_xor_b32 s{sT1}, s{sN}, {self.o["x2"]}
        s_lshl_b32 s{sT1}, s{sT1}, 11
        s_add_u32 s{sFS}, s{sT0}, s{sT1}
        s_add_u32 s{sFS}, s{sFS}, {F_OFF}
        s_xor_b32 s{sT1}, s{sN}, {self.o["x3"]}
        s_lshl_b32 s{sT1}, s{sT1}, 11
        s_add_u32 s{sFES}, s{sT0}, s{sT1}
        s_add_u32 s{sFES}, s{sFES}, {FE_OFF}
        v_bfrev_b32 v{vGST}, 1
        s_lshl_b32 s{sWQ}, s{sML}, 16
        s_sub_u32 s{sWQ}, s{sWQ}, 16384
        """)

    def w2_finish(self):
        k = self.k
        for v in range(5, 9):
            for op in self.w2_ops(v):
                op()
        self.setup2()
        for v in range(3):
            k.wait(vm=("w2", v))
            self.tr16(self.w2_slot(v), 16 * v, "a", ("t2", v))
        for v in range(3):
            k.wait(lg=("t2", v))
            for op in self.w2_ops(9 + v):
                op()
        top, done = k.label("hsw"), k.label("hsd")
        k.e(f"""
        v_cmp_gt_u32 vcc, 64, v{vHS}
        s_cbranch_vccnz {top}
        {done}:
        """)
        self.ool.append(("hs", top, done))
        k.vmem(f"buffer_load_dword v{vHS}, v{vSMP}, {sr(SWS, 4)}, s{sHS} offen sc1", "smp")
        for v in range(3, 8):
            k.wait(vm=("w2", v))
            self.tr16(self.w2_slot(v), 16 * v, "a", ("t2", v))
        gtop, gjoin = k.label("gblk"), k.label("gjoin")
        k.e(f"s_cmp_lt_u32 s2, 8\ns_cbranch_scc1 {gtop}")
        self.ool.append(("g", gtop, gjoin, list(k.vm), list(k.lg)))
        self.w2_last()
        k.e(f"{gjoin}:")
        self.stamp("w2done")

    def w2_last(self):
        k = self.k
        for v in range(8, 12):
            k.wait(vm=("w2", v))
            self.tr16(self.w2_slot(v), 16 * v, "a", ("t2", v))

    def g_block(self):
        k = self.k
        GF = HB
        slots = [T4[0], T4[1], XS[1], XS[2]]
        k.wait(lg=("t2", 7))
        self.stamp("g0")
        for j in range(4):
            self.dma4k(SWG, slots[j], self.w32_soff(j, 0), ("wg", j))
        k.e(f"""
        v_and_b32 v{vT0}, 15, v{vL}
        v_lshlrev_b32 v{vT0}, 10, v{vT0}
        v_lshrrev_b32 v{vT1}, 4, v{vL}
        v_lshl_add_u32 v{vT0}, v{vT1}, 4, v{vT0}
        """)
        for j in range(4):
            t = self.tmp()
            k.e(f"s_lshr_b32 s{t}, s{sR4[j]}, 4")
            k.e(f"v_add_u32 v{vT1}, s{t}, v{vT0}")
            k.vmem(f"buffer_load_dwordx4 {vr(GF + 4 * j, 4)}, v{vT1}, {sr(SG, 4)}, 0 offen", "g")
        self.stamp("gdma")
        self.w2_last()
        self.stamp("gw2")
        k.e(f"""
        v_bfe_u32 v{vT0}, v{vL}, 3, 1
        v_lshlrev_b32 v{vT0}, 13, v{vT0}
        v_and_b32 v{vT1}, 7, v{vL}
        v_lshl_add_u32 v{vT0}, v{vT1}, 4, v{vT0}
        v_lshrrev_b32 v{vT1}, 5, v{vL}
        v_lshl_add_u32 v{vT0}, v{vT1}, 7, v{vT0}
        v_bfe_u32 v{vT1}, v{vL}, 4, 1
        v_lshl_add_u32 v{vT0}, v{vT1}, 3, v{vT0}
        s_lshl_b32 s{sT0}, s2, 10
        s_lshl_b32 s{sT1}, s{sW}, 8
        s_add_u32 s{sT0}, s{sT0}, s{sT1}
        s_add_u32 s{sT0}, s{sT0}, {GE_OFF}
        v_add_u32 v{vGST}, s{sT0}, v{vT0}
        """)
        for j in range(4):
            k.wait(vm=("wg", j))
            self.tr16(slots[j], 192 + 16 * j, "a", ("twg", j))
        self.stamp("gwg")
        k.wait(vm="all")
        self.stamp("gld")
        for j in range(4):
            k.wait(lg=("twg", j))
            for ct in range(4):
                self.mfma16(ACC2 + 4 * ct, 192 + 16 * j + 4 * ct, GF + 4 * j, j == 0)
        self.stamp("gmf")
        self.reduce16(ACC2, False, None, None, None)
        k.e("s_barrier")
        self.stamp("gend")

    def poll_sample(self, stem, vaddr, sbase):
        k = self.k
        top, done = k.label(stem + "p"), k.label(stem + "d")
        k.wait(vm="smp")
        k.e(f"""
        v_cmp_eq_u32 vcc, -1, v{vHS}
        s_cbranch_vccnz {top}
        {done}:
        """)
        self.ool.append(("smp", top, done, vaddr, sbase))

    def reduce16(self, acc, act, vst, sst, tag, mid=None):
        k = self.k
        k.e(f"v_add_u32 v{vT3}, {2 * RW}, v{vRD2}")
        k.nop(8)
        for ct in range(4):
            k.ds(f"ds_write_b128 v{vLIN}, {vr(acc + 4 * ct, 4)} offset:{ct * 1024}")
        k.wait(lg="all")
        k.e("s_barrier")
        for sw in range(4):
            a = vRD2 if sw < 2 else vT3
            k.ds(f"ds_read_b128 {vr(R2 + 4 * sw, 4)}, v{a} offset:{(sw & 1) * RW}", ("r", sw))
        if mid:
            mid()
        k.wait(lg=("r", 1))
        for i in range(4):
            k.e(f"v_add_f32 v{R2 + i}, v{R2 + i}, v{R2 + 4 + i}")
        k.wait(lg=("r", 3))
        for i in range(4):
            k.e(f"v_add_f32 v{R2 + 8 + i}, v{R2 + 8 + i}, v{R2 + 12 + i}")
        for i in range(4):
            k.e(f"v_add_f32 v{R2 + i}, v{R2 + i}, v{R2 + 8 + i}")
        if act:
            self.gelu([R2 + i for i in range(4)], R2 + 4, vKC3)
        k.e(f"v_cvt_pk_bf16_f32 v{R2 + 8}, v{R2}, v{R2 + 1}")
        k.e(f"v_cvt_pk_bf16_f32 v{R2 + 9}, v{R2 + 2}, v{R2 + 3}")
        if vst is not None:
            k.vmem(f"buffer_store_dwordx2 {vr(R2 + 8, 2)}, v{vst}, {sr(SWS, 4)}, s{sst} offen sc1", tag)

    def stage2(self):
        k = self.k
        self.poll_sample("h", vSMP, sHS)
        self.stamp("hpoll")

        def loads(counted, sc):
            for v in range(12):
                j, i = v // 3, v % 3
                t = self.tmp()
                k.e(f"s_add_u32 s{t}, s{sH}, s{sR4[j]}")
                if i == 0:
                    k.e(f"s_sub_u32 s{t}, s{t}, 16384")
                elif i == 2:
                    k.e(f"s_add_u32 s{t}, s{t}, 16384")
                ins = (f"buffer_load_dwordx4 {vr(HB + 4 * v, 4)}, v{vH0 if i == 0 else vLIN16}, "
                       f"{sr(SWS, 4)}, s{t} offen" + (" sc1" if sc else ""))
                if counted:
                    k.vmem(ins, ("h", v))
                else:
                    k.e(ins)
        k.e(f"s_mov_b32 s{sSPIN}, 0")
        loads(True, not self.o["hplain"])
        k.vmem(f"buffer_store_dwordx2 {vr(R2 + 8, 2)}, v{vGST}, {sr(SWS, 4)}, 0 offen sc1", "gest")
        k.wait(lg="all")
        fill = []
        for j in range(4):
            fill += self.dma4k_ops(SWF, T4[j], self.w32_soff(j, 0), ("wf", j))
        for _ in range(self.o.get("wfpre", 4)):
            fill.pop(0)()
        mf, retry, ok = k.label("s2m"), k.label("s2r"), k.label("s2k")
        k.e(f"{mf}:")
        for v in range(12):
            k.wait(vm=("h", v))
            f = HB + 4 * v
            if v == 0:
                k.e(f"v_mov_b32 v{vT0}, v{f + 3}")
            elif v % 2 == 0:
                k.e(f"v_max3_u32 v{vT0}, v{vT0}, v{f - 1}, v{f + 3}")
            for ct in range(4):
                self.mfma16(ACC2 + 4 * ct, 16 * v + 4 * ct, f, v == 0)
            if v < self.o.get("wfloop", 12) and fill:
                fill.pop(0)()
        k.e(f"v_max_u32 v{vT0}, v{vT0}, v{HB + 47}")
        k.e(f"v_cmp_eq_u32 vcc, -1, v{vT0}\ns_cbranch_vccnz {retry}\n{ok}:")
        self.ool.append(("bulk", retry, ok, mf, loads))
        self.stamp("s2mfma")
        self.wf_rest = fill

    def wo_slot(self, bb, e):
        if bb % 2 == 0:
            base = [T4[4], XS[1], XS[2], XS[3]]
        else:
            base = [T4[0], T4[1], T4[2], T4[3]]
        return base[e // 2] + 2048 * (e & 1)

    def wo_issue(self, bb, e0, e1):
        k = self.k
        for e in range(e0, e1):
            assert self.wo_next == 8 * bb + e
            self.wo_next += 1
            k.e(f"s_add_u32 s{sWQ}, s{sWQ}, 16384\ns_and_b32 s{sWQ}, s{sWQ}, 0x7c000")
            self.dma2k(SWO, self.wo_slot(bb, e), f"s{sWQ}", ("wo", bb, e))

    def wo_tr_ops(self, bb):
        ops = []
        for e in range(8):
            for ct, a in enumerate((vTR0, vTR1)):
                for hf in range(2):
                    off = self.wo_slot(bb, e) + 512 * hf
                    dst = 8 * (8 * bb + e) + 4 * ct + 2 * hf
                    ops.append(("ds", f"ds_read_b64_tr_b16 {vr(dst, 2, 'a')}, v{a} offset:{off}", ("two", bb)))
        return ops

    def wo_tr(self, bb):
        k = self.k
        for e in range(8):
            k.wait(vm=("wo", bb, e))
            self.tr32(self.wo_slot(bb, e), 8 * (8 * bb + e), "a", ("two", bb))

    def stage2_tail(self):
        k = self.k
        self.wo_next = 0

        def mid():
            for _ in range(self.o.get("wfmid", 0)):
                if self.wf_rest:
                    self.wf_rest.pop(0)()
        self.reduce16(ACC2, True, vST, sFS, "fst", mid=mid)
        self.stamp("fst")
        while self.wf_rest:
            self.wf_rest.pop(0)()
        k.e("s_barrier")
        self.wo_issue(0, 0, 8)
        k.e(f"""
        v_bfe_u32 v{vT0}, v{vL}, 2, 2
        v_lshrrev_b32 v{vT1}, 5, v{vL}
        v_lshl_add_u32 v{vT1}, v{vT1}, 3, v{vT0}
        v_lshlrev_b32 v{vT1}, 7, v{vT1}
        v_lshrrev_b32 v{vT2}, 1, v{vT0}
        v_lshl_add_u32 v{vT1}, v{vT2}, 6, v{vT1}
        v_bfe_u32 v{vT2}, v{vL}, 4, 1
        v_lshl_add_u32 v{vT1}, v{vT2}, 5, v{vT1}
        v_and_b32 v{vT2}, 1, v{vL}
        v_lshl_add_u32 v{vT1}, v{vT2}, 4, v{vT1}
        v_bfe_u32 v{vT2}, v{vL}, 1, 1
        v_lshl_add_u32 v{vT1}, v{vT2}, 3, v{vT1}
        v_add_u32 v{vTR0}, s{sRW}, v{vT1}
        v_xor_b32 v{vT1}, 64, v{vT1}
        v_add_u32 v{vTR1}, s{sRW}, v{vT1}
        """)
        k.wait(vm=("wf", 3))
        for j in range(4):
            self.tr16(T4[j], 192 + 16 * j, "a", "twf")
        if self.o["b1B"]:
            k.wait(lg="twf")
            self.wo_issue(1, 0, self.o["b1B"])

    def stage3(self):
        k = self.k
        FB = HB

        def loads(counted, sc):
            for j in range(4):
                t = self.tmp()
                k.e(f"s_add_u32 s{t}, s{sFL}, s{sR4[j]}")
                ins = (f"buffer_load_dwordx4 {vr(FB + 4 * j, 4)}, v{vLIN16}, {sr(SWS, 4)}, s{t} offen"
                       + (" sc1" if sc else ""))
                if counted:
                    k.vmem(ins, ("f", j))
                else:
                    k.e(ins)
        k.vmem(f"buffer_load_dword v{vHS}, v{vFSM}, {sr(SWS, 4)}, s{sFL} offen sc1", "smp")
        self.wo_tr(0)
        self.poll_sample("f", vFSM, sFL)
        self.stamp("fpoll")
        k.e(f"s_mov_b32 s{sSPIN}, 0")
        loads(True, not self.o["fplain"])
        k.wait(lg="all")
        mf, retry, ok = k.label("s3m"), k.label("s3r"), k.label("s3k")
        self.wo_issue(1, self.o["b1B"], 8)
        k.e(f"{mf}:")
        for j in range(4):
            k.wait(vm=("f", j))
            f = FB + 4 * j
            if j == 0:
                k.e(f"v_max_u32 v{vT0}, v{f + 1}, v{f + 3}")
            else:
                k.e(f"v_max3_u32 v{vT0}, v{vT0}, v{f + 1}, v{f + 3}")
            for ct in range(4):
                self.mfma16(ACC2 + 4 * ct, 192 + 16 * j + 4 * ct, f, j == 0)
        k.e(f"v_cmp_eq_u32 vcc, -1, v{vT0}\ns_cbranch_vccnz {retry}\n{ok}:")
        self.ool.append(("bulk", retry, ok, mf, loads))
        self.stamp("s3mfma")
        self.reduce16(ACC2, False, vST, sFES, "fest", mid=lambda: self.wo_issue(2, 0, self.o["b2C"]))
        self.stamp("fest")
        k.e("s_barrier")

    def stage4(self):
        k = self.k
        CB, FR, Z, JP, BF, ACC, OUT = 32, 96, 128, 144, 160, 192, 224
        vGA, vFA, vJ0, vJ2 = 8, 9, 10, 11
        RAW = 160
        k.e(f"""
        v_and_b32 v{vT0}, 7, v{vL}
        v_lshlrev_b32 v{vT0}, 4, v{vT0}
        v_lshrrev_b32 v{vT1}, 5, v{vL}
        v_lshl_add_u32 v{vGA}, v{vT1}, 7, v{vT0}
        v_bfe_u32 v{vT0}, v{vL}, 3, 2
        v_lshlrev_b32 v{vT0}, 4, v{vT0}
        v_lshl_add_u32 v{vFA}, v{vT1}, 8, v{vT0}
        v_lshlrev_b32 v{vJ0}, 4, v{vL}
        v_add_u32 v{vJ2}, {2 * RW}, v{vJ0}
        s_lshl_b32 s{sGL}, s{sB}, 13
        s_lshl_b32 s{sT0}, s{sW}, 8
        s_add_u32 s{sGL}, s{sGL}, s{sT0}
        s_add_u32 s{sGL}, s{sGL}, {GE_OFF}
        s_lshl_b32 s{sFE}, s{sM}, 14
        s_lshl_b32 s{sT0}, s{sW}, 9
        s_add_u32 s{sFE}, s{sFE}, s{sT0}
        s_lshl_b32 s{sT0}, s{sJN}, 6
        s_add_u32 s{sFE}, s{sFE}, s{sT0}
        s_add_u32 s{sFE}, s{sFE}, {FE_OFF}
        """)

        def np_off(r, shift):
            t = self.tmp()
            if self.o["rot"]:
                k.e(f"s_add_u32 s{t}, s{sML}, {r}\ns_and_b32 s{t}, s{t}, 7\ns_lshl_b32 s{t}, s{t}, {shift}")
            else:
                k.e(f"s_mov_b32 s{t}, {r << shift}")
            return t

        def ge_loads(counted):
            for r in range(8):
                t = np_off(r, 10)
                k.e(f"s_add_u32 s{t}, s{t}, s{sGL}")
                ins = f"buffer_load_dwordx4 {vr(RAW + 4 * r, 4)}, v{vGA}, {sr(SWS, 4)}, s{t} offen sc1"
                if counted:
                    k.vmem(ins, "ge")
                else:
                    k.e(ins)

        def fe_loads(counted):
            for r in range(8):
                t = np_off(r, 11)
                k.e(f"s_add_u32 s{t}, s{t}, s{sFE}")
                ins = f"buffer_load_dwordx4 {vr(FR + 4 * r, 4)}, v{vFA}, {sr(SWS, 4)}, s{t} offen sc1"
                if counted:
                    k.vmem(ins, ("fe", r))
                else:
                    k.e(ins)

        def check(base, n, dst):
            k.e(f"v_max_u32 v{dst}, v{base + 1}, v{base + 3}")
            for r in range(1, n):
                k.e(f"v_max3_u32 v{dst}, v{dst}, v{base + 4 * r + 1}, v{base + 4 * r + 3}")

        ge_loads(True)
        self.wo_issue(2, self.o["b2C"], 8)
        self.wo_tr(1)
        k.wait(lg="all")
        self.wo_issue(3, 0, 8)
        k.e(f"s_mov_b32 s{sSPIN}, 0")
        k.wait(vm="ge")
        retry, ok = k.label("ger"), k.label("gek")
        again = k.label("gea")
        k.e(f"{again}:")
        check(RAW, 8, vT0)
        k.e(f"v_cmp_eq_u32 vcc, -1, v{vT0}\ns_cbranch_vccnz {retry}\n{ok}:")
        self.ool.append(("poll", retry, ok, again, ge_loads))
        k.e(f"s_mov_b32 s{sA}, {f32(CT)}")
        fe_loads(True)
        for r in range(8):
            for i in range(4):
                src = RAW + 4 * r + i
                k.e(f"v_lshlrev_b32 v{CB + 8 * r + 2 * i}, 16, v{src}")
                k.e(f"v_and_b32 v{CB + 8 * r + 2 * i + 1}, 0xffff0000, v{src}")
        for i in range(64):
            k.e(f"v_mul_f32 v{CB + i}, s{sA}, v{CB + i}")
        self.stamp("cb")
        self.wo_tr(2)
        late_tr = []
        if self.o["trb3"] == "pre":
            self.wo_tr(3)
        else:
            late_tr = self.wo_tr_ops(3)
        k.e(f"s_mov_b32 s{sSPIN}, 0")
        k.wait(vm=("fe", 7))
        retry, ok = k.label("fer"), k.label("fek")
        again = k.label("fea")
        k.e(f"{again}:")
        check(FR, 8, vT0)
        k.e(f"v_cmp_eq_u32 vcc, -1, v{vT0}\ns_cbranch_vccnz {retry}\n{ok}:")
        self.ool.append(("poll", retry, ok, again, fe_loads))
        self.stamp("fepoll")

        def j_ops(r):
            ops = []
            z = Z + 8 * (r & 1)
            jp = JP + 4 * (r & 1)
            for i in range(4):
                ops.append((f"v_lshlrev_b32 v{z + 2 * i}, 16, v{FR + 4 * r + i}", 4))
                ops.append((f"v_and_b32 v{z + 2 * i + 1}, 0xffff0000, v{FR + 4 * r + i}", 4))
            for i in range(8):
                ops.append((f"v_fma_f32 v{z + i}, v{z + i}, s{sA}, v{CB + 8 * r + i}", 4))
            for i in range(8):
                ops.append((f"v_exp_f32 v{z + i}, v{z + i}", 8))
            for i in range(8):
                ops.append((f"v_add_f32 v{z + i}, 1.0, v{z + i}", 4))
            for i in range(8):
                ops.append((f"v_rcp_f32 v{z + i}, v{z + i}", 8))
            for i in range(8):
                ops.append((f"v_fma_f32 v{z + i}, v{z + i}, -2.0, 1.0", 4))
            for i in range(4):
                ops.append((f"v_cvt_pk_bf16_f32 v{jp + i}, v{z + 2 * i}, v{z + 2 * i + 1}", 4))
            ops.append(("ds", f"ds_write_b128 v{vLIN}, {vr(jp, 4)} offset:{r * 1024}", ("jw", r)))
            return ops

        dbg = self.o.get("s4dbg", "")

        def emit(op):
            if op[0] == "ds":
                k.ds(op[1], op[2])
                return 4
            t = op[0]
            if "notrans" in dbg:
                t = t.replace("v_exp_f32", "v_mov_b32").replace("v_rcp_f32", "v_mov_b32")
            if "novalu" not in dbg and not ("nofma" in dbg and t.startswith("v_fma")):
                k.e(t)
            return op[1]

        def read1(r, jj):
            b = BF + 16 * (r & 1)
            a = vJ0 if jj < 2 else vJ2
            k.ds(f"ds_read_b128 {vr(b + 4 * jj, 4)}, v{a} offset:{(jj & 1) * RW + r * 1024}", ("jr", r, jj))

        def reads(r):
            for jj in range(4):
                read1(r, jj)

        k.wait(lg="all")
        if "twice" in dbg:
            k.e(f"s_mov_b32 s{sSPIN}, 0\nL_twice:\ns_waitcnt lgkmcnt(0)\ns_barrier")
            self.stamp("fepoll2")
        for op in j_ops(0):
            emit(op)
        o1 = j_ops(1)
        for op in o1[:16]:
            emit(op)
        k.wait(lg=("jw", 0))
        k.e("s_barrier")
        reads(0)
        for op in o1[16:]:
            emit(op)
        self.stamp("j01")
        for r in range(8):
            ops = j_ops(r + 2) if r + 2 < 8 else []
            total = sum(op[1] if op[0] != "ds" else 4 for op in ops)
            spread = self.o.get("s4spread", 0)
            if not spread:
                k.wait(lg=("jr", r, 3))
            b = BF + 16 * (r & 1)
            spent = 0
            bar_at = self.o["s4bar"] + (self.o.get("s4bar0", 2) if r == 0 else 0)
            assert bar_at + 3 * spread <= 7
            for i in range(8):
                jj, ct = i // 2, i % 2
                q = 4 * r + jj
                if r == 6 and i == 0:
                    k.wait(lg=("two", 3))
                if spread and ct == 0:
                    k.wait(lg=("jr", r, jj))
                if "nomfma" not in dbg:
                    self.mfma32(ACC + 16 * ct, 8 * q + 4 * ct, b + 4 * jj, r == 0 and jj == 0, ak="a")
                if i == bar_at and r + 1 < 8:
                    self.stamp(f"ba{r}")
                    k.wait(lg=("jw", r + 1))
                    self.stamp(f"bb{r}")
                    if "nobar" not in dbg:
                        k.e("s_barrier")
                    self.stamp(f"bc{r}")
                    if not spread:
                        reads(r + 1)
                if spread and r + 1 < 8 and 0 <= (i - bar_at) < 4 * spread and (i - bar_at) % spread == 0:
                    read1(r + 1, (i - bar_at) // spread)
                if late_tr and i > bar_at:
                    for _ in range(2):
                        if late_tr:
                            emit(late_tr.pop(0))
                while ops and spent < total * (i + 1) / 8:
                    spent += emit(ops.pop(0))
            while ops:
                emit(ops.pop(0))
            self.stamp(f"s4r{r}")
        assert not late_tr
        if "twice" in dbg:
            k.e(f"s_add_u32 s{sSPIN}, s{sSPIN}, 1\ns_cmp_lt_u32 s{sSPIN}, 2\ns_cbranch_scc1 L_twice")
        self.stamp("s4mfma")
        k.e(f"""
        s_lshl_b32 s{sT0}, s{sMT}, 7
        s_lshl_b32 s{sT1}, s{sJN}, 5
        s_add_u32 s{sT0}, s{sT0}, s{sT1}
        s_lshl_b32 s{sT0}, s{sT0}, 10
        s_lshl_b32 s{sT1}, s{sNH}, 9
        s_add_u32 s{sT0}, s{sT0}, s{sT1}
        s_lshl_b32 s{sT1}, s{sW}, 7
        s_add_u32 s{sT0}, s{sT0}, s{sT1}
        v_and_b32 v{vT0}, 31, v{vL}
        v_lshlrev_b32 v{vT0}, 10, v{vT0}
        v_lshrrev_b32 v{vT1}, 5, v{vL}
        v_lshl_add_u32 v{vT0}, v{vT1}, 4, v{vT0}
        v_add_u32 v{vT0}, s{sT0}, v{vT0}
        """)
        k.nop(2)
        for ct in range(2):
            for a in range(2):
                src = ACC + 16 * ct + 8 * a
                dst = OUT + 8 * ct + 4 * a
                for i in range(4):
                    k.e(f"v_cvt_pk_bf16_f32 v{dst + i}, v{src + 2 * i}, v{src + 2 * i + 1}")
                o = ct * 64 + a * 32
                os_ = f" offset:{o}" if o else ""
                k.vmem(f"buffer_store_dwordx4 {vr(dst, 4)}, v{vT0}, {sr(SOUT, 4)}, 0 offen{os_}", "out")

    def epilogue(self):
        k = self.k
        if self.stamps:
            self.stamp("end")
            n = self.nst
            k.e("s_waitcnt vmcnt(0) lgkmcnt(0)")
            for i in range(n):
                k.e(f"v_writelane_b32 v{vT1}, s{STAMP0 + 2 * i}, {i}")
            k.e(f"""
            s_lshl_b32 s{sT0}, s2, 2
            s_add_u32 s{sT0}, s{sT0}, s{sW}
            s_lshl_b32 s{sT0}, s{sT0}, 6
            s_add_u32 s{sT0}, s{sT0}, {STAMP_OFF}
            s_mov_b32 s{SWS + 2}, {STAMP_OFF + (1 << 20)}
            v_lshlrev_b32 v{vT0}, 2, v{vL}
            s_mov_b64 exec, 0xffff
            buffer_store_dword v{vT1}, v{vT0}, {sr(SWS, 4)}, s{sT0} offen
            """)
        k.e("s_waitcnt vmcnt(0)\nL_end:\ns_endpgm")
        for item in self.ool:
            if item[0] == "hs":
                _, top, done = item
                k.e(f"""
                {top}:
                s_mov_b32 s{sSPIN}, 0
                v_and_b32 v{vT0}, 3, v{vL}
                v_lshlrev_b32 v{vT0}, 6, v{vT0}
                {top}_l:
                """)
                self.spin_check(done)
                k.e(f"""
                buffer_load_dword v{vHS}, v{vT0}, {sr(SDBG, 4)}, 0 offen sc1
                s_waitcnt vmcnt(0)
                v_cmp_gt_u32 vcc, 64, v{vHS}
                s_cbranch_vccnz {top}_l
                s_branch {done}
                """)
            elif item[0] == "g":
                _, top, join, vm, lg = item
                k.vm, k.lg = vm, lg
                k.e(f"{top}:")
                self.g_block()
                k.e(f"s_branch {join}")
            elif item[0] == "smp":
                _, top, done, vaddr, sbase = item
                k.e(f"{top}:\ns_mov_b32 s{sSPIN}, 0\n{top}_l:")
                self.spin_check(done)
                k.e(f"""
                buffer_load_dword v{vHS}, v{vaddr}, {sr(SWS, 4)}, s{sbase} offen sc1
                s_waitcnt vmcnt(0)
                v_cmp_eq_u32 vcc, -1, v{vHS}
                s_cbranch_vccnz {top}_l
                s_branch {done}
                """)
            else:
                kind, retry, ok, back, loads = item
                k.e(f"{retry}:")
                self.spin_check(ok)
                if kind == "bulk":
                    loads(False, True)
                else:
                    loads(False)
                k.e(f"s_waitcnt vmcnt(0)\ns_branch {back}")
        k.e("L_last:\ns_endpgm")

    def build(self):
        k = self.k
        stop = self.stop_after
        self.prologue()
        self.stage1()
        self.w2_finish()
        if stop != "s1":
            self.stage2()
            self.stage2_tail()
            if stop not in ("s2", "ge"):
                self.stage3()
                if stop != "s3":
                    self.stage4()
        self.epilogue()
        return self.text()

    def text(self):
        head = f"""; RNN-T joint network: two stride-2 conv stems, w_f / w_g projections, tanh, w_o.
; @launch grid=(256,1,1) block=(256,1,1) lds={LDS_BYTES}
.amdgcn_target "amdgcn-amd-amdhsa--gfx950"
.text
.globl {NAME}
.p2align 8
.type {NAME},@function
{NAME}:
"""
        tail = f"""
.section .rodata,"a"
.p2align 6
.amdhsa_kernel {NAME}
  .amdhsa_next_free_vgpr 512
  .amdhsa_next_free_sgpr 102
  .amdhsa_accum_offset 256
  .amdhsa_group_segment_fixed_size 0
  .amdhsa_kernarg_size 80
  .amdhsa_user_sgpr_count 2
  .amdhsa_user_sgpr_kernarg_segment_ptr 1
  .amdhsa_system_sgpr_workgroup_id_x 1
.end_amdhsa_kernel
"""
        return head + self.k.text() + tail


if __name__ == "__main__":
    out = sys.argv[1] if len(sys.argv) > 1 else "cdna_kernels/" + NAME.replace("_kernel", "") + ".s"
    g = Gen2(stamps=False)
    open(out, "w").write(g.build())
    print("wrote", out)
```

```python
import re, sys

TRANS = ("v_exp_f32", "v_log_f32", "v_rcp_f32", "v_rsq_f32", "v_sqrt_f32", "v_sin_f32", "v_cos_f32")


def regs(tok):
    tok = tok.strip()
    m = re.fullmatch(r"([vas])(\d+)", tok)
    if m:
        return {(m.group(1), int(m.group(2)))}
    m = re.fullmatch(r"([vas])\[(\d+):(\d+)\]", tok)
    if m:
        return {(m.group(1), i) for i in range(int(m.group(2)), int(m.group(3)) + 1)}
    if tok == "vcc":
        return {("s", "vcc")}
    if tok == "m0":
        return {("s", "m0")}
    if tok == "exec":
        return {("s", "exec")}
    return set()


def parse(line):
    line = line.split(";")[0].strip()
    if not line or line.endswith(":") or line.startswith("."):
        return None
    parts = line.split(None, 1)
    op = parts[0]
    rest = parts[1] if len(parts) > 1 else ""
    ops = [o.strip() for o in rest.split(",")] if rest else []
    mods = ""
    if ops:
        last = ops[-1].split(None, 1)
        ops[-1] = last[0]
        mods = last[1] if len(last) > 1 else ""
    d = dict(op=op, line=line, mods=mods, w=set(), r=set(), cls="other", data=set())
    R = [regs(o) for o in ops]
    if op.startswith("v_mfma"):
        d["cls"] = "mfma"; d["w"] = R[0]; d["ab"] = R[1] | R[2]; d["c"] = R[3]; d["r"] = d["ab"] | d["c"]
    elif op.startswith("v_cmp"):
        d["cls"] = "valu"; d["w"] = R[0]; d["r"] = set().union(*R[1:])
    elif op.startswith("v_permlane"):
        d["cls"] = "valu"; d["w"] = R[0] | R[1]; d["r"] = R[0] | R[1]
    elif op.startswith("v_"):
        d["cls"] = "valu"; d["w"] = R[0]; d["r"] = set().union(*R[1:]) if len(R) > 1 else set()
        if op.startswith("v_cndmask") and len(R) == 3:
            d["r"] |= {("s", "vcc")}
        if op.startswith("v_fmac") or op.startswith("v_writelane"):
            d["r"] |= R[0]
        if op in ("v_add_co_u32", "v_addc_co_u32"):
            d["w"] |= R[1]
    elif op.startswith("ds_read"):
        d["cls"] = "ds"; d["w"] = R[0]; d["r"] = R[1]
    elif op.startswith("ds_write"):
        d["cls"] = "ds"; d["r"] = set().union(*R)
    elif op.startswith("buffer_load") or op.startswith("global_load"):
        d["cls"] = "vmem"
        if " lds" in " " + mods or mods.endswith("lds"):
            d["r"] = set().union(*R) | {("s", "m0")}; d["dma"] = True
        else:
            d["w"] = R[0]; d["r"] = set().union(*R[1:])
    elif op.startswith("buffer_store") or op.startswith("buffer_atomic") or op.startswith("global_store"):
        d["cls"] = "vmem"; d["r"] = set().union(*R)
        d["data"] = R[0] if op.startswith("buffer") else R[1]
        d["wide"] = op.endswith("x4") or op.endswith("x3")
    elif op.startswith("s_"):
        d["cls"] = "salu"
        if op.startswith("s_cmp") or op.startswith("s_cbranch") or op in ("s_branch", "s_waitcnt", "s_barrier", "s_nop", "s_endpgm", "s_setprio"):
            d["r"] = set().union(*R) if R else set()
        else:
            d["w"] = R[0] if R else set(); d["r"] = set().union(*R[1:]) if len(R) > 1 else set()
    d["ws"] = int(ops[0]) + 1 if op == "s_nop" else 1
    return d


def lint(text):
    ins = [p for p in (parse(l) for l in text.split("\n")) if p]
    errs = []
    for c in ins:
        m = re.search(r"offset:(\d+)", c["mods"])
        if m:
            v = int(m.group(1))
            if c["cls"] == "vmem" and v > 4095:
                errs.append("MUBUF offset > 4095: " + c["line"])
            if c["cls"] == "ds" and v > 65535:
                errs.append("DS offset > 65535: " + c["line"])
    for i, c in enumerate(ins):
        dist = 0
        for j in range(i - 1, max(-1, i - 40), -1):
            p = ins[j]
            need = 0
            why = ""
            vw = {r for r in p["w"] if r[0] in "va"}
            sw = {r for r in p["w"] if r[0] == "s"}
            if p["cls"] == "valu":
                if c["cls"] == "mfma" and vw & c["r"]:
                    need, why = 2, "valu->mfma"
                if c["op"].startswith("v_permlane") and vw & c["r"]:
                    need, why = 2, "valu->permlane"
                if "dpp" in c["op"] or "wave_sh" in c["mods"] or "row_" in c["mods"]:
                    if vw & c["r"]:
                        need, why = 2, "valu->dpp"
                if c["op"] in ("v_readfirstlane_b32", "v_readlane_b32") and vw & c["r"]:
                    need, why = max(need, 1), "valu->readlane"
                if p["op"] in TRANS and c["cls"] == "valu" and c["op"] not in TRANS and vw & c["r"]:
                    need, why = max(need, 1), "trans->valu"
                if sw and c["cls"] == "valu" and sw & c["r"]:
                    need, why = max(need, 2), "valu sgpr->valu"
                if sw and c["cls"] == "vmem" and sw & c["r"]:
                    need, why = max(need, 5), "valu sgpr->vmem"
            if p["cls"] == "mfma":
                if c["cls"] == "mfma":
                    if vw & c["ab"]:
                        need, why = 12, "mfma D->A/B"
                    elif vw & c["c"] and vw != c["c"]:
                        need, why = 10, "mfma D->C partial"
                elif vw & (c["r"] | c["w"]):
                    need, why = 12, "mfma D->other"
            if p["cls"] == "salu" and ("s", "m0") in p["w"] and c.get("dma"):
                need, why = 1, "m0->dma"
            if p.get("wide") and p["data"] & c["w"]:
                need, why = (2 if c["cls"] == "valu" else 1), "store data WAR"
            if dist < need:
                errs.append(f"{why}: need {need}, have {dist}\n    {p['line']}\n    {c['line']}")
            dist += p["ws"]
            if dist >= 20:
                break
    return errs


if __name__ == "__main__":
    e = lint(open(sys.argv[1]).read())
    print("\n".join(e) if e else "lint clean")
```

```python
import sys, kgen2, lint
name, o = sys.argv[1], sys.argv[2] if len(sys.argv) > 2 else ""
g = kgen2.Gen2(stamps=False, opts=eval(f"dict({o})", vars(kgen2)))
t = g.build()
le = lint.lint(t)
if le:
    print("LINT", le[:5]); sys.exit(1)
open(f"exp/{name}.s", "w").write(t)
print("wrote", name, len(t))
```

```python
import math
import sys
from kb import K, vr, ar, sr, f32

NAME = "standalone__seq2seq_rnn_t_joint__speech_kernel"

H_OFF = 65536
F_OFF = H_OFF + (1 << 20)
FE_OFF = F_OFF + (1 << 19)
GE_OFF = FE_OFF + (1 << 19)
WS_REC = 4 << 20
STAMP_OFF = 8 << 20
OOB = 0x80000000
SPIN_MAX = 4096

RW = 40960
RB = 17408
LDS_BYTES = 163840
T4 = [RB + 4096 * t for t in range(5)]
XS = [4096 * t for t in range(4)]

SX, SW1, SW2, SG, SWF, SWG, SWO, SOUT, SDBG, SWS = 24, 28, 32, 36, 40, 44, 48, 52, 56, 60
sW, sM, sN, sB, sMT, sRW, sML, sJN = 64, 65, 66, 67, 68, 69, 70, 71
sKI, sKC = 72, 3
sT0, sT1, sT2, sT3 = 73, 74, 75, 76
sSPIN = 77
STAMP0 = 78
sH, sFL, sFS, sFE, sGL, sGS, sHS, sA, sB2 = 4, 5, 6, 7, 8, 9, 10, 11, 12
sR4 = [13, 14, 15, 16]
sNH = 17
sFES, sWQ = 18, 19

vL, vT0, vT1, vT2, vT3, vLIN, vRD = 1, 2, 3, 4, 5, 6, 7
vXW = 8
vXA, vXZ, vQ0 = 12, 13, 14
vWA0, vWA1, vTR0, vTR1 = 15, 16, 17, 18
vXB = 19
vBA = 22
vW2 = 24
vT16 = 28
vONES = 32
vHS = 36
AF, BFR, ACC1, R1 = 40, 56, 64, 96
vLIN16, vH0, vSMP, vST, vRD2, vKC3, vSV, vFSM, vGST = 8, 9, 10, 11, 12, 13, 14, 19, 20
HB, ACC2, R2 = 128, 176, 192
vPF = 37

C1 = 2 * math.log2(math.e) * math.sqrt(2 / math.pi)
C3 = C1 * 0.044715
CT = 2 * math.log2(math.e)

DEFAULT_STAMPS = ("start", "iss", "x0", "s1mfma", "hst", "w2done", "hpoll", "s2mfma", "fst", "s3mfma", "fest", "end")
S1_STAMPS = ("start", "karg", "iss0", "iss", "x0", "u5", "u11", "u17", "s1mfma", "hst", "w2done", "end")
R4_STAMPS = ("start", "fepoll", "j01", "s4r0", "s4r1", "s4r2", "s4r3", "s4r4", "s4r5", "s4r6", "s4r7", "end")
R5_STAMPS = ("start", "fepoll2", "j01", "s4r0", "s4r1", "s4r2", "s4r3", "s4r4", "s4r5", "s4r6", "s4r7", "end")
G_STAMPS = ("start", "hst", "g0", "gdma", "gw2", "gwg", "gld", "gmf", "gend", "w2done", "hpoll", "end")
S2_STAMPS = ("start", "s1mfma", "hst", "w2done", "hpoll", "s2mfma", "fst", "fpoll", "s3mfma", "fest", "fepoll", "end")
S4_STAMPS = ("start", "hst", "s2mfma", "fst", "fpoll", "s3mfma", "fest", "cb", "fepoll", "s4r3", "s4mfma", "end")


class Gen2:
    def __init__(self, stop_after=None, stamps=True, opts=None):
        self.k = K()
        self.stop_after = stop_after
        self.stamps = stamps
        self.nst = 0
        self.names = []
        self.o = dict(prefetch=False, rot=True, hplain=True, fplain=False, x2=1, x3=2,
                      b1B=8, b2C=8, trb3="loop", s4bar=3, w2in=5)
        self.o.update(opts or {})
        self.rot = 0
        self.ool = []

    def stamp(self, name):
        names = self.o.get("stamps", DEFAULT_STAMPS)
        if not self.stamps or name not in names:
            return
        self.names = list(names)
        self.nst = len(names)
        r = STAMP0 + 2 * names.index(name)
        self.k.e(f"{'s_memtime' if self.o.get('memtime') else 's_memrealtime'} s[{r}:{r + 1}]")

    def tmp(self):
        self.rot = (self.rot + 1) % 4
        return sT0 + self.rot

    def tile(self, key, dst):
        self.k.e(f"s_xor_b32 s{dst}, s{sN}, {self.o[key]}")

    def srd(self, d, ptr, off, nrec):
        k = self.k
        if off is None:
            k.e(f"s_mov_b32 s{d}, s{ptr}\ns_mov_b32 s{d + 1}, s{ptr + 1}")
        else:
            k.e(f"s_add_u32 s{d}, s{ptr}, s{off}\ns_addc_u32 s{d + 1}, s{ptr + 1}, 0")
        k.e(f"s_mov_b32 s{d + 2}, {nrec}\ns_mov_b32 s{d + 3}, 0x20000")

    def nt(self, srd):
        key = {SW1: "ntw1", SW2: "ntw2", SWF: "ntwf", SWG: "ntwg", SWO: "ntwo", SX: "ntx"}[srd]
        return " nt" if self.o.get(key) else ""

    def dma2k(self, srd, lds_off, soff, tag):
        k = self.k
        nt = self.nt(srd)
        k.e(f"s_add_u32 m0, s{sRW}, {lds_off}")
        k.e("s_nop 0")
        k.vmem(f"buffer_load_dwordx4 v{vWA0}, {sr(srd, 4)}, {soff} offen{nt} lds", tag)
        k.vmem(f"buffer_load_dwordx4 v{vWA1}, {sr(srd, 4)}, {soff} offen offset:1024{nt} lds", tag)

    def dma4k_ops(self, srd, lds_off, soff_fn, tag):
        k = self.k
        st = {}

        def op(q):
            if q == 0:
                st["s"] = soff_fn()
                k.e(f"s_add_u32 m0, s{sRW}, {lds_off}")
                k.e("s_nop 0")
            o = f" offset:{q * 1024}" if q else ""
            k.vmem(f"buffer_load_dwordx4 v{vW2 + q}, {sr(srd, 4)}, {st['s']} offen{o}{self.nt(srd)} lds", tag)
        return [lambda q=q: op(q) for q in range(4)]

    def dma4k(self, srd, lds_off, soff_fn, tag):
        for op in self.dma4k_ops(srd, lds_off, soff_fn, tag):
            op()

    def tr32(self, lds_off, dst, kind, tag):
        k = self.k
        for ct, a in enumerate((vTR0, vTR1)):
            k.ds(f"ds_read_b64_tr_b16 {vr(dst + 4 * ct, 2, kind)}, v{a} offset:{lds_off}", tag)
            k.ds(f"ds_read_b64_tr_b16 {vr(dst + 4 * ct + 2, 2, kind)}, v{a} offset:{lds_off + 512}", tag)

    def tr16(self, lds_off, dst, kind, tag):
        k = self.k
        for ct in range(4):
            k.ds(f"ds_read_b64_tr_b16 {vr(dst + 4 * ct, 2, kind)}, v{vT16 + ct} offset:{lds_off}", tag)
            k.ds(f"ds_read_b64_tr_b16 {vr(dst + 4 * ct + 2, 2, kind)}, v{vT16 + ct} offset:{lds_off + 512}", tag)

    def mfma32(self, d, a, b, first, ak="v"):
        c = "0" if first else vr(d, 16)
        self.k.e(f"v_mfma_f32_32x32x16_bf16 {vr(d, 16)}, {vr(a, 4, ak)}, {vr(b, 4)}, {c}")

    def mfma16(self, d, a, b, first, ak="a"):
        c = "0" if first else vr(d, 4)
        self.k.e(f"v_mfma_f32_16x16x32_bf16 {vr(d, 4)}, {vr(a, 4, ak)}, {vr(b, 4)}, {c}")

    def gelu(self, xs, tmp, kc3):
        k = self.k
        ts = [tmp + i for i in range(len(xs))]
        for x, t in zip(xs, ts):
            k.e(f"v_mul_f32 v{t}, v{x}, v{x}")
        for x, t in zip(xs, ts):
            k.e(f"v_fmaak_f32 v{t}, v{t}, v{kc3}, {f32(-C1)}")
        for x, t in zip(xs, ts):
            k.e(f"v_mul_f32 v{t}, v{t}, v{x}")
        for x, t in zip(xs, ts):
            k.e(f"v_exp_f32 v{t}, v{t}")
        for x, t in zip(xs, ts):
            k.e(f"v_add_f32 v{t}, 1.0, v{t}")
        for x, t in zip(xs, ts):
            k.e(f"v_rcp_f32 v{t}, v{t}")
        for x, t in zip(xs, ts):
            k.e(f"v_mul_f32 v{x}, v{x}, v{t}")

    def spin_check(self, done_label):
        self.k.e(f"s_add_u32 s{sSPIN}, s{sSPIN}, 1\ns_cmp_ge_u32 s{sSPIN}, {SPIN_MAX}\ns_cbranch_scc1 {done_label}")

    def prologue(self):
        k = self.k
        rot = self.o["rot"]
        k.e("""
        s_cmp_ge_u32 s2, 256
        s_cbranch_scc1 L_end
        s_load_dwordx16 s[4:19], s[0:1], 0
        s_load_dwordx4 s[20:23], s[0:1], 64
        """)
        self.stamp("start")
        k.e(f"""
        v_lshrrev_b32 v{vT0}, 6, v0
        v_and_b32 v{vL}, 63, v0
        v_readfirstlane_b32 s{sW}, v{vT0}
        s_and_b32 s{sT0}, s2, 7
        s_lshr_b32 s{sT1}, s2, 3
        s_add_u32 s{sJN}, s{sT1}, {self.o.get("jnrot", 0)}
        s_and_b32 s{sJN}, s{sJN}, 3
        s_lshr_b32 s{sML}, s{sT1}, 2
        s_and_b32 s{sT2}, s{sT0}, 1
        s_lshl_b32 s{sN}, s{sT2}, 2
        s_add_u32 s{sN}, s{sN}, s{sJN}
        s_lshr_b32 s{sT0}, s{sT0}, 1
        s_lshl_b32 s{sM}, s{sT0}, 3
        s_add_u32 s{sM}, s{sM}, s{sML}
        s_lshr_b32 s{sB}, s{sM}, 4
        s_and_b32 s{sMT}, s{sM}, 15
        s_mul_i32 s{sRW}, s{sW}, {RW}
        v_lshrrev_b32 v{vT0}, 4, v{vL}
        v_lshrrev_b32 v{vT1}, 5, v{vL}
        v_and_b32 v{vT2}, 15, v{vL}
        v_xor_b32 v{vT2}, v{vT2}, v{vT1}
        v_lshlrev_b32 v{vT2}, 4, v{vT2}
        v_lshl_add_u32 v{vXW}, v{vT0}, 10, v{vT2}
        """)
        for e in range(1, 4):
            k.e(f"v_xor_b32 v{vXW + e}, {e * 32}, v{vXW}")
            k.e(f"v_add_u32 v{vXW + e}, {e * 3072}, v{vXW + e}")
        k.e(f"""
        v_cmp_gt_u32 vcc, 16, v{vL}
        v_bfrev_b32 v{vT0}, 1
        v_lshrrev_b32 v{vT1}, 3, v{vL}
        v_cndmask_b32 v{vQ0}, 0, v{vT0}, vcc
        v_bfe_u32 v{vT2}, v{vT1}, 1, 1
        v_lshlrev_b32 v{vT2}, 2, v{vT2}
        v_and_b32 v{vT3}, 7, v{vL}
        v_xor_b32 v{vT2}, v{vT2}, v{vT3}
        v_lshlrev_b32 v{vT2}, 4, v{vT2}
        v_lshl_add_u32 v{vWA0}, v{vT1}, 10, v{vT2}
        v_add_u32 v{vWA1}, 7168, v{vWA0}
        s_lshl_b32 s{sT0}, s{sW}, 17
        s_lshl_b32 s{sT1}, s{sN}, 7
        s_add_u32 s3, s{sT0}, s{sT1}
        s_mul_i32 s{sT0}, s{sB}, 1000
        s_lshl_b32 s{sT1}, s{sMT}, 6
        s_add_u32 s{sT0}, s{sT0}, s{sT1}
        s_sub_u32 s{sT0}, s{sT0}, 1
        s_lshl_b32 s{sT0}, s{sT0}, 10
        s_lshl_b32 s{sT2}, s{sW}, 8
        s_add_u32 s{sT0}, s{sT0}, s{sT2}
        s_ashr_i32 s{sT3}, s{sT0}, 31
        s_sub_u32 s{sT1}, 1001, s{sT1}
        s_lshl_b32 s{sT1}, s{sT1}, 10
        s_sub_u32 s{SX + 2}, s{sT1}, s{sT2}
        s_mov_b32 s{SX + 3}, 0x20000
        s_sub_u32 s{SW1 + 2}, 1572864, s3
        s_mov_b32 s{SW1 + 3}, 0x20000
        """)
        if rot:
            k.e(f"s_lshl_b32 s{sKI}, s{sML}, 14")
        else:
            k.e(f"s_mov_b32 s{sKI}, 0")
        k.e("s_waitcnt lgkmcnt(0)")
        self.stamp("karg")
        k.e(f"""
        s_add_u32 s{SX}, s4, s{sT0}
        s_addc_u32 s{SX + 1}, s5, s{sT3}
        s_add_u32 s{SW1}, s6, s3
        s_addc_u32 s{SW1 + 1}, s7, 0
        """)

    def code_prefetch(self):
        k = self.k
        mode = self.o.get("cpf", 0)
        if not mode:
            return
        lab = k.label("pf")
        k.e(f"""
        s_cmp_lg_u32 s{sW}, {self.o.get("cpfw", 3)}
        s_cbranch_scc1 {lab}
        s_getpc_b64 s[{sT0 + 1}:{sT0 + 2}]
        L_pc:
        s_lshr_b32 s{sT0}, s2, 3
        s_lshl_b32 s{sT0}, s{sT0}, 10
        v_lshlrev_b32 v{vT0}, 7, v{vL}
        v_add_u32 v{vT0}, s{sT0}, v{vT0}
        v_min_u32 v{vT0}, L_last-L_pc, v{vT0}
        s_mov_b64 exec, 0xff
        global_load_dword v{vPF}, v{vT0}, s[{sT0 + 1}:{sT0 + 2}]
        s_mov_b64 exec, -1
        {lab}:
        """)

    def g_prefetch(self):
        k = self.k
        k.e(f"""
        s_lshr_b32 s{sT0}, s2, 3
        s_lshl_b32 s{sT1}, s{sT0}, 12
        v_lshlrev_b32 v{vT0}, 10, v{vL}
        v_add_u32 v{vT0}, s{sT1}, v{vT0}
        s_lshr_b32 s{sT1}, s{sT0}, 1
        s_lshl_b32 s{sT1}, s{sT1}, 10
        s_and_b32 s{sT0}, s{sT0}, 1
        s_lshl_b32 s{sT0}, s{sT0}, 7
        s_add_u32 s{sT0}, s{sT0}, s{sT1}
        v_mov_b32 v{vT1}, s{sT0}
        s_mov_b64 exec, 15
        """)
        k.vmem(f"buffer_load_dword v{vPF}, v{vT0}, {sr(SWG, 4)}, 0 offen", "pf")
        k.e("s_mov_b64 exec, 1")
        k.vmem(f"buffer_load_dword v{vPF + 1}, v{vT1}, {sr(SG, 4)}, 0 offen", "pf")
        k.e("s_mov_b64 exec, -1")

    def l2pf(self, pos):
        k = self.k
        for key, srd, lanes in (("pfw2", SW2, 48), ("pfwf", SWF, 16), ("pfwo", SWO, 16)):
            if self.o.get(key) != pos:
                continue
            if srd == SWO:
                k.e(f"s_lshr_b32 s{sT0}, s2, 3\ns_lshl_b32 s{sT0}, s{sT0}, 14")
            else:
                k.e(f"s_lshl_b32 s{sT0}, s{sML}, 14")
            k.e(f"""
            v_and_b32 v{vT1}, 15, v{vL}
            v_lshlrev_b32 v{vT1}, 10, v{vT1}
            v_lshrrev_b32 v{vT2}, 4, v{vL}
            v_lshl_add_u32 v{vT1}, v{vT2}, 19, v{vT1}
            s_bfm_b64 exec, {lanes}, 0
            """)
            k.vmem(f"buffer_load_dword v{vPF}, v{vT1}, {sr(srd, 4)}, s{sT0} offen", "pf")
            k.e("s_mov_b64 exec, -1")

    def x_quarter(self, qq):
        k = self.k
        a, z = sT0, sT1
        if self.o["rot"]:
            k.e(f"s_add_u32 s{a}, s{sJN}, {qq}\ns_and_b32 s{a}, s{a}, 3")
        else:
            k.e(f"s_mov_b32 s{a}, {qq}")
        k.e(f"""
        s_lshl_b32 s{sT2}, s{a}, 12
        s_add_u32 m0, s{sT2}, s{sRW}
        s_or_b32 s{z}, s{a}, s{sMT}
        s_cmp_eq_u32 s{z}, 0
        s_cselect_b32 s{z}, -1, 0
        s_and_b32 s{sT3}, s{a}, 1
        s_lshl_b32 s{sT3}, s{sT3}, 7
        s_lshl_b32 s{a}, s{a}, 14
        s_or_b32 s{a}, s{a}, s{sT3}
        """)
        for e in range(4):
            t = vXA if e % 2 == 0 else vXZ
            k.e(f"v_xor_b32 v{t}, s{a}, v{vXW + e}")
            if e == 0:
                k.e(f"v_and_or_b32 v{t}, v{vQ0}, s{z}, v{t}")
            o = f" offset:{e * 1024}" if e else ""
            k.vmem(f"buffer_load_dwordx4 v{t}, {sr(SX, 4)}, 0 offen{o}{self.nt(SX)} lds", "x")

    def x_tail(self):
        k = self.k
        k.e(f"""
        v_lshlrev_b32 v{vXA}, 4, v{vL}
        v_add_u32 v{vXA}, 65536, v{vXA}
        s_add_u32 m0, s{sRW}, 16384
        s_mov_b64 exec, 0xffff
        """)
        k.vmem(f"buffer_load_dwordx4 v{vXA}, {sr(SX, 4)}, 0 offen{self.nt(SX)} lds", "x")
        k.e("s_mov_b64 exec, -1")

    def w1_issue(self, u):
        k = self.k
        i = u % 3
        if i == 0 and u:
            k.e(f"s_add_u32 s{sKI}, s{sKI}, 16384\ns_and_b32 s{sKI}, s{sKI}, 0x1c000")
        if i:
            t = self.tmp()
            k.e(f"s_add_u32 s{t}, s{sKI}, {i * 524288}")
            so = f"s{t}"
        else:
            so = f"s{sKI}"
        self.dma2k(SW1, RB + 2048 * (u % 10), so, ("w1", u))

    def rot4(self):
        k = self.k
        for j in range(4):
            if self.o["rot"]:
                k.e(f"s_add_u32 s{sR4[j]}, s{sML}, {j}\ns_and_b32 s{sR4[j]}, s{sR4[j]}, 3\ns_lshl_b32 s{sR4[j]}, s{sR4[j]}, 10")
            else:
                k.e(f"s_mov_b32 s{sR4[j]}, {j * 1024}")

    def w32_soff(self, j, tap):
        def fn():
            t = self.tmp()
            self.k.e(f"s_lshl_b32 s{t}, s{sR4[j]}, 5")
            if tap:
                self.k.e(f"s_add_u32 s{t}, s{t}, {tap * 524288}")
            return f"s{t}"
        return fn

    def w2_slot(self, v):
        return [T4[2], T4[3], T4[4], T4[0], T4[1], XS[0], XS[1], XS[2], XS[3], T4[2], T4[3], T4[4]][v]

    def w2_ops(self, v):
        return self.dma4k_ops(SW2, self.w2_slot(v), self.w32_soff(v // 3, v % 3), ("w2", v))

    def clears(self):
        k = self.k
        self.srd(SWS, 22, None, WS_REC)
        k.e(f"""
        v_mov_b32 v{vONES}, -1
        v_mov_b32 v{vONES + 1}, -1
        v_mov_b32 v{vONES + 2}, -1
        v_mov_b32 v{vONES + 3}, -1
        v_lshlrev_b32 v{vT0}, 4, v{vL}
        s_lshl_b32 s{sT0}, s{sM}, 14
        s_lshl_b32 s{sT2}, s{sW}, 9
        s_add_u32 s{sT0}, s{sT0}, s{sT2}
        """)
        self.tile("x2", sT1)
        k.e(f"""
        s_lshl_b32 s{sT1}, s{sT1}, 11
        s_add_u32 s{sT2}, s{sT0}, {F_OFF}
        s_add_u32 s{sT2}, s{sT2}, s{sT1}
        """)
        self.tile("x3", sT1)
        k.e(f"""
        s_lshl_b32 s{sT1}, s{sT1}, 11
        s_add_u32 s{sT3}, s{sT0}, {FE_OFF}
        s_add_u32 s{sT3}, s{sT3}, s{sT1}
        s_mov_b32 exec_hi, 0
        """)
        k.vmem(f"buffer_store_dwordx4 {vr(vONES, 4)}, v{vT0}, {sr(SWS, 4)}, s{sT2} offen sc1", "clr")
        k.vmem(f"buffer_store_dwordx4 {vr(vONES, 4)}, v{vT0}, {sr(SWS, 4)}, s{sT3} offen sc1", "clr")
        lab = k.label("c0")
        k.e(f"""
        s_mov_b64 exec, -1
        s_cmp_lg_u32 s{sW}, 0
        s_cbranch_scc1 {lab}
        s_lshl_b32 s{sT0}, s{sM}, 15
        s_lshl_b32 s{sT1}, s{sN}, 11
        s_add_u32 s{sT0}, s{sT0}, s{sT1}
        s_add_u32 s{sT0}, s{sT0}, {H_OFF}
        s_add_u32 s{sT1}, s{sT0}, 16384
        buffer_store_dwordx4 {vr(vONES, 4)}, v{vT0}, {sr(SWS, 4)}, s{sT0} offen sc1
        buffer_store_dwordx4 {vr(vONES, 4)}, v{vT0}, {sr(SWS, 4)}, s{sT0} offen offset:1024 sc1
        buffer_store_dwordx4 {vr(vONES, 4)}, v{vT0}, {sr(SWS, 4)}, s{sT1} offen sc1
        buffer_store_dwordx4 {vr(vONES, 4)}, v{vT0}, {sr(SWS, 4)}, s{sT1} offen offset:1024 sc1
        s_cmp_ge_u32 s2, 8
        s_cbranch_scc1 {lab}
        s_lshl_b32 s{sT0}, s2, 10
        s_add_u32 s{sT0}, s{sT0}, {GE_OFF}
        s_add_u32 s{sT1}, s{sT0}, 8192
        buffer_store_dwordx4 {vr(vONES, 4)}, v{vT0}, {sr(SWS, 4)}, s{sT0} offen sc1
        buffer_store_dwordx4 {vr(vONES, 4)}, v{vT0}, {sr(SWS, 4)}, s{sT1} offen sc1
        {lab}:
        """)

    def prologue2(self):
        k = self.k
        for key, d, ptr, size in (("x2", SW2, 8, 1572864), ("x3", SWF, 12, 524288), (None, SWG, 14, 524288)):
            if key:
                self.tile(key, sT0)
            else:
                k.e(f"s_and_b32 s{sT0}, s2, 7")
            k.e(f"""
            s_lshl_b32 s{sT0}, s{sT0}, 7
            s_lshl_b32 s{sT1}, s{sW}, 17
            s_add_u32 s{sT0}, s{sT0}, s{sT1}
            s_sub_u32 s{sT1}, {size}, s{sT0}
            """)
            self.srd(d, ptr, sT0, f"s{sT1}")
        k.e(f"""
        s_lshl_b32 s{sT0}, s{sW}, 8
        s_sub_u32 s{sT1}, 16384, s{sT0}
        """)
        self.srd(SG, 10, sT0, f"s{sT1}")
        k.e(f"""
        s_lshr_b32 s{sT2}, s{sN}, 2
        s_lshl_b32 s{sT0}, s{sT2}, 9
        s_lshl_b32 s{sT1}, s{sW}, 7
        s_add_u32 s{sT0}, s{sT0}, s{sT1}
        s_sub_u32 s{sT1}, 524288, s{sT0}
        """)
        self.srd(SWO, 16, sT0, f"s{sT1}")
        k.e(f"s_mul_i32 s{sT0}, s{sB}, 2048000")
        self.srd(SOUT, 18, sT0, 2048000)
        self.srd(SDBG, 20, None, 256)
        k.e(f"s_lshr_b32 s{sNH}, s{sN}, 2")
        self.rot4()
        k.e(f"""
        v_lshlrev_b32 v{vT0}, 4, v{vL}
        v_add_u32 v{vLIN}, s{sRW}, v{vT0}
        v_bfe_u32 v{vT0}, v{vL}, 2, 2
        v_lshrrev_b32 v{vT1}, 5, v{vL}
        v_lshl_add_u32 v{vT1}, v{vT1}, 3, v{vT0}
        v_lshlrev_b32 v{vT1}, 7, v{vT1}
        v_lshrrev_b32 v{vT2}, 1, v{vT0}
        v_lshl_add_u32 v{vT1}, v{vT2}, 6, v{vT1}
        v_bfe_u32 v{vT2}, v{vL}, 4, 1
        v_lshl_add_u32 v{vT1}, v{vT2}, 5, v{vT1}
        v_and_b32 v{vT2}, 3, v{vL}
        v_lshl_add_u32 v{vT1}, v{vT2}, 3, v{vT1}
        v_add_u32 v{vTR0}, s{sRW}, v{vT1}
        v_xor_b32 v{vT1}, 64, v{vT1}
        v_add_u32 v{vTR1}, s{sRW}, v{vT1}
        """)
        k.e(f"""
        v_and_b32 v{vT0}, 31, v{vL}
        v_lshrrev_b32 v{vT1}, 5, v{vL}
        v_and_b32 v{vT2}, 15, v{vT0}
        v_xor_b32 v{vT2}, v{vT2}, v{vT1}
        v_lshlrev_b32 v{vT2}, 4, v{vT2}
        v_lshl_add_u32 v{vT2}, v{vT0}, 9, v{vT2}
        v_add_u32 v{vXB}, s{sRW}, v{vT2}
        v_add_u32 v{vXB + 1}, 256, v{vXB}
        v_add_u32 v{vT2}, 1, v{vT0}
        v_and_b32 v{vT2}, 15, v{vT2}
        v_xor_b32 v{vT2}, v{vT2}, v{vT1}
        v_lshlrev_b32 v{vT2}, 4, v{vT2}
        v_lshl_add_u32 v{vT2}, v{vT0}, 9, v{vT2}
        v_add_u32 v{vT2}, 512, v{vT2}
        v_add_u32 v{vXB + 2}, s{sRW}, v{vT2}
        """)
        k.e(f"""
        v_lshrrev_b32 v{vT0}, 3, v{vL}
        v_bfe_u32 v{vT1}, v{vT0}, 1, 1
        v_lshlrev_b32 v{vT1}, 1, v{vT1}
        v_and_b32 v{vT2}, 7, v{vL}
        v_xor_b32 v{vT1}, v{vT1}, v{vT2}
        v_lshlrev_b32 v{vT1}, 4, v{vT1}
        v_lshl_add_u32 v{vW2}, v{vT0}, 10, v{vT1}
        v_xor_b32 v{vT1}, 64, v{vW2}
        v_add_u32 v{vW2 + 1}, 7168, v{vT1}
        v_add_u32 v{vW2 + 2}, {2 * 7168}, v{vW2}
        v_add_u32 v{vW2 + 3}, {3 * 7168}, v{vT1}
        v_lshrrev_b32 v{vT0}, 4, v{vL}
        v_bfe_u32 v{vT1}, v{vL}, 2, 2
        v_lshl_add_u32 v{vT2}, v{vT0}, 3, v{vT1}
        v_lshlrev_b32 v{vT2}, 7, v{vT2}
        v_lshrrev_b32 v{vT1}, 1, v{vT1}
        v_and_b32 v{vT0}, 1, v{vT0}
        v_lshl_add_u32 v{vT1}, v{vT0}, 1, v{vT1}
        v_lshl_add_u32 v{vT2}, v{vT1}, 5, v{vT2}
        v_and_b32 v{vT1}, 3, v{vL}
        v_lshl_add_u32 v{vT2}, v{vT1}, 3, v{vT2}
        v_add_u32 v{vT16}, s{sRW}, v{vT2}
        """)
        for ct in range(1, 4):
            k.e(f"v_xor_b32 v{vT0}, {ct * 32}, v{vT2}\nv_add_u32 v{vT16 + ct}, s{sRW}, v{vT0}")
        k.e(f"""
        v_and_b32 v{vT0}, 15, v{vL}
        v_bfe_u32 v{vT1}, v{vL}, 4, 1
        v_lshl_add_u32 v{vT0}, v{vT0}, 1, v{vT1}
        v_lshlrev_b32 v{vT0}, 4, v{vT0}
        v_lshrrev_b32 v{vT1}, 5, v{vL}
        v_lshl_add_u32 v{vT0}, v{vT1}, 10, v{vT0}
        s_lshl_b32 s{sT0}, s{sW}, 11
        v_add_u32 v{vRD}, s{sT0}, v{vT0}
        """)
        if self.o["rot"]:
            k.e(f"s_lshl_b32 s{sKC}, s{sML}, 5")
        else:
            k.e(f"s_mov_b32 s{sKC}, 0")

    def stage1(self):
        k = self.k
        if self.o.get("cpf") == 1:
            self.code_prefetch()
        self.x_quarter(0)
        for u in range(3):
            self.w1_issue(u)
        if self.o.get("cpf") == 2:
            self.code_prefetch()
        self.clears()
        for qq in range(1, 4):
            self.x_quarter(qq)
        self.x_tail()
        self.stamp("iss0")
        self.prologue2()
        if self.o.get("gpf", 1):
            self.g_prefetch()
        self.l2pf("iss0")
        for u in range(3, 10):
            self.w1_issue(u)
        self.l2pf("iss")
        self.stamp("iss")
        k.wait(vm="x")
        self.stamp("x0")
        lab = k.label("hs")
        k.e(f"""
        s_cmp_lg_u32 s{sW}, 0
        s_cbranch_scc1 {lab}
        s_and_b32 s{sT0}, s2, 3
        s_lshl_b32 s{sT0}, s{sT0}, 6
        v_mov_b32 v{vT0}, s{sT0}
        v_mov_b32 v{vT1}, 1
        s_mov_b64 exec, 1
        buffer_atomic_add v{vT1}, v{vT0}, {sr(SDBG, 4)}, 0 offen sc1
        s_mov_b64 exec, -1
        {lab}:
        """)

        def mm(u):
            a, b = AF + 8 * (u & 1), BFR + 4 * (u & 1)
            self.mfma32(ACC1, a, b, u == 0)
            self.mfma32(ACC1 + 16, a + 4, b, u == 0)

        def refill(u):
            if u + 10 < 24:
                self.w1_issue(u + 10)
            elif u >= 15 and u % 2 == 1 and (u - 15) // 2 < self.o["w2in"]:
                for op in self.w2_ops((u - 15) // 2):
                    op()
            self.l2pf(u)
            if u == 17:
                k.e(f"v_and_b32 v{vT0}, 3, v{vL}\nv_lshlrev_b32 v{vT0}, 6, v{vT0}")
                k.vmem(f"buffer_load_dword v{vHS}, v{vT0}, {sr(SDBG, 4)}, 0 offen sc1", "hs")

        for u in range(24):
            i = u % 3
            if i == 0 and u:
                k.e(f"s_add_u32 s{sKC}, s{sKC}, 32\ns_and_b32 s{sKC}, s{sKC}, 0xe0")
            k.e(f"v_xor_b32 v{vBA + (u & 1)}, s{sKC}, v{vXB + i}")
            k.wait(vm=("w1", u))
            self.tr32(RB + 2048 * (u % 10), AF + 8 * (u & 1), "v", ("u", u))
            k.ds(f"ds_read_b128 {vr(BFR + 4 * (u & 1), 4)}, v{vBA + (u & 1)}", ("u", u))
            if u:
                k.wait(lg=("u", u - 1))
                mm(u - 1)
                refill(u - 1)
            if u in (5, 11, 17):
                self.stamp(f"u{u}")
        k.wait(lg=("u", 23))
        mm(23)
        refill(23)
        self.stamp("s1mfma")
        self.l2pf("s1end")
        k.e(f"v_mov_b32 v{vKC3}, {f32(-C3)}")
        k.e(f"v_add_u32 v{vT3}, {2 * RW}, v{vRD}")
        k.nop(10)
        for blk in range(8):
            k.ds(f"ds_write_b128 v{vLIN}, {vr(ACC1 + 4 * blk, 4)} offset:{blk * 1024}")
        k.wait(lg="all")
        k.e("s_barrier")
        for sw in range(4):
            a = vRD if sw < 2 else vT3
            for j in range(2):
                k.ds(f"ds_read_b128 {vr(R1 + 8 * sw + 4 * j, 4)}, v{a} offset:{(sw & 1) * RW + j * 512}", ("r", sw))
        k.wait(lg=("r", 1))
        for i in range(8):
            k.e(f"v_add_f32 v{R1 + i}, v{R1 + i}, v{R1 + 8 + i}")
        k.wait(lg=("r", 3))
        for i in range(8):
            k.e(f"v_add_f32 v{R1 + 16 + i}, v{R1 + 16 + i}, v{R1 + 24 + i}")
        for i in range(8):
            k.e(f"v_add_f32 v{R1 + i}, v{R1 + i}, v{R1 + 16 + i}")
        self.gelu([R1 + i for i in range(8)], R1 + 8, vKC3)
        for i in range(4):
            k.e(f"v_cvt_pk_bf16_f32 v{R1 + 16 + i}, v{R1 + 2 * i}, v{R1 + 2 * i + 1}")
        k.e(f"""
        v_and_b32 v{vT0}, 15, v{vL}
        v_lshlrev_b32 v{vT0}, 4, v{vT0}
        v_bfe_u32 v{vT1}, v{vL}, 4, 1
        v_lshl_add_u32 v{vT0}, v{vT1}, 14, v{vT0}
        v_lshrrev_b32 v{vT1}, 5, v{vL}
        v_lshl_add_u32 v{vT0}, v{vT1}, 8, v{vT0}
        s_lshl_b32 s{sT0}, s{sM}, 15
        s_lshl_b32 s{sT1}, s{sN}, 11
        s_add_u32 s{sT0}, s{sT0}, s{sT1}
        s_lshl_b32 s{sT1}, s{sW}, 9
        s_add_u32 s{sT0}, s{sT0}, s{sT1}
        s_add_u32 s{sT0}, s{sT0}, {H_OFF}
        """)
        k.vmem(f"buffer_store_dwordx4 {vr(R1 + 16, 4)}, v{vT0}, {sr(SWS, 4)}, s{sT0} offen sc1", "hst")
        self.stamp("hst")
        k.e("s_barrier")

    def setup2(self):
        k = self.k
        k.e(f"""
        v_lshlrev_b32 v{vLIN16}, 4, v{vL}
        v_and_b32 v{vT0}, 15, v{vL}
        v_lshrrev_b32 v{vT1}, 4, v{vL}
        v_add_u32 v{vH0}, {32768 - 16}, v{vLIN16}
        v_lshlrev_b32 v{vT2}, 8, v{vT1}
        v_add_u32 v{vT2}, 240, v{vT2}
        s_cmp_eq_u32 s{sMT}, 0
        s_cselect_b32 s{sT0}, {OOB}, 0
        v_add_u32 v{vT2}, s{sT0}, v{vT2}
        v_cmp_eq_u32 vcc, 0, v{vT0}
        v_and_b32 v{vT3}, 7, v{vL}
        v_lshlrev_b32 v{vT3}, 9, v{vT3}
        v_cndmask_b32 v{vH0}, v{vH0}, v{vT2}, vcc
        v_add_u32 v{vFSM}, {256 + 240 + 12}, v{vT3}
        v_add_u32 v{vSMP}, 16384, v{vFSM}
        v_add_u32 v{vT2}, 32768, v{vSMP}
        v_add_u32 v{vT3}, s{sT0}, v{vSMP}
        v_cmp_gt_u32 vcc, 8, v{vL}
        v_bfrev_b32 v{vSV}, 1
        s_nop 0
        v_cndmask_b32 v{vSMP}, v{vT3}, v{vT2}, vcc
        v_cndmask_b32 v{vFSM}, v{vSV}, v{vFSM}, vcc
        v_cmp_gt_u32 vcc, 16, v{vL}
        v_lshrrev_b32 v{vT2}, 1, v{vT1}
        v_lshlrev_b32 v{vT2}, 8, v{vT2}
        v_cndmask_b32 v{vSMP}, v{vSV}, v{vSMP}, vcc
        v_lshl_add_u32 v{vT2}, v{vT0}, 4, v{vT2}
        v_and_b32 v{vT1}, 1, v{vT1}
        v_lshl_add_u32 v{vST}, v{vT1}, 3, v{vT2}
        s_lshl_b32 s{sT0}, s{sW}, 10
        v_add_u32 v{vRD2}, s{sT0}, v{vLIN16}
        s_lshl_b32 s{sT0}, s{sM}, 15
        s_lshl_b32 s{sT1}, s{sW}, 12
        s_add_u32 s{sH}, s{sT0}, s{sT1}
        s_add_u32 s{sH}, s{sH}, {H_OFF}
        s_sub_u32 s{sHS}, s{sH}, 32768
        s_lshl_b32 s{sT0}, s{sM}, 14
        s_add_u32 s{sFL}, s{sT0}, s{sT1}
        s_add_u32 s{sFL}, s{sFL}, {F_OFF}
        s_lshl_b32 s{sT1}, s{sW}, 9
        s_add_u32 s{sT0}, s{sT0}, s{sT1}
        s_xor_b32 s{sT1}, s{sN}, {self.o["x2"]}
        s_lshl_b32 s{sT1}, s{sT1}, 11
        s_add_u32 s{sFS}, s{sT0}, s{sT1}
        s_add_u32 s{sFS}, s{sFS}, {F_OFF}
        s_xor_b32 s{sT1}, s{sN}, {self.o["x3"]}
        s_lshl_b32 s{sT1}, s{sT1}, 11
        s_add_u32 s{sFES}, s{sT0}, s{sT1}
        s_add_u32 s{sFES}, s{sFES}, {FE_OFF}
        v_bfrev_b32 v{vGST}, 1
        s_lshl_b32 s{sWQ}, s{sML}, 16
        s_sub_u32 s{sWQ}, s{sWQ}, 16384
        """)

    def w2_finish(self):
        k = self.k
        for v in range(self.o["w2in"], 9):
            for op in self.w2_ops(v):
                op()
        self.setup2()
        for v in range(3):
            k.wait(vm=("w2", v))
            self.tr16(self.w2_slot(v), 16 * v, "a", ("t2", v))
        for v in range(3):
            k.wait(lg=("t2", v))
            for op in self.w2_ops(9 + v):
                op()
        top, done = k.label("hsw"), k.label("hsd")
        k.e(f"""
        v_cmp_gt_u32 vcc, 64, v{vHS}
        s_cbranch_vccnz {top}
        {done}:
        """)
        self.ool.append(("hs", top, done))
        k.vmem(f"buffer_load_dword v{vHS}, v{vSMP}, {sr(SWS, 4)}, s{sHS} offen sc1", "smp")
        for v in range(3, 8):
            k.wait(vm=("w2", v))
            self.tr16(self.w2_slot(v), 16 * v, "a", ("t2", v))
        gtop, gjoin = k.label("gblk"), k.label("gjoin")
        k.e(f"s_cmp_lt_u32 s2, 8\ns_cbranch_scc1 {gtop}")
        self.ool.append(("g", gtop, gjoin, list(k.vm), list(k.lg)))
        self.w2_last()
        k.e(f"{gjoin}:")
        self.stamp("w2done")

    def w2_last(self):
        k = self.k
        for v in range(8, 12):
            k.wait(vm=("w2", v))
            self.tr16(self.w2_slot(v), 16 * v, "a", ("t2", v))

    def g_block(self):
        k = self.k
        GF = HB
        slots = [T4[0], T4[1], XS[1], XS[2]]
        k.wait(lg=("t2", 7))
        self.stamp("g0")
        for j in range(4):
            self.dma4k(SWG, slots[j], self.w32_soff(j, 0), ("wg", j))
        k.e(f"""
        v_and_b32 v{vT0}, 15, v{vL}
        v_lshlrev_b32 v{vT0}, 10, v{vT0}
        v_lshrrev_b32 v{vT1}, 4, v{vL}
        v_lshl_add_u32 v{vT0}, v{vT1}, 4, v{vT0}
        """)
        for j in range(4):
            t = self.tmp()
            k.e(f"s_lshr_b32 s{t}, s{sR4[j]}, 4")
            k.e(f"v_add_u32 v{vT1}, s{t}, v{vT0}")
            k.vmem(f"buffer_load_dwordx4 {vr(GF + 4 * j, 4)}, v{vT1}, {sr(SG, 4)}, 0 offen", "g")
        self.stamp("gdma")
        self.w2_last()
        self.stamp("gw2")
        k.e(f"""
        v_bfe_u32 v{vT0}, v{vL}, 3, 1
        v_lshlrev_b32 v{vT0}, 13, v{vT0}
        v_and_b32 v{vT1}, 7, v{vL}
        v_lshl_add_u32 v{vT0}, v{vT1}, 4, v{vT0}
        v_lshrrev_b32 v{vT1}, 5, v{vL}
        v_lshl_add_u32 v{vT0}, v{vT1}, 7, v{vT0}
        v_bfe_u32 v{vT1}, v{vL}, 4, 1
        v_lshl_add_u32 v{vT0}, v{vT1}, 3, v{vT0}
        s_lshl_b32 s{sT0}, s2, 10
        s_lshl_b32 s{sT1}, s{sW}, 8
        s_add_u32 s{sT0}, s{sT0}, s{sT1}
        s_add_u32 s{sT0}, s{sT0}, {GE_OFF}
        v_add_u32 v{vGST}, s{sT0}, v{vT0}
        """)
        for j in range(4):
            k.wait(vm=("wg", j))
            self.tr16(slots[j], 192 + 16 * j, "a", ("twg", j))
        self.stamp("gwg")
        k.wait(vm="all")
        self.stamp("gld")
        for j in range(4):
            k.wait(lg=("twg", j))
            for ct in range(4):
                self.mfma16(ACC2 + 4 * ct, 192 + 16 * j + 4 * ct, GF + 4 * j, j == 0)
        self.stamp("gmf")
        self.reduce16(ACC2, False, None, None, None)
        k.e("s_barrier")
        self.stamp("gend")

    def poll_sample(self, stem, vaddr, sbase):
        k = self.k
        top, done = k.label(stem + "p"), k.label(stem + "d")
        k.wait(vm="smp")
        k.e(f"""
        v_cmp_eq_u32 vcc, -1, v{vHS}
        s_cbranch_vccnz {top}
        {done}:
        """)
        self.ool.append(("smp", top, done, vaddr, sbase))

    def reduce16(self, acc, act, vst, sst, tag, mid=None):
        k = self.k
        k.e(f"v_add_u32 v{vT3}, {2 * RW}, v{vRD2}")
        k.nop(8)
        for ct in range(4):
            k.ds(f"ds_write_b128 v{vLIN}, {vr(acc + 4 * ct, 4)} offset:{ct * 1024}")
        k.wait(lg="all")
        k.e("s_barrier")
        for sw in range(4):
            a = vRD2 if sw < 2 else vT3
            k.ds(f"ds_read_b128 {vr(R2 + 4 * sw, 4)}, v{a} offset:{(sw & 1) * RW}", ("r", sw))
        if mid:
            mid()
        k.wait(lg=("r", 1))
        for i in range(4):
            k.e(f"v_add_f32 v{R2 + i}, v{R2 + i}, v{R2 + 4 + i}")
        k.wait(lg=("r", 3))
        for i in range(4):
            k.e(f"v_add_f32 v{R2 + 8 + i}, v{R2 + 8 + i}, v{R2 + 12 + i}")
        for i in range(4):
            k.e(f"v_add_f32 v{R2 + i}, v{R2 + i}, v{R2 + 8 + i}")
        if act:
            self.gelu([R2 + i for i in range(4)], R2 + 4, vKC3)
        k.e(f"v_cvt_pk_bf16_f32 v{R2 + 8}, v{R2}, v{R2 + 1}")
        k.e(f"v_cvt_pk_bf16_f32 v{R2 + 9}, v{R2 + 2}, v{R2 + 3}")
        if vst is not None:
            k.vmem(f"buffer_store_dwordx2 {vr(R2 + 8, 2)}, v{vst}, {sr(SWS, 4)}, s{sst} offen sc1", tag)

    def stage2(self):
        k = self.k
        self.poll_sample("h", vSMP, sHS)
        self.stamp("hpoll")

        def loads(counted, sc):
            for v in range(12):
                j, i = v // 3, v % 3
                t = self.tmp()
                k.e(f"s_add_u32 s{t}, s{sH}, s{sR4[j]}")
                if i == 0:
                    k.e(f"s_sub_u32 s{t}, s{t}, 16384")
                elif i == 2:
                    k.e(f"s_add_u32 s{t}, s{t}, 16384")
                ins = (f"buffer_load_dwordx4 {vr(HB + 4 * v, 4)}, v{vH0 if i == 0 else vLIN16}, "
                       f"{sr(SWS, 4)}, s{t} offen" + (" sc1" if sc else ""))
                if counted:
                    k.vmem(ins, ("h", v))
                else:
                    k.e(ins)
        k.e(f"s_mov_b32 s{sSPIN}, 0")
        loads(True, not self.o["hplain"])
        k.vmem(f"buffer_store_dwordx2 {vr(R2 + 8, 2)}, v{vGST}, {sr(SWS, 4)}, 0 offen sc1", "gest")
        k.wait(lg="all")
        fill = []
        for j in range(4):
            fill += self.dma4k_ops(SWF, T4[j], self.w32_soff(j, 0), ("wf", j))
        for _ in range(self.o.get("wfpre", 4)):
            fill.pop(0)()
        mf, retry, ok = k.label("s2m"), k.label("s2r"), k.label("s2k")
        k.e(f"{mf}:")
        for v in range(12):
            k.wait(vm=("h", v))
            f = HB + 4 * v
            if v == 0:
                k.e(f"v_mov_b32 v{vT0}, v{f + 3}")
            elif v % 2 == 0:
                k.e(f"v_max3_u32 v{vT0}, v{vT0}, v{f - 1}, v{f + 3}")
            for ct in range(4):
                self.mfma16(ACC2 + 4 * ct, 16 * v + 4 * ct, f, v == 0)
            if v < self.o.get("wfloop", 12) and fill:
                fill.pop(0)()
        k.e(f"v_max_u32 v{vT0}, v{vT0}, v{HB + 47}")
        k.e(f"v_cmp_eq_u32 vcc, -1, v{vT0}\ns_cbranch_vccnz {retry}\n{ok}:")
        self.ool.append(("bulk", retry, ok, mf, loads))
        self.stamp("s2mfma")
        self.wf_rest = fill

    def wo_slot(self, bb, e):
        if bb % 2 == 0:
            base = [T4[4], XS[1], XS[2], XS[3]]
        else:
            base = [T4[0], T4[1], T4[2], T4[3]]
        return base[e // 2] + 2048 * (e & 1)

    def wo_issue(self, bb, e0, e1):
        k = self.k
        for e in range(e0, e1):
            assert self.wo_next == 8 * bb + e
            self.wo_next += 1
            k.e(f"s_add_u32 s{sWQ}, s{sWQ}, 16384\ns_and_b32 s{sWQ}, s{sWQ}, 0x7c000")
            self.dma2k(SWO, self.wo_slot(bb, e), f"s{sWQ}", ("wo", bb, e))

    def wo_tr_ops(self, bb):
        ops = []
        for e in range(8):
            for ct, a in enumerate((vTR0, vTR1)):
                for hf in range(2):
                    off = self.wo_slot(bb, e) + 512 * hf
                    dst = 8 * (8 * bb + e) + 4 * ct + 2 * hf
                    ops.append(("ds", f"ds_read_b64_tr_b16 {vr(dst, 2, 'a')}, v{a} offset:{off}", ("two", bb)))
        return ops

    def wo_tr(self, bb):
        k = self.k
        for e in range(8):
            k.wait(vm=("wo", bb, e))
            self.tr32(self.wo_slot(bb, e), 8 * (8 * bb + e), "a", ("two", bb))

    def stage2_tail(self):
        k = self.k
        self.wo_next = 0

        def mid():
            for _ in range(self.o.get("wfmid", 0)):
                if self.wf_rest:
                    self.wf_rest.pop(0)()
        self.reduce16(ACC2, True, vST, sFS, "fst", mid=mid)
        self.stamp("fst")
        while self.wf_rest:
            self.wf_rest.pop(0)()
        k.e("s_barrier")
        self.wo_issue(0, 0, 8)
        k.e(f"""
        v_bfe_u32 v{vT0}, v{vL}, 2, 2
        v_lshrrev_b32 v{vT1}, 5, v{vL}
        v_lshl_add_u32 v{vT1}, v{vT1}, 3, v{vT0}
        v_lshlrev_b32 v{vT1}, 7, v{vT1}
        v_lshrrev_b32 v{vT2}, 1, v{vT0}
        v_lshl_add_u32 v{vT1}, v{vT2}, 6, v{vT1}
        v_bfe_u32 v{vT2}, v{vL}, 4, 1
        v_lshl_add_u32 v{vT1}, v{vT2}, 5, v{vT1}
        v_and_b32 v{vT2}, 1, v{vL}
        v_lshl_add_u32 v{vT1}, v{vT2}, 4, v{vT1}
        v_bfe_u32 v{vT2}, v{vL}, 1, 1
        v_lshl_add_u32 v{vT1}, v{vT2}, 3, v{vT1}
        v_add_u32 v{vTR0}, s{sRW}, v{vT1}
        v_xor_b32 v{vT1}, 64, v{vT1}
        v_add_u32 v{vTR1}, s{sRW}, v{vT1}
        """)
        k.wait(vm=("wf", 3))
        for j in range(4):
            self.tr16(T4[j], 192 + 16 * j, "a", "twf")
        if self.o["b1B"]:
            k.wait(lg="twf")
            self.wo_issue(1, 0, self.o["b1B"])

    def stage3(self):
        k = self.k
        FB = HB

        def loads(counted, sc):
            for j in range(4):
                t = self.tmp()
                k.e(f"s_add_u32 s{t}, s{sFL}, s{sR4[j]}")
                ins = (f"buffer_load_dwordx4 {vr(FB + 4 * j, 4)}, v{vLIN16}, {sr(SWS, 4)}, s{t} offen"
                       + (" sc1" if sc else ""))
                if counted:
                    k.vmem(ins, ("f", j))
                else:
                    k.e(ins)
        k.vmem(f"buffer_load_dword v{vHS}, v{vFSM}, {sr(SWS, 4)}, s{sFL} offen sc1", "smp")
        self.wo_tr(0)
        self.poll_sample("f", vFSM, sFL)
        self.stamp("fpoll")
        k.e(f"s_mov_b32 s{sSPIN}, 0")
        loads(True, not self.o["fplain"])
        k.wait(lg="all")
        mf, retry, ok = k.label("s3m"), k.label("s3r"), k.label("s3k")
        self.wo_issue(1, self.o["b1B"], 8)
        k.e(f"{mf}:")
        for j in range(4):
            k.wait(vm=("f", j))
            f = FB + 4 * j
            if j == 0:
                k.e(f"v_max_u32 v{vT0}, v{f + 1}, v{f + 3}")
            else:
                k.e(f"v_max3_u32 v{vT0}, v{vT0}, v{f + 1}, v{f + 3}")
            for ct in range(4):
                self.mfma16(ACC2 + 4 * ct, 192 + 16 * j + 4 * ct, f, j == 0)
        k.e(f"v_cmp_eq_u32 vcc, -1, v{vT0}\ns_cbranch_vccnz {retry}\n{ok}:")
        self.ool.append(("bulk", retry, ok, mf, loads))
        self.stamp("s3mfma")
        self.reduce16(ACC2, False, vST, sFES, "fest", mid=lambda: self.wo_issue(2, 0, self.o["b2C"]))
        self.stamp("fest")
        k.e("s_barrier")

    def stage4(self):
        k = self.k
        CB, FR, Z, JP, BF, ACC, OUT = 32, 96, 128, 144, 160, 192, 224
        vGA, vFA, vJ0, vJ2 = 8, 9, 10, 11
        RAW = 160
        k.e(f"""
        v_and_b32 v{vT0}, 7, v{vL}
        v_lshlrev_b32 v{vT0}, 4, v{vT0}
        v_lshrrev_b32 v{vT1}, 5, v{vL}
        v_lshl_add_u32 v{vGA}, v{vT1}, 7, v{vT0}
        v_bfe_u32 v{vT0}, v{vL}, 3, 2
        v_lshlrev_b32 v{vT0}, 4, v{vT0}
        v_lshl_add_u32 v{vFA}, v{vT1}, 8, v{vT0}
        v_lshlrev_b32 v{vJ0}, 4, v{vL}
        v_add_u32 v{vJ2}, {2 * RW}, v{vJ0}
        s_lshl_b32 s{sGL}, s{sB}, 13
        s_lshl_b32 s{sT0}, s{sW}, 8
        s_add_u32 s{sGL}, s{sGL}, s{sT0}
        s_add_u32 s{sGL}, s{sGL}, {GE_OFF}
        s_lshl_b32 s{sFE}, s{sM}, 14
        s_lshl_b32 s{sT0}, s{sW}, 9
        s_add_u32 s{sFE}, s{sFE}, s{sT0}
        s_lshl_b32 s{sT0}, s{sJN}, 6
        s_add_u32 s{sFE}, s{sFE}, s{sT0}
        s_add_u32 s{sFE}, s{sFE}, {FE_OFF}
        """)

        def np_off(r, shift):
            t = self.tmp()
            if self.o["rot"]:
                k.e(f"s_add_u32 s{t}, s{sML}, {r}\ns_and_b32 s{t}, s{t}, 7\ns_lshl_b32 s{t}, s{t}, {shift}")
            else:
                k.e(f"s_mov_b32 s{t}, {r << shift}")
            return t

        def ge_loads(counted):
            for r in range(8):
                t = np_off(r, 10)
                k.e(f"s_add_u32 s{t}, s{t}, s{sGL}")
                ins = f"buffer_load_dwordx4 {vr(RAW + 4 * r, 4)}, v{vGA}, {sr(SWS, 4)}, s{t} offen sc1"
                if counted:
                    k.vmem(ins, "ge")
                else:
                    k.e(ins)

        def fe_loads(counted):
            for r in range(8):
                t = np_off(r, 11)
                k.e(f"s_add_u32 s{t}, s{t}, s{sFE}")
                ins = f"buffer_load_dwordx4 {vr(FR + 4 * r, 4)}, v{vFA}, {sr(SWS, 4)}, s{t} offen sc1"
                if counted:
                    k.vmem(ins, ("fe", r))
                else:
                    k.e(ins)

        def check(base, n, dst):
            k.e(f"v_max_u32 v{dst}, v{base + 1}, v{base + 3}")
            for r in range(1, n):
                k.e(f"v_max3_u32 v{dst}, v{dst}, v{base + 4 * r + 1}, v{base + 4 * r + 3}")

        ge_loads(True)
        self.wo_issue(2, self.o["b2C"], 8)
        self.wo_tr(1)
        k.wait(lg="all")
        self.wo_issue(3, 0, 8)
        k.e(f"s_mov_b32 s{sSPIN}, 0")
        k.wait(vm="ge")
        retry, ok = k.label("ger"), k.label("gek")
        again = k.label("gea")
        k.e(f"{again}:")
        check(RAW, 8, vT0)
        k.e(f"v_cmp_eq_u32 vcc, -1, v{vT0}\ns_cbranch_vccnz {retry}\n{ok}:")
        self.ool.append(("poll", retry, ok, again, ge_loads))
        k.e(f"s_mov_b32 s{sA}, {f32(CT)}")
        fe_loads(True)
        for r in range(8):
            for i in range(4):
                src = RAW + 4 * r + i
                k.e(f"v_lshlrev_b32 v{CB + 8 * r + 2 * i}, 16, v{src}")
                k.e(f"v_and_b32 v{CB + 8 * r + 2 * i + 1}, 0xffff0000, v{src}")
        for i in range(64):
            k.e(f"v_mul_f32 v{CB + i}, s{sA}, v{CB + i}")
        self.stamp("cb")
        self.wo_tr(2)
        late_tr = []
        if self.o["trb3"] == "pre":
            self.wo_tr(3)
        else:
            late_tr = self.wo_tr_ops(3)
        k.e(f"s_mov_b32 s{sSPIN}, 0")
        k.wait(vm=("fe", 7))
        retry, ok = k.label("fer"), k.label("fek")
        again = k.label("fea")
        k.e(f"{again}:")
        check(FR, 8, vT0)
        k.e(f"v_cmp_eq_u32 vcc, -1, v{vT0}\ns_cbranch_vccnz {retry}\n{ok}:")
        self.ool.append(("poll", retry, ok, again, fe_loads))
        self.stamp("fepoll")

        def j_ops(r):
            ops = []
            z = Z + 8 * (r & 1)
            jp = JP + 4 * (r & 1)
            for i in range(4):
                ops.append((f"v_lshlrev_b32 v{z + 2 * i}, 16, v{FR + 4 * r + i}", 4))
                ops.append((f"v_and_b32 v{z + 2 * i + 1}, 0xffff0000, v{FR + 4 * r + i}", 4))
            for i in range(8):
                ops.append((f"v_fma_f32 v{z + i}, v{z + i}, s{sA}, v{CB + 8 * r + i}", 4))
            for i in range(8):
                ops.append((f"v_exp_f32 v{z + i}, v{z + i}", 8))
            for i in range(8):
                ops.append((f"v_add_f32 v{z + i}, 1.0, v{z + i}", 4))
            for i in range(8):
                ops.append((f"v_rcp_f32 v{z + i}, v{z + i}", 8))
            for i in range(8):
                ops.append((f"v_fma_f32 v{z + i}, v{z + i}, -2.0, 1.0", 4))
            for i in range(4):
                ops.append((f"v_cvt_pk_bf16_f32 v{jp + i}, v{z + 2 * i}, v{z + 2 * i + 1}", 4))
            ops.append(("ds", f"ds_write_b128 v{vLIN}, {vr(jp, 4)} offset:{r * 1024}", ("jw", r)))
            return ops

        dbg = self.o.get("s4dbg", "")

        def emit(op):
            if op[0] == "ds":
                k.ds(op[1], op[2])
                return 4
            t = op[0]
            if "notrans" in dbg:
                t = t.replace("v_exp_f32", "v_mov_b32").replace("v_rcp_f32", "v_mov_b32")
            if "novalu" not in dbg and not ("nofma" in dbg and t.startswith("v_fma")):
                k.e(t)
            return op[1]

        def read1(r, jj):
            b = BF + 16 * (r & 1)
            a = vJ0 if jj < 2 else vJ2
            k.ds(f"ds_read_b128 {vr(b + 4 * jj, 4)}, v{a} offset:{(jj & 1) * RW + r * 1024}", ("jr", r, jj))

        def reads(r):
            for jj in range(4):
                read1(r, jj)

        k.wait(lg="all")
        if "twice" in dbg:
            k.e(f"s_mov_b32 s{sSPIN}, 0\nL_twice:\ns_waitcnt lgkmcnt(0)\ns_barrier")
            self.stamp("fepoll2")
        for op in j_ops(0):
            emit(op)
        o1 = j_ops(1)
        for op in o1[:16]:
            emit(op)
        k.wait(lg=("jw", 0))
        k.e("s_barrier")
        reads(0)
        for op in o1[16:]:
            emit(op)
        self.stamp("j01")
        for r in range(8):
            ops = j_ops(r + 2) if r + 2 < 8 else []
            total = sum(op[1] if op[0] != "ds" else 4 for op in ops)
            spread = self.o.get("s4spread", 0)
            if not spread:
                k.wait(lg=("jr", r, 3))
            b = BF + 16 * (r & 1)
            spent = 0
            bar_at = self.o["s4bar"] + (self.o.get("s4bar0", 2) if r == 0 else 0)
            assert bar_at + 3 * spread <= 7
            for i in range(8):
                jj, ct = i // 2, i % 2
                q = 4 * r + jj
                if r == 6 and i == 0:
                    k.wait(lg=("two", 3))
                if spread and ct == 0:
                    k.wait(lg=("jr", r, jj))
                if "nomfma" not in dbg:
                    self.mfma32(ACC + 16 * ct, 8 * q + 4 * ct, b + 4 * jj, r == 0 and jj == 0, ak="a")
                if i == bar_at and r + 1 < 8:
                    self.stamp(f"ba{r}")
                    k.wait(lg=("jw", r + 1))
                    self.stamp(f"bb{r}")
                    if "nobar" not in dbg:
                        k.e("s_barrier")
                    self.stamp(f"bc{r}")
                    if not spread:
                        reads(r + 1)
                if spread and r + 1 < 8 and 0 <= (i - bar_at) < 4 * spread and (i - bar_at) % spread == 0:
                    read1(r + 1, (i - bar_at) // spread)
                if late_tr and i > bar_at:
                    for _ in range(2):
                        if late_tr:
                            emit(late_tr.pop(0))
                while ops and spent < total * (i + 1) / 8:
                    spent += emit(ops.pop(0))
            while ops:
                emit(ops.pop(0))
            self.stamp(f"s4r{r}")
        assert not late_tr
        if "twice" in dbg:
            k.e(f"s_add_u32 s{sSPIN}, s{sSPIN}, 1\ns_cmp_lt_u32 s{sSPIN}, 2\ns_cbranch_scc1 L_twice")
        self.stamp("s4mfma")
        k.e(f"""
        s_lshl_b32 s{sT0}, s{sMT}, 7
        s_lshl_b32 s{sT1}, s{sJN}, 5
        s_add_u32 s{sT0}, s{sT0}, s{sT1}
        s_lshl_b32 s{sT0}, s{sT0}, 10
        s_lshl_b32 s{sT1}, s{sNH}, 9
        s_add_u32 s{sT0}, s{sT0}, s{sT1}
        s_lshl_b32 s{sT1}, s{sW}, 7
        s_add_u32 s{sT0}, s{sT0}, s{sT1}
        v_and_b32 v{vT0}, 31, v{vL}
        v_lshlrev_b32 v{vT0}, 10, v{vT0}
        v_lshrrev_b32 v{vT1}, 5, v{vL}
        v_lshl_add_u32 v{vT0}, v{vT1}, 4, v{vT0}
        v_add_u32 v{vT0}, s{sT0}, v{vT0}
        """)
        k.nop(2)
        for ct in range(2):
            for a in range(2):
                src = ACC + 16 * ct + 8 * a
                dst = OUT + 8 * ct + 4 * a
                for i in range(4):
                    k.e(f"v_cvt_pk_bf16_f32 v{dst + i}, v{src + 2 * i}, v{src + 2 * i + 1}")
                o = ct * 64 + a * 32
                os_ = f" offset:{o}" if o else ""
                k.vmem(f"buffer_store_dwordx4 {vr(dst, 4)}, v{vT0}, {sr(SOUT, 4)}, 0 offen{os_}", "out")

    def epilogue(self):
        k = self.k
        if self.stamps:
            self.stamp("end")
            n = self.nst
            k.e("s_waitcnt vmcnt(0) lgkmcnt(0)")
            for i in range(n):
                k.e(f"v_writelane_b32 v{vT1}, s{STAMP0 + 2 * i}, {i}")
            k.e(f"""
            s_lshl_b32 s{sT0}, s2, 2
            s_add_u32 s{sT0}, s{sT0}, s{sW}
            s_lshl_b32 s{sT0}, s{sT0}, 6
            s_add_u32 s{sT0}, s{sT0}, {STAMP_OFF}
            s_mov_b32 s{SWS + 2}, {STAMP_OFF + (1 << 20)}
            v_lshlrev_b32 v{vT0}, 2, v{vL}
            s_mov_b64 exec, 0xffff
            buffer_store_dword v{vT1}, v{vT0}, {sr(SWS, 4)}, s{sT0} offen
            """)
        k.e("s_waitcnt vmcnt(0)\nL_end:\ns_endpgm")
        for item in self.ool:
            if item[0] == "hs":
                _, top, done = item
                k.e(f"""
                {top}:
                s_mov_b32 s{sSPIN}, 0
                v_and_b32 v{vT0}, 3, v{vL}
                v_lshlrev_b32 v{vT0}, 6, v{vT0}
                {top}_l:
                """)
                self.spin_check(done)
                k.e(f"""
                buffer_load_dword v{vHS}, v{vT0}, {sr(SDBG, 4)}, 0 offen sc1
                s_waitcnt vmcnt(0)
                v_cmp_gt_u32 vcc, 64, v{vHS}
                s_cbranch_vccnz {top}_l
                s_branch {done}
                """)
            elif item[0] == "g":
                _, top, join, vm, lg = item
                k.vm, k.lg = vm, lg
                k.e(f"{top}:")
                self.g_block()
                k.e(f"s_branch {join}")
            elif item[0] == "smp":
                _, top, done, vaddr, sbase = item
                k.e(f"{top}:\ns_mov_b32 s{sSPIN}, 0\n{top}_l:")
                self.spin_check(done)
                k.e(f"""
                buffer_load_dword v{vHS}, v{vaddr}, {sr(SWS, 4)}, s{sbase} offen sc1
                s_waitcnt vmcnt(0)
                v_cmp_eq_u32 vcc, -1, v{vHS}
                s_cbranch_vccnz {top}_l
                s_branch {done}
                """)
            else:
                kind, retry, ok, back, loads = item
                k.e(f"{retry}:")
                self.spin_check(ok)
                if kind == "bulk":
                    loads(False, True)
                else:
                    loads(False)
                k.e(f"s_waitcnt vmcnt(0)\ns_branch {back}")
        k.e("L_last:\ns_endpgm")

    def build(self):
        k = self.k
        stop = self.stop_after
        self.prologue()
        self.stage1()
        self.w2_finish()
        if stop != "s1":
            self.stage2()
            self.stage2_tail()
            if stop not in ("s2", "ge"):
                self.stage3()
                if stop != "s3":
                    self.stage4()
        self.epilogue()
        return self.text()

    def text(self):
        head = f"""; RNN-T joint network: two stride-2 conv stems, w_f / w_g projections, tanh, w_o.
; @launch grid=(256,1,1) block=(256,1,1) lds={LDS_BYTES}
.amdgcn_target "amdgcn-amd-amdhsa--gfx950"
.text
.globl {NAME}
.p2align 8
.type {NAME},@function
{NAME}:
"""
        tail = f"""
.section .rodata,"a"
.p2align 6
.amdhsa_kernel {NAME}
  .amdhsa_next_free_vgpr 512
  .amdhsa_next_free_sgpr 102
  .amdhsa_accum_offset 256
  .amdhsa_group_segment_fixed_size 0
  .amdhsa_kernarg_size 80
  .amdhsa_user_sgpr_count 2
  .amdhsa_user_sgpr_kernarg_segment_ptr 1
  .amdhsa_system_sgpr_workgroup_id_x 1
.end_amdhsa_kernel
"""
        return head + self.k.text() + tail


if __name__ == "__main__":
    out = sys.argv[1] if len(sys.argv) > 1 else "cdna_kernels/" + NAME.replace("_kernel", "") + ".s"
    g = Gen2(stamps=False)
    open(out, "w").write(g.build())
    print("wrote", out)
```

```python
import math
import sys
from kb import K, vr, ar, sr, f32

NAME = "standalone__seq2seq_rnn_t_joint__speech_kernel"

H_OFF = 65536
F_OFF = H_OFF + (1 << 20)
FE_OFF = F_OFF + (1 << 19)
GE_OFF = FE_OFF + (1 << 19)
P_OFF = GE_OFF + 65536
WS_REC = 4 << 20
STAMP_OFF = 8 << 20
OOB = 0x80000000
SPIN_MAX = 4096

RW = 40960
RB = 17408
LDS_BYTES = 163840
T4 = [RB + 4096 * t for t in range(5)]
XS = [4096 * t for t in range(4)]
GS = RB + 20480

SX, SW1, SW2, SG, SWF, SWG, SWO, SOUT, SDBG, SWS = 24, 28, 32, 36, 40, 44, 48, 52, 56, 60
sW, sM, sN, sB, sMT, sRW, sML, sJN = 64, 65, 66, 67, 68, 69, 70, 71
sKI, sKC = 72, 3
sT0, sT1, sT2, sT3 = 73, 74, 75, 76
sSPIN = 77
STAMP0 = 78
sH, sFL, sFS, sFE, sGL, sGS, sHS, sA, sB2 = 4, 5, 6, 7, 8, 9, 10, 11, 12
sR4 = [13, 14, 15, 16]
sNH = 17
sFES, sWQ = 18, 19

vL, vT0, vT1, vT2, vT3, vLIN, vRD = 1, 2, 3, 4, 5, 6, 7
vXW = 8
vXA, vXZ, vQ0 = 12, 13, 14
vWA0, vWA1, vTR0, vTR1 = 15, 16, 17, 18
vXB = 19
vBA = 22
vW2 = 24
vT16 = 28
vONES = 32
vHS = 36
AF, BFR, ACC1, R1 = 40, 56, 64, 96
vLIN16, vH0, vSMP, vST, vRD2, vKC3, vSV, vFSM, vGST = 8, 9, 10, 11, 12, 13, 14, 19, 20
HB, ACC2, R2 = 128, 176, 192
vPF = 37
vGP = 21

C1 = 2 * math.log2(math.e) * math.sqrt(2 / math.pi)
C3 = C1 * 0.044715
CT = 2 * math.log2(math.e)

DEFAULT_STAMPS = ("start", "iss", "x0", "s1mfma", "hst", "w2done", "hpoll", "s2mfma", "fst", "s3mfma", "fest", "end")
S1_STAMPS = ("start", "karg", "iss0", "iss", "x0", "u5", "u11", "u17", "s1mfma", "hst", "w2done", "end")
R4_STAMPS = ("start", "fepoll", "j01", "s4r0", "s4r1", "s4r2", "s4r3", "s4r4", "s4r5", "s4r6", "s4r7", "end")
R5_STAMPS = ("start", "fepoll2", "j01", "s4r0", "s4r1", "s4r2", "s4r3", "s4r4", "s4r5", "s4r6", "s4r7", "end")
G_STAMPS = ("start", "hst", "g0", "gdma", "gw2", "gwg", "gld", "gmf", "gend", "w2done", "hpoll", "end")
GL_STAMPS = ("start", "fst", "gdma", "gwg", "gld", "gmf", "gend", "fpoll", "s3mfma", "fest", "fepoll", "end")
S2_STAMPS = ("start", "s1mfma", "hst", "w2done", "hpoll", "s2mfma", "fst", "fpoll", "s3mfma", "fest", "fepoll", "end")
S4_STAMPS = ("start", "hst", "s2mfma", "fst", "fpoll", "s3mfma", "fest", "cb", "fepoll", "s4r3", "s4mfma", "end")


class Gen2:
    def __init__(self, stop_after=None, stamps=True, opts=None):
        self.k = K()
        self.stop_after = stop_after
        self.stamps = stamps
        self.nst = 0
        self.names = []
        self.o = dict(prefetch=False, rot=True, hplain=True, fplain=False, x2=1, x3=2,
                      b1B=8, b2C=8, trb3="loop", s4bar=3, w2in=3, w2mid=0, glate=0, g4=0)
        self.o.update(opts or {})
        self.rot = 0
        self.ool = []

    def stamp(self, name):
        names = self.o.get("stamps", DEFAULT_STAMPS)
        if not self.stamps or name not in names:
            return
        self.names = list(names)
        self.nst = len(names)
        r = STAMP0 + 2 * names.index(name)
        self.k.e(f"{'s_memtime' if self.o.get('memtime') else 's_memrealtime'} s[{r}:{r + 1}]")

    def tmp(self):
        self.rot = (self.rot + 1) % 4
        return sT0 + self.rot

    def tile(self, key, dst):
        self.k.e(f"s_xor_b32 s{dst}, s{sN}, {self.o[key]}")

    def srd(self, d, ptr, off, nrec):
        k = self.k
        if off is None:
            k.e(f"s_mov_b32 s{d}, s{ptr}\ns_mov_b32 s{d + 1}, s{ptr + 1}")
        else:
            k.e(f"s_add_u32 s{d}, s{ptr}, s{off}\ns_addc_u32 s{d + 1}, s{ptr + 1}, 0")
        k.e(f"s_mov_b32 s{d + 2}, {nrec}\ns_mov_b32 s{d + 3}, 0x20000")

    def nt(self, srd):
        key = {SW1: "ntw1", SW2: "ntw2", SWF: "ntwf", SWG: "ntwg", SWO: "ntwo", SX: "ntx"}[srd]
        return " nt" if self.o.get(key) else ""

    def dma2k(self, srd, lds_off, soff, tag):
        k = self.k
        nt = self.nt(srd)
        k.e(f"s_add_u32 m0, s{sRW}, {lds_off}")
        k.e("s_nop 0")
        k.vmem(f"buffer_load_dwordx4 v{vWA0}, {sr(srd, 4)}, {soff} offen{nt} lds", tag)
        k.vmem(f"buffer_load_dwordx4 v{vWA1}, {sr(srd, 4)}, {soff} offen offset:1024{nt} lds", tag)

    def dma4k_ops(self, srd, lds_off, soff_fn, tag):
        k = self.k
        st = {}

        def op(q):
            if q == 0:
                st["s"] = soff_fn()
                k.e(f"s_add_u32 m0, s{sRW}, {lds_off}")
                k.e("s_nop 0")
            o = f" offset:{q * 1024}" if q else ""
            k.vmem(f"buffer_load_dwordx4 v{vW2 + q}, {sr(srd, 4)}, {st['s']} offen{o}{self.nt(srd)} lds", tag)
        return [lambda q=q: op(q) for q in range(4)]

    def dma4k(self, srd, lds_off, soff_fn, tag):
        for op in self.dma4k_ops(srd, lds_off, soff_fn, tag):
            op()

    def tr32(self, lds_off, dst, kind, tag):
        k = self.k
        for ct, a in enumerate((vTR0, vTR1)):
            k.ds(f"ds_read_b64_tr_b16 {vr(dst + 4 * ct, 2, kind)}, v{a} offset:{lds_off}", tag)
            k.ds(f"ds_read_b64_tr_b16 {vr(dst + 4 * ct + 2, 2, kind)}, v{a} offset:{lds_off + 512}", tag)

    def tr16(self, lds_off, dst, kind, tag):
        k = self.k
        for ct in range(4):
            k.ds(f"ds_read_b64_tr_b16 {vr(dst + 4 * ct, 2, kind)}, v{vT16 + ct} offset:{lds_off}", tag)
            k.ds(f"ds_read_b64_tr_b16 {vr(dst + 4 * ct + 2, 2, kind)}, v{vT16 + ct} offset:{lds_off + 512}", tag)

    def mfma32(self, d, a, b, first, ak="v"):
        c = "0" if first else vr(d, 16)
        self.k.e(f"v_mfma_f32_32x32x16_bf16 {vr(d, 16)}, {vr(a, 4, ak)}, {vr(b, 4)}, {c}")

    def mfma16(self, d, a, b, first, ak="a"):
        c = "0" if first else vr(d, 4)
        self.k.e(f"v_mfma_f32_16x16x32_bf16 {vr(d, 4)}, {vr(a, 4, ak)}, {vr(b, 4)}, {c}")

    def gelu(self, xs, tmp, kc3):
        k = self.k
        ts = [tmp + i for i in range(len(xs))]
        for x, t in zip(xs, ts):
            k.e(f"v_mul_f32 v{t}, v{x}, v{x}")
        for x, t in zip(xs, ts):
            k.e(f"v_fmaak_f32 v{t}, v{t}, v{kc3}, {f32(-C1)}")
        for x, t in zip(xs, ts):
            k.e(f"v_mul_f32 v{t}, v{t}, v{x}")
        for x, t in zip(xs, ts):
            k.e(f"v_exp_f32 v{t}, v{t}")
        for x, t in zip(xs, ts):
            k.e(f"v_add_f32 v{t}, 1.0, v{t}")
        for x, t in zip(xs, ts):
            k.e(f"v_rcp_f32 v{t}, v{t}")
        for x, t in zip(xs, ts):
            k.e(f"v_mul_f32 v{x}, v{x}, v{t}")

    def spin_check(self, done_label):
        self.k.e(f"s_add_u32 s{sSPIN}, s{sSPIN}, 1\ns_cmp_ge_u32 s{sSPIN}, {SPIN_MAX}\ns_cbranch_scc1 {done_label}")

    def prologue(self):
        k = self.k
        rot = self.o["rot"]
        k.e("""
        s_cmp_ge_u32 s2, 256
        s_cbranch_scc1 L_end
        s_load_dwordx16 s[4:19], s[0:1], 0
        s_load_dwordx4 s[20:23], s[0:1], 64
        """)
        self.stamp("start")
        k.e(f"""
        v_lshrrev_b32 v{vT0}, 6, v0
        v_and_b32 v{vL}, 63, v0
        v_readfirstlane_b32 s{sW}, v{vT0}
        s_and_b32 s{sT0}, s2, 7
        s_lshr_b32 s{sT1}, s2, 3
        s_add_u32 s{sJN}, s{sT1}, {self.o.get("jnrot", 0)}
        s_and_b32 s{sJN}, s{sJN}, 3
        s_lshr_b32 s{sML}, s{sT1}, 2
        s_and_b32 s{sT2}, s{sT0}, 1
        s_lshl_b32 s{sN}, s{sT2}, 2
        s_add_u32 s{sN}, s{sN}, s{sJN}
        s_lshr_b32 s{sT0}, s{sT0}, 1
        s_lshl_b32 s{sM}, s{sT0}, 3
        s_add_u32 s{sM}, s{sM}, s{sML}
        s_lshr_b32 s{sB}, s{sM}, 4
        s_and_b32 s{sMT}, s{sM}, 15
        s_mul_i32 s{sRW}, s{sW}, {RW}
        v_lshrrev_b32 v{vT0}, 4, v{vL}
        v_lshrrev_b32 v{vT1}, 5, v{vL}
        v_and_b32 v{vT2}, 15, v{vL}
        v_xor_b32 v{vT2}, v{vT2}, v{vT1}
        v_lshlrev_b32 v{vT2}, 4, v{vT2}
        v_lshl_add_u32 v{vXW}, v{vT0}, 10, v{vT2}
        """)
        for e in range(1, 4):
            k.e(f"v_xor_b32 v{vXW + e}, {e * 32}, v{vXW}")
            k.e(f"v_add_u32 v{vXW + e}, {e * 3072}, v{vXW + e}")
        k.e(f"""
        v_cmp_gt_u32 vcc, 16, v{vL}
        v_bfrev_b32 v{vT0}, 1
        v_lshrrev_b32 v{vT1}, 3, v{vL}
        v_cndmask_b32 v{vQ0}, 0, v{vT0}, vcc
        v_bfe_u32 v{vT2}, v{vT1}, 1, 1
        v_lshlrev_b32 v{vT2}, 2, v{vT2}
        v_and_b32 v{vT3}, 7, v{vL}
        v_xor_b32 v{vT2}, v{vT2}, v{vT3}
        v_lshlrev_b32 v{vT2}, 4, v{vT2}
        v_lshl_add_u32 v{vWA0}, v{vT1}, 10, v{vT2}
        v_add_u32 v{vWA1}, 7168, v{vWA0}
        s_lshl_b32 s{sT0}, s{sW}, 17
        s_lshl_b32 s{sT1}, s{sN}, 7
        s_add_u32 s3, s{sT0}, s{sT1}
        s_mul_i32 s{sT0}, s{sB}, 1000
        s_lshl_b32 s{sT1}, s{sMT}, 6
        s_add_u32 s{sT0}, s{sT0}, s{sT1}
        s_sub_u32 s{sT0}, s{sT0}, 1
        s_lshl_b32 s{sT0}, s{sT0}, 10
        s_lshl_b32 s{sT2}, s{sW}, 8
        s_add_u32 s{sT0}, s{sT0}, s{sT2}
        s_ashr_i32 s{sT3}, s{sT0}, 31
        s_sub_u32 s{sT1}, 1001, s{sT1}
        s_lshl_b32 s{sT1}, s{sT1}, 10
        s_sub_u32 s{SX + 2}, s{sT1}, s{sT2}
        s_mov_b32 s{SX + 3}, 0x20000
        s_sub_u32 s{SW1 + 2}, 1572864, s3
        s_mov_b32 s{SW1 + 3}, 0x20000
        """)
        if rot:
            k.e(f"s_lshl_b32 s{sKI}, s{sML}, 14")
        else:
            k.e(f"s_mov_b32 s{sKI}, 0")
        k.e("s_waitcnt lgkmcnt(0)")
        self.stamp("karg")
        k.e(f"""
        s_add_u32 s{SX}, s4, s{sT0}
        s_addc_u32 s{SX + 1}, s5, s{sT3}
        s_add_u32 s{SW1}, s6, s3
        s_addc_u32 s{SW1 + 1}, s7, 0
        """)

    def code_prefetch(self):
        k = self.k
        mode = self.o.get("cpf", 0)
        if not mode:
            return
        lab = k.label("pf")
        k.e(f"""
        s_cmp_lg_u32 s{sW}, {self.o.get("cpfw", 3)}
        s_cbranch_scc1 {lab}
        s_getpc_b64 s[{sT0 + 1}:{sT0 + 2}]
        L_pc:
        s_lshr_b32 s{sT0}, s2, 3
        s_lshl_b32 s{sT0}, s{sT0}, 11
        v_lshlrev_b32 v{vT0}, 7, v{vL}
        v_add_u32 v{vT0}, s{sT0}, v{vT0}
        v_min_u32 v{vT0}, L_last-L_pc, v{vT0}
        s_mov_b64 exec, 0xffff
        global_load_dword v{vPF}, v{vT0}, s[{sT0 + 1}:{sT0 + 2}]
        s_mov_b64 exec, -1
        {lab}:
        """)

    def g_prefetch(self):
        k = self.k
        k.e(f"""
        s_lshr_b32 s{sT0}, s2, 3
        s_lshl_b32 s{sT1}, s{sT0}, 12
        v_lshlrev_b32 v{vT0}, 10, v{vL}
        v_add_u32 v{vT0}, s{sT1}, v{vT0}
        s_lshr_b32 s{sT1}, s{sT0}, 1
        s_lshl_b32 s{sT1}, s{sT1}, 10
        s_and_b32 s{sT0}, s{sT0}, 1
        s_lshl_b32 s{sT0}, s{sT0}, 7
        s_add_u32 s{sT0}, s{sT0}, s{sT1}
        v_mov_b32 v{vT1}, s{sT0}
        s_mov_b64 exec, 15
        """)
        k.vmem(f"buffer_load_dword v{vPF}, v{vT0}, {sr(SWG, 4)}, 0 offen", "pf")
        k.e("s_mov_b64 exec, 1")
        k.vmem(f"buffer_load_dword v{vPF + 1}, v{vT1}, {sr(SG, 4)}, 0 offen", "pf")
        k.e("s_mov_b64 exec, -1")

    def l2pf(self, pos):
        k = self.k
        for key, srd, lanes in (("pfw2", SW2, 48), ("pfwf", SWF, 16), ("pfwo", SWO, 16)):
            if self.o.get(key) != pos:
                continue
            if srd == SWO:
                k.e(f"s_lshr_b32 s{sT0}, s2, 3\ns_lshl_b32 s{sT0}, s{sT0}, 14")
            else:
                k.e(f"s_lshl_b32 s{sT0}, s{sML}, 14")
            k.e(f"""
            v_and_b32 v{vT1}, 15, v{vL}
            v_lshlrev_b32 v{vT1}, 10, v{vT1}
            v_lshrrev_b32 v{vT2}, 4, v{vL}
            v_lshl_add_u32 v{vT1}, v{vT2}, 19, v{vT1}
            s_bfm_b64 exec, {lanes}, 0
            """)
            k.vmem(f"buffer_load_dword v{vPF}, v{vT1}, {sr(srd, 4)}, s{sT0} offen", "pf")
            k.e("s_mov_b64 exec, -1")

    def x_quarter(self, qq):
        k = self.k
        a, z = sT0, sT1
        if self.o["rot"]:
            k.e(f"s_add_u32 s{a}, s{sJN}, {qq}\ns_and_b32 s{a}, s{a}, 3")
        else:
            k.e(f"s_mov_b32 s{a}, {qq}")
        k.e(f"""
        s_lshl_b32 s{sT2}, s{a}, 12
        s_add_u32 m0, s{sT2}, s{sRW}
        s_or_b32 s{z}, s{a}, s{sMT}
        s_cmp_eq_u32 s{z}, 0
        s_cselect_b32 s{z}, -1, 0
        s_and_b32 s{sT3}, s{a}, 1
        s_lshl_b32 s{sT3}, s{sT3}, 7
        s_lshl_b32 s{a}, s{a}, 14
        s_or_b32 s{a}, s{a}, s{sT3}
        """)
        for e in range(4):
            t = vXA if e % 2 == 0 else vXZ
            k.e(f"v_xor_b32 v{t}, s{a}, v{vXW + e}")
            if e == 0:
                k.e(f"v_and_or_b32 v{t}, v{vQ0}, s{z}, v{t}")
            o = f" offset:{e * 1024}" if e else ""
            k.vmem(f"buffer_load_dwordx4 v{t}, {sr(SX, 4)}, 0 offen{o}{self.nt(SX)} lds", "x")

    def x_tail(self):
        k = self.k
        k.e(f"""
        v_lshlrev_b32 v{vXA}, 4, v{vL}
        v_add_u32 v{vXA}, 65536, v{vXA}
        s_add_u32 m0, s{sRW}, 16384
        s_mov_b64 exec, 0xffff
        """)
        k.vmem(f"buffer_load_dwordx4 v{vXA}, {sr(SX, 4)}, 0 offen{self.nt(SX)} lds", "x")
        k.e("s_mov_b64 exec, -1")

    def w1_issue(self, u):
        k = self.k
        i = u % 3
        if i == 0 and u:
            k.e(f"s_add_u32 s{sKI}, s{sKI}, 16384\ns_and_b32 s{sKI}, s{sKI}, 0x1c000")
        if i:
            t = self.tmp()
            k.e(f"s_add_u32 s{t}, s{sKI}, {i * 524288}")
            so = f"s{t}"
        else:
            so = f"s{sKI}"
        self.dma2k(SW1, RB + 2048 * (u % 10), so, ("w1", u))

    def rot4(self):
        k = self.k
        for j in range(4):
            if self.o["rot"]:
                k.e(f"s_add_u32 s{sR4[j]}, s{sML}, {j}\ns_and_b32 s{sR4[j]}, s{sR4[j]}, 3\ns_lshl_b32 s{sR4[j]}, s{sR4[j]}, 10")
            else:
                k.e(f"s_mov_b32 s{sR4[j]}, {j * 1024}")

    def w32_soff(self, j, tap):
        def fn():
            t = self.tmp()
            self.k.e(f"s_lshl_b32 s{t}, s{sR4[j]}, 5")
            if tap:
                self.k.e(f"s_add_u32 s{t}, s{t}, {tap * 524288}")
            return f"s{t}"
        return fn

    def w2_slot(self, v):
        xs = [XS[2], XS[3], XS[0], XS[1]] if self.o["w2mid"] else XS
        return [T4[2], T4[3], T4[4], T4[0], T4[1], xs[0], xs[1], xs[2], xs[3], T4[2], T4[3], T4[4]][v]

    def w2_ops(self, v):
        return self.dma4k_ops(SW2, self.w2_slot(v), self.w32_soff(v // 3, v % 3), ("w2", v))

    def clears(self):
        k = self.k
        self.srd(SWS, 22, None, WS_REC)
        k.e(f"""
        v_mov_b32 v{vONES}, -1
        v_mov_b32 v{vONES + 1}, -1
        v_mov_b32 v{vONES + 2}, -1
        v_mov_b32 v{vONES + 3}, -1
        v_lshlrev_b32 v{vT0}, 4, v{vL}
        s_lshl_b32 s{sT0}, s{sM}, 14
        s_lshl_b32 s{sT2}, s{sW}, 9
        s_add_u32 s{sT0}, s{sT0}, s{sT2}
        """)
        self.tile("x2", sT1)
        k.e(f"""
        s_lshl_b32 s{sT1}, s{sT1}, 11
        s_add_u32 s{sT2}, s{sT0}, {F_OFF}
        s_add_u32 s{sT2}, s{sT2}, s{sT1}
        """)
        self.tile("x3", sT1)
        k.e(f"""
        s_lshl_b32 s{sT1}, s{sT1}, 11
        s_add_u32 s{sT3}, s{sT0}, {FE_OFF}
        s_add_u32 s{sT3}, s{sT3}, s{sT1}
        s_mov_b32 exec_hi, 0
        """)
        k.vmem(f"buffer_store_dwordx4 {vr(vONES, 4)}, v{vT0}, {sr(SWS, 4)}, s{sT2} offen sc1", "clr")
        k.vmem(f"buffer_store_dwordx4 {vr(vONES, 4)}, v{vT0}, {sr(SWS, 4)}, s{sT3} offen sc1", "clr")
        lab = k.label("c0")
        k.e(f"""
        s_mov_b64 exec, -1
        s_cmp_lg_u32 s{sW}, 0
        s_cbranch_scc1 {lab}
        s_lshl_b32 s{sT0}, s{sM}, 15
        s_lshl_b32 s{sT1}, s{sN}, 11
        s_add_u32 s{sT0}, s{sT0}, s{sT1}
        s_add_u32 s{sT0}, s{sT0}, {H_OFF}
        s_add_u32 s{sT1}, s{sT0}, 16384
        buffer_store_dwordx4 {vr(vONES, 4)}, v{vT0}, {sr(SWS, 4)}, s{sT0} offen sc1
        buffer_store_dwordx4 {vr(vONES, 4)}, v{vT0}, {sr(SWS, 4)}, s{sT0} offen offset:1024 sc1
        buffer_store_dwordx4 {vr(vONES, 4)}, v{vT0}, {sr(SWS, 4)}, s{sT1} offen sc1
        buffer_store_dwordx4 {vr(vONES, 4)}, v{vT0}, {sr(SWS, 4)}, s{sT1} offen offset:1024 sc1
        """)
        if self.o["g4"]:
            k.e(f"""
            s_cmp_lg_u32 s{sN}, 0
            s_cbranch_scc1 {lab}
            s_and_b32 s{sT0}, s{sM}, 7
            s_lshr_b32 s{sT1}, s{sM}, 3
            s_lshl_b32 s{sT2}, s{sT0}, 14
            s_lshl_b32 s{sT3}, s{sT1}, 12
            s_add_u32 s{sT2}, s{sT2}, s{sT3}
            s_add_u32 s{sT2}, s{sT2}, {P_OFF}
            s_lshl_b32 s{sT0}, s{sT0}, 10
            s_lshl_b32 s{sT1}, s{sT1}, 8
            s_add_u32 s{sT0}, s{sT0}, s{sT1}
            s_add_u32 s{sT0}, s{sT0}, {GE_OFF}
            s_add_u32 s{sT1}, s{sT0}, 8192
            buffer_store_dwordx4 {vr(vONES, 4)}, v{vT0}, {sr(SWS, 4)}, s{sT2} offen sc1
            buffer_store_dwordx4 {vr(vONES, 4)}, v{vT0}, {sr(SWS, 4)}, s{sT2} offen offset:1024 sc1
            buffer_store_dwordx4 {vr(vONES, 4)}, v{vT0}, {sr(SWS, 4)}, s{sT2} offen offset:2048 sc1
            buffer_store_dwordx4 {vr(vONES, 4)}, v{vT0}, {sr(SWS, 4)}, s{sT2} offen offset:3072 sc1
            s_mov_b64 exec, 0xffff
            buffer_store_dwordx4 {vr(vONES, 4)}, v{vT0}, {sr(SWS, 4)}, s{sT0} offen sc1
            buffer_store_dwordx4 {vr(vONES, 4)}, v{vT0}, {sr(SWS, 4)}, s{sT1} offen sc1
            s_mov_b64 exec, -1
            {lab}:
            """)
            return
        k.e(f"""
        s_cmp_ge_u32 s2, 8
        s_cbranch_scc1 {lab}
        s_lshl_b32 s{sT0}, s2, 10
        s_add_u32 s{sT0}, s{sT0}, {GE_OFF}
        s_add_u32 s{sT1}, s{sT0}, 8192
        buffer_store_dwordx4 {vr(vONES, 4)}, v{vT0}, {sr(SWS, 4)}, s{sT0} offen sc1
        buffer_store_dwordx4 {vr(vONES, 4)}, v{vT0}, {sr(SWS, 4)}, s{sT1} offen sc1
        {lab}:
        """)

    def prologue2(self):
        k = self.k
        for key, d, ptr, size in (("x2", SW2, 8, 1572864), ("x3", SWF, 12, 524288), (None, SWG, 14, 524288)):
            if key is None and self.o["g4"]:
                k.e(f"""
                s_and_b32 s{sT0}, s{sM}, 7
                s_lshl_b32 s{sT0}, s{sT0}, 7
                s_lshr_b32 s{sT1}, s{sM}, 3
                s_lshl_b32 s{sT1}, s{sT1}, 17
                s_add_u32 s{sT0}, s{sT0}, s{sT1}
                s_lshl_b32 s{sT1}, s{sW}, 15
                s_add_u32 s{sT0}, s{sT0}, s{sT1}
                s_sub_u32 s{sT1}, {size}, s{sT0}
                """)
                self.srd(d, ptr, sT0, f"s{sT1}")
                continue
            if key:
                self.tile(key, sT0)
            else:
                k.e(f"s_and_b32 s{sT0}, s2, 7")
            k.e(f"""
            s_lshl_b32 s{sT0}, s{sT0}, 7
            s_lshl_b32 s{sT1}, s{sW}, 17
            s_add_u32 s{sT0}, s{sT0}, s{sT1}
            s_sub_u32 s{sT1}, {size}, s{sT0}
            """)
            self.srd(d, ptr, sT0, f"s{sT1}")
        if self.o["g4"]:
            k.e(f"""
            s_lshr_b32 s{sT0}, s{sM}, 3
            s_lshl_b32 s{sT0}, s{sT0}, 8
            s_lshl_b32 s{sT1}, s{sW}, 6
            s_add_u32 s{sT0}, s{sT0}, s{sT1}
            s_sub_u32 s{sT1}, 16384, s{sT0}
            """)
        else:
            k.e(f"""
            s_lshl_b32 s{sT0}, s{sW}, 8
            s_sub_u32 s{sT1}, 16384, s{sT0}
            """)
        self.srd(SG, 10, sT0, f"s{sT1}")
        k.e(f"""
        s_lshr_b32 s{sT2}, s{sN}, 2
        s_lshl_b32 s{sT0}, s{sT2}, 9
        s_lshl_b32 s{sT1}, s{sW}, 7
        s_add_u32 s{sT0}, s{sT0}, s{sT1}
        s_sub_u32 s{sT1}, 524288, s{sT0}
        """)
        self.srd(SWO, 16, sT0, f"s{sT1}")
        k.e(f"s_mul_i32 s{sT0}, s{sB}, 2048000")
        self.srd(SOUT, 18, sT0, 2048000)
        self.srd(SDBG, 20, None, 256)
        k.e(f"s_lshr_b32 s{sNH}, s{sN}, 2")
        self.rot4()
        k.e(f"""
        v_lshlrev_b32 v{vT0}, 4, v{vL}
        v_add_u32 v{vLIN}, s{sRW}, v{vT0}
        v_bfe_u32 v{vT0}, v{vL}, 2, 2
        v_lshrrev_b32 v{vT1}, 5, v{vL}
        v_lshl_add_u32 v{vT1}, v{vT1}, 3, v{vT0}
        v_lshlrev_b32 v{vT1}, 7, v{vT1}
        v_lshrrev_b32 v{vT2}, 1, v{vT0}
        v_lshl_add_u32 v{vT1}, v{vT2}, 6, v{vT1}
        v_bfe_u32 v{vT2}, v{vL}, 4, 1
        v_lshl_add_u32 v{vT1}, v{vT2}, 5, v{vT1}
        v_and_b32 v{vT2}, 3, v{vL}
        v_lshl_add_u32 v{vT1}, v{vT2}, 3, v{vT1}
        v_add_u32 v{vTR0}, s{sRW}, v{vT1}
        v_xor_b32 v{vT1}, 64, v{vT1}
        v_add_u32 v{vTR1}, s{sRW}, v{vT1}
        """)
        k.e(f"""
        v_and_b32 v{vT0}, 31, v{vL}
        v_lshrrev_b32 v{vT1}, 5, v{vL}
        v_and_b32 v{vT2}, 15, v{vT0}
        v_xor_b32 v{vT2}, v{vT2}, v{vT1}
        v_lshlrev_b32 v{vT2}, 4, v{vT2}
        v_lshl_add_u32 v{vT2}, v{vT0}, 9, v{vT2}
        v_add_u32 v{vXB}, s{sRW}, v{vT2}
        v_add_u32 v{vXB + 1}, 256, v{vXB}
        v_add_u32 v{vT2}, 1, v{vT0}
        v_and_b32 v{vT2}, 15, v{vT2}
        v_xor_b32 v{vT2}, v{vT2}, v{vT1}
        v_lshlrev_b32 v{vT2}, 4, v{vT2}
        v_lshl_add_u32 v{vT2}, v{vT0}, 9, v{vT2}
        v_add_u32 v{vT2}, 512, v{vT2}
        v_add_u32 v{vXB + 2}, s{sRW}, v{vT2}
        """)
        k.e(f"""
        v_lshrrev_b32 v{vT0}, 3, v{vL}
        v_bfe_u32 v{vT1}, v{vT0}, 1, 1
        v_lshlrev_b32 v{vT1}, 1, v{vT1}
        v_and_b32 v{vT2}, 7, v{vL}
        v_xor_b32 v{vT1}, v{vT1}, v{vT2}
        v_lshlrev_b32 v{vT1}, 4, v{vT1}
        v_lshl_add_u32 v{vW2}, v{vT0}, 10, v{vT1}
        v_xor_b32 v{vT1}, 64, v{vW2}
        v_add_u32 v{vW2 + 1}, 7168, v{vT1}
        v_add_u32 v{vW2 + 2}, {2 * 7168}, v{vW2}
        v_add_u32 v{vW2 + 3}, {3 * 7168}, v{vT1}
        v_lshrrev_b32 v{vT0}, 4, v{vL}
        v_bfe_u32 v{vT1}, v{vL}, 2, 2
        v_lshl_add_u32 v{vT2}, v{vT0}, 3, v{vT1}
        v_lshlrev_b32 v{vT2}, 7, v{vT2}
        v_lshrrev_b32 v{vT1}, 1, v{vT1}
        v_and_b32 v{vT0}, 1, v{vT0}
        v_lshl_add_u32 v{vT1}, v{vT0}, 1, v{vT1}
        v_lshl_add_u32 v{vT2}, v{vT1}, 5, v{vT2}
        v_and_b32 v{vT1}, 3, v{vL}
        v_lshl_add_u32 v{vT2}, v{vT1}, 3, v{vT2}
        v_add_u32 v{vT16}, s{sRW}, v{vT2}
        """)
        for ct in range(1, 4):
            k.e(f"v_xor_b32 v{vT0}, {ct * 32}, v{vT2}\nv_add_u32 v{vT16 + ct}, s{sRW}, v{vT0}")
        k.e(f"""
        v_and_b32 v{vT0}, 15, v{vL}
        v_bfe_u32 v{vT1}, v{vL}, 4, 1
        v_lshl_add_u32 v{vT0}, v{vT0}, 1, v{vT1}
        v_lshlrev_b32 v{vT0}, 4, v{vT0}
        v_lshrrev_b32 v{vT1}, 5, v{vL}
        v_lshl_add_u32 v{vT0}, v{vT1}, 10, v{vT0}
        s_lshl_b32 s{sT0}, s{sW}, 11
        v_add_u32 v{vRD}, s{sT0}, v{vT0}
        """)
        if self.o["rot"]:
            k.e(f"s_lshl_b32 s{sKC}, s{sML}, 5")
        else:
            k.e(f"s_mov_b32 s{sKC}, 0")

    def stage1(self):
        k = self.k
        if self.o.get("cpf") == 1:
            self.code_prefetch()
        self.x_quarter(0)
        for u in range(3):
            self.w1_issue(u)
        if self.o.get("cpf") == 2:
            self.code_prefetch()
        self.clears()
        for qq in range(1, 4):
            self.x_quarter(qq)
        self.x_tail()
        self.stamp("iss0")
        self.prologue2()
        if self.o.get("gpf", 1) and not self.o["g4"]:
            self.g_prefetch()
        self.l2pf("iss0")
        for u in range(3, 10):
            self.w1_issue(u)
        self.l2pf("iss")
        self.stamp("iss")
        k.wait(vm="x")
        self.stamp("x0")
        lab = k.label("hs")
        k.e(f"""
        s_cmp_lg_u32 s{sW}, 0
        s_cbranch_scc1 {lab}
        s_and_b32 s{sT0}, s2, 3
        s_lshl_b32 s{sT0}, s{sT0}, 6
        v_mov_b32 v{vT0}, s{sT0}
        v_mov_b32 v{vT1}, 1
        s_mov_b64 exec, 1
        buffer_atomic_add v{vT1}, v{vT0}, {sr(SDBG, 4)}, 0 offen sc1
        s_mov_b64 exec, -1
        {lab}:
        """)

        def mm(u):
            a, b = AF + 8 * (u & 1), BFR + 4 * (u & 1)
            self.mfma32(ACC1, a, b, u == 0)
            self.mfma32(ACC1 + 16, a + 4, b, u == 0)

        def refill(u):
            if u + 10 < 24:
                self.w1_issue(u + 10)
            elif u >= 15 and u % 2 == 1 and (u - 15) // 2 < self.o["w2in"]:
                for op in self.w2_ops((u - 15) // 2):
                    op()
            self.l2pf(u)
            if u == 17:
                k.e(f"v_and_b32 v{vT0}, 3, v{vL}\nv_lshlrev_b32 v{vT0}, 6, v{vT0}")
                k.vmem(f"buffer_load_dword v{vHS}, v{vT0}, {sr(SDBG, 4)}, 0 offen sc1", "hs")

        for u in range(24):
            i = u % 3
            if i == 0 and u:
                k.e(f"s_add_u32 s{sKC}, s{sKC}, 32\ns_and_b32 s{sKC}, s{sKC}, 0xe0")
            k.e(f"v_xor_b32 v{vBA + (u & 1)}, s{sKC}, v{vXB + i}")
            k.wait(vm=("w1", u))
            self.tr32(RB + 2048 * (u % 10), AF + 8 * (u & 1), "v", ("u", u))
            k.ds(f"ds_read_b128 {vr(BFR + 4 * (u & 1), 4)}, v{vBA + (u & 1)}", ("u", u))
            if u:
                k.wait(lg=("u", u - 1))
                mm(u - 1)
                refill(u - 1)
            if u in (5, 11, 17):
                self.stamp(f"u{u}")
        k.wait(lg=("u", 23))
        mm(23)
        refill(23)
        self.stamp("s1mfma")
        if self.o["g4"]:
            self.g4_issue()
        self.l2pf("s1end")
        k.e(f"v_mov_b32 v{vKC3}, {f32(-C3)}")
        k.e(f"v_add_u32 v{vT3}, {2 * RW}, v{vRD}")
        k.nop(10)
        for blk in range(8):
            k.ds(f"ds_write_b128 v{vLIN}, {vr(ACC1 + 4 * blk, 4)} offset:{blk * 1024}")
        k.wait(lg="all")
        k.e("s_barrier")
        for sw in range(4):
            a = vRD if sw < 2 else vT3
            for j in range(2):
                k.ds(f"ds_read_b128 {vr(R1 + 8 * sw + 4 * j, 4)}, v{a} offset:{(sw & 1) * RW + j * 512}", ("r", sw))
        assert self.o["w2in"] + self.o["w2mid"] <= 7
        for v in range(self.o["w2in"], self.o["w2in"] + self.o["w2mid"]):
            for op in self.w2_ops(v):
                op()
        k.wait(lg=("r", 1))
        for i in range(8):
            k.e(f"v_add_f32 v{R1 + i}, v{R1 + i}, v{R1 + 8 + i}")
        k.wait(lg=("r", 3))
        for i in range(8):
            k.e(f"v_add_f32 v{R1 + 16 + i}, v{R1 + 16 + i}, v{R1 + 24 + i}")
        for i in range(8):
            k.e(f"v_add_f32 v{R1 + i}, v{R1 + i}, v{R1 + 16 + i}")
        self.gelu([R1 + i for i in range(8)], R1 + 8, vKC3)
        for i in range(4):
            k.e(f"v_cvt_pk_bf16_f32 v{R1 + 16 + i}, v{R1 + 2 * i}, v{R1 + 2 * i + 1}")
        k.e(f"""
        v_and_b32 v{vT0}, 15, v{vL}
        v_lshlrev_b32 v{vT0}, 4, v{vT0}
        v_bfe_u32 v{vT1}, v{vL}, 4, 1
        v_lshl_add_u32 v{vT0}, v{vT1}, 14, v{vT0}
        v_lshrrev_b32 v{vT1}, 5, v{vL}
        v_lshl_add_u32 v{vT0}, v{vT1}, 8, v{vT0}
        s_lshl_b32 s{sT0}, s{sM}, 15
        s_lshl_b32 s{sT1}, s{sN}, 11
        s_add_u32 s{sT0}, s{sT0}, s{sT1}
        s_lshl_b32 s{sT1}, s{sW}, 9
        s_add_u32 s{sT0}, s{sT0}, s{sT1}
        s_add_u32 s{sT0}, s{sT0}, {H_OFF}
        """)
        k.vmem(f"buffer_store_dwordx4 {vr(R1 + 16, 4)}, v{vT0}, {sr(SWS, 4)}, s{sT0} offen sc1", "hst")
        self.stamp("hst")
        k.e("s_barrier")

    def setup2(self):
        k = self.k
        k.e(f"""
        v_lshlrev_b32 v{vLIN16}, 4, v{vL}
        v_and_b32 v{vT0}, 15, v{vL}
        v_lshrrev_b32 v{vT1}, 4, v{vL}
        v_add_u32 v{vH0}, {32768 - 16}, v{vLIN16}
        v_lshlrev_b32 v{vT2}, 8, v{vT1}
        v_add_u32 v{vT2}, 240, v{vT2}
        s_cmp_eq_u32 s{sMT}, 0
        s_cselect_b32 s{sT0}, {OOB}, 0
        v_add_u32 v{vT2}, s{sT0}, v{vT2}
        v_cmp_eq_u32 vcc, 0, v{vT0}
        v_and_b32 v{vT3}, 7, v{vL}
        v_lshlrev_b32 v{vT3}, 9, v{vT3}
        v_cndmask_b32 v{vH0}, v{vH0}, v{vT2}, vcc
        v_add_u32 v{vFSM}, {256 + 240 + 12}, v{vT3}
        v_add_u32 v{vSMP}, 16384, v{vFSM}
        v_add_u32 v{vT2}, 32768, v{vSMP}
        v_add_u32 v{vT3}, s{sT0}, v{vSMP}
        v_cmp_gt_u32 vcc, 8, v{vL}
        v_bfrev_b32 v{vSV}, 1
        s_nop 0
        v_cndmask_b32 v{vSMP}, v{vT3}, v{vT2}, vcc
        v_cndmask_b32 v{vFSM}, v{vSV}, v{vFSM}, vcc
        v_cmp_gt_u32 vcc, 16, v{vL}
        v_lshrrev_b32 v{vT2}, 1, v{vT1}
        v_lshlrev_b32 v{vT2}, 8, v{vT2}
        v_cndmask_b32 v{vSMP}, v{vSV}, v{vSMP}, vcc
        v_lshl_add_u32 v{vT2}, v{vT0}, 4, v{vT2}
        v_and_b32 v{vT1}, 1, v{vT1}
        v_lshl_add_u32 v{vST}, v{vT1}, 3, v{vT2}
        s_lshl_b32 s{sT0}, s{sW}, 10
        v_add_u32 v{vRD2}, s{sT0}, v{vLIN16}
        s_lshl_b32 s{sT0}, s{sM}, 15
        s_lshl_b32 s{sT1}, s{sW}, 12
        s_add_u32 s{sH}, s{sT0}, s{sT1}
        s_add_u32 s{sH}, s{sH}, {H_OFF}
        s_sub_u32 s{sHS}, s{sH}, 32768
        s_lshl_b32 s{sT0}, s{sM}, 14
        s_add_u32 s{sFL}, s{sT0}, s{sT1}
        s_add_u32 s{sFL}, s{sFL}, {F_OFF}
        s_lshl_b32 s{sT1}, s{sW}, 9
        s_add_u32 s{sT0}, s{sT0}, s{sT1}
        s_xor_b32 s{sT1}, s{sN}, {self.o["x2"]}
        s_lshl_b32 s{sT1}, s{sT1}, 11
        s_add_u32 s{sFS}, s{sT0}, s{sT1}
        s_add_u32 s{sFS}, s{sFS}, {F_OFF}
        s_xor_b32 s{sT1}, s{sN}, {self.o["x3"]}
        s_lshl_b32 s{sT1}, s{sT1}, 11
        s_add_u32 s{sFES}, s{sT0}, s{sT1}
        s_add_u32 s{sFES}, s{sFES}, {FE_OFF}
        v_bfrev_b32 v{vGST}, 1
        s_lshl_b32 s{sWQ}, s{sML}, 16
        s_sub_u32 s{sWQ}, s{sWQ}, 16384
        """)
        if self.o["g4"]:
            k.e(f"""
            s_or_b32 s{sT0}, s{sN}, s{sW}
            s_cmp_eq_u32 s{sT0}, 0
            s_cselect_b32 s{sT2}, 0, {OOB}
            s_and_b32 s{sT0}, s{sM}, 7
            s_lshr_b32 s{sT1}, s{sM}, 3
            s_lshl_b32 s{sT3}, s{sT0}, 14
            s_add_u32 s{sT3}, s{sT3}, s{sT2}
            s_lshl_b32 s{sA}, s{sT1}, 10
            s_add_u32 s{sT3}, s{sT3}, s{sA}
            s_add_u32 s{sT3}, s{sT3}, {P_OFF}
            v_add_u32 v{vGP}, s{sT3}, v{vLIN16}
            v_bfe_u32 v{vT0}, v{vL}, 3, 1
            v_lshlrev_b32 v{vT0}, 13, v{vT0}
            v_and_b32 v{vT1}, 7, v{vL}
            v_lshl_add_u32 v{vT0}, v{vT1}, 4, v{vT0}
            v_lshrrev_b32 v{vT1}, 5, v{vL}
            v_lshl_add_u32 v{vT0}, v{vT1}, 7, v{vT0}
            v_bfe_u32 v{vT1}, v{vL}, 4, 1
            v_lshl_add_u32 v{vT0}, v{vT1}, 3, v{vT0}
            s_lshl_b32 s{sT0}, s{sT0}, 10
            s_lshl_b32 s{sT1}, s{sT1}, 8
            s_add_u32 s{sT0}, s{sT0}, s{sT1}
            s_add_u32 s{sT0}, s{sT0}, s{sT2}
            s_add_u32 s{sT0}, s{sT0}, {GE_OFF}
            v_add_u32 v{vGST}, s{sT0}, v{vT0}
            """)

    def w2_finish(self):
        k = self.k
        for v in range(self.o["w2in"] + self.o["w2mid"], 9):
            if v == 8 and self.o["g4"]:
                self.g4_partial()
            for op in self.w2_ops(v):
                op()
        self.setup2()
        for v in range(3):
            k.wait(vm=("w2", v))
            self.tr16(self.w2_slot(v), 16 * v, "a", ("t2", v))
        for v in range(3):
            k.wait(lg=("t2", v))
            for op in self.w2_ops(9 + v):
                op()
        top, done = k.label("hsw"), k.label("hsd")
        k.e(f"""
        v_cmp_gt_u32 vcc, 64, v{vHS}
        s_cbranch_vccnz {top}
        {done}:
        """)
        self.ool.append(("hs", top, done))
        k.vmem(f"buffer_load_dword v{vHS}, v{vSMP}, {sr(SWS, 4)}, s{sHS} offen sc1", "smp")
        for v in range(3, 8):
            k.wait(vm=("w2", v))
            self.tr16(self.w2_slot(v), 16 * v, "a", ("t2", v))
        if self.o["glate"] or self.o["g4"]:
            self.w2_last()
        else:
            gtop, gjoin = k.label("gblk"), k.label("gjoin")
            k.e(f"s_cmp_lt_u32 s2, 8\ns_cbranch_scc1 {gtop}")
            self.ool.append(("g", gtop, gjoin, list(k.vm), list(k.lg)))
            self.w2_last()
            k.e(f"{gjoin}:")
        self.stamp("w2done")

    def w2_last(self):
        k = self.k
        for v in range(8, 12):
            k.wait(vm=("w2", v))
            self.tr16(self.w2_slot(v), 16 * v, "a", ("t2", v))

    def g4_issue(self):
        k = self.k
        lab = k.label("g4i")
        k.e(f"""
        s_cmp_lg_u32 s{sN}, 0
        s_cbranch_scc1 {lab}
        s_add_u32 m0, s{sRW}, {XS[3]}
        v_and_b32 v{vT0}, 15, v{vL}
        v_lshlrev_b32 v{vT0}, 10, v{vT0}
        v_lshrrev_b32 v{vT1}, 4, v{vL}
        v_lshl_add_u32 v{vT0}, v{vT1}, 4, v{vT0}
        """)
        for q in range(4):
            o = f" offset:{q * 1024}" if q else ""
            k.e(f"buffer_load_dwordx4 v{vW2 + q}, {sr(SWG, 4)}, 0 offen{o} lds")
        k.e(f"""
        s_add_u32 m0, s{sRW}, {GS}
        s_nop 0
        buffer_load_dwordx4 v{vT0}, {sr(SG, 4)}, 0 offen lds
        {lab}:
        """)
        self.g4_mark = k.nvm

    def g4_partial(self):
        k = self.k
        A, B, D = 128, 144, 160
        lab = k.label("g4p")
        k.e(f"""
        s_cmp_lg_u32 s{sN}, 0
        s_cbranch_scc1 {lab}
        v_subrev_u32 v{vT0}, s{sRW}, v{vT16}
        s_lshl_b32 s{sT0}, s{sW}, 5
        v_xor_b32 v{vT0}, s{sT0}, v{vT0}
        v_add_u32 v{vT1}, {2 * RW}, v{vT0}
        v_lshlrev_b32 v{vT2}, 4, v{vL}
        v_add_u32 v{vT2}, {GS}, v{vT2}
        v_add_u32 v{vT3}, {2 * RW}, v{vT2}
        s_waitcnt vmcnt({k.nvm - self.g4_mark}) lgkmcnt(0)
        s_barrier
        """)
        for j in range(4):
            a, b = (vT0, vT2) if j < 2 else (vT1, vT3)
            o = (j & 1) * RW
            k.e(f"ds_read_b64_tr_b16 {vr(A + 4 * j, 2)}, v{a} offset:{o + XS[3]}")
            k.e(f"ds_read_b64_tr_b16 {vr(A + 4 * j + 2, 2)}, v{a} offset:{o + XS[3] + 512}")
            k.e(f"ds_read_b128 {vr(B + 4 * j, 4)}, v{b} offset:{o}")
        k.e(f"""
        s_and_b32 s{sT0}, s{sM}, 7
        s_lshl_b32 s{sT0}, s{sT0}, 14
        s_lshr_b32 s{sT1}, s{sM}, 3
        s_lshl_b32 s{sT1}, s{sT1}, 12
        s_add_u32 s{sT0}, s{sT0}, s{sT1}
        s_lshl_b32 s{sT1}, s{sW}, 10
        s_add_u32 s{sT0}, s{sT0}, s{sT1}
        s_add_u32 s{sT0}, s{sT0}, {P_OFF}
        s_waitcnt lgkmcnt(0)
        s_barrier
        v_lshlrev_b32 v{vT0}, 4, v{vL}
        """)
        for j in range(4):
            self.mfma16(D, A + 4 * j, B + 4 * j, j == 0, ak="v")
        k.nop(12)
        k.e(f"buffer_store_dwordx4 {vr(D, 4)}, v{vT0}, {sr(SWS, 4)}, s{sT0} offen sc1\n{lab}:")

    def g4_loads(self, counted):
        k = self.k
        for q in range(4):
            t = self.tmp()
            k.e(f"s_mov_b32 s{t}, {q * 4096}")
            ins = f"buffer_load_dwordx4 {vr(160 + 4 * q, 4)}, v{vGP}, {sr(SWS, 4)}, s{t} offen sc1"
            if counted:
                k.vmem(ins, "gp")
            else:
                k.e(ins)

    def g4_final(self):
        k = self.k
        P = 160
        k.e(f"s_mov_b32 s{sSPIN}, 0")
        k.wait(vm="gp")
        retry, ok, again = k.label("gpr"), k.label("gpk"), k.label("gpa")
        k.e(f"{again}:")
        k.e(f"v_max_u32 v{vT0}, v{P}, v{P + 1}")
        for i in range(2, 16, 2):
            k.e(f"v_max3_u32 v{vT0}, v{vT0}, v{P + i}, v{P + i + 1}")
        k.e(f"v_cmp_eq_u32 vcc, -1, v{vT0}\ns_cbranch_vccnz {retry}\n{ok}:")
        self.ool.append(("poll", retry, ok, again, self.g4_loads))
        for i in range(4):
            k.e(f"v_add_f32 v{P + i}, v{P + i}, v{P + 4 + i}")
            k.e(f"v_add_f32 v{P + 8 + i}, v{P + 8 + i}, v{P + 12 + i}")
        for i in range(4):
            k.e(f"v_add_f32 v{P + i}, v{P + i}, v{P + 8 + i}")
        k.e(f"v_cvt_pk_bf16_f32 v{P + 4}, v{P}, v{P + 1}")
        k.e(f"v_cvt_pk_bf16_f32 v{P + 5}, v{P + 2}, v{P + 3}")
        k.vmem(f"buffer_store_dwordx2 {vr(P + 4, 2)}, v{vGST}, {sr(SWS, 4)}, 0 offen sc1", "gest")

    def g_loads(self, GF):
        k = self.k
        k.e(f"""
        v_and_b32 v{vT0}, 15, v{vL}
        v_lshlrev_b32 v{vT0}, 10, v{vT0}
        v_lshrrev_b32 v{vT1}, 4, v{vL}
        v_lshl_add_u32 v{vT0}, v{vT1}, 4, v{vT0}
        """)
        for j in range(4):
            t = self.tmp()
            k.e(f"s_lshr_b32 s{t}, s{sR4[j]}, 4")
            k.e(f"v_add_u32 v{vT1}, s{t}, v{vT0}")
            k.vmem(f"buffer_load_dwordx4 {vr(GF + 4 * j, 4)}, v{vT1}, {sr(SG, 4)}, 0 offen", "g")

    def g_addr(self):
        k = self.k
        k.e(f"""
        v_bfe_u32 v{vT0}, v{vL}, 3, 1
        v_lshlrev_b32 v{vT0}, 13, v{vT0}
        v_and_b32 v{vT1}, 7, v{vL}
        v_lshl_add_u32 v{vT0}, v{vT1}, 4, v{vT0}
        v_lshrrev_b32 v{vT1}, 5, v{vL}
        v_lshl_add_u32 v{vT0}, v{vT1}, 7, v{vT0}
        v_bfe_u32 v{vT1}, v{vL}, 4, 1
        v_lshl_add_u32 v{vT0}, v{vT1}, 3, v{vT0}
        s_lshl_b32 s{sT0}, s2, 10
        s_lshl_b32 s{sT1}, s{sW}, 8
        s_add_u32 s{sT0}, s{sT0}, s{sT1}
        s_add_u32 s{sT0}, s{sT0}, {GE_OFF}
        v_add_u32 v{vGST}, s{sT0}, v{vT0}
        """)

    def g_block(self):
        k = self.k
        GF = HB
        slots = [T4[0], T4[1], XS[2], XS[3]] if self.o["w2mid"] else [T4[0], T4[1], XS[1], XS[2]]
        k.wait(lg=("t2", 7))
        self.stamp("g0")
        for j in range(4):
            self.dma4k(SWG, slots[j], self.w32_soff(j, 0), ("wg", j))
        self.g_loads(GF)
        self.stamp("gdma")
        self.w2_last()
        self.stamp("gw2")
        self.g_addr()
        for j in range(4):
            k.wait(vm=("wg", j))
            self.tr16(slots[j], 192 + 16 * j, "a", ("twg", j))
        self.stamp("gwg")
        k.wait(vm="all")
        self.stamp("gld")
        for j in range(4):
            k.wait(lg=("twg", j))
            for ct in range(4):
                self.mfma16(ACC2 + 4 * ct, 192 + 16 * j + 4 * ct, GF + 4 * j, j == 0)
        self.stamp("gmf")
        self.reduce16(ACC2, False, None, None, None)
        k.e("s_barrier")
        self.stamp("gend")

    def poll_sample(self, stem, vaddr, sbase):
        k = self.k
        top, done = k.label(stem + "p"), k.label(stem + "d")
        k.wait(vm="smp")
        k.e(f"""
        v_cmp_eq_u32 vcc, -1, v{vHS}
        s_cbranch_vccnz {top}
        {done}:
        """)
        self.ool.append(("smp", top, done, vaddr, sbase))

    def reduce16(self, acc, act, vst, sst, tag, mid=None):
        k = self.k
        k.e(f"v_add_u32 v{vT3}, {2 * RW}, v{vRD2}")
        k.nop(8)
        for ct in range(4):
            k.ds(f"ds_write_b128 v{vLIN}, {vr(acc + 4 * ct, 4)} offset:{ct * 1024}")
        k.wait(lg="all")
        k.e("s_barrier")
        for sw in range(4):
            a = vRD2 if sw < 2 else vT3
            k.ds(f"ds_read_b128 {vr(R2 + 4 * sw, 4)}, v{a} offset:{(sw & 1) * RW}", ("r", sw))
        if mid:
            mid()
        k.wait(lg=("r", 1))
        for i in range(4):
            k.e(f"v_add_f32 v{R2 + i}, v{R2 + i}, v{R2 + 4 + i}")
        k.wait(lg=("r", 3))
        for i in range(4):
            k.e(f"v_add_f32 v{R2 + 8 + i}, v{R2 + 8 + i}, v{R2 + 12 + i}")
        for i in range(4):
            k.e(f"v_add_f32 v{R2 + i}, v{R2 + i}, v{R2 + 8 + i}")
        if act:
            self.gelu([R2 + i for i in range(4)], R2 + 4, vKC3)
        k.e(f"v_cvt_pk_bf16_f32 v{R2 + 8}, v{R2}, v{R2 + 1}")
        k.e(f"v_cvt_pk_bf16_f32 v{R2 + 9}, v{R2 + 2}, v{R2 + 3}")
        if vst is not None:
            k.vmem(f"buffer_store_dwordx2 {vr(R2 + 8, 2)}, v{vst}, {sr(SWS, 4)}, s{sst} offen sc1", tag)

    def stage2(self):
        k = self.k
        self.poll_sample("h", vSMP, sHS)
        self.stamp("hpoll")

        def loads(counted, sc):
            for v in range(12):
                j, i = v // 3, v % 3
                t = self.tmp()
                k.e(f"s_add_u32 s{t}, s{sH}, s{sR4[j]}")
                if i == 0:
                    k.e(f"s_sub_u32 s{t}, s{t}, 16384")
                elif i == 2:
                    k.e(f"s_add_u32 s{t}, s{t}, 16384")
                ins = (f"buffer_load_dwordx4 {vr(HB + 4 * v, 4)}, v{vH0 if i == 0 else vLIN16}, "
                       f"{sr(SWS, 4)}, s{t} offen" + (" sc1" if sc else ""))
                if counted:
                    k.vmem(ins, ("h", v))
                else:
                    k.e(ins)
        k.e(f"s_mov_b32 s{sSPIN}, 0")
        loads(True, not self.o["hplain"])
        if not self.o["glate"] and not self.o["g4"]:
            k.vmem(f"buffer_store_dwordx2 {vr(R2 + 8, 2)}, v{vGST}, {sr(SWS, 4)}, 0 offen sc1", "gest")
        k.wait(lg="all")
        fill = []
        for j in range(4):
            fill += self.dma4k_ops(SWF, T4[j], self.w32_soff(j, 0), ("wf", j))
        for _ in range(self.o.get("wfpre", 4)):
            fill.pop(0)()
        mf, retry, ok = k.label("s2m"), k.label("s2r"), k.label("s2k")
        k.e(f"{mf}:")
        for v in range(12):
            k.wait(vm=("h", v))
            f = HB + 4 * v
            if v == 0:
                k.e(f"v_mov_b32 v{vT0}, v{f + 3}")
            elif v % 2 == 0:
                k.e(f"v_max3_u32 v{vT0}, v{vT0}, v{f - 1}, v{f + 3}")
            for ct in range(4):
                self.mfma16(ACC2 + 4 * ct, 16 * v + 4 * ct, f, v == 0)
            if v < self.o.get("wfloop", 12) and fill:
                fill.pop(0)()
        k.e(f"v_max_u32 v{vT0}, v{vT0}, v{HB + 47}")
        k.e(f"v_cmp_eq_u32 vcc, -1, v{vT0}\ns_cbranch_vccnz {retry}\n{ok}:")
        self.ool.append(("bulk", retry, ok, mf, loads))
        self.stamp("s2mfma")
        if self.o["g4"]:
            self.g4_loads(True)
        self.wf_rest = fill

    def wo_slot(self, bb, e):
        if bb % 2 == 0:
            base = [T4[4], XS[1], XS[2], XS[3]]
        else:
            base = [T4[0], T4[1], T4[2], T4[3]]
        return base[e // 2] + 2048 * (e & 1)

    def wo_issue(self, bb, e0, e1):
        k = self.k
        for e in range(e0, e1):
            assert self.wo_next == 8 * bb + e
            self.wo_next += 1
            k.e(f"s_add_u32 s{sWQ}, s{sWQ}, 16384\ns_and_b32 s{sWQ}, s{sWQ}, 0x7c000")
            self.dma2k(SWO, self.wo_slot(bb, e), f"s{sWQ}", ("wo", bb, e))

    def wo_tr_ops(self, bb):
        ops = []
        for e in range(8):
            for ct, a in enumerate((vTR0, vTR1)):
                for hf in range(2):
                    off = self.wo_slot(bb, e) + 512 * hf
                    dst = 8 * (8 * bb + e) + 4 * ct + 2 * hf
                    ops.append(("ds", f"ds_read_b64_tr_b16 {vr(dst, 2, 'a')}, v{a} offset:{off}", ("two", bb)))
        return ops

    def wo_tr(self, bb):
        k = self.k
        for e in range(8):
            k.wait(vm=("wo", bb, e))
            self.tr32(self.wo_slot(bb, e), 8 * (8 * bb + e), "a", ("two", bb))

    def stage2_tail(self):
        k = self.k
        self.wo_next = 0

        def mid():
            for _ in range(self.o.get("wfmid", 0)):
                if self.wf_rest:
                    self.wf_rest.pop(0)()
        self.reduce16(ACC2, True, vST, sFS, "fst", mid=mid)
        self.stamp("fst")
        while self.wf_rest:
            self.wf_rest.pop(0)()
        k.e("s_barrier")
        if self.o["glate"]:
            gtop, self.gjoin = k.label("gl"), k.label("glj")
            k.e(f"s_cmp_lt_u32 s2, 8\ns_cbranch_scc1 {gtop}")
            self.ool.append(("glate", gtop, self.gjoin, list(k.vm), list(k.lg), self.wo_next))
        self.wo_issue(0, 0, 8)
        self.wo_pattern()
        k.wait(vm=("wf", 3))
        for j in range(4):
            self.tr16(T4[j], 192 + 16 * j, "a", "twf")
        if self.o["g4"]:
            self.g4_final()
        if self.o["b1B"]:
            k.wait(lg="twf")
            self.wo_issue(1, 0, self.o["b1B"])
        if self.o["glate"] and self.stop_after in ("s2", "ge"):
            k.e(f"s_waitcnt vmcnt(0) lgkmcnt(0)\n{self.gjoin}:")

    def glate_block(self, join):
        k = self.k
        GF = HB + 16
        slots = [self.wo_slot(0, 2 * j) for j in range(4)]
        for j in range(4):
            self.dma4k(SWG, slots[j], self.w32_soff(j, 0), ("wg", j))
        self.g_loads(GF)
        self.stamp("gdma")
        self.wo_pattern()
        self.g_addr()
        k.wait(vm=("wf", 3))
        for j in range(4):
            self.tr16(T4[j], 192 + 16 * j, "a", "twf")
        for j in range(4):
            k.wait(vm=("wg", j))
            self.tr16(slots[j], 128 + 16 * j, "a", ("twg", j))
        self.stamp("gwg")
        k.wait(lg="all")
        self.wo_issue(0, 0, 8)
        k.vmem(f"buffer_load_dword v{vHS}, v{vFSM}, {sr(SWS, 4)}, s{sFL} offen sc1", "smp")
        k.wait(vm="g")
        self.stamp("gld")
        for j in range(4):
            for ct in range(4):
                self.mfma16(ACC2 + 4 * ct, 128 + 16 * j + 4 * ct, GF + 4 * j, j == 0)
        self.stamp("gmf")
        self.reduce16(ACC2, False, None, None, None)
        k.vmem(f"buffer_store_dwordx2 {vr(R2 + 8, 2)}, v{vGST}, {sr(SWS, 4)}, 0 offen sc1", "gest")
        k.e("s_barrier")
        self.stamp("gend")
        if self.stop_after in ("s2", "ge"):
            k.e(f"s_waitcnt vmcnt(0) lgkmcnt(0)\ns_branch {join}")
            return
        self.stage3(gpath=True)
        k.wait(vm=("wo", 1, 7))
        k.e(f"s_branch {join}")

    def wo_pattern(self):
        k = self.k
        k.e(f"""
        v_bfe_u32 v{vT0}, v{vL}, 2, 2
        v_lshrrev_b32 v{vT1}, 5, v{vL}
        v_lshl_add_u32 v{vT1}, v{vT1}, 3, v{vT0}
        v_lshlrev_b32 v{vT1}, 7, v{vT1}
        v_lshrrev_b32 v{vT2}, 1, v{vT0}
        v_lshl_add_u32 v{vT1}, v{vT2}, 6, v{vT1}
        v_bfe_u32 v{vT2}, v{vL}, 4, 1
        v_lshl_add_u32 v{vT1}, v{vT2}, 5, v{vT1}
        v_and_b32 v{vT2}, 1, v{vL}
        v_lshl_add_u32 v{vT1}, v{vT2}, 4, v{vT1}
        v_bfe_u32 v{vT2}, v{vL}, 1, 1
        v_lshl_add_u32 v{vT1}, v{vT2}, 3, v{vT1}
        v_add_u32 v{vTR0}, s{sRW}, v{vT1}
        v_xor_b32 v{vT1}, 64, v{vT1}
        v_add_u32 v{vTR1}, s{sRW}, v{vT1}
        """)

    def stage3(self, gpath=False):
        k = self.k
        FB = HB
        b1B = 0 if gpath else self.o["b1B"]

        def loads(counted, sc):
            for j in range(4):
                t = self.tmp()
                k.e(f"s_add_u32 s{t}, s{sFL}, s{sR4[j]}")
                ins = (f"buffer_load_dwordx4 {vr(FB + 4 * j, 4)}, v{vLIN16}, {sr(SWS, 4)}, s{t} offen"
                       + (" sc1" if sc else ""))
                if counted:
                    k.vmem(ins, ("f", j))
                else:
                    k.e(ins)
        if not gpath:
            k.vmem(f"buffer_load_dword v{vHS}, v{vFSM}, {sr(SWS, 4)}, s{sFL} offen sc1", "smp")
        self.wo_tr(0)
        self.poll_sample("f", vFSM, sFL)
        self.stamp("fpoll")
        k.e(f"s_mov_b32 s{sSPIN}, 0")
        loads(True, not self.o["fplain"])
        k.wait(lg="all")
        mf, retry, ok = k.label("s3m"), k.label("s3r"), k.label("s3k")
        self.wo_issue(1, b1B, 8)
        k.e(f"{mf}:")
        for j in range(4):
            k.wait(vm=("f", j))
            f = FB + 4 * j
            if j == 0:
                k.e(f"v_max_u32 v{vT0}, v{f + 1}, v{f + 3}")
            else:
                k.e(f"v_max3_u32 v{vT0}, v{vT0}, v{f + 1}, v{f + 3}")
            for ct in range(4):
                self.mfma16(ACC2 + 4 * ct, 192 + 16 * j + 4 * ct, f, j == 0)
        k.e(f"v_cmp_eq_u32 vcc, -1, v{vT0}\ns_cbranch_vccnz {retry}\n{ok}:")
        self.ool.append(("bulk", retry, ok, mf, loads))
        self.stamp("s3mfma")
        self.reduce16(ACC2, False, vST, sFES, "fest", mid=lambda: self.wo_issue(2, 0, self.o["b2C"]))
        self.stamp("fest")
        if gpath:
            return
        if self.o["glate"]:
            k.e(f"{self.gjoin}:")
        k.e("s_barrier")

    def stage4(self):
        k = self.k
        CB, FR, Z, JP, BF, ACC, OUT = 32, 96, 128, 144, 160, 192, 224
        vGA, vFA, vJ0, vJ2 = 8, 9, 10, 11
        RAW = 160
        k.e(f"""
        v_and_b32 v{vT0}, 7, v{vL}
        v_lshlrev_b32 v{vT0}, 4, v{vT0}
        v_lshrrev_b32 v{vT1}, 5, v{vL}
        v_lshl_add_u32 v{vGA}, v{vT1}, 7, v{vT0}
        v_bfe_u32 v{vT0}, v{vL}, 3, 2
        v_lshlrev_b32 v{vT0}, 4, v{vT0}
        v_lshl_add_u32 v{vFA}, v{vT1}, 8, v{vT0}
        v_lshlrev_b32 v{vJ0}, 4, v{vL}
        v_add_u32 v{vJ2}, {2 * RW}, v{vJ0}
        s_lshl_b32 s{sGL}, s{sB}, 13
        s_lshl_b32 s{sT0}, s{sW}, 8
        s_add_u32 s{sGL}, s{sGL}, s{sT0}
        s_add_u32 s{sGL}, s{sGL}, {GE_OFF}
        s_lshl_b32 s{sFE}, s{sM}, 14
        s_lshl_b32 s{sT0}, s{sW}, 9
        s_add_u32 s{sFE}, s{sFE}, s{sT0}
        s_lshl_b32 s{sT0}, s{sJN}, 6
        s_add_u32 s{sFE}, s{sFE}, s{sT0}
        s_add_u32 s{sFE}, s{sFE}, {FE_OFF}
        """)

        def np_off(r, shift):
            t = self.tmp()
            if self.o["rot"]:
                k.e(f"s_add_u32 s{t}, s{sML}, {r}\ns_and_b32 s{t}, s{t}, 7\ns_lshl_b32 s{t}, s{t}, {shift}")
            else:
                k.e(f"s_mov_b32 s{t}, {r << shift}")
            return t

        def ge_loads(counted):
            for r in range(8):
                t = np_off(r, 10)
                k.e(f"s_add_u32 s{t}, s{t}, s{sGL}")
                ins = f"buffer_load_dwordx4 {vr(RAW + 4 * r, 4)}, v{vGA}, {sr(SWS, 4)}, s{t} offen sc1"
                if counted:
                    k.vmem(ins, "ge")
                else:
                    k.e(ins)

        def fe_loads(counted):
            for r in range(8):
                t = np_off(r, 11)
                k.e(f"s_add_u32 s{t}, s{t}, s{sFE}")
                ins = f"buffer_load_dwordx4 {vr(FR + 4 * r, 4)}, v{vFA}, {sr(SWS, 4)}, s{t} offen sc1"
                if counted:
                    k.vmem(ins, ("fe", r))
                else:
                    k.e(ins)

        def check(base, n, dst):
            k.e(f"v_max_u32 v{dst}, v{base + 1}, v{base + 3}")
            for r in range(1, n):
                k.e(f"v_max3_u32 v{dst}, v{dst}, v{base + 4 * r + 1}, v{base + 4 * r + 3}")

        ge_loads(True)
        self.wo_issue(2, self.o["b2C"], 8)
        self.wo_tr(1)
        k.wait(lg="all")
        self.wo_issue(3, 0, 8)
        k.e(f"s_mov_b32 s{sSPIN}, 0")
        k.wait(vm="ge")
        retry, ok = k.label("ger"), k.label("gek")
        again = k.label("gea")
        k.e(f"{again}:")
        check(RAW, 8, vT0)
        k.e(f"v_cmp_eq_u32 vcc, -1, v{vT0}\ns_cbranch_vccnz {retry}\n{ok}:")
        self.ool.append(("poll", retry, ok, again, ge_loads))
        k.e(f"s_mov_b32 s{sA}, {f32(CT)}")
        fe_loads(True)
        for r in range(8):
            for i in range(4):
                src = RAW + 4 * r + i
                k.e(f"v_lshlrev_b32 v{CB + 8 * r + 2 * i}, 16, v{src}")
                k.e(f"v_and_b32 v{CB + 8 * r + 2 * i + 1}, 0xffff0000, v{src}")
        for i in range(64):
            k.e(f"v_mul_f32 v{CB + i}, s{sA}, v{CB + i}")
        self.stamp("cb")
        self.wo_tr(2)
        late_tr = []
        if self.o["trb3"] == "pre":
            self.wo_tr(3)
        else:
            late_tr = self.wo_tr_ops(3)
        k.e(f"s_mov_b32 s{sSPIN}, 0")
        k.wait(vm=("fe", 7))
        retry, ok = k.label("fer"), k.label("fek")
        again = k.label("fea")
        k.e(f"{again}:")
        check(FR, 8, vT0)
        k.e(f"v_cmp_eq_u32 vcc, -1, v{vT0}\ns_cbranch_vccnz {retry}\n{ok}:")
        self.ool.append(("poll", retry, ok, again, fe_loads))
        self.stamp("fepoll")

        def j_ops(r):
            ops = []
            z = Z + 8 * (r & 1)
            jp = JP + 4 * (r & 1)
            for i in range(4):
                ops.append((f"v_lshlrev_b32 v{z + 2 * i}, 16, v{FR + 4 * r + i}", 4))
                ops.append((f"v_and_b32 v{z + 2 * i + 1}, 0xffff0000, v{FR + 4 * r + i}", 4))
            for i in range(8):
                ops.append((f"v_fma_f32 v{z + i}, v{z + i}, s{sA}, v{CB + 8 * r + i}", 4))
            for i in range(8):
                ops.append((f"v_exp_f32 v{z + i}, v{z + i}", 8))
            for i in range(8):
                ops.append((f"v_add_f32 v{z + i}, 1.0, v{z + i}", 4))
            for i in range(8):
                ops.append((f"v_rcp_f32 v{z + i}, v{z + i}", 8))
            for i in range(8):
                ops.append((f"v_fma_f32 v{z + i}, v{z + i}, -2.0, 1.0", 4))
            for i in range(4):
                ops.append((f"v_cvt_pk_bf16_f32 v{jp + i}, v{z + 2 * i}, v{z + 2 * i + 1}", 4))
            ops.append(("ds", f"ds_write_b128 v{vLIN}, {vr(jp, 4)} offset:{r * 1024}", ("jw", r)))
            return ops

        dbg = self.o.get("s4dbg", "")

        def emit(op):
            if op[0] == "ds":
                k.ds(op[1], op[2])
                return 4
            t = op[0]
            if "notrans" in dbg:
                t = t.replace("v_exp_f32", "v_mov_b32").replace("v_rcp_f32", "v_mov_b32")
            if "novalu" not in dbg and not ("nofma" in dbg and t.startswith("v_fma")):
                k.e(t)
            return op[1]

        def read1(r, jj):
            b = BF + 16 * (r & 1)
            a = vJ0 if jj < 2 else vJ2
            k.ds(f"ds_read_b128 {vr(b + 4 * jj, 4)}, v{a} offset:{(jj & 1) * RW + r * 1024}", ("jr", r, jj))

        def reads(r):
            for jj in range(4):
                read1(r, jj)

        k.wait(lg="all")
        if "twice" in dbg:
            k.e(f"s_mov_b32 s{sSPIN}, 0\nL_twice:\ns_waitcnt lgkmcnt(0)\ns_barrier")
            self.stamp("fepoll2")
        for op in j_ops(0):
            emit(op)
        o1 = j_ops(1)
        for op in o1[:16]:
            emit(op)
        k.wait(lg=("jw", 0))
        k.e("s_barrier")
        reads(0)
        for op in o1[16:]:
            emit(op)
        self.stamp("j01")
        for r in range(8):
            ops = j_ops(r + 2) if r + 2 < 8 else []
            total = sum(op[1] if op[0] != "ds" else 4 for op in ops)
            spread = self.o.get("s4spread", 0)
            if not spread:
                k.wait(lg=("jr", r, 3))
            b = BF + 16 * (r & 1)
            spent = 0
            bar_at = self.o["s4bar"] + (self.o.get("s4bar0", 2) if r == 0 else 0)
            assert bar_at + 3 * spread <= 7
            for i in range(8):
                jj, ct = i // 2, i % 2
                q = 4 * r + jj
                if r == 6 and i == 0:
                    k.wait(lg=("two", 3))
                if spread and ct == 0:
                    k.wait(lg=("jr", r, jj))
                if "nomfma" not in dbg:
                    self.mfma32(ACC + 16 * ct, 8 * q + 4 * ct, b + 4 * jj, r == 0 and jj == 0, ak="a")
                if i == bar_at and r + 1 < 8:
                    self.stamp(f"ba{r}")
                    k.wait(lg=("jw", r + 1))
                    self.stamp(f"bb{r}")
                    if "nobar" not in dbg:
                        k.e("s_barrier")
                    self.stamp(f"bc{r}")
                    if not spread:
                        reads(r + 1)
                if spread and r + 1 < 8 and 0 <= (i - bar_at) < 4 * spread and (i - bar_at) % spread == 0:
                    read1(r + 1, (i - bar_at) // spread)
                if late_tr and i > bar_at:
                    for _ in range(2):
                        if late_tr:
                            emit(late_tr.pop(0))
                while ops and spent < total * (i + 1) / 8:
                    spent += emit(ops.pop(0))
            while ops:
                emit(ops.pop(0))
            self.stamp(f"s4r{r}")
        assert not late_tr
        if "twice" in dbg:
            k.e(f"s_add_u32 s{sSPIN}, s{sSPIN}, 1\ns_cmp_lt_u32 s{sSPIN}, 2\ns_cbranch_scc1 L_twice")
        self.stamp("s4mfma")
        k.e(f"""
        s_lshl_b32 s{sT0}, s{sMT}, 7
        s_lshl_b32 s{sT1}, s{sJN}, 5
        s_add_u32 s{sT0}, s{sT0}, s{sT1}
        s_lshl_b32 s{sT0}, s{sT0}, 10
        s_lshl_b32 s{sT1}, s{sNH}, 9
        s_add_u32 s{sT0}, s{sT0}, s{sT1}
        s_lshl_b32 s{sT1}, s{sW}, 7
        s_add_u32 s{sT0}, s{sT0}, s{sT1}
        v_and_b32 v{vT0}, 31, v{vL}
        v_lshlrev_b32 v{vT0}, 10, v{vT0}
        v_lshrrev_b32 v{vT1}, 5, v{vL}
        v_lshl_add_u32 v{vT0}, v{vT1}, 4, v{vT0}
        v_add_u32 v{vT0}, s{sT0}, v{vT0}
        """)
        k.nop(2)
        for ct in range(2):
            for a in range(2):
                src = ACC + 16 * ct + 8 * a
                dst = OUT + 8 * ct + 4 * a
                for i in range(4):
                    k.e(f"v_cvt_pk_bf16_f32 v{dst + i}, v{src + 2 * i}, v{src + 2 * i + 1}")
                o = ct * 64 + a * 32
                os_ = f" offset:{o}" if o else ""
                k.vmem(f"buffer_store_dwordx4 {vr(dst, 4)}, v{vT0}, {sr(SOUT, 4)}, 0 offen{os_}", "out")

    def epilogue(self):
        k = self.k
        if self.stamps:
            self.stamp("end")
            n = self.nst
            k.e("s_waitcnt vmcnt(0) lgkmcnt(0)")
            for i in range(n):
                k.e(f"v_writelane_b32 v{vT1}, s{STAMP0 + 2 * i}, {i}")
            k.e(f"""
            s_lshl_b32 s{sT0}, s2, 2
            s_add_u32 s{sT0}, s{sT0}, s{sW}
            s_lshl_b32 s{sT0}, s{sT0}, 6
            s_add_u32 s{sT0}, s{sT0}, {STAMP_OFF}
            s_mov_b32 s{SWS + 2}, {STAMP_OFF + (1 << 20)}
            v_lshlrev_b32 v{vT0}, 2, v{vL}
            s_mov_b64 exec, 0xffff
            buffer_store_dword v{vT1}, v{vT0}, {sr(SWS, 4)}, s{sT0} offen
            """)
        k.e("s_waitcnt vmcnt(0)\nL_end:\ns_endpgm")
        for item in self.ool:
            if item[0] == "hs":
                _, top, done = item
                k.e(f"""
                {top}:
                s_mov_b32 s{sSPIN}, 0
                v_and_b32 v{vT0}, 3, v{vL}
                v_lshlrev_b32 v{vT0}, 6, v{vT0}
                {top}_l:
                """)
                self.spin_check(done)
                k.e(f"""
                buffer_load_dword v{vHS}, v{vT0}, {sr(SDBG, 4)}, 0 offen sc1
                s_waitcnt vmcnt(0)
                v_cmp_gt_u32 vcc, 64, v{vHS}
                s_cbranch_vccnz {top}_l
                s_branch {done}
                """)
            elif item[0] == "g":
                _, top, join, vm, lg = item
                k.vm, k.lg = vm, lg
                k.e(f"{top}:")
                self.g_block()
                k.e(f"s_branch {join}")
            elif item[0] == "glate":
                _, top, join, vm, lg, self.wo_next = item
                k.vm, k.lg = vm, lg
                k.e(f"{top}:")
                self.glate_block(join)
            elif item[0] == "smp":
                _, top, done, vaddr, sbase = item
                k.e(f"{top}:\ns_mov_b32 s{sSPIN}, 0\n{top}_l:")
                self.spin_check(done)
                k.e(f"""
                buffer_load_dword v{vHS}, v{vaddr}, {sr(SWS, 4)}, s{sbase} offen sc1
                s_waitcnt vmcnt(0)
                v_cmp_eq_u32 vcc, -1, v{vHS}
                s_cbranch_vccnz {top}_l
                s_branch {done}
                """)
            else:
                kind, retry, ok, back, loads = item
                k.e(f"{retry}:")
                self.spin_check(ok)
                if kind == "bulk":
                    loads(False, True)
                else:
                    loads(False)
                k.e(f"s_waitcnt vmcnt(0)\ns_branch {back}")
        k.e("L_last:\ns_endpgm")

    def build(self):
        k = self.k
        stop = self.stop_after
        self.prologue()
        self.stage1()
        self.w2_finish()
        if stop != "s1":
            self.stage2()
            self.stage2_tail()
            if stop not in ("s2", "ge"):
                self.stage3()
                if stop != "s3":
                    self.stage4()
        self.epilogue()
        return self.text()

    def text(self):
        head = f"""; RNN-T joint network: two stride-2 conv stems, w_f / w_g projections, tanh, w_o.
; @launch grid=(256,1,1) block=(256,1,1) lds={LDS_BYTES}
.amdgcn_target "amdgcn-amd-amdhsa--gfx950"
.text
.globl {NAME}
.p2align 8
.type {NAME},@function
{NAME}:
"""
        tail = f"""
.section .rodata,"a"
.p2align 6
.amdhsa_kernel {NAME}
  .amdhsa_next_free_vgpr 512
  .amdhsa_next_free_sgpr 102
  .amdhsa_accum_offset 256
  .amdhsa_group_segment_fixed_size 0
  .amdhsa_kernarg_size 80
  .amdhsa_user_sgpr_count 2
  .amdhsa_user_sgpr_kernarg_segment_ptr 1
  .amdhsa_system_sgpr_workgroup_id_x 1
.end_amdhsa_kernel
"""
        return head + self.k.text() + tail


if __name__ == "__main__":
    out = sys.argv[1] if len(sys.argv) > 1 else "cdna_kernels/" + NAME.replace("_kernel", "") + ".s"
    g = Gen2(stamps=False)
    open(out, "w").write(g.build())
    print("wrote", out)
```

```python
import math
import sys
from kb import K, vr, ar, sr, f32

NAME = "standalone__seq2seq_rnn_t_joint__speech_kernel"

H_OFF = 65536
F_OFF = H_OFF + (1 << 20)
FE_OFF = F_OFF + (1 << 19)
GE_OFF = FE_OFF + (1 << 19)
P_OFF = GE_OFF + 65536
WS_REC = 4 << 20
STAMP_OFF = 8 << 20
OOB = 0x80000000
SPIN_MAX = 4096

RW = 40960
RB = 17408
LDS_BYTES = 163840
T4 = [RB + 4096 * t for t in range(5)]
XS = [4096 * t for t in range(4)]
GS = RB + 20480

SX, SW1, SW2, SG, SWF, SWG, SWO, SOUT, SDBG, SWS = 24, 28, 32, 36, 40, 44, 48, 52, 56, 60
sW, sM, sN, sB, sMT, sRW, sML, sJN = 64, 65, 66, 67, 68, 69, 70, 71
sKI, sKC = 72, 3
sT0, sT1, sT2, sT3 = 73, 74, 75, 76
sSPIN = 77
STAMP0 = 78
sH, sFL, sFS, sFE, sGL, sGS, sHS, sA, sB2 = 4, 5, 6, 7, 8, 9, 10, 11, 12
sR4 = [13, 14, 15, 16]
sNH = 17
sFES, sWQ = 18, 19

vL, vT0, vT1, vT2, vT3, vLIN, vRD = 1, 2, 3, 4, 5, 6, 7
vXW = 8
vXA, vXZ, vQ0 = 12, 13, 14
vWA0, vWA1, vTR0, vTR1 = 15, 16, 17, 18
vXB = 19
vBA = 22
vW2 = 24
vT16 = 28
vONES = 32
vHS = 36
AF, BFR, ACC1, R1 = 40, 56, 64, 96
vLIN16, vH0, vSMP, vST, vRD2, vKC3, vSV, vFSM, vGST = 8, 9, 10, 11, 12, 13, 14, 19, 20
HB, ACC2, R2 = 128, 176, 192
vPF = 37
vGP = 21

C1 = 2 * math.log2(math.e) * math.sqrt(2 / math.pi)
C3 = C1 * 0.044715
CT = 2 * math.log2(math.e)

DEFAULT_STAMPS = ("start", "iss", "x0", "s1mfma", "hst", "w2done", "hpoll", "s2mfma", "fst", "s3mfma", "fest", "end")
S1_STAMPS = ("start", "karg", "iss0", "iss", "x0", "u5", "u11", "u17", "s1mfma", "hst", "w2done", "end")
R4_STAMPS = ("start", "fepoll", "j01", "s4r0", "s4r1", "s4r2", "s4r3", "s4r4", "s4r5", "s4r6", "s4r7", "end")
R5_STAMPS = ("start", "fepoll2", "j01", "s4r0", "s4r1", "s4r2", "s4r3", "s4r4", "s4r5", "s4r6", "s4r7", "end")
G_STAMPS = ("start", "hst", "g0", "gdma", "gw2", "gwg", "gld", "gmf", "gend", "w2done", "hpoll", "end")
GL_STAMPS = ("start", "fst", "gdma", "gwg", "gld", "gmf", "gend", "fpoll", "s3mfma", "fest", "fepoll", "end")
S2_STAMPS = ("start", "s1mfma", "hst", "w2done", "hpoll", "s2mfma", "fst", "fpoll", "s3mfma", "fest", "fepoll", "end")
P_STAMPS = ("start", "karg", "probe", "iss0", "iss", "x0", "u5", "u11", "u17", "s1mfma", "hst", "end")
S4_STAMPS = ("start", "hst", "s2mfma", "fst", "fpoll", "s3mfma", "fest", "cb", "fepoll", "s4r3", "s4mfma", "end")


class Gen2:
    def __init__(self, stop_after=None, stamps=True, opts=None):
        self.k = K()
        self.stop_after = stop_after
        self.stamps = stamps
        self.nst = 0
        self.names = []
        self.o = dict(prefetch=False, rot=True, hplain=True, fplain=False, x2=1, x3=2,
                      b1B=8, b2C=8, trb3="loop", s4bar=3, w2in=3, w2mid=0, glate=0, g4=1)
        self.o.update(opts or {})
        self.rot = 0
        self.ool = []

    def stamp(self, name):
        names = self.o.get("stamps", DEFAULT_STAMPS)
        if not self.stamps or name not in names:
            return
        self.names = list(names)
        self.nst = len(names)
        r = STAMP0 + 2 * names.index(name)
        self.k.e(f"{'s_memtime' if self.o.get('memtime') else 's_memrealtime'} s[{r}:{r + 1}]")

    def tmp(self):
        self.rot = (self.rot + 1) % 4
        return sT0 + self.rot

    def tile(self, key, dst):
        self.k.e(f"s_xor_b32 s{dst}, s{sN}, {self.o[key]}")

    def srd(self, d, ptr, off, nrec):
        k = self.k
        if off is None:
            k.e(f"s_mov_b32 s{d}, s{ptr}\ns_mov_b32 s{d + 1}, s{ptr + 1}")
        else:
            k.e(f"s_add_u32 s{d}, s{ptr}, s{off}\ns_addc_u32 s{d + 1}, s{ptr + 1}, 0")
        k.e(f"s_mov_b32 s{d + 2}, {nrec}\ns_mov_b32 s{d + 3}, 0x20000")

    def nt(self, srd):
        key = {SW1: "ntw1", SW2: "ntw2", SWF: "ntwf", SWG: "ntwg", SWO: "ntwo", SX: "ntx"}[srd]
        return " nt" if self.o.get(key) else ""

    def dma2k(self, srd, lds_off, soff, tag):
        k = self.k
        nt = self.nt(srd)
        k.e(f"s_add_u32 m0, s{sRW}, {lds_off}")
        k.e("s_nop 0")
        k.vmem(f"buffer_load_dwordx4 v{vWA0}, {sr(srd, 4)}, {soff} offen{nt} lds", tag)
        k.vmem(f"buffer_load_dwordx4 v{vWA1}, {sr(srd, 4)}, {soff} offen offset:1024{nt} lds", tag)

    def dma4k_ops(self, srd, lds_off, soff_fn, tag):
        k = self.k
        st = {}

        def op(q):
            if q == 0:
                st["s"] = soff_fn()
                k.e(f"s_add_u32 m0, s{sRW}, {lds_off}")
                k.e("s_nop 0")
            o = f" offset:{q * 1024}" if q else ""
            k.vmem(f"buffer_load_dwordx4 v{vW2 + q}, {sr(srd, 4)}, {st['s']} offen{o}{self.nt(srd)} lds", tag)
        return [lambda q=q: op(q) for q in range(4)]

    def dma4k(self, srd, lds_off, soff_fn, tag):
        for op in self.dma4k_ops(srd, lds_off, soff_fn, tag):
            op()

    def tr32(self, lds_off, dst, kind, tag):
        k = self.k
        for ct, a in enumerate((vTR0, vTR1)):
            k.ds(f"ds_read_b64_tr_b16 {vr(dst + 4 * ct, 2, kind)}, v{a} offset:{lds_off}", tag)
            k.ds(f"ds_read_b64_tr_b16 {vr(dst + 4 * ct + 2, 2, kind)}, v{a} offset:{lds_off + 512}", tag)

    def tr16(self, lds_off, dst, kind, tag):
        k = self.k
        for ct in range(4):
            k.ds(f"ds_read_b64_tr_b16 {vr(dst + 4 * ct, 2, kind)}, v{vT16 + ct} offset:{lds_off}", tag)
            k.ds(f"ds_read_b64_tr_b16 {vr(dst + 4 * ct + 2, 2, kind)}, v{vT16 + ct} offset:{lds_off + 512}", tag)

    def mfma32(self, d, a, b, first, ak="v"):
        c = "0" if first else vr(d, 16)
        self.k.e(f"v_mfma_f32_32x32x16_bf16 {vr(d, 16)}, {vr(a, 4, ak)}, {vr(b, 4)}, {c}")

    def mfma16(self, d, a, b, first, ak="a"):
        c = "0" if first else vr(d, 4)
        self.k.e(f"v_mfma_f32_16x16x32_bf16 {vr(d, 4)}, {vr(a, 4, ak)}, {vr(b, 4)}, {c}")

    def gelu(self, xs, tmp, kc3):
        k = self.k
        ts = [tmp + i for i in range(len(xs))]
        for x, t in zip(xs, ts):
            k.e(f"v_mul_f32 v{t}, v{x}, v{x}")
        for x, t in zip(xs, ts):
            k.e(f"v_fmaak_f32 v{t}, v{t}, v{kc3}, {f32(-C1)}")
        for x, t in zip(xs, ts):
            k.e(f"v_mul_f32 v{t}, v{t}, v{x}")
        for x, t in zip(xs, ts):
            k.e(f"v_exp_f32 v{t}, v{t}")
        for x, t in zip(xs, ts):
            k.e(f"v_add_f32 v{t}, 1.0, v{t}")
        for x, t in zip(xs, ts):
            k.e(f"v_rcp_f32 v{t}, v{t}")
        for x, t in zip(xs, ts):
            k.e(f"v_mul_f32 v{x}, v{x}, v{t}")

    def spin_check(self, done_label):
        self.k.e(f"s_add_u32 s{sSPIN}, s{sSPIN}, 1\ns_cmp_ge_u32 s{sSPIN}, {SPIN_MAX}\ns_cbranch_scc1 {done_label}")

    def prologue(self):
        k = self.k
        rot = self.o["rot"]
        k.e("""
        s_cmp_ge_u32 s2, 256
        s_cbranch_scc1 L_end
        s_load_dwordx16 s[4:19], s[0:1], 0
        s_load_dwordx4 s[20:23], s[0:1], 64
        """)
        self.stamp("start")
        k.e(f"""
        v_lshrrev_b32 v{vT0}, 6, v0
        v_and_b32 v{vL}, 63, v0
        v_readfirstlane_b32 s{sW}, v{vT0}
        s_and_b32 s{sT0}, s2, 7
        s_lshr_b32 s{sT1}, s2, 3
        s_add_u32 s{sJN}, s{sT1}, {self.o.get("jnrot", 0)}
        s_and_b32 s{sJN}, s{sJN}, 3
        s_lshr_b32 s{sML}, s{sT1}, 2
        s_and_b32 s{sT2}, s{sT0}, 1
        s_lshl_b32 s{sN}, s{sT2}, 2
        s_add_u32 s{sN}, s{sN}, s{sJN}
        s_lshr_b32 s{sT0}, s{sT0}, 1
        s_lshl_b32 s{sM}, s{sT0}, 3
        s_add_u32 s{sM}, s{sM}, s{sML}
        s_lshr_b32 s{sB}, s{sM}, 4
        s_and_b32 s{sMT}, s{sM}, 15
        s_mul_i32 s{sRW}, s{sW}, {RW}
        v_lshrrev_b32 v{vT0}, 4, v{vL}
        v_lshrrev_b32 v{vT1}, 5, v{vL}
        v_and_b32 v{vT2}, 15, v{vL}
        v_xor_b32 v{vT2}, v{vT2}, v{vT1}
        v_lshlrev_b32 v{vT2}, 4, v{vT2}
        v_lshl_add_u32 v{vXW}, v{vT0}, 10, v{vT2}
        """)
        for e in range(1, 4):
            k.e(f"v_xor_b32 v{vXW + e}, {e * 32}, v{vXW}")
            k.e(f"v_add_u32 v{vXW + e}, {e * 3072}, v{vXW + e}")
        k.e(f"""
        v_cmp_gt_u32 vcc, 16, v{vL}
        v_bfrev_b32 v{vT0}, 1
        v_lshrrev_b32 v{vT1}, 3, v{vL}
        v_cndmask_b32 v{vQ0}, 0, v{vT0}, vcc
        v_bfe_u32 v{vT2}, v{vT1}, 1, 1
        v_lshlrev_b32 v{vT2}, 2, v{vT2}
        v_and_b32 v{vT3}, 7, v{vL}
        v_xor_b32 v{vT2}, v{vT2}, v{vT3}
        v_lshlrev_b32 v{vT2}, 4, v{vT2}
        v_lshl_add_u32 v{vWA0}, v{vT1}, 10, v{vT2}
        v_add_u32 v{vWA1}, 7168, v{vWA0}
        s_lshl_b32 s{sT0}, s{sW}, 17
        s_lshl_b32 s{sT1}, s{sN}, 7
        s_add_u32 s3, s{sT0}, s{sT1}
        s_mul_i32 s{sT0}, s{sB}, 1000
        s_lshl_b32 s{sT1}, s{sMT}, 6
        s_add_u32 s{sT0}, s{sT0}, s{sT1}
        s_sub_u32 s{sT0}, s{sT0}, 1
        s_lshl_b32 s{sT0}, s{sT0}, 10
        s_lshl_b32 s{sT2}, s{sW}, 8
        s_add_u32 s{sT0}, s{sT0}, s{sT2}
        s_ashr_i32 s{sT3}, s{sT0}, 31
        s_sub_u32 s{sT1}, 1001, s{sT1}
        s_lshl_b32 s{sT1}, s{sT1}, 10
        s_sub_u32 s{SX + 2}, s{sT1}, s{sT2}
        s_mov_b32 s{SX + 3}, 0x20000
        s_sub_u32 s{SW1 + 2}, 1572864, s3
        s_mov_b32 s{SW1 + 3}, 0x20000
        """)
        if rot:
            k.e(f"s_lshl_b32 s{sKI}, s{sML}, 14")
        else:
            k.e(f"s_mov_b32 s{sKI}, 0")
        k.e("s_waitcnt lgkmcnt(0)")
        self.stamp("karg")
        k.e(f"""
        s_add_u32 s{SX}, s4, s{sT0}
        s_addc_u32 s{SX + 1}, s5, s{sT3}
        s_add_u32 s{SW1}, s6, s3
        s_addc_u32 s{SW1 + 1}, s7, 0
        """)

    def code_prefetch(self):
        k = self.k
        mode = self.o.get("cpf", 0)
        if not mode:
            return
        lab = k.label("pf")
        k.e(f"""
        s_cmp_lg_u32 s{sW}, {self.o.get("cpfw", 3)}
        s_cbranch_scc1 {lab}
        s_getpc_b64 s[{sT0 + 1}:{sT0 + 2}]
        L_pc:
        s_lshr_b32 s{sT0}, s2, 3
        s_lshl_b32 s{sT0}, s{sT0}, 11
        v_lshlrev_b32 v{vT0}, 7, v{vL}
        v_add_u32 v{vT0}, s{sT0}, v{vT0}
        v_min_u32 v{vT0}, L_last-L_pc, v{vT0}
        s_mov_b64 exec, 0xffff
        global_load_dword v{vPF}, v{vT0}, s[{sT0 + 1}:{sT0 + 2}]
        s_mov_b64 exec, -1
        {lab}:
        """)

    def g_prefetch(self):
        k = self.k
        k.e(f"""
        s_lshr_b32 s{sT0}, s2, 3
        s_lshl_b32 s{sT1}, s{sT0}, 12
        v_lshlrev_b32 v{vT0}, 10, v{vL}
        v_add_u32 v{vT0}, s{sT1}, v{vT0}
        s_lshr_b32 s{sT1}, s{sT0}, 1
        s_lshl_b32 s{sT1}, s{sT1}, 10
        s_and_b32 s{sT0}, s{sT0}, 1
        s_lshl_b32 s{sT0}, s{sT0}, 7
        s_add_u32 s{sT0}, s{sT0}, s{sT1}
        v_mov_b32 v{vT1}, s{sT0}
        s_mov_b64 exec, 15
        """)
        k.vmem(f"buffer_load_dword v{vPF}, v{vT0}, {sr(SWG, 4)}, 0 offen", "pf")
        k.e("s_mov_b64 exec, 1")
        k.vmem(f"buffer_load_dword v{vPF + 1}, v{vT1}, {sr(SG, 4)}, 0 offen", "pf")
        k.e("s_mov_b64 exec, -1")

    def l2pf(self, pos):
        k = self.k
        for key, srd, lanes in (("pfw2", SW2, 48), ("pfwf", SWF, 16), ("pfwo", SWO, 16)):
            if self.o.get(key) != pos:
                continue
            if srd == SWO:
                k.e(f"s_lshr_b32 s{sT0}, s2, 3\ns_lshl_b32 s{sT0}, s{sT0}, 14")
            else:
                k.e(f"s_lshl_b32 s{sT0}, s{sML}, 14")
            k.e(f"""
            v_and_b32 v{vT1}, 15, v{vL}
            v_lshlrev_b32 v{vT1}, 10, v{vT1}
            v_lshrrev_b32 v{vT2}, 4, v{vL}
            v_lshl_add_u32 v{vT1}, v{vT2}, 19, v{vT1}
            s_bfm_b64 exec, {lanes}, 0
            """)
            k.vmem(f"buffer_load_dword v{vPF}, v{vT1}, {sr(srd, 4)}, s{sT0} offen", "pf")
            k.e("s_mov_b64 exec, -1")

    def x_quarter(self, qq):
        k = self.k
        a, z = sT0, sT1
        if self.o["rot"]:
            k.e(f"s_add_u32 s{a}, s{sJN}, {qq}\ns_and_b32 s{a}, s{a}, 3")
        else:
            k.e(f"s_mov_b32 s{a}, {qq}")
        k.e(f"""
        s_lshl_b32 s{sT2}, s{a}, 12
        s_add_u32 m0, s{sT2}, s{sRW}
        s_or_b32 s{z}, s{a}, s{sMT}
        s_cmp_eq_u32 s{z}, 0
        s_cselect_b32 s{z}, -1, 0
        s_and_b32 s{sT3}, s{a}, 1
        s_lshl_b32 s{sT3}, s{sT3}, 7
        s_lshl_b32 s{a}, s{a}, 14
        s_or_b32 s{a}, s{a}, s{sT3}
        """)
        for e in range(4):
            t = vXA if e % 2 == 0 else vXZ
            k.e(f"v_xor_b32 v{t}, s{a}, v{vXW + e}")
            if e == 0:
                k.e(f"v_and_or_b32 v{t}, v{vQ0}, s{z}, v{t}")
            o = f" offset:{e * 1024}" if e else ""
            k.vmem(f"buffer_load_dwordx4 v{t}, {sr(SX, 4)}, 0 offen{o}{self.nt(SX)} lds", "x")
            if qq == 0 and self.o.get("probe") == e + 1:
                k.e("s_waitcnt vmcnt(0)")
                self.stamp("probe")

    def x_tail(self):
        k = self.k
        k.e(f"""
        v_lshlrev_b32 v{vXA}, 4, v{vL}
        v_add_u32 v{vXA}, 65536, v{vXA}
        s_add_u32 m0, s{sRW}, 16384
        s_mov_b64 exec, 0xffff
        """)
        k.vmem(f"buffer_load_dwordx4 v{vXA}, {sr(SX, 4)}, 0 offen{self.nt(SX)} lds", "x")
        k.e("s_mov_b64 exec, -1")

    def w1_issue(self, u):
        k = self.k
        i = u % 3
        if i == 0 and u:
            k.e(f"s_add_u32 s{sKI}, s{sKI}, 16384\ns_and_b32 s{sKI}, s{sKI}, 0x1c000")
        if i:
            t = self.tmp()
            k.e(f"s_add_u32 s{t}, s{sKI}, {i * 524288}")
            so = f"s{t}"
        else:
            so = f"s{sKI}"
        self.dma2k(SW1, RB + 2048 * (u % 10), so, ("w1", u))

    def rot4(self):
        k = self.k
        for j in range(4):
            if self.o["rot"]:
                k.e(f"s_add_u32 s{sR4[j]}, s{sML}, {j}\ns_and_b32 s{sR4[j]}, s{sR4[j]}, 3\ns_lshl_b32 s{sR4[j]}, s{sR4[j]}, 10")
            else:
                k.e(f"s_mov_b32 s{sR4[j]}, {j * 1024}")

    def w32_soff(self, j, tap):
        def fn():
            t = self.tmp()
            self.k.e(f"s_lshl_b32 s{t}, s{sR4[j]}, 5")
            if tap:
                self.k.e(f"s_add_u32 s{t}, s{t}, {tap * 524288}")
            return f"s{t}"
        return fn

    def w2_slot(self, v):
        xs = [XS[2], XS[3], XS[0], XS[1]] if self.o["w2mid"] else XS
        return [T4[2], T4[3], T4[4], T4[0], T4[1], xs[0], xs[1], xs[2], xs[3], T4[2], T4[3], T4[4]][v]

    def w2_ops(self, v):
        return self.dma4k_ops(SW2, self.w2_slot(v), self.w32_soff(v // 3, v % 3), ("w2", v))

    def clears(self):
        k = self.k
        self.srd(SWS, 22, None, WS_REC)
        k.e(f"""
        v_mov_b32 v{vONES}, -1
        v_mov_b32 v{vONES + 1}, -1
        v_mov_b32 v{vONES + 2}, -1
        v_mov_b32 v{vONES + 3}, -1
        v_lshlrev_b32 v{vT0}, 4, v{vL}
        s_lshl_b32 s{sT0}, s{sM}, 14
        s_lshl_b32 s{sT2}, s{sW}, 9
        s_add_u32 s{sT0}, s{sT0}, s{sT2}
        """)
        self.tile("x2", sT1)
        k.e(f"""
        s_lshl_b32 s{sT1}, s{sT1}, 11
        s_add_u32 s{sT2}, s{sT0}, {F_OFF}
        s_add_u32 s{sT2}, s{sT2}, s{sT1}
        """)
        self.tile("x3", sT1)
        k.e(f"""
        s_lshl_b32 s{sT1}, s{sT1}, 11
        s_add_u32 s{sT3}, s{sT0}, {FE_OFF}
        s_add_u32 s{sT3}, s{sT3}, s{sT1}
        s_mov_b32 exec_hi, 0
        """)
        k.vmem(f"buffer_store_dwordx4 {vr(vONES, 4)}, v{vT0}, {sr(SWS, 4)}, s{sT2} offen sc1", "clr")
        k.vmem(f"buffer_store_dwordx4 {vr(vONES, 4)}, v{vT0}, {sr(SWS, 4)}, s{sT3} offen sc1", "clr")
        lab = k.label("c0")
        k.e(f"""
        s_mov_b64 exec, -1
        s_cmp_lg_u32 s{sW}, 0
        s_cbranch_scc1 {lab}
        s_lshl_b32 s{sT0}, s{sM}, 15
        s_lshl_b32 s{sT1}, s{sN}, 11
        s_add_u32 s{sT0}, s{sT0}, s{sT1}
        s_add_u32 s{sT0}, s{sT0}, {H_OFF}
        s_add_u32 s{sT1}, s{sT0}, 16384
        buffer_store_dwordx4 {vr(vONES, 4)}, v{vT0}, {sr(SWS, 4)}, s{sT0} offen sc1
        buffer_store_dwordx4 {vr(vONES, 4)}, v{vT0}, {sr(SWS, 4)}, s{sT0} offen offset:1024 sc1
        buffer_store_dwordx4 {vr(vONES, 4)}, v{vT0}, {sr(SWS, 4)}, s{sT1} offen sc1
        buffer_store_dwordx4 {vr(vONES, 4)}, v{vT0}, {sr(SWS, 4)}, s{sT1} offen offset:1024 sc1
        """)
        if self.o["g4"]:
            k.e(f"""
            s_cmp_lg_u32 s{sN}, 0
            s_cbranch_scc1 {lab}
            s_and_b32 s{sT0}, s{sM}, 7
            s_lshr_b32 s{sT1}, s{sM}, 3
            s_lshl_b32 s{sT2}, s{sT0}, 14
            s_lshl_b32 s{sT3}, s{sT1}, 12
            s_add_u32 s{sT2}, s{sT2}, s{sT3}
            s_add_u32 s{sT2}, s{sT2}, {P_OFF}
            s_lshl_b32 s{sT0}, s{sT0}, 10
            s_lshl_b32 s{sT1}, s{sT1}, 8
            s_add_u32 s{sT0}, s{sT0}, s{sT1}
            s_add_u32 s{sT0}, s{sT0}, {GE_OFF}
            s_add_u32 s{sT1}, s{sT0}, 8192
            buffer_store_dwordx4 {vr(vONES, 4)}, v{vT0}, {sr(SWS, 4)}, s{sT2} offen sc1
            buffer_store_dwordx4 {vr(vONES, 4)}, v{vT0}, {sr(SWS, 4)}, s{sT2} offen offset:1024 sc1
            buffer_store_dwordx4 {vr(vONES, 4)}, v{vT0}, {sr(SWS, 4)}, s{sT2} offen offset:2048 sc1
            buffer_store_dwordx4 {vr(vONES, 4)}, v{vT0}, {sr(SWS, 4)}, s{sT2} offen offset:3072 sc1
            s_mov_b64 exec, 0xffff
            buffer_store_dwordx4 {vr(vONES, 4)}, v{vT0}, {sr(SWS, 4)}, s{sT0} offen sc1
            buffer_store_dwordx4 {vr(vONES, 4)}, v{vT0}, {sr(SWS, 4)}, s{sT1} offen sc1
            s_mov_b64 exec, -1
            {lab}:
            """)
            return
        k.e(f"""
        s_cmp_ge_u32 s2, 8
        s_cbranch_scc1 {lab}
        s_lshl_b32 s{sT0}, s2, 10
        s_add_u32 s{sT0}, s{sT0}, {GE_OFF}
        s_add_u32 s{sT1}, s{sT0}, 8192
        buffer_store_dwordx4 {vr(vONES, 4)}, v{vT0}, {sr(SWS, 4)}, s{sT0} offen sc1
        buffer_store_dwordx4 {vr(vONES, 4)}, v{vT0}, {sr(SWS, 4)}, s{sT1} offen sc1
        {lab}:
        """)

    def prologue2(self):
        k = self.k
        for key, d, ptr, size in (("x2", SW2, 8, 1572864), ("x3", SWF, 12, 524288), (None, SWG, 14, 524288)):
            if key is None and self.o["g4"]:
                k.e(f"""
                s_and_b32 s{sT0}, s{sM}, 7
                s_lshl_b32 s{sT0}, s{sT0}, 7
                s_lshr_b32 s{sT1}, s{sM}, 3
                s_lshl_b32 s{sT1}, s{sT1}, 17
                s_add_u32 s{sT0}, s{sT0}, s{sT1}
                s_lshl_b32 s{sT1}, s{sW}, 15
                s_add_u32 s{sT0}, s{sT0}, s{sT1}
                s_sub_u32 s{sT1}, {size}, s{sT0}
                """)
                self.srd(d, ptr, sT0, f"s{sT1}")
                continue
            if key:
                self.tile(key, sT0)
            else:
                k.e(f"s_and_b32 s{sT0}, s2, 7")
            k.e(f"""
            s_lshl_b32 s{sT0}, s{sT0}, 7
            s_lshl_b32 s{sT1}, s{sW}, 17
            s_add_u32 s{sT0}, s{sT0}, s{sT1}
            s_sub_u32 s{sT1}, {size}, s{sT0}
            """)
            self.srd(d, ptr, sT0, f"s{sT1}")
        if self.o["g4"]:
            k.e(f"""
            s_lshr_b32 s{sT0}, s{sM}, 3
            s_lshl_b32 s{sT0}, s{sT0}, 8
            s_lshl_b32 s{sT1}, s{sW}, 6
            s_add_u32 s{sT0}, s{sT0}, s{sT1}
            s_sub_u32 s{sT1}, 16384, s{sT0}
            """)
        else:
            k.e(f"""
            s_lshl_b32 s{sT0}, s{sW}, 8
            s_sub_u32 s{sT1}, 16384, s{sT0}
            """)
        self.srd(SG, 10, sT0, f"s{sT1}")
        k.e(f"""
        s_lshr_b32 s{sT2}, s{sN}, 2
        s_lshl_b32 s{sT0}, s{sT2}, 9
        s_lshl_b32 s{sT1}, s{sW}, 7
        s_add_u32 s{sT0}, s{sT0}, s{sT1}
        s_sub_u32 s{sT1}, 524288, s{sT0}
        """)
        self.srd(SWO, 16, sT0, f"s{sT1}")
        k.e(f"s_mul_i32 s{sT0}, s{sB}, 2048000")
        self.srd(SOUT, 18, sT0, 2048000)
        self.srd(SDBG, 20, None, 256)
        k.e(f"s_lshr_b32 s{sNH}, s{sN}, 2")
        self.rot4()
        k.e(f"""
        v_lshlrev_b32 v{vT0}, 4, v{vL}
        v_add_u32 v{vLIN}, s{sRW}, v{vT0}
        v_bfe_u32 v{vT0}, v{vL}, 2, 2
        v_lshrrev_b32 v{vT1}, 5, v{vL}
        v_lshl_add_u32 v{vT1}, v{vT1}, 3, v{vT0}
        v_lshlrev_b32 v{vT1}, 7, v{vT1}
        v_lshrrev_b32 v{vT2}, 1, v{vT0}
        v_lshl_add_u32 v{vT1}, v{vT2}, 6, v{vT1}
        v_bfe_u32 v{vT2}, v{vL}, 4, 1
        v_lshl_add_u32 v{vT1}, v{vT2}, 5, v{vT1}
        v_and_b32 v{vT2}, 3, v{vL}
        v_lshl_add_u32 v{vT1}, v{vT2}, 3, v{vT1}
        v_add_u32 v{vTR0}, s{sRW}, v{vT1}
        v_xor_b32 v{vT1}, 64, v{vT1}
        v_add_u32 v{vTR1}, s{sRW}, v{vT1}
        """)
        k.e(f"""
        v_and_b32 v{vT0}, 31, v{vL}
        v_lshrrev_b32 v{vT1}, 5, v{vL}
        v_and_b32 v{vT2}, 15, v{vT0}
        v_xor_b32 v{vT2}, v{vT2}, v{vT1}
        v_lshlrev_b32 v{vT2}, 4, v{vT2}
        v_lshl_add_u32 v{vT2}, v{vT0}, 9, v{vT2}
        v_add_u32 v{vXB}, s{sRW}, v{vT2}
        v_add_u32 v{vXB + 1}, 256, v{vXB}
        v_add_u32 v{vT2}, 1, v{vT0}
        v_and_b32 v{vT2}, 15, v{vT2}
        v_xor_b32 v{vT2}, v{vT2}, v{vT1}
        v_lshlrev_b32 v{vT2}, 4, v{vT2}
        v_lshl_add_u32 v{vT2}, v{vT0}, 9, v{vT2}
        v_add_u32 v{vT2}, 512, v{vT2}
        v_add_u32 v{vXB + 2}, s{sRW}, v{vT2}
        """)
        k.e(f"""
        v_lshrrev_b32 v{vT0}, 3, v{vL}
        v_bfe_u32 v{vT1}, v{vT0}, 1, 1
        v_lshlrev_b32 v{vT1}, 1, v{vT1}
        v_and_b32 v{vT2}, 7, v{vL}
        v_xor_b32 v{vT1}, v{vT1}, v{vT2}
        v_lshlrev_b32 v{vT1}, 4, v{vT1}
        v_lshl_add_u32 v{vW2}, v{vT0}, 10, v{vT1}
        v_xor_b32 v{vT1}, 64, v{vW2}
        v_add_u32 v{vW2 + 1}, 7168, v{vT1}
        v_add_u32 v{vW2 + 2}, {2 * 7168}, v{vW2}
        v_add_u32 v{vW2 + 3}, {3 * 7168}, v{vT1}
        v_lshrrev_b32 v{vT0}, 4, v{vL}
        v_bfe_u32 v{vT1}, v{vL}, 2, 2
        v_lshl_add_u32 v{vT2}, v{vT0}, 3, v{vT1}
        v_lshlrev_b32 v{vT2}, 7, v{vT2}
        v_lshrrev_b32 v{vT1}, 1, v{vT1}
        v_and_b32 v{vT0}, 1, v{vT0}
        v_lshl_add_u32 v{vT1}, v{vT0}, 1, v{vT1}
        v_lshl_add_u32 v{vT2}, v{vT1}, 5, v{vT2}
        v_and_b32 v{vT1}, 3, v{vL}
        v_lshl_add_u32 v{vT2}, v{vT1}, 3, v{vT2}
        v_add_u32 v{vT16}, s{sRW}, v{vT2}
        """)
        for ct in range(1, 4):
            k.e(f"v_xor_b32 v{vT0}, {ct * 32}, v{vT2}\nv_add_u32 v{vT16 + ct}, s{sRW}, v{vT0}")
        k.e(f"""
        v_and_b32 v{vT0}, 15, v{vL}
        v_bfe_u32 v{vT1}, v{vL}, 4, 1
        v_lshl_add_u32 v{vT0}, v{vT0}, 1, v{vT1}
        v_lshlrev_b32 v{vT0}, 4, v{vT0}
        v_lshrrev_b32 v{vT1}, 5, v{vL}
        v_lshl_add_u32 v{vT0}, v{vT1}, 10, v{vT0}
        s_lshl_b32 s{sT0}, s{sW}, 11
        v_add_u32 v{vRD}, s{sT0}, v{vT0}
        """)
        if self.o["rot"]:
            k.e(f"s_lshl_b32 s{sKC}, s{sML}, 5")
        else:
            k.e(f"s_mov_b32 s{sKC}, 0")

    def stage1(self):
        k = self.k
        if self.o.get("cpf") == 1:
            self.code_prefetch()
        self.x_quarter(0)
        for u in range(3):
            self.w1_issue(u)
        if self.o.get("cpf") == 2:
            self.code_prefetch()
        self.clears()
        for qq in range(1, 4):
            self.x_quarter(qq)
        self.x_tail()
        self.stamp("iss0")
        self.prologue2()
        if self.o.get("gpf", 1) and not self.o["g4"]:
            self.g_prefetch()
        self.l2pf("iss0")
        for u in range(3, 10):
            self.w1_issue(u)
        self.l2pf("iss")
        self.stamp("iss")
        k.wait(vm="x")
        self.stamp("x0")
        lab = k.label("hs")
        k.e(f"""
        s_cmp_lg_u32 s{sW}, 0
        s_cbranch_scc1 {lab}
        s_and_b32 s{sT0}, s2, 3
        s_lshl_b32 s{sT0}, s{sT0}, 6
        v_mov_b32 v{vT0}, s{sT0}
        v_mov_b32 v{vT1}, 1
        s_mov_b64 exec, 1
        buffer_atomic_add v{vT1}, v{vT0}, {sr(SDBG, 4)}, 0 offen sc1
        s_mov_b64 exec, -1
        {lab}:
        """)

        def mm(u):
            a, b = AF + 8 * (u & 1), BFR + 4 * (u & 1)
            self.mfma32(ACC1, a, b, u == 0)
            self.mfma32(ACC1 + 16, a + 4, b, u == 0)

        def refill(u):
            if u + 10 < 24:
                self.w1_issue(u + 10)
            elif u >= 15 and u % 2 == 1 and (u - 15) // 2 < self.o["w2in"]:
                for op in self.w2_ops((u - 15) // 2):
                    op()
            self.l2pf(u)
            if u == 17:
                k.e(f"v_and_b32 v{vT0}, 3, v{vL}\nv_lshlrev_b32 v{vT0}, 6, v{vT0}")
                k.vmem(f"buffer_load_dword v{vHS}, v{vT0}, {sr(SDBG, 4)}, 0 offen sc1", "hs")

        for u in range(24):
            i = u % 3
            if i == 0 and u:
                k.e(f"s_add_u32 s{sKC}, s{sKC}, 32\ns_and_b32 s{sKC}, s{sKC}, 0xe0")
            k.e(f"v_xor_b32 v{vBA + (u & 1)}, s{sKC}, v{vXB + i}")
            k.wait(vm=("w1", u))
            self.tr32(RB + 2048 * (u % 10), AF + 8 * (u & 1), "v", ("u", u))
            k.ds(f"ds_read_b128 {vr(BFR + 4 * (u & 1), 4)}, v{vBA + (u & 1)}", ("u", u))
            if u:
                k.wait(lg=("u", u - 1))
                mm(u - 1)
                refill(u - 1)
            if u in (5, 11, 17):
                self.stamp(f"u{u}")
        k.wait(lg=("u", 23))
        mm(23)
        refill(23)
        self.stamp("s1mfma")
        if self.o["g4"]:
            self.g4_issue()
        self.l2pf("s1end")
        k.e(f"v_mov_b32 v{vKC3}, {f32(-C3)}")
        k.e(f"v_add_u32 v{vT3}, {2 * RW}, v{vRD}")
        k.nop(10)
        for blk in range(8):
            k.ds(f"ds_write_b128 v{vLIN}, {vr(ACC1 + 4 * blk, 4)} offset:{blk * 1024}")
        k.wait(lg="all")
        k.e("s_barrier")
        for sw in range(4):
            a = vRD if sw < 2 else vT3
            for j in range(2):
                k.ds(f"ds_read_b128 {vr(R1 + 8 * sw + 4 * j, 4)}, v{a} offset:{(sw & 1) * RW + j * 512}", ("r", sw))
        assert self.o["w2in"] + self.o["w2mid"] <= 7
        for v in range(self.o["w2in"], self.o["w2in"] + self.o["w2mid"]):
            for op in self.w2_ops(v):
                op()
        k.wait(lg=("r", 1))
        for i in range(8):
            k.e(f"v_add_f32 v{R1 + i}, v{R1 + i}, v{R1 + 8 + i}")
        k.wait(lg=("r", 3))
        for i in range(8):
            k.e(f"v_add_f32 v{R1 + 16 + i}, v{R1 + 16 + i}, v{R1 + 24 + i}")
        for i in range(8):
            k.e(f"v_add_f32 v{R1 + i}, v{R1 + i}, v{R1 + 16 + i}")
        self.gelu([R1 + i for i in range(8)], R1 + 8, vKC3)
        for i in range(4):
            k.e(f"v_cvt_pk_bf16_f32 v{R1 + 16 + i}, v{R1 + 2 * i}, v{R1 + 2 * i + 1}")
        k.e(f"""
        v_and_b32 v{vT0}, 15, v{vL}
        v_lshlrev_b32 v{vT0}, 4, v{vT0}
        v_bfe_u32 v{vT1}, v{vL}, 4, 1
        v_lshl_add_u32 v{vT0}, v{vT1}, 14, v{vT0}
        v_lshrrev_b32 v{vT1}, 5, v{vL}
        v_lshl_add_u32 v{vT0}, v{vT1}, 8, v{vT0}
        s_lshl_b32 s{sT0}, s{sM}, 15
        s_lshl_b32 s{sT1}, s{sN}, 11
        s_add_u32 s{sT0}, s{sT0}, s{sT1}
        s_lshl_b32 s{sT1}, s{sW}, 9
        s_add_u32 s{sT0}, s{sT0}, s{sT1}
        s_add_u32 s{sT0}, s{sT0}, {H_OFF}
        """)
        k.vmem(f"buffer_store_dwordx4 {vr(R1 + 16, 4)}, v{vT0}, {sr(SWS, 4)}, s{sT0} offen sc1", "hst")
        self.stamp("hst")
        k.e("s_barrier")

    def setup2(self):
        k = self.k
        k.e(f"""
        v_lshlrev_b32 v{vLIN16}, 4, v{vL}
        v_and_b32 v{vT0}, 15, v{vL}
        v_lshrrev_b32 v{vT1}, 4, v{vL}
        v_add_u32 v{vH0}, {32768 - 16}, v{vLIN16}
        v_lshlrev_b32 v{vT2}, 8, v{vT1}
        v_add_u32 v{vT2}, 240, v{vT2}
        s_cmp_eq_u32 s{sMT}, 0
        s_cselect_b32 s{sT0}, {OOB}, 0
        v_add_u32 v{vT2}, s{sT0}, v{vT2}
        v_cmp_eq_u32 vcc, 0, v{vT0}
        v_and_b32 v{vT3}, 7, v{vL}
        v_lshlrev_b32 v{vT3}, 9, v{vT3}
        v_cndmask_b32 v{vH0}, v{vH0}, v{vT2}, vcc
        v_add_u32 v{vFSM}, {256 + 240 + 12}, v{vT3}
        v_add_u32 v{vSMP}, 16384, v{vFSM}
        v_add_u32 v{vT2}, 32768, v{vSMP}
        v_add_u32 v{vT3}, s{sT0}, v{vSMP}
        v_cmp_gt_u32 vcc, 8, v{vL}
        v_bfrev_b32 v{vSV}, 1
        s_nop 0
        v_cndmask_b32 v{vSMP}, v{vT3}, v{vT2}, vcc
        v_cndmask_b32 v{vFSM}, v{vSV}, v{vFSM}, vcc
        v_cmp_gt_u32 vcc, 16, v{vL}
        v_lshrrev_b32 v{vT2}, 1, v{vT1}
        v_lshlrev_b32 v{vT2}, 8, v{vT2}
        v_cndmask_b32 v{vSMP}, v{vSV}, v{vSMP}, vcc
        v_lshl_add_u32 v{vT2}, v{vT0}, 4, v{vT2}
        v_and_b32 v{vT1}, 1, v{vT1}
        v_lshl_add_u32 v{vST}, v{vT1}, 3, v{vT2}
        s_lshl_b32 s{sT0}, s{sW}, 10
        v_add_u32 v{vRD2}, s{sT0}, v{vLIN16}
        s_lshl_b32 s{sT0}, s{sM}, 15
        s_lshl_b32 s{sT1}, s{sW}, 12
        s_add_u32 s{sH}, s{sT0}, s{sT1}
        s_add_u32 s{sH}, s{sH}, {H_OFF}
        s_sub_u32 s{sHS}, s{sH}, 32768
        s_lshl_b32 s{sT0}, s{sM}, 14
        s_add_u32 s{sFL}, s{sT0}, s{sT1}
        s_add_u32 s{sFL}, s{sFL}, {F_OFF}
        s_lshl_b32 s{sT1}, s{sW}, 9
        s_add_u32 s{sT0}, s{sT0}, s{sT1}
        s_xor_b32 s{sT1}, s{sN}, {self.o["x2"]}
        s_lshl_b32 s{sT1}, s{sT1}, 11
        s_add_u32 s{sFS}, s{sT0}, s{sT1}
        s_add_u32 s{sFS}, s{sFS}, {F_OFF}
        s_xor_b32 s{sT1}, s{sN}, {self.o["x3"]}
        s_lshl_b32 s{sT1}, s{sT1}, 11
        s_add_u32 s{sFES}, s{sT0}, s{sT1}
        s_add_u32 s{sFES}, s{sFES}, {FE_OFF}
        v_bfrev_b32 v{vGST}, 1
        s_lshl_b32 s{sWQ}, s{sML}, 16
        s_sub_u32 s{sWQ}, s{sWQ}, 16384
        """)
        if self.o["g4"]:
            k.e(f"""
            s_or_b32 s{sT0}, s{sN}, s{sW}
            s_cmp_eq_u32 s{sT0}, 0
            s_cselect_b32 s{sT2}, 0, {OOB}
            s_and_b32 s{sT0}, s{sM}, 7
            s_lshr_b32 s{sT1}, s{sM}, 3
            s_lshl_b32 s{sT3}, s{sT0}, 14
            s_add_u32 s{sT3}, s{sT3}, s{sT2}
            s_lshl_b32 s{sA}, s{sT1}, 10
            s_add_u32 s{sT3}, s{sT3}, s{sA}
            s_add_u32 s{sT3}, s{sT3}, {P_OFF}
            v_add_u32 v{vGP}, s{sT3}, v{vLIN16}
            v_bfe_u32 v{vT0}, v{vL}, 3, 1
            v_lshlrev_b32 v{vT0}, 13, v{vT0}
            v_and_b32 v{vT1}, 7, v{vL}
            v_lshl_add_u32 v{vT0}, v{vT1}, 4, v{vT0}
            v_lshrrev_b32 v{vT1}, 5, v{vL}
            v_lshl_add_u32 v{vT0}, v{vT1}, 7, v{vT0}
            v_bfe_u32 v{vT1}, v{vL}, 4, 1
            v_lshl_add_u32 v{vT0}, v{vT1}, 3, v{vT0}
            s_lshl_b32 s{sT0}, s{sT0}, 10
            s_lshl_b32 s{sT1}, s{sT1}, 8
            s_add_u32 s{sT0}, s{sT0}, s{sT1}
            s_add_u32 s{sT0}, s{sT0}, s{sT2}
            s_add_u32 s{sT0}, s{sT0}, {GE_OFF}
            v_add_u32 v{vGST}, s{sT0}, v{vT0}
            """)

    def w2_finish(self):
        k = self.k
        for v in range(self.o["w2in"] + self.o["w2mid"], 9):
            if v == 8 and self.o["g4"]:
                self.g4_partial()
            for op in self.w2_ops(v):
                op()
        self.setup2()
        for v in range(3):
            k.wait(vm=("w2", v))
            self.tr16(self.w2_slot(v), 16 * v, "a", ("t2", v))
        for v in range(3):
            k.wait(lg=("t2", v))
            for op in self.w2_ops(9 + v):
                op()
        top, done = k.label("hsw"), k.label("hsd")
        k.e(f"""
        v_cmp_gt_u32 vcc, 64, v{vHS}
        s_cbranch_vccnz {top}
        {done}:
        """)
        self.ool.append(("hs", top, done))
        hd = self.o.get("hdirect", 0)
        if not hd:
            k.vmem(f"buffer_load_dword v{vHS}, v{vSMP}, {sr(SWS, 4)}, s{sHS} offen sc1", "smp")
        for v in range(3, 8):
            k.wait(vm=("w2", v))
            self.tr16(self.w2_slot(v), 16 * v, "a", ("t2", v))
            if hd and v == hd + 2 and v < 8:
                self.h_loads(True, not self.o["hplain"])
        if self.o["glate"] or self.o["g4"]:
            self.w2_last()
        else:
            gtop, gjoin = k.label("gblk"), k.label("gjoin")
            k.e(f"s_cmp_lt_u32 s2, 8\ns_cbranch_scc1 {gtop}")
            self.ool.append(("g", gtop, gjoin, list(k.vm), list(k.lg)))
            self.w2_last()
            k.e(f"{gjoin}:")
        self.stamp("w2done")

    def w2_last(self):
        k = self.k
        for v in range(8, 12):
            k.wait(vm=("w2", v))
            self.tr16(self.w2_slot(v), 16 * v, "a", ("t2", v))

    def g4_issue(self):
        k = self.k
        lab = k.label("g4i")
        k.e(f"""
        s_cmp_lg_u32 s{sN}, 0
        s_cbranch_scc1 {lab}
        s_add_u32 m0, s{sRW}, {XS[3]}
        v_and_b32 v{vT0}, 15, v{vL}
        v_lshlrev_b32 v{vT0}, 10, v{vT0}
        v_lshrrev_b32 v{vT1}, 4, v{vL}
        v_lshl_add_u32 v{vT0}, v{vT1}, 4, v{vT0}
        """)
        for q in range(4):
            o = f" offset:{q * 1024}" if q else ""
            k.e(f"buffer_load_dwordx4 v{vW2 + q}, {sr(SWG, 4)}, 0 offen{o} lds")
        k.e(f"""
        s_add_u32 m0, s{sRW}, {GS}
        s_nop 0
        buffer_load_dwordx4 v{vT0}, {sr(SG, 4)}, 0 offen lds
        {lab}:
        """)
        self.g4_mark = k.nvm

    def g4_partial(self):
        k = self.k
        A, B, D = 128, 144, 160
        lab = k.label("g4p")
        k.e(f"""
        s_cmp_lg_u32 s{sN}, 0
        s_cbranch_scc1 {lab}
        v_subrev_u32 v{vT0}, s{sRW}, v{vT16}
        s_lshl_b32 s{sT0}, s{sW}, 5
        v_xor_b32 v{vT0}, s{sT0}, v{vT0}
        v_add_u32 v{vT1}, {2 * RW}, v{vT0}
        v_lshlrev_b32 v{vT2}, 4, v{vL}
        v_add_u32 v{vT2}, {GS}, v{vT2}
        v_add_u32 v{vT3}, {2 * RW}, v{vT2}
        s_waitcnt vmcnt({k.nvm - self.g4_mark}) lgkmcnt(0)
        s_barrier
        """)
        for j in range(4):
            a, b = (vT0, vT2) if j < 2 else (vT1, vT3)
            o = (j & 1) * RW
            k.e(f"ds_read_b64_tr_b16 {vr(A + 4 * j, 2)}, v{a} offset:{o + XS[3]}")
            k.e(f"ds_read_b64_tr_b16 {vr(A + 4 * j + 2, 2)}, v{a} offset:{o + XS[3] + 512}")
            k.e(f"ds_read_b128 {vr(B + 4 * j, 4)}, v{b} offset:{o}")
        k.e(f"""
        s_and_b32 s{sT0}, s{sM}, 7
        s_lshl_b32 s{sT0}, s{sT0}, 14
        s_lshr_b32 s{sT1}, s{sM}, 3
        s_lshl_b32 s{sT1}, s{sT1}, 12
        s_add_u32 s{sT0}, s{sT0}, s{sT1}
        s_lshl_b32 s{sT1}, s{sW}, 10
        s_add_u32 s{sT0}, s{sT0}, s{sT1}
        s_add_u32 s{sT0}, s{sT0}, {P_OFF}
        s_waitcnt lgkmcnt(0)
        s_barrier
        v_lshlrev_b32 v{vT0}, 4, v{vL}
        """)
        for j in range(4):
            self.mfma16(D, A + 4 * j, B + 4 * j, j == 0, ak="v")
        k.nop(12)
        k.e(f"buffer_store_dwordx4 {vr(D, 4)}, v{vT0}, {sr(SWS, 4)}, s{sT0} offen sc1\n{lab}:")

    def g4_loads(self, counted):
        k = self.k
        for q in range(4):
            t = self.tmp()
            k.e(f"s_mov_b32 s{t}, {q * 4096}")
            ins = f"buffer_load_dwordx4 {vr(160 + 4 * q, 4)}, v{vGP}, {sr(SWS, 4)}, s{t} offen sc1"
            if counted:
                k.vmem(ins, "gp")
            else:
                k.e(ins)

    def g4_final(self):
        k = self.k
        P = 160
        k.e(f"s_mov_b32 s{sSPIN}, 0")
        k.wait(vm="gp")
        retry, ok, again = k.label("gpr"), k.label("gpk"), k.label("gpa")
        k.e(f"{again}:")
        k.e(f"v_max_u32 v{vT0}, v{P}, v{P + 1}")
        for i in range(2, 16, 2):
            k.e(f"v_max3_u32 v{vT0}, v{vT0}, v{P + i}, v{P + i + 1}")
        k.e(f"v_cmp_eq_u32 vcc, -1, v{vT0}\ns_cbranch_vccnz {retry}\n{ok}:")
        self.ool.append(("poll", retry, ok, again, self.g4_loads))
        for i in range(4):
            k.e(f"v_add_f32 v{P + i}, v{P + i}, v{P + 4 + i}")
            k.e(f"v_add_f32 v{P + 8 + i}, v{P + 8 + i}, v{P + 12 + i}")
        for i in range(4):
            k.e(f"v_add_f32 v{P + i}, v{P + i}, v{P + 8 + i}")
        k.e(f"v_cvt_pk_bf16_f32 v{P + 4}, v{P}, v{P + 1}")
        k.e(f"v_cvt_pk_bf16_f32 v{P + 5}, v{P + 2}, v{P + 3}")
        k.vmem(f"buffer_store_dwordx2 {vr(P + 4, 2)}, v{vGST}, {sr(SWS, 4)}, 0 offen sc1", "gest")

    def g_loads(self, GF):
        k = self.k
        k.e(f"""
        v_and_b32 v{vT0}, 15, v{vL}
        v_lshlrev_b32 v{vT0}, 10, v{vT0}
        v_lshrrev_b32 v{vT1}, 4, v{vL}
        v_lshl_add_u32 v{vT0}, v{vT1}, 4, v{vT0}
        """)
        for j in range(4):
            t = self.tmp()
            k.e(f"s_lshr_b32 s{t}, s{sR4[j]}, 4")
            k.e(f"v_add_u32 v{vT1}, s{t}, v{vT0}")
            k.vmem(f"buffer_load_dwordx4 {vr(GF + 4 * j, 4)}, v{vT1}, {sr(SG, 4)}, 0 offen", "g")

    def g_addr(self):
        k = self.k
        k.e(f"""
        v_bfe_u32 v{vT0}, v{vL}, 3, 1
        v_lshlrev_b32 v{vT0}, 13, v{vT0}
        v_and_b32 v{vT1}, 7, v{vL}
        v_lshl_add_u32 v{vT0}, v{vT1}, 4, v{vT0}
        v_lshrrev_b32 v{vT1}, 5, v{vL}
        v_lshl_add_u32 v{vT0}, v{vT1}, 7, v{vT0}
        v_bfe_u32 v{vT1}, v{vL}, 4, 1
        v_lshl_add_u32 v{vT0}, v{vT1}, 3, v{vT0}
        s_lshl_b32 s{sT0}, s2, 10
        s_lshl_b32 s{sT1}, s{sW}, 8
        s_add_u32 s{sT0}, s{sT0}, s{sT1}
        s_add_u32 s{sT0}, s{sT0}, {GE_OFF}
        v_add_u32 v{vGST}, s{sT0}, v{vT0}
        """)

    def g_block(self):
        k = self.k
        GF = HB
        slots = [T4[0], T4[1], XS[2], XS[3]] if self.o["w2mid"] else [T4[0], T4[1], XS[1], XS[2]]
        k.wait(lg=("t2", 7))
        self.stamp("g0")
        for j in range(4):
            self.dma4k(SWG, slots[j], self.w32_soff(j, 0), ("wg", j))
        self.g_loads(GF)
        self.stamp("gdma")
        self.w2_last()
        self.stamp("gw2")
        self.g_addr()
        for j in range(4):
            k.wait(vm=("wg", j))
            self.tr16(slots[j], 192 + 16 * j, "a", ("twg", j))
        self.stamp("gwg")
        k.wait(vm="all")
        self.stamp("gld")
        for j in range(4):
            k.wait(lg=("twg", j))
            for ct in range(4):
                self.mfma16(ACC2 + 4 * ct, 192 + 16 * j + 4 * ct, GF + 4 * j, j == 0)
        self.stamp("gmf")
        self.reduce16(ACC2, False, None, None, None)
        k.e("s_barrier")
        self.stamp("gend")

    def poll_sample(self, stem, vaddr, sbase):
        k = self.k
        top, done = k.label(stem + "p"), k.label(stem + "d")
        k.wait(vm="smp")
        k.e(f"""
        v_cmp_eq_u32 vcc, -1, v{vHS}
        s_cbranch_vccnz {top}
        {done}:
        """)
        self.ool.append(("smp", top, done, vaddr, sbase))

    def reduce16(self, acc, act, vst, sst, tag, mid=None):
        k = self.k
        k.e(f"v_add_u32 v{vT3}, {2 * RW}, v{vRD2}")
        k.nop(8)
        for ct in range(4):
            k.ds(f"ds_write_b128 v{vLIN}, {vr(acc + 4 * ct, 4)} offset:{ct * 1024}")
        k.wait(lg="all")
        k.e("s_barrier")
        for sw in range(4):
            a = vRD2 if sw < 2 else vT3
            k.ds(f"ds_read_b128 {vr(R2 + 4 * sw, 4)}, v{a} offset:{(sw & 1) * RW}", ("r", sw))
        if mid:
            mid()
        k.wait(lg=("r", 1))
        for i in range(4):
            k.e(f"v_add_f32 v{R2 + i}, v{R2 + i}, v{R2 + 4 + i}")
        k.wait(lg=("r", 3))
        for i in range(4):
            k.e(f"v_add_f32 v{R2 + 8 + i}, v{R2 + 8 + i}, v{R2 + 12 + i}")
        for i in range(4):
            k.e(f"v_add_f32 v{R2 + i}, v{R2 + i}, v{R2 + 8 + i}")
        if act:
            self.gelu([R2 + i for i in range(4)], R2 + 4, vKC3)
        k.e(f"v_cvt_pk_bf16_f32 v{R2 + 8}, v{R2}, v{R2 + 1}")
        k.e(f"v_cvt_pk_bf16_f32 v{R2 + 9}, v{R2 + 2}, v{R2 + 3}")
        if vst is not None:
            k.vmem(f"buffer_store_dwordx2 {vr(R2 + 8, 2)}, v{vst}, {sr(SWS, 4)}, s{sst} offen sc1", tag)

    def h_loads(self, counted, sc):
        k = self.k
        for v in range(12):
            j, i = v // 3, v % 3
            t = self.tmp()
            k.e(f"s_add_u32 s{t}, s{sH}, s{sR4[j]}")
            if i == 0:
                k.e(f"s_sub_u32 s{t}, s{t}, 16384")
            elif i == 2:
                k.e(f"s_add_u32 s{t}, s{t}, 16384")
            ins = (f"buffer_load_dwordx4 {vr(HB + 4 * v, 4)}, v{vH0 if i == 0 else vLIN16}, "
                   f"{sr(SWS, 4)}, s{t} offen" + (" sc1" if sc else ""))
            if counted:
                k.vmem(ins, ("h", v))
            else:
                k.e(ins)

    def stage2(self):
        k = self.k
        hd = self.o.get("hdirect", 0)
        if not hd:
            self.poll_sample("h", vSMP, sHS)
        self.stamp("hpoll")
        loads = self.h_loads
        k.e(f"s_mov_b32 s{sSPIN}, 0")
        if not hd:
            loads(True, not self.o["hplain"])
        if not self.o["glate"] and not self.o["g4"]:
            k.vmem(f"buffer_store_dwordx2 {vr(R2 + 8, 2)}, v{vGST}, {sr(SWS, 4)}, 0 offen sc1", "gest")
        k.wait(lg="all")
        fill = []
        for j in range(4):
            fill += self.dma4k_ops(SWF, T4[j], self.w32_soff(j, 0), ("wf", j))
        for _ in range(self.o.get("wfpre", 4)):
            fill.pop(0)()
        mf, retry, ok = k.label("s2m"), k.label("s2r"), k.label("s2k")
        k.e(f"{mf}:")
        for v in range(12):
            k.wait(vm=("h", v))
            f = HB + 4 * v
            if v == 0:
                k.e(f"v_mov_b32 v{vT0}, v{f + 3}")
            elif v % 2 == 0:
                k.e(f"v_max3_u32 v{vT0}, v{vT0}, v{f - 1}, v{f + 3}")
            for ct in range(4):
                self.mfma16(ACC2 + 4 * ct, 16 * v + 4 * ct, f, v == 0)
            if v < self.o.get("wfloop", 12) and fill:
                fill.pop(0)()
        k.e(f"v_max_u32 v{vT0}, v{vT0}, v{HB + 47}")
        k.e(f"v_cmp_eq_u32 vcc, -1, v{vT0}\ns_cbranch_vccnz {retry}\n{ok}:")
        self.ool.append(("bulk", retry, ok, mf, loads))
        self.stamp("s2mfma")
        if self.o["g4"]:
            self.g4_loads(True)
        self.wf_rest = fill

    def wo_slot(self, bb, e):
        if bb % 2 == 0:
            base = [T4[4], XS[1], XS[2], XS[3]]
        else:
            base = [T4[0], T4[1], T4[2], T4[3]]
        return base[e // 2] + 2048 * (e & 1)

    def wo_issue(self, bb, e0, e1):
        k = self.k
        for e in range(e0, e1):
            assert self.wo_next == 8 * bb + e
            self.wo_next += 1
            k.e(f"s_add_u32 s{sWQ}, s{sWQ}, 16384\ns_and_b32 s{sWQ}, s{sWQ}, 0x7c000")
            self.dma2k(SWO, self.wo_slot(bb, e), f"s{sWQ}", ("wo", bb, e))

    def wo_tr_ops(self, bb):
        ops = []
        for e in range(8):
            for ct, a in enumerate((vTR0, vTR1)):
                for hf in range(2):
                    off = self.wo_slot(bb, e) + 512 * hf
                    dst = 8 * (8 * bb + e) + 4 * ct + 2 * hf
                    ops.append(("ds", f"ds_read_b64_tr_b16 {vr(dst, 2, 'a')}, v{a} offset:{off}", ("two", bb)))
        return ops

    def wo_tr(self, bb):
        k = self.k
        for e in range(8):
            k.wait(vm=("wo", bb, e))
            self.tr32(self.wo_slot(bb, e), 8 * (8 * bb + e), "a", ("two", bb))

    def stage2_tail(self):
        k = self.k
        self.wo_next = 0

        def mid():
            for _ in range(self.o.get("wfmid", 0)):
                if self.wf_rest:
                    self.wf_rest.pop(0)()
        self.reduce16(ACC2, True, vST, sFS, "fst", mid=mid)
        self.stamp("fst")
        while self.wf_rest:
            self.wf_rest.pop(0)()
        k.e("s_barrier")
        if self.o["glate"]:
            gtop, self.gjoin = k.label("gl"), k.label("glj")
            k.e(f"s_cmp_lt_u32 s2, 8\ns_cbranch_scc1 {gtop}")
            self.ool.append(("glate", gtop, self.gjoin, list(k.vm), list(k.lg), self.wo_next))
        self.wo_issue(0, 0, 8)
        self.wo_pattern()
        k.wait(vm=("wf", 3))
        for j in range(4):
            self.tr16(T4[j], 192 + 16 * j, "a", "twf")
        if self.o["g4"]:
            self.g4_final()
        if self.o["b1B"]:
            k.wait(lg="twf")
            self.wo_issue(1, 0, self.o["b1B"])
        if self.o["glate"] and self.stop_after in ("s2", "ge"):
            k.e(f"s_waitcnt vmcnt(0) lgkmcnt(0)\n{self.gjoin}:")

    def glate_block(self, join):
        k = self.k
        GF = HB + 16
        slots = [self.wo_slot(0, 2 * j) for j in range(4)]
        for j in range(4):
            self.dma4k(SWG, slots[j], self.w32_soff(j, 0), ("wg", j))
        self.g_loads(GF)
        self.stamp("gdma")
        self.wo_pattern()
        self.g_addr()
        k.wait(vm=("wf", 3))
        for j in range(4):
            self.tr16(T4[j], 192 + 16 * j, "a", "twf")
        for j in range(4):
            k.wait(vm=("wg", j))
            self.tr16(slots[j], 128 + 16 * j, "a", ("twg", j))
        self.stamp("gwg")
        k.wait(lg="all")
        self.wo_issue(0, 0, 8)
        k.vmem(f"buffer_load_dword v{vHS}, v{vFSM}, {sr(SWS, 4)}, s{sFL} offen sc1", "smp")
        k.wait(vm="g")
        self.stamp("gld")
        for j in range(4):
            for ct in range(4):
                self.mfma16(ACC2 + 4 * ct, 128 + 16 * j + 4 * ct, GF + 4 * j, j == 0)
        self.stamp("gmf")
        self.reduce16(ACC2, False, None, None, None)
        k.vmem(f"buffer_store_dwordx2 {vr(R2 + 8, 2)}, v{vGST}, {sr(SWS, 4)}, 0 offen sc1", "gest")
        k.e("s_barrier")
        self.stamp("gend")
        if self.stop_after in ("s2", "ge"):
            k.e(f"s_waitcnt vmcnt(0) lgkmcnt(0)\ns_branch {join}")
            return
        self.stage3(gpath=True)
        k.wait(vm=("wo", 1, 7))
        k.e(f"s_branch {join}")

    def wo_pattern(self):
        k = self.k
        k.e(f"""
        v_bfe_u32 v{vT0}, v{vL}, 2, 2
        v_lshrrev_b32 v{vT1}, 5, v{vL}
        v_lshl_add_u32 v{vT1}, v{vT1}, 3, v{vT0}
        v_lshlrev_b32 v{vT1}, 7, v{vT1}
        v_lshrrev_b32 v{vT2}, 1, v{vT0}
        v_lshl_add_u32 v{vT1}, v{vT2}, 6, v{vT1}
        v_bfe_u32 v{vT2}, v{vL}, 4, 1
        v_lshl_add_u32 v{vT1}, v{vT2}, 5, v{vT1}
        v_and_b32 v{vT2}, 1, v{vL}
        v_lshl_add_u32 v{vT1}, v{vT2}, 4, v{vT1}
        v_bfe_u32 v{vT2}, v{vL}, 1, 1
        v_lshl_add_u32 v{vT1}, v{vT2}, 3, v{vT1}
        v_add_u32 v{vTR0}, s{sRW}, v{vT1}
        v_xor_b32 v{vT1}, 64, v{vT1}
        v_add_u32 v{vTR1}, s{sRW}, v{vT1}
        """)

    def stage3(self, gpath=False):
        k = self.k
        FB = HB
        b1B = 0 if gpath else self.o["b1B"]

        def loads(counted, sc):
            for j in range(4):
                t = self.tmp()
                k.e(f"s_add_u32 s{t}, s{sFL}, s{sR4[j]}")
                ins = (f"buffer_load_dwordx4 {vr(FB + 4 * j, 4)}, v{vLIN16}, {sr(SWS, 4)}, s{t} offen"
                       + (" sc1" if sc else ""))
                if counted:
                    k.vmem(ins, ("f", j))
                else:
                    k.e(ins)
        fd = self.o.get("fdirect", 0)
        if fd:
            k.e(f"s_mov_b32 s{sSPIN}, 0")
            loads(True, True)
            self.wo_tr(0)
            k.wait(vm=("f", 3))
            again, retry0, ok0 = k.label("fda"), k.label("fdr"), k.label("fdk")
            k.e(f"{again}:")
            k.e(f"v_max_u32 v{vT0}, v{FB + 1}, v{FB + 3}")
            for j in range(1, 4):
                k.e(f"v_max3_u32 v{vT0}, v{vT0}, v{FB + 4 * j + 1}, v{FB + 4 * j + 3}")
            k.e(f"v_cmp_eq_u32 vcc, -1, v{vT0}\ns_cbranch_vccnz {retry0}\n{ok0}:")
            self.ool.append(("poll", retry0, ok0, again, lambda counted: loads(counted, True)))
            self.stamp("fpoll")
            k.wait(lg="all")
            self.wo_issue(1, b1B, 8)
            for j in range(4):
                for ct in range(4):
                    self.mfma16(ACC2 + 4 * ct, 192 + 16 * j + 4 * ct, FB + 4 * j, j == 0)
            self.stamp("s3mfma")
            self.reduce16(ACC2, False, vST, sFES, "fest", mid=lambda: self.wo_issue(2, 0, self.o["b2C"]))
            self.stamp("fest")
            k.e("s_barrier")
            return
        if not gpath:
            k.vmem(f"buffer_load_dword v{vHS}, v{vFSM}, {sr(SWS, 4)}, s{sFL} offen sc1", "smp")
        self.wo_tr(0)
        self.poll_sample("f", vFSM, sFL)
        self.stamp("fpoll")
        k.e(f"s_mov_b32 s{sSPIN}, 0")
        loads(True, not self.o["fplain"])
        k.wait(lg="all")
        mf, retry, ok = k.label("s3m"), k.label("s3r"), k.label("s3k")
        self.wo_issue(1, b1B, 8)
        k.e(f"{mf}:")
        for j in range(4):
            k.wait(vm=("f", j))
            f = FB + 4 * j
            if j == 0:
                k.e(f"v_max_u32 v{vT0}, v{f + 1}, v{f + 3}")
            else:
                k.e(f"v_max3_u32 v{vT0}, v{vT0}, v{f + 1}, v{f + 3}")
            for ct in range(4):
                self.mfma16(ACC2 + 4 * ct, 192 + 16 * j + 4 * ct, f, j == 0)
        k.e(f"v_cmp_eq_u32 vcc, -1, v{vT0}\ns_cbranch_vccnz {retry}\n{ok}:")
        self.ool.append(("bulk", retry, ok, mf, loads))
        self.stamp("s3mfma")
        self.reduce16(ACC2, False, vST, sFES, "fest", mid=lambda: self.wo_issue(2, 0, self.o["b2C"]))
        self.stamp("fest")
        if gpath:
            return
        if self.o["glate"]:
            k.e(f"{self.gjoin}:")
        k.e("s_barrier")

    def stage4(self):
        k = self.k
        CB, FR, Z, JP, BF, ACC, OUT = 32, 96, 128, 144, 160, 192, 224
        vGA, vFA, vJ0, vJ2 = 8, 9, 10, 11
        RAW = 160
        k.e(f"""
        v_and_b32 v{vT0}, 7, v{vL}
        v_lshlrev_b32 v{vT0}, 4, v{vT0}
        v_lshrrev_b32 v{vT1}, 5, v{vL}
        v_lshl_add_u32 v{vGA}, v{vT1}, 7, v{vT0}
        v_bfe_u32 v{vT0}, v{vL}, 3, 2
        v_lshlrev_b32 v{vT0}, 4, v{vT0}
        v_lshl_add_u32 v{vFA}, v{vT1}, 8, v{vT0}
        v_lshlrev_b32 v{vJ0}, 4, v{vL}
        v_add_u32 v{vJ2}, {2 * RW}, v{vJ0}
        s_lshl_b32 s{sGL}, s{sB}, 13
        s_lshl_b32 s{sT0}, s{sW}, 8
        s_add_u32 s{sGL}, s{sGL}, s{sT0}
        s_add_u32 s{sGL}, s{sGL}, {GE_OFF}
        s_lshl_b32 s{sFE}, s{sM}, 14
        s_lshl_b32 s{sT0}, s{sW}, 9
        s_add_u32 s{sFE}, s{sFE}, s{sT0}
        s_lshl_b32 s{sT0}, s{sJN}, 6
        s_add_u32 s{sFE}, s{sFE}, s{sT0}
        s_add_u32 s{sFE}, s{sFE}, {FE_OFF}
        """)

        def np_off(r, shift):
            t = self.tmp()
            if self.o["rot"]:
                k.e(f"s_add_u32 s{t}, s{sML}, {r}\ns_and_b32 s{t}, s{t}, 7\ns_lshl_b32 s{t}, s{t}, {shift}")
            else:
                k.e(f"s_mov_b32 s{t}, {r << shift}")
            return t

        def ge_loads(counted):
            for r in range(8):
                t = np_off(r, 10)
                k.e(f"s_add_u32 s{t}, s{t}, s{sGL}")
                ins = f"buffer_load_dwordx4 {vr(RAW + 4 * r, 4)}, v{vGA}, {sr(SWS, 4)}, s{t} offen sc1"
                if counted:
                    k.vmem(ins, "ge")
                else:
                    k.e(ins)

        def fe_loads(counted):
            for r in range(8):
                t = np_off(r, 11)
                k.e(f"s_add_u32 s{t}, s{t}, s{sFE}")
                ins = f"buffer_load_dwordx4 {vr(FR + 4 * r, 4)}, v{vFA}, {sr(SWS, 4)}, s{t} offen sc1"
                if counted:
                    k.vmem(ins, ("fe", r))
                else:
                    k.e(ins)

        def check(base, n, dst):
            k.e(f"v_max_u32 v{dst}, v{base + 1}, v{base + 3}")
            for r in range(1, n):
                k.e(f"v_max3_u32 v{dst}, v{dst}, v{base + 4 * r + 1}, v{base + 4 * r + 3}")

        ge_loads(True)
        self.wo_issue(2, self.o["b2C"], 8)
        self.wo_tr(1)
        k.wait(lg="all")
        self.wo_issue(3, 0, 8)
        k.e(f"s_mov_b32 s{sSPIN}, 0")
        k.wait(vm="ge")
        retry, ok = k.label("ger"), k.label("gek")
        again = k.label("gea")
        k.e(f"{again}:")
        check(RAW, 8, vT0)
        k.e(f"v_cmp_eq_u32 vcc, -1, v{vT0}\ns_cbranch_vccnz {retry}\n{ok}:")
        self.ool.append(("poll", retry, ok, again, ge_loads))
        k.e(f"s_mov_b32 s{sA}, {f32(CT)}")
        fe_loads(True)
        for r in range(8):
            for i in range(4):
                src = RAW + 4 * r + i
                k.e(f"v_lshlrev_b32 v{CB + 8 * r + 2 * i}, 16, v{src}")
                k.e(f"v_and_b32 v{CB + 8 * r + 2 * i + 1}, 0xffff0000, v{src}")
        for i in range(64):
            k.e(f"v_mul_f32 v{CB + i}, s{sA}, v{CB + i}")
        self.stamp("cb")
        self.wo_tr(2)
        late_tr = []
        if self.o["trb3"] == "pre":
            self.wo_tr(3)
        else:
            late_tr = self.wo_tr_ops(3)
        k.e(f"s_mov_b32 s{sSPIN}, 0")
        k.wait(vm=("fe", 7))
        retry, ok = k.label("fer"), k.label("fek")
        again = k.label("fea")
        k.e(f"{again}:")
        check(FR, 8, vT0)
        k.e(f"v_cmp_eq_u32 vcc, -1, v{vT0}\ns_cbranch_vccnz {retry}\n{ok}:")
        self.ool.append(("poll", retry, ok, again, fe_loads))
        self.stamp("fepoll")

        def j_ops(r):
            ops = []
            z = Z + 8 * (r & 1)
            jp = JP + 4 * (r & 1)
            for i in range(4):
                ops.append((f"v_lshlrev_b32 v{z + 2 * i}, 16, v{FR + 4 * r + i}", 4))
                ops.append((f"v_and_b32 v{z + 2 * i + 1}, 0xffff0000, v{FR + 4 * r + i}", 4))
            for i in range(8):
                ops.append((f"v_fma_f32 v{z + i}, v{z + i}, s{sA}, v{CB + 8 * r + i}", 4))
            for i in range(8):
                ops.append((f"v_exp_f32 v{z + i}, v{z + i}", 8))
            for i in range(8):
                ops.append((f"v_add_f32 v{z + i}, 1.0, v{z + i}", 4))
            for i in range(8):
                ops.append((f"v_rcp_f32 v{z + i}, v{z + i}", 8))
            for i in range(8):
                ops.append((f"v_fma_f32 v{z + i}, v{z + i}, -2.0, 1.0", 4))
            for i in range(4):
                ops.append((f"v_cvt_pk_bf16_f32 v{jp + i}, v{z + 2 * i}, v{z + 2 * i + 1}", 4))
            ops.append(("ds", f"ds_write_b128 v{vLIN}, {vr(jp, 4)} offset:{r * 1024}", ("jw", r)))
            return ops

        dbg = self.o.get("s4dbg", "")

        def emit(op):
            if op[0] == "ds":
                k.ds(op[1], op[2])
                return 4
            t = op[0]
            if "notrans" in dbg:
                t = t.replace("v_exp_f32", "v_mov_b32").replace("v_rcp_f32", "v_mov_b32")
            if "novalu" not in dbg and not ("nofma" in dbg and t.startswith("v_fma")):
                k.e(t)
            return op[1]

        def read1(r, jj):
            b = BF + 16 * (r & 1)
            a = vJ0 if jj < 2 else vJ2
            k.ds(f"ds_read_b128 {vr(b + 4 * jj, 4)}, v{a} offset:{(jj & 1) * RW + r * 1024}", ("jr", r, jj))

        def reads(r):
            for jj in range(4):
                read1(r, jj)

        k.wait(lg="all")
        if "twice" in dbg:
            k.e(f"s_mov_b32 s{sSPIN}, 0\nL_twice:\ns_waitcnt lgkmcnt(0)\ns_barrier")
            self.stamp("fepoll2")
        for op in j_ops(0):
            emit(op)
        o1 = j_ops(1)
        for op in o1[:16]:
            emit(op)
        k.wait(lg=("jw", 0))
        k.e("s_barrier")
        reads(0)
        for op in o1[16:]:
            emit(op)
        self.stamp("j01")
        for r in range(8):
            ops = j_ops(r + 2) if r + 2 < 8 else []
            total = sum(op[1] if op[0] != "ds" else 4 for op in ops)
            spread = self.o.get("s4spread", 0)
            if not spread:
                k.wait(lg=("jr", r, 3))
            b = BF + 16 * (r & 1)
            spent = 0
            bar_at = self.o["s4bar"] + (self.o.get("s4bar0", 2) if r == 0 else 0)
            assert bar_at + 3 * spread <= 7
            for i in range(8):
                jj, ct = i // 2, i % 2
                q = 4 * r + jj
                if r == 6 and i == 0:
                    k.wait(lg=("two", 3))
                if spread and ct == 0:
                    k.wait(lg=("jr", r, jj))
                if "nomfma" not in dbg:
                    self.mfma32(ACC + 16 * ct, 8 * q + 4 * ct, b + 4 * jj, r == 0 and jj == 0, ak="a")
                if i == bar_at and r + 1 < 8:
                    self.stamp(f"ba{r}")
                    k.wait(lg=("jw", r + 1))
                    self.stamp(f"bb{r}")
                    if "nobar" not in dbg:
                        k.e("s_barrier")
                    self.stamp(f"bc{r}")
                    if not spread:
                        reads(r + 1)
                if spread and r + 1 < 8 and 0 <= (i - bar_at) < 4 * spread and (i - bar_at) % spread == 0:
                    read1(r + 1, (i - bar_at) // spread)
                if late_tr and i > bar_at:
                    for _ in range(2):
                        if late_tr:
                            emit(late_tr.pop(0))
                while ops and spent < total * (i + 1) / 8:
                    spent += emit(ops.pop(0))
            while ops:
                emit(ops.pop(0))
            self.stamp(f"s4r{r}")
        assert not late_tr
        if "twice" in dbg:
            k.e(f"s_add_u32 s{sSPIN}, s{sSPIN}, 1\ns_cmp_lt_u32 s{sSPIN}, 2\ns_cbranch_scc1 L_twice")
        self.stamp("s4mfma")
        k.e(f"""
        s_lshl_b32 s{sT0}, s{sMT}, 7
        s_lshl_b32 s{sT1}, s{sJN}, 5
        s_add_u32 s{sT0}, s{sT0}, s{sT1}
        s_lshl_b32 s{sT0}, s{sT0}, 10
        s_lshl_b32 s{sT1}, s{sNH}, 9
        s_add_u32 s{sT0}, s{sT0}, s{sT1}
        s_lshl_b32 s{sT1}, s{sW}, 7
        s_add_u32 s{sT0}, s{sT0}, s{sT1}
        v_and_b32 v{vT0}, 31, v{vL}
        v_lshlrev_b32 v{vT0}, 10, v{vT0}
        v_lshrrev_b32 v{vT1}, 5, v{vL}
        v_lshl_add_u32 v{vT0}, v{vT1}, 4, v{vT0}
        v_add_u32 v{vT0}, s{sT0}, v{vT0}
        """)
        k.nop(2)
        for ct in range(2):
            for a in range(2):
                src = ACC + 16 * ct + 8 * a
                dst = OUT + 8 * ct + 4 * a
                for i in range(4):
                    k.e(f"v_cvt_pk_bf16_f32 v{dst + i}, v{src + 2 * i}, v{src + 2 * i + 1}")
                o = ct * 64 + a * 32
                os_ = f" offset:{o}" if o else ""
                k.vmem(f"buffer_store_dwordx4 {vr(dst, 4)}, v{vT0}, {sr(SOUT, 4)}, 0 offen{os_}", "out")

    def epilogue(self):
        k = self.k
        if self.stamps:
            self.stamp("end")
            n = self.nst
            k.e("s_waitcnt vmcnt(0) lgkmcnt(0)")
            for i in range(n):
                k.e(f"v_writelane_b32 v{vT1}, s{STAMP0 + 2 * i}, {i}")
            k.e(f"""
            s_lshl_b32 s{sT0}, s2, 2
            s_add_u32 s{sT0}, s{sT0}, s{sW}
            s_lshl_b32 s{sT0}, s{sT0}, 6
            s_add_u32 s{sT0}, s{sT0}, {STAMP_OFF}
            s_mov_b32 s{SWS + 2}, {STAMP_OFF + (1 << 20)}
            v_lshlrev_b32 v{vT0}, 2, v{vL}
            s_mov_b64 exec, 0xffff
            buffer_store_dword v{vT1}, v{vT0}, {sr(SWS, 4)}, s{sT0} offen
            """)
        k.e("s_waitcnt vmcnt(0)\nL_end:\ns_endpgm")
        for item in self.ool:
            if item[0] == "hs":
                _, top, done = item
                k.e(f"""
                {top}:
                s_mov_b32 s{sSPIN}, 0
                v_and_b32 v{vT0}, 3, v{vL}
                v_lshlrev_b32 v{vT0}, 6, v{vT0}
                {top}_l:
                """)
                self.spin_check(done)
                k.e(f"""
                buffer_load_dword v{vHS}, v{vT0}, {sr(SDBG, 4)}, 0 offen sc1
                s_waitcnt vmcnt(0)
                v_cmp_gt_u32 vcc, 64, v{vHS}
                s_cbranch_vccnz {top}_l
                s_branch {done}
                """)
            elif item[0] == "g":
                _, top, join, vm, lg = item
                k.vm, k.lg = vm, lg
                k.e(f"{top}:")
                self.g_block()
                k.e(f"s_branch {join}")
            elif item[0] == "glate":
                _, top, join, vm, lg, self.wo_next = item
                k.vm, k.lg = vm, lg
                k.e(f"{top}:")
                self.glate_block(join)
            elif item[0] == "smp":
                _, top, done, vaddr, sbase = item
                k.e(f"{top}:\ns_mov_b32 s{sSPIN}, 0\n{top}_l:")
                self.spin_check(done)
                k.e(f"""
                buffer_load_dword v{vHS}, v{vaddr}, {sr(SWS, 4)}, s{sbase} offen sc1
                s_waitcnt vmcnt(0)
                v_cmp_eq_u32 vcc, -1, v{vHS}
                s_cbranch_vccnz {top}_l
                s_branch {done}
                """)
            else:
                kind, retry, ok, back, loads = item
                k.e(f"{retry}:")
                self.spin_check(ok)
                if kind == "bulk":
                    loads(False, True)
                else:
                    loads(False)
                k.e(f"s_waitcnt vmcnt(0)\ns_branch {back}")
        k.e("L_last:\ns_endpgm")

    def build(self):
        k = self.k
        stop = self.stop_after
        self.prologue()
        self.stage1()
        self.w2_finish()
        if stop != "s1":
            self.stage2()
            self.stage2_tail()
            if stop not in ("s2", "ge"):
                self.stage3()
                if stop != "s3":
                    self.stage4()
        self.epilogue()
        return self.text()

    def text(self):
        head = f"""; RNN-T joint network: two stride-2 conv stems, w_f / w_g projections, tanh, w_o.
; @launch grid=(256,1,1) block=(256,1,1) lds={LDS_BYTES}
.amdgcn_target "amdgcn-amd-amdhsa--gfx950"
.text
.globl {NAME}
.p2align 8
.type {NAME},@function
{NAME}:
"""
        tail = f"""
.section .rodata,"a"
.p2align 6
.amdhsa_kernel {NAME}
  .amdhsa_next_free_vgpr 512
  .amdhsa_next_free_sgpr 102
  .amdhsa_accum_offset 256
  .amdhsa_group_segment_fixed_size 0
  .amdhsa_kernarg_size 80
  .amdhsa_user_sgpr_count 2
  .amdhsa_user_sgpr_kernarg_segment_ptr 1
  .amdhsa_system_sgpr_workgroup_id_x 1
.end_amdhsa_kernel
"""
        return head + self.k.text() + tail


if __name__ == "__main__":
    out = sys.argv[1] if len(sys.argv) > 1 else "cdna_kernels/" + NAME.replace("_kernel", "") + ".s"
    g = Gen2(stamps=False)
    open(out, "w").write(g.build())
    print("wrote", out)
```

```python
import math
import sys
from kb import K, vr, ar, sr, f32

NAME = "standalone__seq2seq_rnn_t_joint__speech_kernel"

H_OFF = 65536
F_OFF = H_OFF + (1 << 20)
FE_OFF = F_OFF + (1 << 19)
GE_OFF = FE_OFF + (1 << 20)
P_OFF = GE_OFF + 65536
WS_REC = 4 << 20
STAMP_OFF = 8 << 20
OOB = 0x80000000
SPIN_MAX = 4096

RW = 40960
RB = 17408
LDS_BYTES = 163840
T4 = [RB + 4096 * t for t in range(5)]
XS = [4096 * t for t in range(4)]
GS = RB + 20480
FS = GS + 1024

SX, SW1, SW2, SG, SWF, SWG, SWO, SOUT, SDBG, SWS = 24, 28, 32, 36, 40, 44, 48, 52, 56, 60
sW, sM, sN, sB, sMT, sRW, sML, sJN = 64, 65, 66, 67, 68, 69, 70, 71
sKI, sKC = 72, 3
sT0, sT1, sT2, sT3 = 73, 74, 75, 76
sSPIN = 77
STAMP0 = 78
sH, sFL, sFS, sFE, sGL, sGS, sHS, sA, sB2 = 4, 5, 6, 7, 8, 9, 10, 11, 12
sR4 = [13, 14, 15, 16]
sNH = 17
sFES, sWQ = 18, 19

vL, vT0, vT1, vT2, vT3, vLIN, vRD = 1, 2, 3, 4, 5, 6, 7
vXW = 8
vXA, vXZ, vQ0 = 12, 13, 14
vWA0, vWA1, vTR0, vTR1 = 15, 16, 17, 18
vXB = 19
vBA = 22
vW2 = 24
vT16 = 28
vONES = 32
vHS = 36
AF, BFR, ACC1, R1 = 40, 56, 64, 96
vLIN16, vH0, vSMP, vST, vRD2, vKC3, vSV, vFSM, vGST = 8, 9, 10, 11, 12, 13, 14, 19, 20
HB, ACC2, R2 = 128, 176, 192
vPF = 37
vGP = 21
vFST = 19

C1 = 2 * math.log2(math.e) * math.sqrt(2 / math.pi)
C3 = C1 * 0.044715
CT = 2 * math.log2(math.e)
EX_MAX = 125.0

DEFAULT_STAMPS = ("start", "iss", "x0", "s1mfma", "hst", "w2done", "hpoll", "s2mfma", "fst", "s3mfma", "fest", "end")
S1_STAMPS = ("start", "karg", "iss0", "iss", "x0", "u5", "u11", "u17", "s1mfma", "hst", "w2done", "end")
R4_STAMPS = ("start", "fepoll", "j01", "s4r0", "s4r1", "s4r2", "s4r3", "s4r4", "s4r5", "s4r6", "s4r7", "end")
R5_STAMPS = ("start", "fepoll2", "j01", "s4r0", "s4r1", "s4r2", "s4r3", "s4r4", "s4r5", "s4r6", "s4r7", "end")
G_STAMPS = ("start", "hst", "g0", "gdma", "gw2", "gwg", "gld", "gmf", "gend", "w2done", "hpoll", "end")
GL_STAMPS = ("start", "fst", "gdma", "gwg", "gld", "gmf", "gend", "fpoll", "s3mfma", "fest", "fepoll", "end")
S2_STAMPS = ("start", "s1mfma", "hst", "w2done", "hpoll", "s2mfma", "fst", "fpoll", "s3mfma", "fest", "fepoll", "end")
P_STAMPS = ("start", "karg", "probe", "iss0", "iss", "x0", "u5", "u11", "u17", "s1mfma", "hst", "end")
S4_STAMPS = ("start", "hst", "s2mfma", "fst", "fpoll", "s3mfma", "fest", "cb", "fepoll", "s4r3", "s4mfma", "end")


class Gen2:
    def __init__(self, stop_after=None, stamps=True, opts=None):
        self.k = K()
        self.stop_after = stop_after
        self.stamps = stamps
        self.nst = 0
        self.names = []
        self.o = dict(prefetch=False, rot=True, hplain=True, fplain=False, x2=1, x3=2,
                      b1B=4, b2C=8, trb3="loop", s4bar=3, w2in=3, w2mid=0, glate=0, g4=1,
                      fdirect=1, hdirect=3, ex=0)
        self.o.update(opts or {})
        self.rot = 0
        self.ool = []

    def stamp(self, name):
        names = self.o.get("stamps", DEFAULT_STAMPS)
        if not self.stamps or name not in names:
            return
        self.names = list(names)
        self.nst = len(names)
        r = STAMP0 + 2 * names.index(name)
        self.k.e(f"{'s_memtime' if self.o.get('memtime') else 's_memrealtime'} s[{r}:{r + 1}]")

    def tmp(self):
        self.rot = (self.rot + 1) % 4
        return sT0 + self.rot

    def tile(self, key, dst):
        self.k.e(f"s_xor_b32 s{dst}, s{sN}, {self.o[key]}")

    def srd(self, d, ptr, off, nrec):
        k = self.k
        if off is None:
            k.e(f"s_mov_b32 s{d}, s{ptr}\ns_mov_b32 s{d + 1}, s{ptr + 1}")
        else:
            k.e(f"s_add_u32 s{d}, s{ptr}, s{off}\ns_addc_u32 s{d + 1}, s{ptr + 1}, 0")
        k.e(f"s_mov_b32 s{d + 2}, {nrec}\ns_mov_b32 s{d + 3}, 0x20000")

    def nt(self, srd):
        key = {SW1: "ntw1", SW2: "ntw2", SWF: "ntwf", SWG: "ntwg", SWO: "ntwo", SX: "ntx"}[srd]
        return " nt" if self.o.get(key) else ""

    def dma2k(self, srd, lds_off, soff, tag):
        k = self.k
        nt = self.nt(srd)
        k.e(f"s_add_u32 m0, s{sRW}, {lds_off}")
        k.e("s_nop 0")
        k.vmem(f"buffer_load_dwordx4 v{vWA0}, {sr(srd, 4)}, {soff} offen{nt} lds", tag)
        k.vmem(f"buffer_load_dwordx4 v{vWA1}, {sr(srd, 4)}, {soff} offen offset:1024{nt} lds", tag)

    def dma4k_ops(self, srd, lds_off, soff_fn, tag):
        k = self.k
        st = {}

        def op(q):
            if q == 0:
                st["s"] = soff_fn()
                k.e(f"s_add_u32 m0, s{sRW}, {lds_off}")
                k.e("s_nop 0")
            o = f" offset:{q * 1024}" if q else ""
            k.vmem(f"buffer_load_dwordx4 v{vW2 + q}, {sr(srd, 4)}, {st['s']} offen{o}{self.nt(srd)} lds", tag)
        return [lambda q=q: op(q) for q in range(4)]

    def dma4k(self, srd, lds_off, soff_fn, tag):
        for op in self.dma4k_ops(srd, lds_off, soff_fn, tag):
            op()

    def tr32(self, lds_off, dst, kind, tag):
        k = self.k
        for ct, a in enumerate((vTR0, vTR1)):
            k.ds(f"ds_read_b64_tr_b16 {vr(dst + 4 * ct, 2, kind)}, v{a} offset:{lds_off}", tag)
            k.ds(f"ds_read_b64_tr_b16 {vr(dst + 4 * ct + 2, 2, kind)}, v{a} offset:{lds_off + 512}", tag)

    def tr16(self, lds_off, dst, kind, tag):
        k = self.k
        for ct in range(4):
            k.ds(f"ds_read_b64_tr_b16 {vr(dst + 4 * ct, 2, kind)}, v{vT16 + ct} offset:{lds_off}", tag)
            k.ds(f"ds_read_b64_tr_b16 {vr(dst + 4 * ct + 2, 2, kind)}, v{vT16 + ct} offset:{lds_off + 512}", tag)

    def mfma32(self, d, a, b, first, ak="v"):
        c = "0" if first else vr(d, 16)
        self.k.e(f"v_mfma_f32_32x32x16_bf16 {vr(d, 16)}, {vr(a, 4, ak)}, {vr(b, 4)}, {c}")

    def mfma16(self, d, a, b, first, ak="a"):
        c = "0" if first else vr(d, 4)
        self.k.e(f"v_mfma_f32_16x16x32_bf16 {vr(d, 4)}, {vr(a, 4, ak)}, {vr(b, 4)}, {c}")

    def gelu(self, xs, tmp, kc3):
        k = self.k
        ts = [tmp + i for i in range(len(xs))]
        for x, t in zip(xs, ts):
            k.e(f"v_mul_f32 v{t}, v{x}, v{x}")
        for x, t in zip(xs, ts):
            k.e(f"v_fmaak_f32 v{t}, v{t}, v{kc3}, {f32(-C1)}")
        for x, t in zip(xs, ts):
            k.e(f"v_mul_f32 v{t}, v{t}, v{x}")
        for x, t in zip(xs, ts):
            k.e(f"v_exp_f32 v{t}, v{t}")
        for x, t in zip(xs, ts):
            k.e(f"v_add_f32 v{t}, 1.0, v{t}")
        for x, t in zip(xs, ts):
            k.e(f"v_rcp_f32 v{t}, v{t}")
        for x, t in zip(xs, ts):
            k.e(f"v_mul_f32 v{x}, v{x}, v{t}")

    def spin_check(self, done_label):
        self.k.e(f"s_add_u32 s{sSPIN}, s{sSPIN}, 1\ns_cmp_ge_u32 s{sSPIN}, {SPIN_MAX}\ns_cbranch_scc1 {done_label}")

    def prologue(self):
        k = self.k
        rot = self.o["rot"]
        k.e("""
        s_cmp_ge_u32 s2, 256
        s_cbranch_scc1 L_end
        s_load_dwordx16 s[4:19], s[0:1], 0
        s_load_dwordx4 s[20:23], s[0:1], 64
        """)
        self.stamp("start")
        k.e(f"""
        v_lshrrev_b32 v{vT0}, 6, v0
        v_and_b32 v{vL}, 63, v0
        v_readfirstlane_b32 s{sW}, v{vT0}
        s_and_b32 s{sT0}, s2, 7
        s_lshr_b32 s{sT1}, s2, 3
        s_add_u32 s{sJN}, s{sT1}, {self.o.get("jnrot", 0)}
        s_and_b32 s{sJN}, s{sJN}, 3
        s_lshr_b32 s{sML}, s{sT1}, 2
        s_and_b32 s{sT2}, s{sT0}, 1
        s_lshl_b32 s{sN}, s{sT2}, 2
        s_add_u32 s{sN}, s{sN}, s{sJN}
        s_lshr_b32 s{sT0}, s{sT0}, 1
        s_lshl_b32 s{sM}, s{sT0}, 3
        s_add_u32 s{sM}, s{sM}, s{sML}
        s_lshr_b32 s{sB}, s{sM}, 4
        s_and_b32 s{sMT}, s{sM}, 15
        s_mul_i32 s{sRW}, s{sW}, {RW}
        v_lshrrev_b32 v{vT0}, 4, v{vL}
        v_lshrrev_b32 v{vT1}, 5, v{vL}
        v_and_b32 v{vT2}, 15, v{vL}
        v_xor_b32 v{vT2}, v{vT2}, v{vT1}
        v_lshlrev_b32 v{vT2}, 4, v{vT2}
        v_lshl_add_u32 v{vXW}, v{vT0}, 10, v{vT2}
        """)
        for e in range(1, 4):
            k.e(f"v_xor_b32 v{vXW + e}, {e * 32}, v{vXW}")
            k.e(f"v_add_u32 v{vXW + e}, {e * 3072}, v{vXW + e}")
        k.e(f"""
        v_cmp_gt_u32 vcc, 16, v{vL}
        v_bfrev_b32 v{vT0}, 1
        v_lshrrev_b32 v{vT1}, 3, v{vL}
        v_cndmask_b32 v{vQ0}, 0, v{vT0}, vcc
        v_bfe_u32 v{vT2}, v{vT1}, 1, 1
        v_lshlrev_b32 v{vT2}, 2, v{vT2}
        v_and_b32 v{vT3}, 7, v{vL}
        v_xor_b32 v{vT2}, v{vT2}, v{vT3}
        v_lshlrev_b32 v{vT2}, 4, v{vT2}
        v_lshl_add_u32 v{vWA0}, v{vT1}, 10, v{vT2}
        v_add_u32 v{vWA1}, 7168, v{vWA0}
        s_lshl_b32 s{sT0}, s{sW}, 17
        s_lshl_b32 s{sT1}, s{sN}, 7
        s_add_u32 s3, s{sT0}, s{sT1}
        s_mul_i32 s{sT0}, s{sB}, 1000
        s_lshl_b32 s{sT1}, s{sMT}, 6
        s_add_u32 s{sT0}, s{sT0}, s{sT1}
        s_sub_u32 s{sT0}, s{sT0}, 1
        s_lshl_b32 s{sT0}, s{sT0}, 10
        s_lshl_b32 s{sT2}, s{sW}, 8
        s_add_u32 s{sT0}, s{sT0}, s{sT2}
        s_ashr_i32 s{sT3}, s{sT0}, 31
        s_sub_u32 s{sT1}, 1001, s{sT1}
        s_lshl_b32 s{sT1}, s{sT1}, 10
        s_sub_u32 s{SX + 2}, s{sT1}, s{sT2}
        s_mov_b32 s{SX + 3}, 0x20000
        s_sub_u32 s{SW1 + 2}, 1572864, s3
        s_mov_b32 s{SW1 + 3}, 0x20000
        """)
        if rot:
            k.e(f"s_lshl_b32 s{sKI}, s{sML}, 14")
        else:
            k.e(f"s_mov_b32 s{sKI}, 0")
        k.e("s_waitcnt lgkmcnt(0)")
        self.stamp("karg")
        k.e(f"""
        s_add_u32 s{SX}, s4, s{sT0}
        s_addc_u32 s{SX + 1}, s5, s{sT3}
        s_add_u32 s{SW1}, s6, s3
        s_addc_u32 s{SW1 + 1}, s7, 0
        """)

    def code_prefetch(self):
        k = self.k
        mode = self.o.get("cpf", 0)
        if not mode:
            return
        lab = k.label("pf")
        k.e(f"""
        s_cmp_lg_u32 s{sW}, {self.o.get("cpfw", 3)}
        s_cbranch_scc1 {lab}
        s_getpc_b64 s[{sT0 + 1}:{sT0 + 2}]
        L_pc:
        s_lshr_b32 s{sT0}, s2, 3
        s_lshl_b32 s{sT0}, s{sT0}, 11
        v_lshlrev_b32 v{vT0}, 7, v{vL}
        v_add_u32 v{vT0}, s{sT0}, v{vT0}
        v_min_u32 v{vT0}, L_last-L_pc, v{vT0}
        s_mov_b64 exec, 0xffff
        global_load_dword v{vPF}, v{vT0}, s[{sT0 + 1}:{sT0 + 2}]
        s_mov_b64 exec, -1
        {lab}:
        """)

    def g_prefetch(self):
        k = self.k
        k.e(f"""
        s_lshr_b32 s{sT0}, s2, 3
        s_lshl_b32 s{sT1}, s{sT0}, 12
        v_lshlrev_b32 v{vT0}, 10, v{vL}
        v_add_u32 v{vT0}, s{sT1}, v{vT0}
        s_lshr_b32 s{sT1}, s{sT0}, 1
        s_lshl_b32 s{sT1}, s{sT1}, 10
        s_and_b32 s{sT0}, s{sT0}, 1
        s_lshl_b32 s{sT0}, s{sT0}, 7
        s_add_u32 s{sT0}, s{sT0}, s{sT1}
        v_mov_b32 v{vT1}, s{sT0}
        s_mov_b64 exec, 15
        """)
        k.vmem(f"buffer_load_dword v{vPF}, v{vT0}, {sr(SWG, 4)}, 0 offen", "pf")
        k.e("s_mov_b64 exec, 1")
        k.vmem(f"buffer_load_dword v{vPF + 1}, v{vT1}, {sr(SG, 4)}, 0 offen", "pf")
        k.e("s_mov_b64 exec, -1")

    def l2pf(self, pos):
        k = self.k
        for key, srd, lanes in (("pfw2", SW2, 48), ("pfwf", SWF, 16), ("pfwo", SWO, 16)):
            if self.o.get(key) != pos:
                continue
            if srd == SWO:
                k.e(f"s_lshr_b32 s{sT0}, s2, 3\ns_lshl_b32 s{sT0}, s{sT0}, 14")
            else:
                k.e(f"s_lshl_b32 s{sT0}, s{sML}, 14")
            k.e(f"""
            v_and_b32 v{vT1}, 15, v{vL}
            v_lshlrev_b32 v{vT1}, 10, v{vT1}
            v_lshrrev_b32 v{vT2}, 4, v{vL}
            v_lshl_add_u32 v{vT1}, v{vT2}, 19, v{vT1}
            s_bfm_b64 exec, {lanes}, 0
            """)
            k.vmem(f"buffer_load_dword v{vPF}, v{vT1}, {sr(srd, 4)}, s{sT0} offen", "pf")
            k.e("s_mov_b64 exec, -1")

    def x_quarter(self, qq):
        k = self.k
        a, z = sT0, sT1
        if self.o["rot"]:
            k.e(f"s_add_u32 s{a}, s{sJN}, {qq}\ns_and_b32 s{a}, s{a}, 3")
        else:
            k.e(f"s_mov_b32 s{a}, {qq}")
        k.e(f"""
        s_lshl_b32 s{sT2}, s{a}, 12
        s_add_u32 m0, s{sT2}, s{sRW}
        s_or_b32 s{z}, s{a}, s{sMT}
        s_cmp_eq_u32 s{z}, 0
        s_cselect_b32 s{z}, -1, 0
        s_and_b32 s{sT3}, s{a}, 1
        s_lshl_b32 s{sT3}, s{sT3}, 7
        s_lshl_b32 s{a}, s{a}, 14
        s_or_b32 s{a}, s{a}, s{sT3}
        """)
        for e in range(4):
            t = vXA if e % 2 == 0 else vXZ
            k.e(f"v_xor_b32 v{t}, s{a}, v{vXW + e}")
            if e == 0:
                k.e(f"v_and_or_b32 v{t}, v{vQ0}, s{z}, v{t}")
            o = f" offset:{e * 1024}" if e else ""
            k.vmem(f"buffer_load_dwordx4 v{t}, {sr(SX, 4)}, 0 offen{o}{self.nt(SX)} lds", "x")
            if qq == 0 and self.o.get("probe") == e + 1:
                k.e("s_waitcnt vmcnt(0)")
                self.stamp("probe")

    def x_tail(self):
        k = self.k
        k.e(f"""
        v_lshlrev_b32 v{vXA}, 4, v{vL}
        v_add_u32 v{vXA}, 65536, v{vXA}
        s_add_u32 m0, s{sRW}, 16384
        s_mov_b64 exec, 0xffff
        """)
        k.vmem(f"buffer_load_dwordx4 v{vXA}, {sr(SX, 4)}, 0 offen{self.nt(SX)} lds", "x")
        k.e("s_mov_b64 exec, -1")

    def w1_issue(self, u):
        k = self.k
        i = u % 3
        if i == 0 and u:
            k.e(f"s_add_u32 s{sKI}, s{sKI}, 16384\ns_and_b32 s{sKI}, s{sKI}, 0x1c000")
        if i:
            t = self.tmp()
            k.e(f"s_add_u32 s{t}, s{sKI}, {i * 524288}")
            so = f"s{t}"
        else:
            so = f"s{sKI}"
        self.dma2k(SW1, RB + 2048 * (u % 10), so, ("w1", u))

    def rot4(self):
        k = self.k
        for j in range(4):
            if self.o["rot"]:
                k.e(f"s_add_u32 s{sR4[j]}, s{sML}, {j}\ns_and_b32 s{sR4[j]}, s{sR4[j]}, 3\ns_lshl_b32 s{sR4[j]}, s{sR4[j]}, 10")
            else:
                k.e(f"s_mov_b32 s{sR4[j]}, {j * 1024}")

    def w32_soff(self, j, tap):
        def fn():
            t = self.tmp()
            self.k.e(f"s_lshl_b32 s{t}, s{sR4[j]}, 5")
            if tap:
                self.k.e(f"s_add_u32 s{t}, s{t}, {tap * 524288}")
            return f"s{t}"
        return fn

    def w2_slot(self, v):
        xs = [XS[2], XS[3], XS[0], XS[1]] if self.o["w2mid"] else XS
        return [T4[2], T4[3], T4[4], T4[0], T4[1], xs[0], xs[1], xs[2], xs[3], T4[2], T4[3], T4[4]][v]

    def w2_ops(self, v):
        return self.dma4k_ops(SW2, self.w2_slot(v), self.w32_soff(v // 3, v % 3), ("w2", v))

    def clears(self):
        k = self.k
        self.srd(SWS, 22, None, WS_REC)
        k.e(f"""
        v_mov_b32 v{vONES}, -1
        v_mov_b32 v{vONES + 1}, -1
        v_mov_b32 v{vONES + 2}, -1
        v_mov_b32 v{vONES + 3}, -1
        v_lshlrev_b32 v{vT0}, 4, v{vL}
        s_lshl_b32 s{sT0}, s{sM}, 14
        s_lshl_b32 s{sT2}, s{sW}, 9
        s_add_u32 s{sT0}, s{sT0}, s{sT2}
        """)
        self.tile("x2", sT1)
        k.e(f"""
        s_lshl_b32 s{sT1}, s{sT1}, 11
        s_add_u32 s{sT2}, s{sT0}, {F_OFF}
        s_add_u32 s{sT2}, s{sT2}, s{sT1}
        """)
        self.tile("x3", sT1)
        ex = self.o["ex"]
        if ex:
            k.e(f"""
            s_lshl_b32 s{sT1}, s{sT1}, 11
            s_add_u32 s{sT3}, s{sT0}, s{sT1}
            s_lshl_b32 s{sT3}, s{sT3}, 1
            s_add_u32 s{sT3}, s{sT3}, {FE_OFF}
            """)
            k.vmem(f"buffer_store_dwordx4 {vr(vONES, 4)}, v{vT0}, {sr(SWS, 4)}, s{sT3} offen sc1", "clr")
            k.e("s_mov_b32 exec_hi, 0")
            k.vmem(f"buffer_store_dwordx4 {vr(vONES, 4)}, v{vT0}, {sr(SWS, 4)}, s{sT2} offen sc1", "clr")
        else:
            k.e(f"""
            s_lshl_b32 s{sT1}, s{sT1}, 11
            s_add_u32 s{sT3}, s{sT0}, {FE_OFF}
            s_add_u32 s{sT3}, s{sT3}, s{sT1}
            s_mov_b32 exec_hi, 0
            """)
            k.vmem(f"buffer_store_dwordx4 {vr(vONES, 4)}, v{vT0}, {sr(SWS, 4)}, s{sT2} offen sc1", "clr")
            k.vmem(f"buffer_store_dwordx4 {vr(vONES, 4)}, v{vT0}, {sr(SWS, 4)}, s{sT3} offen sc1", "clr")
        lab = k.label("c0")
        k.e(f"""
        s_mov_b64 exec, -1
        s_cmp_lg_u32 s{sW}, 0
        s_cbranch_scc1 {lab}
        s_lshl_b32 s{sT0}, s{sM}, 15
        s_lshl_b32 s{sT1}, s{sN}, 11
        s_add_u32 s{sT0}, s{sT0}, s{sT1}
        s_add_u32 s{sT0}, s{sT0}, {H_OFF}
        s_add_u32 s{sT1}, s{sT0}, 16384
        buffer_store_dwordx4 {vr(vONES, 4)}, v{vT0}, {sr(SWS, 4)}, s{sT0} offen sc1
        buffer_store_dwordx4 {vr(vONES, 4)}, v{vT0}, {sr(SWS, 4)}, s{sT0} offen offset:1024 sc1
        buffer_store_dwordx4 {vr(vONES, 4)}, v{vT0}, {sr(SWS, 4)}, s{sT1} offen sc1
        buffer_store_dwordx4 {vr(vONES, 4)}, v{vT0}, {sr(SWS, 4)}, s{sT1} offen offset:1024 sc1
        """)
        if self.o["g4"]:
            k.e(f"""
            s_cmp_lg_u32 s{sN}, 0
            s_cbranch_scc1 {lab}
            s_and_b32 s{sT0}, s{sM}, 7
            s_lshr_b32 s{sT1}, s{sM}, 3
            s_lshl_b32 s{sT2}, s{sT0}, 14
            s_lshl_b32 s{sT3}, s{sT1}, 12
            s_add_u32 s{sT2}, s{sT2}, s{sT3}
            s_add_u32 s{sT2}, s{sT2}, {P_OFF}
            s_lshl_b32 s{sT0}, s{sT0}, {10 + ex}
            s_lshl_b32 s{sT1}, s{sT1}, {8 + ex}
            s_add_u32 s{sT0}, s{sT0}, s{sT1}
            s_add_u32 s{sT0}, s{sT0}, {GE_OFF}
            s_add_u32 s{sT1}, s{sT0}, {8192 << ex}
            buffer_store_dwordx4 {vr(vONES, 4)}, v{vT0}, {sr(SWS, 4)}, s{sT2} offen sc1
            buffer_store_dwordx4 {vr(vONES, 4)}, v{vT0}, {sr(SWS, 4)}, s{sT2} offen offset:1024 sc1
            buffer_store_dwordx4 {vr(vONES, 4)}, v{vT0}, {sr(SWS, 4)}, s{sT2} offen offset:2048 sc1
            buffer_store_dwordx4 {vr(vONES, 4)}, v{vT0}, {sr(SWS, 4)}, s{sT2} offen offset:3072 sc1
            s_bfm_b64 exec, {16 << ex}, 0
            buffer_store_dwordx4 {vr(vONES, 4)}, v{vT0}, {sr(SWS, 4)}, s{sT0} offen sc1
            buffer_store_dwordx4 {vr(vONES, 4)}, v{vT0}, {sr(SWS, 4)}, s{sT1} offen sc1
            s_mov_b64 exec, -1
            {lab}:
            """)
            return
        k.e(f"""
        s_cmp_ge_u32 s2, 8
        s_cbranch_scc1 {lab}
        s_lshl_b32 s{sT0}, s2, 10
        s_add_u32 s{sT0}, s{sT0}, {GE_OFF}
        s_add_u32 s{sT1}, s{sT0}, 8192
        buffer_store_dwordx4 {vr(vONES, 4)}, v{vT0}, {sr(SWS, 4)}, s{sT0} offen sc1
        buffer_store_dwordx4 {vr(vONES, 4)}, v{vT0}, {sr(SWS, 4)}, s{sT1} offen sc1
        {lab}:
        """)

    def prologue2(self):
        k = self.k
        for key, d, ptr, size in (("x2", SW2, 8, 1572864), ("x3", SWF, 12, 524288), (None, SWG, 14, 524288)):
            if key is None and self.o["g4"]:
                k.e(f"""
                s_and_b32 s{sT0}, s{sM}, 7
                s_lshl_b32 s{sT0}, s{sT0}, 7
                s_lshr_b32 s{sT1}, s{sM}, 3
                s_lshl_b32 s{sT1}, s{sT1}, 17
                s_add_u32 s{sT0}, s{sT0}, s{sT1}
                s_lshl_b32 s{sT1}, s{sW}, 15
                s_add_u32 s{sT0}, s{sT0}, s{sT1}
                s_sub_u32 s{sT1}, {size}, s{sT0}
                """)
                self.srd(d, ptr, sT0, f"s{sT1}")
                continue
            if key:
                self.tile(key, sT0)
            else:
                k.e(f"s_and_b32 s{sT0}, s2, 7")
            k.e(f"""
            s_lshl_b32 s{sT0}, s{sT0}, 7
            s_lshl_b32 s{sT1}, s{sW}, 17
            s_add_u32 s{sT0}, s{sT0}, s{sT1}
            s_sub_u32 s{sT1}, {size}, s{sT0}
            """)
            self.srd(d, ptr, sT0, f"s{sT1}")
        if self.o["g4"]:
            k.e(f"""
            s_lshr_b32 s{sT0}, s{sM}, 3
            s_lshl_b32 s{sT0}, s{sT0}, 8
            s_lshl_b32 s{sT1}, s{sW}, 6
            s_add_u32 s{sT0}, s{sT0}, s{sT1}
            s_sub_u32 s{sT1}, 16384, s{sT0}
            """)
        else:
            k.e(f"""
            s_lshl_b32 s{sT0}, s{sW}, 8
            s_sub_u32 s{sT1}, 16384, s{sT0}
            """)
        self.srd(SG, 10, sT0, f"s{sT1}")
        k.e(f"""
        s_lshr_b32 s{sT2}, s{sN}, 2
        s_lshl_b32 s{sT0}, s{sT2}, 9
        s_lshl_b32 s{sT1}, s{sW}, 7
        s_add_u32 s{sT0}, s{sT0}, s{sT1}
        s_sub_u32 s{sT1}, 524288, s{sT0}
        """)
        self.srd(SWO, 16, sT0, f"s{sT1}")
        k.e(f"s_mul_i32 s{sT0}, s{sB}, 2048000")
        self.srd(SOUT, 18, sT0, 2048000)
        self.srd(SDBG, 20, None, 256)
        k.e(f"s_lshr_b32 s{sNH}, s{sN}, 2")
        self.rot4()
        k.e(f"""
        v_lshlrev_b32 v{vT0}, 4, v{vL}
        v_add_u32 v{vLIN}, s{sRW}, v{vT0}
        v_bfe_u32 v{vT0}, v{vL}, 2, 2
        v_lshrrev_b32 v{vT1}, 5, v{vL}
        v_lshl_add_u32 v{vT1}, v{vT1}, 3, v{vT0}
        v_lshlrev_b32 v{vT1}, 7, v{vT1}
        v_lshrrev_b32 v{vT2}, 1, v{vT0}
        v_lshl_add_u32 v{vT1}, v{vT2}, 6, v{vT1}
        v_bfe_u32 v{vT2}, v{vL}, 4, 1
        v_lshl_add_u32 v{vT1}, v{vT2}, 5, v{vT1}
        v_and_b32 v{vT2}, 3, v{vL}
        v_lshl_add_u32 v{vT1}, v{vT2}, 3, v{vT1}
        v_add_u32 v{vTR0}, s{sRW}, v{vT1}
        v_xor_b32 v{vT1}, 64, v{vT1}
        v_add_u32 v{vTR1}, s{sRW}, v{vT1}
        """)
        k.e(f"""
        v_and_b32 v{vT0}, 31, v{vL}
        v_lshrrev_b32 v{vT1}, 5, v{vL}
        v_and_b32 v{vT2}, 15, v{vT0}
        v_xor_b32 v{vT2}, v{vT2}, v{vT1}
        v_lshlrev_b32 v{vT2}, 4, v{vT2}
        v_lshl_add_u32 v{vT2}, v{vT0}, 9, v{vT2}
        v_add_u32 v{vXB}, s{sRW}, v{vT2}
        v_add_u32 v{vXB + 1}, 256, v{vXB}
        v_add_u32 v{vT2}, 1, v{vT0}
        v_and_b32 v{vT2}, 15, v{vT2}
        v_xor_b32 v{vT2}, v{vT2}, v{vT1}
        v_lshlrev_b32 v{vT2}, 4, v{vT2}
        v_lshl_add_u32 v{vT2}, v{vT0}, 9, v{vT2}
        v_add_u32 v{vT2}, 512, v{vT2}
        v_add_u32 v{vXB + 2}, s{sRW}, v{vT2}
        """)
        k.e(f"""
        v_lshrrev_b32 v{vT0}, 3, v{vL}
        v_bfe_u32 v{vT1}, v{vT0}, 1, 1
        v_lshlrev_b32 v{vT1}, 1, v{vT1}
        v_and_b32 v{vT2}, 7, v{vL}
        v_xor_b32 v{vT1}, v{vT1}, v{vT2}
        v_lshlrev_b32 v{vT1}, 4, v{vT1}
        v_lshl_add_u32 v{vW2}, v{vT0}, 10, v{vT1}
        v_xor_b32 v{vT1}, 64, v{vW2}
        v_add_u32 v{vW2 + 1}, 7168, v{vT1}
        v_add_u32 v{vW2 + 2}, {2 * 7168}, v{vW2}
        v_add_u32 v{vW2 + 3}, {3 * 7168}, v{vT1}
        v_lshrrev_b32 v{vT0}, 4, v{vL}
        v_bfe_u32 v{vT1}, v{vL}, 2, 2
        v_lshl_add_u32 v{vT2}, v{vT0}, 3, v{vT1}
        v_lshlrev_b32 v{vT2}, 7, v{vT2}
        v_lshrrev_b32 v{vT1}, 1, v{vT1}
        v_and_b32 v{vT0}, 1, v{vT0}
        v_lshl_add_u32 v{vT1}, v{vT0}, 1, v{vT1}
        v_lshl_add_u32 v{vT2}, v{vT1}, 5, v{vT2}
        v_and_b32 v{vT1}, 3, v{vL}
        v_lshl_add_u32 v{vT2}, v{vT1}, 3, v{vT2}
        v_add_u32 v{vT16}, s{sRW}, v{vT2}
        """)
        for ct in range(1, 4):
            k.e(f"v_xor_b32 v{vT0}, {ct * 32}, v{vT2}\nv_add_u32 v{vT16 + ct}, s{sRW}, v{vT0}")
        k.e(f"""
        v_and_b32 v{vT0}, 15, v{vL}
        v_bfe_u32 v{vT1}, v{vL}, 4, 1
        v_lshl_add_u32 v{vT0}, v{vT0}, 1, v{vT1}
        v_lshlrev_b32 v{vT0}, 4, v{vT0}
        v_lshrrev_b32 v{vT1}, 5, v{vL}
        v_lshl_add_u32 v{vT0}, v{vT1}, 10, v{vT0}
        s_lshl_b32 s{sT0}, s{sW}, 11
        v_add_u32 v{vRD}, s{sT0}, v{vT0}
        """)
        if self.o["rot"]:
            k.e(f"s_lshl_b32 s{sKC}, s{sML}, 5")
        else:
            k.e(f"s_mov_b32 s{sKC}, 0")

    def stage1(self):
        k = self.k
        if self.o.get("cpf") == 1:
            self.code_prefetch()
        self.x_quarter(0)
        for u in range(3):
            self.w1_issue(u)
        if self.o.get("cpf") == 2:
            self.code_prefetch()
        self.clears()
        for qq in range(1, 4):
            self.x_quarter(qq)
        self.x_tail()
        self.stamp("iss0")
        self.prologue2()
        if self.o.get("gpf", 1) and not self.o["g4"]:
            self.g_prefetch()
        self.l2pf("iss0")
        for u in range(3, 10):
            self.w1_issue(u)
        self.l2pf("iss")
        self.stamp("iss")
        k.wait(vm="x")
        self.stamp("x0")
        lab = k.label("hs")
        k.e(f"""
        s_cmp_lg_u32 s{sW}, 0
        s_cbranch_scc1 {lab}
        s_and_b32 s{sT0}, s2, 3
        s_lshl_b32 s{sT0}, s{sT0}, 6
        v_mov_b32 v{vT0}, s{sT0}
        v_mov_b32 v{vT1}, 1
        s_mov_b64 exec, 1
        buffer_atomic_add v{vT1}, v{vT0}, {sr(SDBG, 4)}, 0 offen sc1
        s_mov_b64 exec, -1
        {lab}:
        """)

        def mm(u):
            a, b = AF + 8 * (u & 1), BFR + 4 * (u & 1)
            self.mfma32(ACC1, a, b, u == 0)
            self.mfma32(ACC1 + 16, a + 4, b, u == 0)

        def refill(u):
            if u + 10 < 24:
                self.w1_issue(u + 10)
            elif u >= 15 and u % 2 == 1 and (u - 15) // 2 < self.o["w2in"]:
                for op in self.w2_ops((u - 15) // 2):
                    op()
            self.l2pf(u)
            if u == 17:
                k.e(f"v_and_b32 v{vT0}, 3, v{vL}\nv_lshlrev_b32 v{vT0}, 6, v{vT0}")
                k.vmem(f"buffer_load_dword v{vHS}, v{vT0}, {sr(SDBG, 4)}, 0 offen sc1", "hs")

        for u in range(24):
            i = u % 3
            if i == 0 and u:
                k.e(f"s_add_u32 s{sKC}, s{sKC}, 32\ns_and_b32 s{sKC}, s{sKC}, 0xe0")
            k.e(f"v_xor_b32 v{vBA + (u & 1)}, s{sKC}, v{vXB + i}")
            k.wait(vm=("w1", u))
            self.tr32(RB + 2048 * (u % 10), AF + 8 * (u & 1), "v", ("u", u))
            k.ds(f"ds_read_b128 {vr(BFR + 4 * (u & 1), 4)}, v{vBA + (u & 1)}", ("u", u))
            if u:
                k.wait(lg=("u", u - 1))
                mm(u - 1)
                refill(u - 1)
            if u in (5, 11, 17):
                self.stamp(f"u{u}")
        k.wait(lg=("u", 23))
        mm(23)
        refill(23)
        self.stamp("s1mfma")
        if self.o["g4"]:
            self.g4_issue()
        self.l2pf("s1end")
        k.e(f"v_mov_b32 v{vKC3}, {f32(-C3)}")
        k.e(f"v_add_u32 v{vT3}, {2 * RW}, v{vRD}")
        k.nop(10)
        for blk in range(8):
            k.ds(f"ds_write_b128 v{vLIN}, {vr(ACC1 + 4 * blk, 4)} offset:{blk * 1024}")
        k.wait(lg="all")
        k.e("s_barrier")
        for sw in range(4):
            a = vRD if sw < 2 else vT3
            for j in range(2):
                k.ds(f"ds_read_b128 {vr(R1 + 8 * sw + 4 * j, 4)}, v{a} offset:{(sw & 1) * RW + j * 512}", ("r", sw))
        assert self.o["w2in"] + self.o["w2mid"] <= 7
        for v in range(self.o["w2in"], self.o["w2in"] + self.o["w2mid"]):
            for op in self.w2_ops(v):
                op()
        k.wait(lg=("r", 1))
        for i in range(8):
            k.e(f"v_add_f32 v{R1 + i}, v{R1 + i}, v{R1 + 8 + i}")
        k.wait(lg=("r", 3))
        for i in range(8):
            k.e(f"v_add_f32 v{R1 + 16 + i}, v{R1 + 16 + i}, v{R1 + 24 + i}")
        for i in range(8):
            k.e(f"v_add_f32 v{R1 + i}, v{R1 + i}, v{R1 + 16 + i}")
        self.gelu([R1 + i for i in range(8)], R1 + 8, vKC3)
        for i in range(4):
            k.e(f"v_cvt_pk_bf16_f32 v{R1 + 16 + i}, v{R1 + 2 * i}, v{R1 + 2 * i + 1}")
        k.e(f"""
        v_and_b32 v{vT0}, 15, v{vL}
        v_lshlrev_b32 v{vT0}, 4, v{vT0}
        v_bfe_u32 v{vT1}, v{vL}, 4, 1
        v_lshl_add_u32 v{vT0}, v{vT1}, 14, v{vT0}
        v_lshrrev_b32 v{vT1}, 5, v{vL}
        v_lshl_add_u32 v{vT0}, v{vT1}, 8, v{vT0}
        s_lshl_b32 s{sT0}, s{sM}, 15
        s_lshl_b32 s{sT1}, s{sN}, 11
        s_add_u32 s{sT0}, s{sT0}, s{sT1}
        s_lshl_b32 s{sT1}, s{sW}, 9
        s_add_u32 s{sT0}, s{sT0}, s{sT1}
        s_add_u32 s{sT0}, s{sT0}, {H_OFF}
        """)
        k.vmem(f"buffer_store_dwordx4 {vr(R1 + 16, 4)}, v{vT0}, {sr(SWS, 4)}, s{sT0} offen sc1", "hst")
        self.stamp("hst")
        k.e("s_barrier")

    def setup2(self):
        k = self.k
        k.e(f"""
        v_lshlrev_b32 v{vLIN16}, 4, v{vL}
        v_and_b32 v{vT0}, 15, v{vL}
        v_lshrrev_b32 v{vT1}, 4, v{vL}
        v_add_u32 v{vH0}, {32768 - 16}, v{vLIN16}
        v_lshlrev_b32 v{vT2}, 8, v{vT1}
        v_add_u32 v{vT2}, 240, v{vT2}
        s_cmp_eq_u32 s{sMT}, 0
        s_cselect_b32 s{sT0}, {OOB}, 0
        v_add_u32 v{vT2}, s{sT0}, v{vT2}
        v_cmp_eq_u32 vcc, 0, v{vT0}
        v_and_b32 v{vT3}, 7, v{vL}
        v_lshlrev_b32 v{vT3}, 9, v{vT3}
        v_cndmask_b32 v{vH0}, v{vH0}, v{vT2}, vcc
        v_add_u32 v{vFSM}, {256 + 240 + 12}, v{vT3}
        v_add_u32 v{vSMP}, 16384, v{vFSM}
        v_add_u32 v{vT2}, 32768, v{vSMP}
        v_add_u32 v{vT3}, s{sT0}, v{vSMP}
        v_cmp_gt_u32 vcc, 8, v{vL}
        v_bfrev_b32 v{vSV}, 1
        s_nop 0
        v_cndmask_b32 v{vSMP}, v{vT3}, v{vT2}, vcc
        v_cndmask_b32 v{vFSM}, v{vSV}, v{vFSM}, vcc
        v_cmp_gt_u32 vcc, 16, v{vL}
        v_lshrrev_b32 v{vT2}, 1, v{vT1}
        v_lshlrev_b32 v{vT2}, 8, v{vT2}
        v_cndmask_b32 v{vSMP}, v{vSV}, v{vSMP}, vcc
        v_lshl_add_u32 v{vT2}, v{vT0}, 4, v{vT2}
        v_and_b32 v{vT1}, 1, v{vT1}
        v_lshl_add_u32 v{vST}, v{vT1}, 3, v{vT2}
        s_lshl_b32 s{sT0}, s{sW}, 10
        v_add_u32 v{vRD2}, s{sT0}, v{vLIN16}
        s_lshl_b32 s{sT0}, s{sM}, 15
        s_lshl_b32 s{sT1}, s{sW}, 12
        s_add_u32 s{sH}, s{sT0}, s{sT1}
        s_add_u32 s{sH}, s{sH}, {H_OFF}
        s_sub_u32 s{sHS}, s{sH}, 32768
        s_lshl_b32 s{sT0}, s{sM}, 14
        s_add_u32 s{sFL}, s{sT0}, s{sT1}
        s_add_u32 s{sFL}, s{sFL}, {F_OFF}
        s_lshl_b32 s{sT1}, s{sW}, 9
        s_add_u32 s{sT0}, s{sT0}, s{sT1}
        s_xor_b32 s{sT1}, s{sN}, {self.o["x2"]}
        s_lshl_b32 s{sT1}, s{sT1}, 11
        s_add_u32 s{sFS}, s{sT0}, s{sT1}
        s_add_u32 s{sFS}, s{sFS}, {F_OFF}
        s_xor_b32 s{sT1}, s{sN}, {self.o["x3"]}
        s_lshl_b32 s{sT1}, s{sT1}, 11
        s_add_u32 s{sFES}, s{sT0}, s{sT1}
        {f"s_lshl_b32 s{sFES}, s{sFES}, 1" if self.o["ex"] else ""}
        s_add_u32 s{sFES}, s{sFES}, {FE_OFF}
        v_bfrev_b32 v{vGST}, 1
        s_lshl_b32 s{sWQ}, s{sML}, 16
        s_sub_u32 s{sWQ}, s{sWQ}, 16384
        """)
        if self.o["ex"]:
            assert self.o["fdirect"] and self.o["g4"]
            k.e(f"""
            v_lshrrev_b32 v{vT0}, 5, v{vL}
            v_lshlrev_b32 v{vT0}, 9, v{vT0}
            v_bfe_u32 v{vT1}, v{vL}, 2, 2
            v_lshl_add_u32 v{vT0}, v{vT1}, 7, v{vT0}
            v_bfe_u32 v{vT1}, v{vL}, 4, 1
            v_lshl_add_u32 v{vT0}, v{vT1}, 6, v{vT0}
            v_and_b32 v{vT1}, 3, v{vL}
            v_lshl_add_u32 v{vFST}, v{vT1}, 4, v{vT0}
            """)
        if self.o["g4"]:
            ex = self.o["ex"]
            k.e(f"""
            s_or_b32 s{sT0}, s{sN}, s{sW}
            s_cmp_eq_u32 s{sT0}, 0
            s_cselect_b32 s{sT2}, 0, {OOB}
            s_and_b32 s{sT0}, s{sM}, 7
            s_lshr_b32 s{sT1}, s{sM}, 3
            s_lshl_b32 s{sT3}, s{sT0}, 14
            s_add_u32 s{sT3}, s{sT3}, s{sT2}
            s_lshl_b32 s{sA}, s{sT1}, 10
            s_add_u32 s{sT3}, s{sT3}, s{sA}
            s_add_u32 s{sT3}, s{sT3}, {P_OFF}
            v_add_u32 v{vGP}, s{sT3}, v{vLIN16}
            v_bfe_u32 v{vT0}, v{vL}, 3, 1
            v_lshlrev_b32 v{vT0}, {13 + ex}, v{vT0}
            v_and_b32 v{vT1}, 7, v{vL}
            v_lshl_add_u32 v{vT0}, v{vT1}, 4, v{vT0}
            v_lshrrev_b32 v{vT1}, 5, v{vL}
            v_lshl_add_u32 v{vT0}, v{vT1}, {7 + ex}, v{vT0}
            v_bfe_u32 v{vT1}, v{vL}, 4, 1
            v_lshl_add_u32 v{vT0}, v{vT1}, {7 if ex else 3}, v{vT0}
            s_lshl_b32 s{sT0}, s{sT0}, {10 + ex}
            s_lshl_b32 s{sT1}, s{sT1}, {8 + ex}
            s_add_u32 s{sT0}, s{sT0}, s{sT1}
            s_add_u32 s{sT0}, s{sT0}, s{sT2}
            s_add_u32 s{sT0}, s{sT0}, {GE_OFF}
            v_add_u32 v{vGST}, s{sT0}, v{vT0}
            """)

    def w2_finish(self):
        k = self.k
        for v in range(self.o["w2in"] + self.o["w2mid"], 9):
            if v == 8 and self.o["g4"]:
                self.g4_partial()
            for op in self.w2_ops(v):
                op()
        self.setup2()
        for v in range(3):
            k.wait(vm=("w2", v))
            self.tr16(self.w2_slot(v), 16 * v, "a", ("t2", v))
        for v in range(3):
            k.wait(lg=("t2", v))
            for op in self.w2_ops(9 + v):
                op()
        top, done = k.label("hsw"), k.label("hsd")
        k.e(f"""
        v_cmp_gt_u32 vcc, 64, v{vHS}
        s_cbranch_vccnz {top}
        {done}:
        """)
        self.ool.append(("hs", top, done))
        hd = self.o.get("hdirect", 0)
        if not hd:
            k.vmem(f"buffer_load_dword v{vHS}, v{vSMP}, {sr(SWS, 4)}, s{sHS} offen sc1", "smp")
        for v in range(3, 8):
            k.wait(vm=("w2", v))
            self.tr16(self.w2_slot(v), 16 * v, "a", ("t2", v))
            if hd and v == hd + 2 and v < 8:
                self.h_loads(True, not self.o["hplain"])
        if self.o["glate"] or self.o["g4"]:
            self.w2_last()
        else:
            gtop, gjoin = k.label("gblk"), k.label("gjoin")
            k.e(f"s_cmp_lt_u32 s2, 8\ns_cbranch_scc1 {gtop}")
            self.ool.append(("g", gtop, gjoin, list(k.vm), list(k.lg)))
            self.w2_last()
            k.e(f"{gjoin}:")
        self.stamp("w2done")

    def w2_last(self):
        k = self.k
        for v in range(8, 12):
            k.wait(vm=("w2", v))
            self.tr16(self.w2_slot(v), 16 * v, "a", ("t2", v))

    def g4_issue(self):
        k = self.k
        lab = k.label("g4i")
        k.e(f"""
        s_cmp_lg_u32 s{sN}, 0
        s_cbranch_scc1 {lab}
        s_add_u32 m0, s{sRW}, {XS[3]}
        v_and_b32 v{vT0}, 15, v{vL}
        v_lshlrev_b32 v{vT0}, 10, v{vT0}
        v_lshrrev_b32 v{vT1}, 4, v{vL}
        v_lshl_add_u32 v{vT0}, v{vT1}, 4, v{vT0}
        """)
        for q in range(4):
            o = f" offset:{q * 1024}" if q else ""
            k.e(f"buffer_load_dwordx4 v{vW2 + q}, {sr(SWG, 4)}, 0 offen{o} lds")
        k.e(f"""
        s_add_u32 m0, s{sRW}, {GS}
        s_nop 0
        buffer_load_dwordx4 v{vT0}, {sr(SG, 4)}, 0 offen lds
        {lab}:
        """)
        self.g4_mark = k.nvm

    def g4_partial(self):
        k = self.k
        A, B, D = 128, 144, 160
        lab = k.label("g4p")
        k.e(f"""
        s_cmp_lg_u32 s{sN}, 0
        s_cbranch_scc1 {lab}
        v_subrev_u32 v{vT0}, s{sRW}, v{vT16}
        s_lshl_b32 s{sT0}, s{sW}, 5
        v_xor_b32 v{vT0}, s{sT0}, v{vT0}
        v_add_u32 v{vT1}, {2 * RW}, v{vT0}
        v_lshlrev_b32 v{vT2}, 4, v{vL}
        v_add_u32 v{vT2}, {GS}, v{vT2}
        v_add_u32 v{vT3}, {2 * RW}, v{vT2}
        s_waitcnt vmcnt({k.nvm - self.g4_mark}) lgkmcnt(0)
        s_barrier
        """)
        for j in range(4):
            a, b = (vT0, vT2) if j < 2 else (vT1, vT3)
            o = (j & 1) * RW
            k.e(f"ds_read_b64_tr_b16 {vr(A + 4 * j, 2)}, v{a} offset:{o + XS[3]}")
            k.e(f"ds_read_b64_tr_b16 {vr(A + 4 * j + 2, 2)}, v{a} offset:{o + XS[3] + 512}")
            k.e(f"ds_read_b128 {vr(B + 4 * j, 4)}, v{b} offset:{o}")
        k.e(f"""
        s_and_b32 s{sT0}, s{sM}, 7
        s_lshl_b32 s{sT0}, s{sT0}, 14
        s_lshr_b32 s{sT1}, s{sM}, 3
        s_lshl_b32 s{sT1}, s{sT1}, 12
        s_add_u32 s{sT0}, s{sT0}, s{sT1}
        s_lshl_b32 s{sT1}, s{sW}, 10
        s_add_u32 s{sT0}, s{sT0}, s{sT1}
        s_add_u32 s{sT0}, s{sT0}, {P_OFF}
        s_waitcnt lgkmcnt(0)
        s_barrier
        v_lshlrev_b32 v{vT0}, 4, v{vL}
        """)
        for j in range(4):
            self.mfma16(D, A + 4 * j, B + 4 * j, j == 0, ak="v")
        k.nop(12)
        k.e(f"buffer_store_dwordx4 {vr(D, 4)}, v{vT0}, {sr(SWS, 4)}, s{sT0} offen sc1\n{lab}:")

    def g4_loads(self, counted):
        k = self.k
        for q in range(4):
            t = self.tmp()
            k.e(f"s_mov_b32 s{t}, {q * 4096}")
            ins = f"buffer_load_dwordx4 {vr(160 + 4 * q, 4)}, v{vGP}, {sr(SWS, 4)}, s{t} offen sc1"
            if counted:
                k.vmem(ins, "gp")
            else:
                k.e(ins)

    def g4_final(self):
        k = self.k
        P = 160
        k.e(f"s_mov_b32 s{sSPIN}, 0")
        k.wait(vm="gp")
        retry, ok, again = k.label("gpr"), k.label("gpk"), k.label("gpa")
        k.e(f"{again}:")
        k.e(f"v_max_u32 v{vT0}, v{P}, v{P + 1}")
        for i in range(2, 16, 2):
            k.e(f"v_max3_u32 v{vT0}, v{vT0}, v{P + i}, v{P + i + 1}")
        k.e(f"v_cmp_eq_u32 vcc, -1, v{vT0}\ns_cbranch_vccnz {retry}\n{ok}:")
        self.ool.append(("poll", retry, ok, again, self.g4_loads))
        for i in range(4):
            k.e(f"v_add_f32 v{P + i}, v{P + i}, v{P + 4 + i}")
            k.e(f"v_add_f32 v{P + 8 + i}, v{P + 8 + i}, v{P + 12 + i}")
        for i in range(4):
            k.e(f"v_add_f32 v{P + i}, v{P + i}, v{P + 8 + i}")
        if self.o["ex"]:
            self.ex_tail(P, P + 4, P + 8, P + 12, P + 16)
            k.vmem(f"buffer_store_dwordx4 {vr(P + 12, 4)}, v{vGST}, {sr(SWS, 4)}, 0 offen sc1", "gest")
            return
        k.e(f"v_cvt_pk_bf16_f32 v{P + 4}, v{P}, v{P + 1}")
        k.e(f"v_cvt_pk_bf16_f32 v{P + 5}, v{P + 2}, v{P + 3}")
        k.vmem(f"buffer_store_dwordx2 {vr(P + 4, 2)}, v{vGST}, {sr(SWS, 4)}, 0 offen sc1", "gest")

    def ex_tail(self, S, PK, B, T, A):
        k = self.k
        k.e(f"v_cvt_pk_bf16_f32 v{PK}, v{S}, v{S + 1}")
        k.e(f"v_cvt_pk_bf16_f32 v{PK + 1}, v{S + 2}, v{S + 3}")
        for i in range(2):
            k.e(f"v_lshlrev_b32 v{B + 2 * i}, 16, v{PK + i}")
            k.e(f"v_and_b32 v{B + 2 * i + 1}, 0xffff0000, v{PK + i}")
        for i in range(4):
            k.e(f"v_mul_f32 v{T + i}, {f32(CT)}, v{B + i}")
        for i in range(4):
            k.e(f"v_and_b32 v{A + i}, 0x7fffffff, v{T + i}")
        for i in range(4):
            k.e(f"v_exp_f32 v{T + i}, v{T + i}")
        fix, ok = k.label("exf"), k.label("exk")
        k.e(f"""
        v_max3_u32 v{A}, v{A}, v{A + 1}, v{A + 2}
        v_max_u32 v{A}, v{A}, v{A + 3}
        v_cmp_lt_u32 vcc, {f32(EX_MAX)}, v{A}
        s_cbranch_vccnz {fix}
        {ok}:
        """)
        self.ool.append(("exfix", fix, ok, PK, T, A))

    def g_loads(self, GF):
        k = self.k
        k.e(f"""
        v_and_b32 v{vT0}, 15, v{vL}
        v_lshlrev_b32 v{vT0}, 10, v{vT0}
        v_lshrrev_b32 v{vT1}, 4, v{vL}
        v_lshl_add_u32 v{vT0}, v{vT1}, 4, v{vT0}
        """)
        for j in range(4):
            t = self.tmp()
            k.e(f"s_lshr_b32 s{t}, s{sR4[j]}, 4")
            k.e(f"v_add_u32 v{vT1}, s{t}, v{vT0}")
            k.vmem(f"buffer_load_dwordx4 {vr(GF + 4 * j, 4)}, v{vT1}, {sr(SG, 4)}, 0 offen", "g")

    def g_addr(self):
        k = self.k
        k.e(f"""
        v_bfe_u32 v{vT0}, v{vL}, 3, 1
        v_lshlrev_b32 v{vT0}, 13, v{vT0}
        v_and_b32 v{vT1}, 7, v{vL}
        v_lshl_add_u32 v{vT0}, v{vT1}, 4, v{vT0}
        v_lshrrev_b32 v{vT1}, 5, v{vL}
        v_lshl_add_u32 v{vT0}, v{vT1}, 7, v{vT0}
        v_bfe_u32 v{vT1}, v{vL}, 4, 1
        v_lshl_add_u32 v{vT0}, v{vT1}, 3, v{vT0}
        s_lshl_b32 s{sT0}, s2, 10
        s_lshl_b32 s{sT1}, s{sW}, 8
        s_add_u32 s{sT0}, s{sT0}, s{sT1}
        s_add_u32 s{sT0}, s{sT0}, {GE_OFF}
        v_add_u32 v{vGST}, s{sT0}, v{vT0}
        """)

    def g_block(self):
        k = self.k
        GF = HB
        slots = [T4[0], T4[1], XS[2], XS[3]] if self.o["w2mid"] else [T4[0], T4[1], XS[1], XS[2]]
        k.wait(lg=("t2", 7))
        self.stamp("g0")
        for j in range(4):
            self.dma4k(SWG, slots[j], self.w32_soff(j, 0), ("wg", j))
        self.g_loads(GF)
        self.stamp("gdma")
        self.w2_last()
        self.stamp("gw2")
        self.g_addr()
        for j in range(4):
            k.wait(vm=("wg", j))
            self.tr16(slots[j], 192 + 16 * j, "a", ("twg", j))
        self.stamp("gwg")
        k.wait(vm="all")
        self.stamp("gld")
        for j in range(4):
            k.wait(lg=("twg", j))
            for ct in range(4):
                self.mfma16(ACC2 + 4 * ct, 192 + 16 * j + 4 * ct, GF + 4 * j, j == 0)
        self.stamp("gmf")
        self.reduce16(ACC2, False, None, None, None)
        k.e("s_barrier")
        self.stamp("gend")

    def poll_sample(self, stem, vaddr, sbase):
        k = self.k
        top, done = k.label(stem + "p"), k.label(stem + "d")
        k.wait(vm="smp")
        k.e(f"""
        v_cmp_eq_u32 vcc, -1, v{vHS}
        s_cbranch_vccnz {top}
        {done}:
        """)
        self.ool.append(("smp", top, done, vaddr, sbase))

    def reduce16(self, acc, act, vst, sst, tag, mid=None, ex=False):
        k = self.k
        k.e(f"v_add_u32 v{vT3}, {2 * RW}, v{vRD2}")
        k.nop(8)
        for ct in range(4):
            k.ds(f"ds_write_b128 v{vLIN}, {vr(acc + 4 * ct, 4)} offset:{ct * 1024}")
        k.wait(lg="all")
        k.e("s_barrier")
        for sw in range(4):
            a = vRD2 if sw < 2 else vT3
            k.ds(f"ds_read_b128 {vr(R2 + 4 * sw, 4)}, v{a} offset:{(sw & 1) * RW}", ("r", sw))
        if mid:
            mid()
        k.wait(lg=("r", 1))
        for i in range(4):
            k.e(f"v_add_f32 v{R2 + i}, v{R2 + i}, v{R2 + 4 + i}")
        k.wait(lg=("r", 3))
        for i in range(4):
            k.e(f"v_add_f32 v{R2 + 8 + i}, v{R2 + 8 + i}, v{R2 + 12 + i}")
        for i in range(4):
            k.e(f"v_add_f32 v{R2 + i}, v{R2 + i}, v{R2 + 8 + i}")
        if act:
            self.gelu([R2 + i for i in range(4)], R2 + 4, vKC3)
        if ex:
            self.ex_tail(R2, R2 + 4, R2 + 8, R2 + 12, R2 + 16)
            k.vmem(f"buffer_store_dwordx4 {vr(R2 + 12, 4)}, v{vFST}, {sr(SWS, 4)}, s{sst} offen sc1", tag)
            return
        k.e(f"v_cvt_pk_bf16_f32 v{R2 + 8}, v{R2}, v{R2 + 1}")
        k.e(f"v_cvt_pk_bf16_f32 v{R2 + 9}, v{R2 + 2}, v{R2 + 3}")
        if vst is not None:
            k.vmem(f"buffer_store_dwordx2 {vr(R2 + 8, 2)}, v{vst}, {sr(SWS, 4)}, s{sst} offen sc1", tag)

    def h_loads(self, counted, sc):
        k = self.k
        for v in range(12):
            j, i = v // 3, v % 3
            t = self.tmp()
            k.e(f"s_add_u32 s{t}, s{sH}, s{sR4[j]}")
            if i == 0:
                k.e(f"s_sub_u32 s{t}, s{t}, 16384")
            elif i == 2:
                k.e(f"s_add_u32 s{t}, s{t}, 16384")
            ins = (f"buffer_load_dwordx4 {vr(HB + 4 * v, 4)}, v{vH0 if i == 0 else vLIN16}, "
                   f"{sr(SWS, 4)}, s{t} offen" + (" sc1" if sc else ""))
            if counted:
                k.vmem(ins, ("h", v))
            else:
                k.e(ins)

    def stage2(self):
        k = self.k
        hd = self.o.get("hdirect", 0)
        if not hd:
            self.poll_sample("h", vSMP, sHS)
        self.stamp("hpoll")
        loads = self.h_loads
        k.e(f"s_mov_b32 s{sSPIN}, 0")
        if not hd:
            loads(True, not self.o["hplain"])
        if not self.o["glate"] and not self.o["g4"]:
            k.vmem(f"buffer_store_dwordx2 {vr(R2 + 8, 2)}, v{vGST}, {sr(SWS, 4)}, 0 offen sc1", "gest")
        k.wait(lg="all")
        fill = []
        for j in range(4):
            fill += self.dma4k_ops(SWF, T4[j], self.w32_soff(j, 0), ("wf", j))
        for _ in range(self.o.get("wfpre", 4)):
            fill.pop(0)()
        mf, retry, ok = k.label("s2m"), k.label("s2r"), k.label("s2k")
        k.e(f"{mf}:")
        for v in range(12):
            k.wait(vm=("h", v))
            f = HB + 4 * v
            if v == 0:
                k.e(f"v_mov_b32 v{vT0}, v{f + 3}")
            elif v % 2 == 0:
                k.e(f"v_max3_u32 v{vT0}, v{vT0}, v{f - 1}, v{f + 3}")
            for ct in range(4):
                self.mfma16(ACC2 + 4 * ct, 16 * v + 4 * ct, f, v == 0)
            if v < self.o.get("wfloop", 12) and fill:
                fill.pop(0)()
        k.e(f"v_max_u32 v{vT0}, v{vT0}, v{HB + 47}")
        k.e(f"v_cmp_eq_u32 vcc, -1, v{vT0}\ns_cbranch_vccnz {retry}\n{ok}:")
        self.ool.append(("bulk", retry, ok, mf, loads))
        self.stamp("s2mfma")
        if self.o["g4"]:
            self.g4_loads(True)
        self.wf_rest = fill

    def wo_slot(self, bb, e):
        if bb % 2 == 0:
            base = [T4[4], XS[1], XS[2], XS[3]]
        else:
            base = [T4[0], T4[1], T4[2], T4[3]]
        return base[e // 2] + 2048 * (e & 1)

    def wo_issue(self, bb, e0, e1):
        k = self.k
        for e in range(e0, e1):
            assert self.wo_next == 8 * bb + e
            self.wo_next += 1
            k.e(f"s_add_u32 s{sWQ}, s{sWQ}, 16384\ns_and_b32 s{sWQ}, s{sWQ}, 0x7c000")
            self.dma2k(SWO, self.wo_slot(bb, e), f"s{sWQ}", ("wo", bb, e))

    def wo_tr_ops(self, bb):
        ops = []
        for e in range(8):
            for ct, a in enumerate((vTR0, vTR1)):
                for hf in range(2):
                    off = self.wo_slot(bb, e) + 512 * hf
                    dst = 8 * (8 * bb + e) + 4 * ct + 2 * hf
                    ops.append(("ds", f"ds_read_b64_tr_b16 {vr(dst, 2, 'a')}, v{a} offset:{off}", ("two", bb)))
        return ops

    def wo_tr(self, bb):
        k = self.k
        for e in range(8):
            k.wait(vm=("wo", bb, e))
            self.tr32(self.wo_slot(bb, e), 8 * (8 * bb + e), "a", ("two", bb))

    def stage2_tail(self):
        k = self.k
        self.wo_next = 0

        def mid():
            for _ in range(self.o.get("wfmid", 0)):
                if self.wf_rest:
                    self.wf_rest.pop(0)()
        self.reduce16(ACC2, True, vST, sFS, "fst", mid=mid)
        self.stamp("fst")
        while self.wf_rest:
            self.wf_rest.pop(0)()
        k.e("s_barrier")
        if self.o["glate"]:
            gtop, self.gjoin = k.label("gl"), k.label("glj")
            k.e(f"s_cmp_lt_u32 s2, 8\ns_cbranch_scc1 {gtop}")
            self.ool.append(("glate", gtop, self.gjoin, list(k.vm), list(k.lg), self.wo_next))
        self.wo_issue(0, 0, 8)
        self.wo_pattern()
        k.wait(vm=("wf", 3))
        for j in range(4):
            self.tr16(T4[j], 192 + 16 * j, "a", "twf")
        if self.o["g4"]:
            self.g4_final()
        if self.o["b1B"]:
            k.wait(lg="twf")
            self.wo_issue(1, 0, self.o["b1B"])
        if self.o["glate"] and self.stop_after in ("s2", "ge"):
            k.e(f"s_waitcnt vmcnt(0) lgkmcnt(0)\n{self.gjoin}:")

    def glate_block(self, join):
        k = self.k
        GF = HB + 16
        slots = [self.wo_slot(0, 2 * j) for j in range(4)]
        for j in range(4):
            self.dma4k(SWG, slots[j], self.w32_soff(j, 0), ("wg", j))
        self.g_loads(GF)
        self.stamp("gdma")
        self.wo_pattern()
        self.g_addr()
        k.wait(vm=("wf", 3))
        for j in range(4):
            self.tr16(T4[j], 192 + 16 * j, "a", "twf")
        for j in range(4):
            k.wait(vm=("wg", j))
            self.tr16(slots[j], 128 + 16 * j, "a", ("twg", j))
        self.stamp("gwg")
        k.wait(lg="all")
        self.wo_issue(0, 0, 8)
        k.vmem(f"buffer_load_dword v{vHS}, v{vFSM}, {sr(SWS, 4)}, s{sFL} offen sc1", "smp")
        k.wait(vm="g")
        self.stamp("gld")
        for j in range(4):
            for ct in range(4):
                self.mfma16(ACC2 + 4 * ct, 128 + 16 * j + 4 * ct, GF + 4 * j, j == 0)
        self.stamp("gmf")
        self.reduce16(ACC2, False, None, None, None)
        k.vmem(f"buffer_store_dwordx2 {vr(R2 + 8, 2)}, v{vGST}, {sr(SWS, 4)}, 0 offen sc1", "gest")
        k.e("s_barrier")
        self.stamp("gend")
        if self.stop_after in ("s2", "ge"):
            k.e(f"s_waitcnt vmcnt(0) lgkmcnt(0)\ns_branch {join}")
            return
        self.stage3(gpath=True)
        k.wait(vm=("wo", 1, 7))
        k.e(f"s_branch {join}")

    def wo_pattern(self):
        k = self.k
        k.e(f"""
        v_bfe_u32 v{vT0}, v{vL}, 2, 2
        v_lshrrev_b32 v{vT1}, 5, v{vL}
        v_lshl_add_u32 v{vT1}, v{vT1}, 3, v{vT0}
        v_lshlrev_b32 v{vT1}, 7, v{vT1}
        v_lshrrev_b32 v{vT2}, 1, v{vT0}
        v_lshl_add_u32 v{vT1}, v{vT2}, 6, v{vT1}
        v_bfe_u32 v{vT2}, v{vL}, 4, 1
        v_lshl_add_u32 v{vT1}, v{vT2}, 5, v{vT1}
        v_and_b32 v{vT2}, 1, v{vL}
        v_lshl_add_u32 v{vT1}, v{vT2}, 4, v{vT1}
        v_bfe_u32 v{vT2}, v{vL}, 1, 1
        v_lshl_add_u32 v{vT1}, v{vT2}, 3, v{vT1}
        v_add_u32 v{vTR0}, s{sRW}, v{vT1}
        v_xor_b32 v{vT1}, 64, v{vT1}
        v_add_u32 v{vTR1}, s{sRW}, v{vT1}
        """)

    def stage3(self, gpath=False):
        k = self.k
        FB = HB
        b1B = 0 if gpath else self.o["b1B"]

        def loads(counted, sc):
            for j in range(4):
                t = self.tmp()
                k.e(f"s_add_u32 s{t}, s{sFL}, s{sR4[j]}")
                ins = (f"buffer_load_dwordx4 {vr(FB + 4 * j, 4)}, v{vLIN16}, {sr(SWS, 4)}, s{t} offen"
                       + (" sc1" if sc else ""))
                if counted:
                    k.vmem(ins, ("f", j))
                else:
                    k.e(ins)
        fd = self.o.get("fdirect", 0)
        if fd:
            k.e(f"s_mov_b32 s{sSPIN}, 0")
            loads(True, True)
            self.wo_tr(0)
            k.wait(vm=("f", 3))
            again, retry0, ok0 = k.label("fda"), k.label("fdr"), k.label("fdk")
            k.e(f"{again}:")
            k.e(f"v_max_u32 v{vT0}, v{FB + 1}, v{FB + 3}")
            for j in range(1, 4):
                k.e(f"v_max3_u32 v{vT0}, v{vT0}, v{FB + 4 * j + 1}, v{FB + 4 * j + 3}")
            k.e(f"v_cmp_eq_u32 vcc, -1, v{vT0}\ns_cbranch_vccnz {retry0}\n{ok0}:")
            self.ool.append(("poll", retry0, ok0, again, lambda counted: loads(counted, True)))
            self.stamp("fpoll")
            k.wait(lg="all")
            self.wo_issue(1, b1B, 8)
            for j in range(4):
                for ct in range(4):
                    self.mfma16(ACC2 + 4 * ct, 192 + 16 * j + 4 * ct, FB + 4 * j, j == 0)
            self.stamp("s3mfma")
            self.reduce16(ACC2, False, vST, sFES, "fest", mid=lambda: self.wo_issue(2, 0, self.o["b2C"]),
                          ex=self.o["ex"])
            self.stamp("fest")
            k.e("s_barrier")
            return
        if not gpath:
            k.vmem(f"buffer_load_dword v{vHS}, v{vFSM}, {sr(SWS, 4)}, s{sFL} offen sc1", "smp")
        self.wo_tr(0)
        self.poll_sample("f", vFSM, sFL)
        self.stamp("fpoll")
        k.e(f"s_mov_b32 s{sSPIN}, 0")
        loads(True, not self.o["fplain"])
        k.wait(lg="all")
        mf, retry, ok = k.label("s3m"), k.label("s3r"), k.label("s3k")
        self.wo_issue(1, b1B, 8)
        k.e(f"{mf}:")
        for j in range(4):
            k.wait(vm=("f", j))
            f = FB + 4 * j
            if j == 0:
                k.e(f"v_max_u32 v{vT0}, v{f + 1}, v{f + 3}")
            else:
                k.e(f"v_max3_u32 v{vT0}, v{vT0}, v{f + 1}, v{f + 3}")
            for ct in range(4):
                self.mfma16(ACC2 + 4 * ct, 192 + 16 * j + 4 * ct, f, j == 0)
        k.e(f"v_cmp_eq_u32 vcc, -1, v{vT0}\ns_cbranch_vccnz {retry}\n{ok}:")
        self.ool.append(("bulk", retry, ok, mf, loads))
        self.stamp("s3mfma")
        self.reduce16(ACC2, False, vST, sFES, "fest", mid=lambda: self.wo_issue(2, 0, self.o["b2C"]),
                          ex=self.o["ex"])
        self.stamp("fest")
        if gpath:
            return
        if self.o["glate"]:
            k.e(f"{self.gjoin}:")
        k.e("s_barrier")

    def stage4(self):
        k = self.k
        CB, FR, Z, JP, BF, ACC, OUT = 32, 96, 128, 144, 160, 192, 224
        vGA, vFA, vJ0, vJ2 = 8, 9, 10, 11
        RAW = 160
        ex = self.o["ex"]
        if ex:
            Z, JP = 224, 240
            late_tr, fr_read = self.s4_head_ex(CB, FR, Z)
        else:
            late_tr, fr_read = self.s4_head(CB, FR, RAW), None
        self.stamp("fepoll")
        self.s4_loop(CB, FR, Z, JP, BF, ACC, OUT, late_tr, fr_read)

    def s4_head(self, CB, FR, RAW):
        k = self.k
        ex = 0
        vGA, vFA, vJ0, vJ2 = 8, 9, 10, 11
        k.e(f"""
        v_and_b32 v{vT0}, 7, v{vL}
        v_lshlrev_b32 v{vT0}, 4, v{vT0}
        v_lshrrev_b32 v{vT1}, 5, v{vL}
        v_lshl_add_u32 v{vGA}, v{vT1}, {7 + ex}, v{vT0}
        v_bfe_u32 v{vT0}, v{vL}, 3, 2
        v_lshlrev_b32 v{vT0}, 4, v{vT0}
        v_lshl_add_u32 v{vFA}, v{vT1}, {8 + ex}, v{vT0}
        v_lshlrev_b32 v{vJ0}, 4, v{vL}
        v_add_u32 v{vJ2}, {2 * RW}, v{vJ0}
        s_lshl_b32 s{sGL}, s{sB}, {13 + ex}
        s_lshl_b32 s{sT0}, s{sW}, {8 + ex}
        s_add_u32 s{sGL}, s{sGL}, s{sT0}
        s_add_u32 s{sGL}, s{sGL}, {GE_OFF}
        s_lshl_b32 s{sFE}, s{sM}, {14 + ex}
        s_lshl_b32 s{sT0}, s{sW}, {9 + ex}
        s_add_u32 s{sFE}, s{sFE}, s{sT0}
        s_lshl_b32 s{sT0}, s{sJN}, 6
        s_add_u32 s{sFE}, s{sFE}, s{sT0}
        s_add_u32 s{sFE}, s{sFE}, {FE_OFF}
        """)

        def np_off(r, shift):
            t = self.tmp()
            if self.o["rot"]:
                k.e(f"s_add_u32 s{t}, s{sML}, {r}\ns_and_b32 s{t}, s{t}, 7\ns_lshl_b32 s{t}, s{t}, {shift}")
            else:
                k.e(f"s_mov_b32 s{t}, {r << shift}")
            return t

        def ge_loads(counted):
            for r in range(8):
                t = np_off(r, 10 + ex)
                k.e(f"s_add_u32 s{t}, s{t}, s{sGL}")
                for hf in range(1 + ex):
                    d, o = RAW + (4 << ex) * r + 4 * hf, f" offset:{128 * hf}" if hf else ""
                    ins = f"buffer_load_dwordx4 {vr(d, 4)}, v{vGA}, {sr(SWS, 4)}, s{t} offen{o} sc1"
                    if counted:
                        k.vmem(ins, "ge")
                    else:
                        k.e(ins)

        def fe_loads(counted):
            for r in range(8):
                t = np_off(r, 11 + ex)
                k.e(f"s_add_u32 s{t}, s{t}, s{sFE}")
                for hf in range(1 + ex):
                    d, o = FR + (4 << ex) * r + 4 * hf, f" offset:{256 * hf}" if hf else ""
                    ins = f"buffer_load_dwordx4 {vr(d, 4)}, v{vFA}, {sr(SWS, 4)}, s{t} offen{o} sc1"
                    if counted:
                        k.vmem(ins, ("fe", r))
                    else:
                        k.e(ins)

        def check(base, n, dst):
            if ex:
                k.e(f"v_max_u32 v{dst}, v{base + 3}, v{base + 7}")
                for g in range(2, 2 * n, 2):
                    k.e(f"v_max3_u32 v{dst}, v{dst}, v{base + 4 * g + 3}, v{base + 4 * g + 7}")
                return
            k.e(f"v_max_u32 v{dst}, v{base + 1}, v{base + 3}")
            for r in range(1, n):
                k.e(f"v_max3_u32 v{dst}, v{dst}, v{base + 4 * r + 1}, v{base + 4 * r + 3}")

        ge_loads(True)
        self.wo_issue(2, self.o["b2C"], 8)
        self.wo_tr(1)
        k.wait(lg="all")
        self.wo_issue(3, 0, 8)
        k.e(f"s_mov_b32 s{sSPIN}, 0")
        if ex:
            k.e(f"s_mov_b32 s{sA}, 0")
        k.wait(vm="ge")
        retry, ok = k.label("ger"), k.label("gek")
        again = k.label("gea")
        k.e(f"{again}:")
        test = "v_cmp_gt_i32 vcc, 0," if ex else "v_cmp_eq_u32 vcc, -1,"
        check(RAW, 8, vT0)
        k.e(f"{test} v{vT0}\ns_cbranch_vccnz {retry}\n{ok}:")
        self.ool.append(("pollx" if ex else "poll", retry, ok, again, ge_loads))
        if ex:
            fe_loads(True)
        else:
            k.e(f"s_mov_b32 s{sA}, {f32(CT)}")
            fe_loads(True)
            for r in range(8):
                for i in range(4):
                    src = RAW + 4 * r + i
                    k.e(f"v_lshlrev_b32 v{CB + 8 * r + 2 * i}, 16, v{src}")
                    k.e(f"v_and_b32 v{CB + 8 * r + 2 * i + 1}, 0xffff0000, v{src}")
            for i in range(64):
                k.e(f"v_mul_f32 v{CB + i}, s{sA}, v{CB + i}")
        self.stamp("cb")
        self.wo_tr(2)
        late_tr = []
        if self.o["trb3"] == "pre":
            self.wo_tr(3)
        else:
            late_tr = self.wo_tr_ops(3)
        k.e(f"s_mov_b32 s{sSPIN}, 0")
        k.wait(vm=("fe", 7))
        retry, ok = k.label("fer"), k.label("fek")
        again = k.label("fea")
        k.e(f"{again}:")
        check(FR, 8, vT0)
        k.e(f"{test} v{vT0}\ns_cbranch_vccnz {retry}\n{ok}:")
        self.ool.append(("poll", retry, ok, again, fe_loads))
        return late_tr

    def s4_head_ex(self, CB, FR, Z):
        k = self.k
        vGG, vFG, vCRD, vFRD, vJ0, vJ2 = [8, 12, 13, 14], [9, 20], 21, 22, 10, 11
        GR, FB = 160, 176
        k.e(f"""
        v_and_b32 v{vT0}, 7, v{vL}
        v_lshlrev_b32 v{vT0}, 4, v{vT0}
        v_bfe_u32 v{vT1}, v{vL}, 3, 1
        v_lshl_add_u32 v{vT2}, v{vT1}, 8, v{vT0}
        v_lshl_add_u32 v{vT3}, v{vT1}, 9, v{vT0}
        v_bfe_u32 v{vT1}, v{vL}, 4, 1
        v_lshl_add_u32 v{vT2}, v{vT1}, 7, v{vT2}
        v_lshrrev_b32 v{vT1}, 5, v{vL}
        v_lshl_add_u32 v{vCRD}, v{vT1}, 7, v{vT0}
        v_add_u32 v{vCRD}, s{sRW}, v{vCRD}
        v_add_u32 v{vT1}, s{sML}, v{vT1}
        """)
        for j in range(4):
            k.e(f"""
            v_add_u32 v{vT0}, {2 * j}, v{vT1}
            v_and_b32 v{vT0}, 7, v{vT0}
            v_lshl_add_u32 v{vGG[j]}, v{vT0}, 11, v{vT2}
            """)
        k.e(f"""
        s_lshl_b32 s{sGL}, s{sB}, 14
        s_lshl_b32 s{sT0}, s{sW}, 9
        s_add_u32 s{sGL}, s{sGL}, s{sT0}
        s_add_u32 s{sGL}, s{sGL}, {GE_OFF}
        """)

        def ge_loads(counted):
            for j in range(4):
                ins = f"buffer_load_dwordx4 {vr(GR + 4 * j, 4)}, v{vGG[j]}, {sr(SWS, 4)}, s{sGL} offen sc1"
                if counted:
                    k.vmem(ins, "ge")
                else:
                    k.e(ins)

        def fe_loads(counted):
            for j in range(2):
                ins = f"buffer_load_dwordx4 {vr(FB + 4 * j, 4)}, v{vFG[j]}, {sr(SWS, 4)}, s{sFE} offen sc1"
                if counted:
                    k.vmem(ins, "fe")
                else:
                    k.e(ins)
        ge_loads(True)
        k.e(f"""
        v_lshrrev_b32 v{vT1}, 4, v{vL}
        v_add_u32 v{vT1}, s{sML}, v{vT1}
        v_and_b32 v{vT0}, 7, v{vT1}
        v_lshl_add_u32 v{vFG[0]}, v{vT0}, 12, v{vT3}
        v_xor_b32 v{vFG[1]}, 16384, v{vFG[0]}
        v_lshrrev_b32 v{vT1}, 5, v{vL}
        v_bfe_u32 v{vT0}, v{vL}, 3, 2
        v_lshlrev_b32 v{vT0}, 4, v{vT0}
        v_lshl_add_u32 v{vFRD}, v{vT1}, 7, v{vT0}
        v_add_u32 v{vFRD}, s{sRW}, v{vFRD}
        v_lshlrev_b32 v{vJ0}, 4, v{vL}
        v_add_u32 v{vJ2}, {2 * RW}, v{vJ0}
        s_lshl_b32 s{sFE}, s{sM}, 15
        s_lshl_b32 s{sT0}, s{sW}, 10
        s_add_u32 s{sFE}, s{sFE}, s{sT0}
        s_lshl_b32 s{sT0}, s{sJN}, 7
        s_add_u32 s{sFE}, s{sFE}, s{sT0}
        s_add_u32 s{sFE}, s{sFE}, {FE_OFF}
        """)
        self.wo_issue(2, self.o["b2C"], 8)
        self.wo_tr(1)
        k.wait(lg="all")
        if self.o.get("feat", 0) == -2:
            fe_loads(True)
        if not self.o.get("b3late"):
            self.wo_issue(3, 0, 8)
        if self.o.get("feat", 0) == -1:
            fe_loads(True)
        k.e(f"s_mov_b32 s{sSPIN}, 0\ns_mov_b32 s{sA}, 0")
        k.wait(vm="ge")
        retry, ok, again = k.label("ger"), k.label("gek"), k.label("gea")
        k.e(f"""
        {again}:
        v_max_u32 v{vT0}, v{GR + 3}, v{GR + 7}
        v_max3_u32 v{vT0}, v{vT0}, v{GR + 11}, v{GR + 15}
        v_cmp_gt_i32 vcc, 0, v{vT0}
        s_cbranch_vccnz {retry}
        {ok}:
        """)
        self.ool.append(("pollx", retry, ok, again, ge_loads))
        if self.o.get("feat", 0) == 0:
            fe_loads(True)
        for j in range(4):
            k.ds(f"ds_write_b128 v{vLIN}, {vr(GR + 4 * j, 4)} offset:{j * 1024}", "gw")
        if self.o.get("b3late"):
            self.wo_issue(3, 0, 8)
        k.wait(lg="gw")
        for r in range(8):
            for hf in range(2):
                k.ds(f"ds_read_b128 {vr(CB + 8 * r + 4 * hf, 4)}, v{vCRD} offset:{r * 512 + hf * 256}", "cb")
        if self.o.get("feat", 0) == 1:
            fe_loads(True)
        self.stamp("cb")
        self.wo_tr(2)
        if self.o.get("feat", 0) == 2:
            fe_loads(True)
        late_tr = self.wo_tr_ops(3)
        k.e(f"s_mov_b32 s{sSPIN}, 0")
        k.wait(vm="fe")
        retry, ok, again = k.label("fer"), k.label("fek"), k.label("fea")
        k.e(f"""
        {again}:
        v_max_u32 v{vT0}, v{FB + 3}, v{FB + 7}
        v_cmp_gt_i32 vcc, 0, v{vT0}
        s_cbranch_vccnz {retry}
        {ok}:
        """)
        self.ool.append(("pollx", retry, ok, again, fe_loads))
        for j in range(2):
            k.ds(f"ds_write_b128 v{vLIN}, {vr(FB + 4 * j, 4)} offset:{FS + j * 1024}", "fw")

        def fr_read(r):
            for hf in range(2):
                k.ds(f"ds_read_b128 {vr(FR + 8 * r + 4 * hf, 4)}, v{vFRD} offset:{FS + r * 256 + hf * 64}", ("fr", r))
        slow, fast = k.label("exs"), k.label("exq")
        k.e(f"s_cmp_lg_u32 s{sA}, 0\ns_cbranch_scc1 {slow}\n{fast}:")
        self.ool.append(("exslow", slow, fast, CB, FR, Z, vFRD))
        k.wait(lg="all")
        for r in range(4):
            fr_read(r)
        return late_tr, fr_read

    def s4_loop(self, CB, FR, Z, JP, BF, ACC, OUT, late_tr, fr_read):
        k = self.k
        ex = self.o["ex"]
        vJ0, vJ2 = 10, 11

        def j_ops(r):
            ops = []
            z = Z + 8 * (r & 1)
            jp = JP + 4 * (r & 1)
            if ex:
                for i in range(8):
                    ops.append((f"v_fma_f32 v{z + i}, v{FR + 8 * r + i}, v{CB + 8 * r + i}, 1.0", 4))
                for i in range(8):
                    ops.append((f"v_rcp_f32 v{z + i}, v{z + i}", 8))
                for i in range(8):
                    ops.append((f"v_fma_f32 v{z + i}, v{z + i}, -2.0, 1.0", 4))
                for i in range(4):
                    ops.append((f"v_cvt_pk_bf16_f32 v{jp + i}, v{z + 2 * i}, v{z + 2 * i + 1}", 4))
                ops.append(("ds", f"ds_write_b128 v{vLIN}, {vr(jp, 4)} offset:{r * 1024}", ("jw", r)))
                return ops
            for i in range(4):
                ops.append((f"v_lshlrev_b32 v{z + 2 * i}, 16, v{FR + 4 * r + i}", 4))
                ops.append((f"v_and_b32 v{z + 2 * i + 1}, 0xffff0000, v{FR + 4 * r + i}", 4))
            for i in range(8):
                ops.append((f"v_fma_f32 v{z + i}, v{z + i}, s{sA}, v{CB + 8 * r + i}", 4))
            for i in range(8):
                ops.append((f"v_exp_f32 v{z + i}, v{z + i}", 8))
            for i in range(8):
                ops.append((f"v_add_f32 v{z + i}, 1.0, v{z + i}", 4))
            for i in range(8):
                ops.append((f"v_rcp_f32 v{z + i}, v{z + i}", 8))
            for i in range(8):
                ops.append((f"v_fma_f32 v{z + i}, v{z + i}, -2.0, 1.0", 4))
            for i in range(4):
                ops.append((f"v_cvt_pk_bf16_f32 v{jp + i}, v{z + 2 * i}, v{z + 2 * i + 1}", 4))
            ops.append(("ds", f"ds_write_b128 v{vLIN}, {vr(jp, 4)} offset:{r * 1024}", ("jw", r)))
            return ops

        dbg = self.o.get("s4dbg", "")

        def emit(op):
            if op[0] == "ds":
                k.ds(op[1], op[2])
                return 4
            t = op[0]
            if "notrans" in dbg:
                t = t.replace("v_exp_f32", "v_mov_b32").replace("v_rcp_f32", "v_mov_b32")
            if "novalu" not in dbg and not ("nofma" in dbg and t.startswith("v_fma")):
                k.e(t)
            return op[1]

        def read1(r, jj):
            b = BF + 16 * (r & 1)
            a = vJ0 if jj < 2 else vJ2
            k.ds(f"ds_read_b128 {vr(b + 4 * jj, 4)}, v{a} offset:{(jj & 1) * RW + r * 1024}", ("jr", r, jj))

        def reads(r):
            for jj in range(4):
                read1(r, jj)

        k.wait(lg=("fr", 0) if ex else "all")
        if "twice" in dbg:
            k.e(f"s_mov_b32 s{sSPIN}, 0\nL_twice:\ns_waitcnt lgkmcnt(0)\ns_barrier")
            self.stamp("fepoll2")
        for op in j_ops(0):
            emit(op)
        o1 = j_ops(1)
        n1 = 8 if ex else 16
        if ex:
            k.wait(lg=("fr", 1))
        for op in o1[:n1]:
            emit(op)
        k.wait(lg=("jw", 0))
        k.e("s_barrier")
        reads(0)
        for op in o1[n1:]:
            emit(op)
        self.stamp("j01")
        for r in range(8):
            ops = j_ops(r + 2) if r + 2 < 8 else []
            total = sum(op[1] if op[0] != "ds" else 4 for op in ops)
            spread = self.o.get("s4spread", 0)
            if not spread:
                k.wait(lg=("jr", r, 3))
            b = BF + 16 * (r & 1)
            spent = 0
            bar_at = self.o["s4bar"] + (self.o.get("s4bar0", 2) if r == 0 else 0)
            assert bar_at + 3 * spread <= 7
            for i in range(8):
                jj, ct = i // 2, i % 2
                q = 4 * r + jj
                if r == 6 and i == 0:
                    k.wait(lg=("two", 3))
                if spread and ct == 0:
                    k.wait(lg=("jr", r, jj))
                if "nomfma" not in dbg:
                    self.mfma32(ACC + 16 * ct, 8 * q + 4 * ct, b + 4 * jj, r == 0 and jj == 0, ak="a")
                if ex and r < 2 and i < 2:
                    fr_read(4 + 2 * r + i)
                if i == bar_at and r + 1 < 8:
                    self.stamp(f"ba{r}")
                    k.wait(lg=("jw", r + 1))
                    self.stamp(f"bb{r}")
                    if "nobar" not in dbg:
                        k.e("s_barrier")
                    self.stamp(f"bc{r}")
                    if not spread:
                        reads(r + 1)
                if spread and r + 1 < 8 and 0 <= (i - bar_at) < 4 * spread and (i - bar_at) % spread == 0:
                    read1(r + 1, (i - bar_at) // spread)
                if late_tr and i > bar_at and r >= self.o.get("ltr0", 2 if ex else 0):
                    if (self.o.get("b3late") or self.o.get("feat", 0) == -2) and len(late_tr) == 32:
                        k.wait(vm=("wo", 3, 7))
                    left = sum(7 - self.o["s4bar"] for rr in range(r + 1, 6)) + (8 - i)
                    for _ in range(max(2, -(-len(late_tr) // max(left, 1)))):
                        if late_tr:
                            emit(late_tr.pop(0))
                while ops and spent < total * (i + 1) / 8:
                    spent += emit(ops.pop(0))
            while ops:
                emit(ops.pop(0))
            self.stamp(f"s4r{r}")
        assert not late_tr
        if "twice" in dbg:
            k.e(f"s_add_u32 s{sSPIN}, s{sSPIN}, 1\ns_cmp_lt_u32 s{sSPIN}, 2\ns_cbranch_scc1 L_twice")
        self.stamp("s4mfma")
        k.e(f"""
        s_lshl_b32 s{sT0}, s{sMT}, 7
        s_lshl_b32 s{sT1}, s{sJN}, 5
        s_add_u32 s{sT0}, s{sT0}, s{sT1}
        s_lshl_b32 s{sT0}, s{sT0}, 10
        s_lshl_b32 s{sT1}, s{sNH}, 9
        s_add_u32 s{sT0}, s{sT0}, s{sT1}
        s_lshl_b32 s{sT1}, s{sW}, 7
        s_add_u32 s{sT0}, s{sT0}, s{sT1}
        v_and_b32 v{vT0}, 31, v{vL}
        v_lshlrev_b32 v{vT0}, 10, v{vT0}
        v_lshrrev_b32 v{vT1}, 5, v{vL}
        v_lshl_add_u32 v{vT0}, v{vT1}, 4, v{vT0}
        v_add_u32 v{vT0}, s{sT0}, v{vT0}
        """)
        k.nop(2)
        for ct in range(2):
            for a in range(2):
                src = ACC + 16 * ct + 8 * a
                dst = OUT + 8 * ct + 4 * a
                for i in range(4):
                    k.e(f"v_cvt_pk_bf16_f32 v{dst + i}, v{src + 2 * i}, v{src + 2 * i + 1}")
                o = ct * 64 + a * 32
                os_ = f" offset:{o}" if o else ""
                k.vmem(f"buffer_store_dwordx4 {vr(dst, 4)}, v{vT0}, {sr(SOUT, 4)}, 0 offen{os_}", "out")

    def epilogue(self):
        k = self.k
        if self.stamps:
            self.stamp("end")
            n = self.nst
            k.e("s_waitcnt vmcnt(0) lgkmcnt(0)")
            for i in range(n):
                k.e(f"v_writelane_b32 v{vT1}, s{STAMP0 + 2 * i}, {i}")
            k.e(f"""
            s_lshl_b32 s{sT0}, s2, 2
            s_add_u32 s{sT0}, s{sT0}, s{sW}
            s_lshl_b32 s{sT0}, s{sT0}, 6
            s_add_u32 s{sT0}, s{sT0}, {STAMP_OFF}
            s_mov_b32 s{SWS + 2}, {STAMP_OFF + (1 << 20)}
            v_lshlrev_b32 v{vT0}, 2, v{vL}
            s_mov_b64 exec, 0xffff
            buffer_store_dword v{vT1}, v{vT0}, {sr(SWS, 4)}, s{sT0} offen
            """)
        k.e("s_waitcnt vmcnt(0)\nL_end:\ns_endpgm")
        for item in self.ool:
            if item[0] == "hs":
                _, top, done = item
                k.e(f"""
                {top}:
                s_mov_b32 s{sSPIN}, 0
                v_and_b32 v{vT0}, 3, v{vL}
                v_lshlrev_b32 v{vT0}, 6, v{vT0}
                {top}_l:
                """)
                self.spin_check(done)
                k.e(f"""
                buffer_load_dword v{vHS}, v{vT0}, {sr(SDBG, 4)}, 0 offen sc1
                s_waitcnt vmcnt(0)
                v_cmp_gt_u32 vcc, 64, v{vHS}
                s_cbranch_vccnz {top}_l
                s_branch {done}
                """)
            elif item[0] == "g":
                _, top, join, vm, lg = item
                k.vm, k.lg = vm, lg
                k.e(f"{top}:")
                self.g_block()
                k.e(f"s_branch {join}")
            elif item[0] == "glate":
                _, top, join, vm, lg, self.wo_next = item
                k.vm, k.lg = vm, lg
                k.e(f"{top}:")
                self.glate_block(join)
            elif item[0] == "exfix":
                _, top, ok, PK, T, A = item
                k.e(f"{top}:")
                for i in range(2):
                    k.e(f"v_and_b32 v{A + 2 * i}, 0xffff, v{PK + i}")
                    k.e(f"v_lshrrev_b32 v{A + 2 * i + 1}, 16, v{PK + i}")
                for i in range(4):
                    k.e(f"v_or_b32 v{A + i}, 0x80000000, v{A + i}")
                for i in range(4):
                    k.e(f"v_cndmask_b32 v{T + i}, v{T + i}, v{A + i}, vcc")
                k.e(f"s_branch {ok}")
            elif item[0] == "pollx":
                _, retry, ok, back, loads = item
                real = retry + "_r"
                k.e(f"""
                {retry}:
                v_cmp_eq_u32 vcc, -1, v{vT0}
                s_cbranch_vccnz {real}
                s_mov_b32 s{sA}, 1
                s_branch {ok}
                {real}:
                """)
                self.spin_check(ok)
                loads(False)
                k.e(f"s_waitcnt vmcnt(0)\ns_branch {back}")
            elif item[0] == "exslow":
                _, top, ok, CB, FR, Z, vFRD = item
                k.e(f"{top}:\ns_mov_b32 s{sA}, {f32(CT)}\ns_waitcnt lgkmcnt(0)")
                for r in range(8):
                    for hf in range(2):
                        k.e(f"ds_read_b128 {vr(FR + 8 * r + 4 * hf, 4)}, v{vFRD} offset:{FS + r * 256 + hf * 64}")
                k.e("s_waitcnt lgkmcnt(0)")
                for i in range(64):
                    for src, t in ((CB + i, Z), (FR + i, Z + 2)):
                        k.e(f"""
                        v_cmp_gt_i32 vcc, 0, v{src}
                        v_log_f32 v{t + 1}, v{src}
                        v_lshlrev_b32 v{t}, 16, v{src}
                        v_mul_f32 v{t}, s{sA}, v{t}
                        v_cndmask_b32 v{t}, v{t + 1}, v{t}, vcc
                        """)
                    k.e(f"""
                    v_add_f32 v{Z}, v{Z}, v{Z + 2}
                    s_nop 0
                    v_exp_f32 v{CB + i}, v{Z}
                    """)
                for i in range(4):
                    k.e(f"v_mov_b32 v{Z + 4 + i}, 1.0")
                for j in range(2):
                    k.e(f"ds_write_b128 v{vLIN}, {vr(Z + 4, 4)} offset:{FS + j * 1024}")
                k.e(f"s_branch {ok}")
            elif item[0] == "smp":
                _, top, done, vaddr, sbase = item
                k.e(f"{top}:\ns_mov_b32 s{sSPIN}, 0\n{top}_l:")
                self.spin_check(done)
                k.e(f"""
                buffer_load_dword v{vHS}, v{vaddr}, {sr(SWS, 4)}, s{sbase} offen sc1
                s_waitcnt vmcnt(0)
                v_cmp_eq_u32 vcc, -1, v{vHS}
                s_cbranch_vccnz {top}_l
                s_branch {done}
                """)
            else:
                kind, retry, ok, back, loads = item
                k.e(f"{retry}:")
                self.spin_check(ok)
                if kind == "bulk":
                    loads(False, True)
                else:
                    loads(False)
                k.e(f"s_waitcnt vmcnt(0)\ns_branch {back}")
        k.e("L_last:\ns_endpgm")

    def build(self):
        k = self.k
        stop = self.stop_after
        self.prologue()
        self.stage1()
        self.w2_finish()
        if stop != "s1":
            self.stage2()
            self.stage2_tail()
            if stop not in ("s2", "ge"):
                self.stage3()
                if stop != "s3":
                    self.stage4()
        self.epilogue()
        return self.text()

    def text(self):
        head = f"""; RNN-T joint network: two stride-2 conv stems, w_f / w_g projections, tanh, w_o.
; @launch grid=(256,1,1) block=(256,1,1) lds={LDS_BYTES}
.amdgcn_target "amdgcn-amd-amdhsa--gfx950"
.text
.globl {NAME}
.p2align 8
.type {NAME},@function
{NAME}:
"""
        tail = f"""
.section .rodata,"a"
.p2align 6
.amdhsa_kernel {NAME}
  .amdhsa_next_free_vgpr 512
  .amdhsa_next_free_sgpr 102
  .amdhsa_accum_offset 256
  .amdhsa_group_segment_fixed_size 0
  .amdhsa_kernarg_size 80
  .amdhsa_user_sgpr_count 2
  .amdhsa_user_sgpr_kernarg_segment_ptr 1
  .amdhsa_system_sgpr_workgroup_id_x 1
.end_amdhsa_kernel
"""
        return head + self.k.text() + tail


if __name__ == "__main__":
    out = sys.argv[1] if len(sys.argv) > 1 else "cdna_kernels/" + NAME.replace("_kernel", "") + ".s"
    g = Gen2(stamps=False)
    open(out, "w").write(g.build())
    print("wrote", out)
```

```python
import math
import sys
from kb import K, vr, ar, sr, f32

NAME = "standalone__seq2seq_rnn_t_joint__speech_kernel"

H_OFF = 65536
F_OFF = H_OFF + (1 << 20)
FE_OFF = F_OFF + (1 << 19)
GE_OFF = FE_OFF + (1 << 20)
P_OFF = GE_OFF + 65536
WS_REC = 4 << 20
STAMP_OFF = 8 << 20
OOB = 0x80000000
SPIN_MAX = 4096

RW = 40960
RB = 17408
LDS_BYTES = 163840
T4 = [RB + 4096 * t for t in range(5)]
XS = [4096 * t for t in range(4)]
GS = RB + 20480
FS = GS + 1024

SX, SW1, SW2, SG, SWF, SWG, SWO, SOUT, SDBG, SWS = 24, 28, 32, 36, 40, 44, 48, 52, 56, 60
sW, sM, sN, sB, sMT, sRW, sML, sJN = 64, 65, 66, 67, 68, 69, 70, 71
sKI, sKC = 72, 3
sT0, sT1, sT2, sT3 = 73, 74, 75, 76
sSPIN = 77
STAMP0 = 78
sH, sFL, sFS, sFE, sGL, sGS, sHS, sA, sB2 = 4, 5, 6, 7, 8, 9, 10, 11, 12
sR4 = [13, 14, 15, 16]
sNH = 17
sFES, sWQ = 18, 19

vL, vT0, vT1, vT2, vT3, vLIN, vRD = 1, 2, 3, 4, 5, 6, 7
vXW = 8
vXA, vXZ, vQ0 = 12, 13, 14
vWA0, vWA1, vTR0, vTR1 = 15, 16, 17, 18
vXB = 19
vBA = 22
vW2 = 24
vT16 = 28
vONES = 32
vHS = 36
AF, BFR, ACC1, R1 = 40, 56, 64, 96
vLIN16, vH0, vSMP, vST, vRD2, vKC3, vSV, vFSM, vGST = 8, 9, 10, 11, 12, 13, 14, 19, 20
HB, ACC2, R2 = 128, 176, 192
vPF = 37
vGP = 21
vFST = 19

C1 = 2 * math.log2(math.e) * math.sqrt(2 / math.pi)
C3 = C1 * 0.044715
CT = 2 * math.log2(math.e)
EX_MAX = 125.0

DEFAULT_STAMPS = ("start", "iss", "x0", "s1mfma", "hst", "w2done", "hpoll", "s2mfma", "fst", "s3mfma", "fest", "end")
S1_STAMPS = ("start", "karg", "iss0", "iss", "x0", "u5", "u11", "u17", "s1mfma", "hst", "w2done", "end")
R4_STAMPS = ("start", "fepoll", "j01", "s4r0", "s4r1", "s4r2", "s4r3", "s4r4", "s4r5", "s4r6", "s4r7", "end")
R5_STAMPS = ("start", "fepoll2", "j01", "s4r0", "s4r1", "s4r2", "s4r3", "s4r4", "s4r5", "s4r6", "s4r7", "end")
G_STAMPS = ("start", "hst", "g0", "gdma", "gw2", "gwg", "gld", "gmf", "gend", "w2done", "hpoll", "end")
GL_STAMPS = ("start", "fst", "gdma", "gwg", "gld", "gmf", "gend", "fpoll", "s3mfma", "fest", "fepoll", "end")
S2_STAMPS = ("start", "s1mfma", "hst", "w2done", "hpoll", "s2mfma", "fst", "fpoll", "s3mfma", "fest", "fepoll", "end")
P_STAMPS = ("start", "karg", "probe", "iss0", "iss", "x0", "u5", "u11", "u17", "s1mfma", "hst", "end")
S4_STAMPS = ("start", "hst", "s2mfma", "fst", "fpoll", "s3mfma", "fest", "cb", "fepoll", "s4r3", "s4mfma", "end")


class Gen2:
    def __init__(self, stop_after=None, stamps=True, opts=None):
        self.k = K()
        self.stop_after = stop_after
        self.stamps = stamps
        self.nst = 0
        self.names = []
        self.o = dict(prefetch=False, rot=True, hplain=True, fplain=False, x2=1, x3=2,
                      b1B=4, b2C=8, trb3="loop", s4bar=3, w2in=3, w2mid=0, glate=0, g4=1,
                      fdirect=1, hdirect=3, ex=0)
        self.o.update(opts or {})
        self.rot = 0
        self.ool = []

    def stamp(self, name):
        names = self.o.get("stamps", DEFAULT_STAMPS)
        if not self.stamps or name not in names:
            return
        self.names = list(names)
        self.nst = len(names)
        r = STAMP0 + 2 * names.index(name)
        self.k.e(f"{'s_memtime' if self.o.get('memtime') else 's_memrealtime'} s[{r}:{r + 1}]")

    def tmp(self):
        self.rot = (self.rot + 1) % 4
        return sT0 + self.rot

    def tile(self, key, dst):
        self.k.e(f"s_xor_b32 s{dst}, s{sN}, {self.o[key]}")

    def srd(self, d, ptr, off, nrec):
        k = self.k
        if off is None:
            k.e(f"s_mov_b32 s{d}, s{ptr}\ns_mov_b32 s{d + 1}, s{ptr + 1}")
        else:
            k.e(f"s_add_u32 s{d}, s{ptr}, s{off}\ns_addc_u32 s{d + 1}, s{ptr + 1}, 0")
        k.e(f"s_mov_b32 s{d + 2}, {nrec}\ns_mov_b32 s{d + 3}, 0x20000")

    def nt(self, srd):
        key = {SW1: "ntw1", SW2: "ntw2", SWF: "ntwf", SWG: "ntwg", SWO: "ntwo", SX: "ntx"}[srd]
        return " nt" if self.o.get(key) else ""

    def dma2k(self, srd, lds_off, soff, tag):
        k = self.k
        nt = self.nt(srd)
        k.e(f"s_add_u32 m0, s{sRW}, {lds_off}")
        k.e("s_nop 0")
        k.vmem(f"buffer_load_dwordx4 v{vWA0}, {sr(srd, 4)}, {soff} offen{nt} lds", tag)
        k.vmem(f"buffer_load_dwordx4 v{vWA1}, {sr(srd, 4)}, {soff} offen offset:1024{nt} lds", tag)

    def dma4k_ops(self, srd, lds_off, soff_fn, tag):
        k = self.k
        st = {}

        def op(q):
            if q == 0:
                st["s"] = soff_fn()
                k.e(f"s_add_u32 m0, s{sRW}, {lds_off}")
                k.e("s_nop 0")
            o = f" offset:{q * 1024}" if q else ""
            k.vmem(f"buffer_load_dwordx4 v{vW2 + q}, {sr(srd, 4)}, {st['s']} offen{o}{self.nt(srd)} lds", tag)
        return [lambda q=q: op(q) for q in range(4)]

    def dma4k(self, srd, lds_off, soff_fn, tag):
        for op in self.dma4k_ops(srd, lds_off, soff_fn, tag):
            op()

    def tr32(self, lds_off, dst, kind, tag):
        k = self.k
        for ct, a in enumerate((vTR0, vTR1)):
            k.ds(f"ds_read_b64_tr_b16 {vr(dst + 4 * ct, 2, kind)}, v{a} offset:{lds_off}", tag)
            k.ds(f"ds_read_b64_tr_b16 {vr(dst + 4 * ct + 2, 2, kind)}, v{a} offset:{lds_off + 512}", tag)

    def tr16(self, lds_off, dst, kind, tag):
        k = self.k
        for ct in range(4):
            k.ds(f"ds_read_b64_tr_b16 {vr(dst + 4 * ct, 2, kind)}, v{vT16 + ct} offset:{lds_off}", tag)
            k.ds(f"ds_read_b64_tr_b16 {vr(dst + 4 * ct + 2, 2, kind)}, v{vT16 + ct} offset:{lds_off + 512}", tag)

    def mfma32(self, d, a, b, first, ak="v"):
        c = "0" if first else vr(d, 16)
        self.k.e(f"v_mfma_f32_32x32x16_bf16 {vr(d, 16)}, {vr(a, 4, ak)}, {vr(b, 4)}, {c}")

    def mfma16(self, d, a, b, first, ak="a"):
        c = "0" if first else vr(d, 4)
        self.k.e(f"v_mfma_f32_16x16x32_bf16 {vr(d, 4)}, {vr(a, 4, ak)}, {vr(b, 4)}, {c}")

    def gelu(self, xs, tmp, kc3):
        k = self.k
        ts = [tmp + i for i in range(len(xs))]
        for x, t in zip(xs, ts):
            k.e(f"v_mul_f32 v{t}, v{x}, v{x}")
        for x, t in zip(xs, ts):
            k.e(f"v_fmaak_f32 v{t}, v{t}, v{kc3}, {f32(-C1)}")
        for x, t in zip(xs, ts):
            k.e(f"v_mul_f32 v{t}, v{t}, v{x}")
        for x, t in zip(xs, ts):
            k.e(f"v_exp_f32 v{t}, v{t}")
        for x, t in zip(xs, ts):
            k.e(f"v_add_f32 v{t}, 1.0, v{t}")
        for x, t in zip(xs, ts):
            k.e(f"v_rcp_f32 v{t}, v{t}")
        for x, t in zip(xs, ts):
            k.e(f"v_mul_f32 v{x}, v{x}, v{t}")

    def spin_check(self, done_label):
        self.k.e(f"s_add_u32 s{sSPIN}, s{sSPIN}, 1\ns_cmp_ge_u32 s{sSPIN}, {SPIN_MAX}\ns_cbranch_scc1 {done_label}")

    def prologue(self):
        k = self.k
        rot = self.o["rot"]
        k.e("""
        s_cmp_ge_u32 s2, 256
        s_cbranch_scc1 L_end
        s_load_dwordx16 s[4:19], s[0:1], 0
        s_load_dwordx4 s[20:23], s[0:1], 64
        """)
        self.stamp("start")
        k.e(f"""
        v_lshrrev_b32 v{vT0}, 6, v0
        v_and_b32 v{vL}, 63, v0
        v_readfirstlane_b32 s{sW}, v{vT0}
        s_and_b32 s{sT0}, s2, 7
        s_lshr_b32 s{sT1}, s2, 3
        s_add_u32 s{sJN}, s{sT1}, {self.o.get("jnrot", 0)}
        s_and_b32 s{sJN}, s{sJN}, 3
        s_lshr_b32 s{sML}, s{sT1}, 2
        s_and_b32 s{sT2}, s{sT0}, 1
        s_lshl_b32 s{sN}, s{sT2}, 2
        s_add_u32 s{sN}, s{sN}, s{sJN}
        s_lshr_b32 s{sT0}, s{sT0}, 1
        s_lshl_b32 s{sM}, s{sT0}, 3
        s_add_u32 s{sM}, s{sM}, s{sML}
        s_lshr_b32 s{sB}, s{sM}, 4
        s_and_b32 s{sMT}, s{sM}, 15
        s_mul_i32 s{sRW}, s{sW}, {RW}
        v_lshrrev_b32 v{vT0}, 4, v{vL}
        v_lshrrev_b32 v{vT1}, 5, v{vL}
        v_and_b32 v{vT2}, 15, v{vL}
        v_xor_b32 v{vT2}, v{vT2}, v{vT1}
        v_lshlrev_b32 v{vT2}, 4, v{vT2}
        v_lshl_add_u32 v{vXW}, v{vT0}, 10, v{vT2}
        """)
        for e in range(1, 4):
            k.e(f"v_xor_b32 v{vXW + e}, {e * 32}, v{vXW}")
            k.e(f"v_add_u32 v{vXW + e}, {e * 3072}, v{vXW + e}")
        k.e(f"""
        v_cmp_gt_u32 vcc, 16, v{vL}
        v_bfrev_b32 v{vT0}, 1
        v_lshrrev_b32 v{vT1}, 3, v{vL}
        v_cndmask_b32 v{vQ0}, 0, v{vT0}, vcc
        v_bfe_u32 v{vT2}, v{vT1}, 1, 1
        v_lshlrev_b32 v{vT2}, 2, v{vT2}
        v_and_b32 v{vT3}, 7, v{vL}
        v_xor_b32 v{vT2}, v{vT2}, v{vT3}
        v_lshlrev_b32 v{vT2}, 4, v{vT2}
        v_lshl_add_u32 v{vWA0}, v{vT1}, 10, v{vT2}
        v_add_u32 v{vWA1}, 7168, v{vWA0}
        s_lshl_b32 s{sT0}, s{sW}, 17
        s_lshl_b32 s{sT1}, s{sN}, 7
        s_add_u32 s3, s{sT0}, s{sT1}
        s_mul_i32 s{sT0}, s{sB}, 1000
        s_lshl_b32 s{sT1}, s{sMT}, 6
        s_add_u32 s{sT0}, s{sT0}, s{sT1}
        s_sub_u32 s{sT0}, s{sT0}, 1
        s_lshl_b32 s{sT0}, s{sT0}, 10
        s_lshl_b32 s{sT2}, s{sW}, 8
        s_add_u32 s{sT0}, s{sT0}, s{sT2}
        s_ashr_i32 s{sT3}, s{sT0}, 31
        s_sub_u32 s{sT1}, 1001, s{sT1}
        s_lshl_b32 s{sT1}, s{sT1}, 10
        s_sub_u32 s{SX + 2}, s{sT1}, s{sT2}
        s_mov_b32 s{SX + 3}, 0x20000
        s_sub_u32 s{SW1 + 2}, 1572864, s3
        s_mov_b32 s{SW1 + 3}, 0x20000
        """)
        if rot:
            k.e(f"s_lshl_b32 s{sKI}, s{sML}, 14")
        else:
            k.e(f"s_mov_b32 s{sKI}, 0")
        k.e("s_waitcnt lgkmcnt(0)")
        self.stamp("karg")
        k.e(f"""
        s_add_u32 s{SX}, s4, s{sT0}
        s_addc_u32 s{SX + 1}, s5, s{sT3}
        s_add_u32 s{SW1}, s6, s3
        s_addc_u32 s{SW1 + 1}, s7, 0
        """)

    def code_prefetch(self):
        k = self.k
        mode = self.o.get("cpf", 0)
        if not mode:
            return
        lab = k.label("pf")
        k.e(f"""
        s_cmp_lg_u32 s{sW}, {self.o.get("cpfw", 3)}
        s_cbranch_scc1 {lab}
        s_getpc_b64 s[{sT0 + 1}:{sT0 + 2}]
        L_pc:
        s_lshr_b32 s{sT0}, s2, 3
        s_lshl_b32 s{sT0}, s{sT0}, 11
        v_lshlrev_b32 v{vT0}, 7, v{vL}
        v_add_u32 v{vT0}, s{sT0}, v{vT0}
        v_min_u32 v{vT0}, L_last-L_pc, v{vT0}
        s_mov_b64 exec, 0xffff
        global_load_dword v{vPF}, v{vT0}, s[{sT0 + 1}:{sT0 + 2}]
        s_mov_b64 exec, -1
        {lab}:
        """)

    def g_prefetch(self):
        k = self.k
        k.e(f"""
        s_lshr_b32 s{sT0}, s2, 3
        s_lshl_b32 s{sT1}, s{sT0}, 12
        v_lshlrev_b32 v{vT0}, 10, v{vL}
        v_add_u32 v{vT0}, s{sT1}, v{vT0}
        s_lshr_b32 s{sT1}, s{sT0}, 1
        s_lshl_b32 s{sT1}, s{sT1}, 10
        s_and_b32 s{sT0}, s{sT0}, 1
        s_lshl_b32 s{sT0}, s{sT0}, 7
        s_add_u32 s{sT0}, s{sT0}, s{sT1}
        v_mov_b32 v{vT1}, s{sT0}
        s_mov_b64 exec, 15
        """)
        k.vmem(f"buffer_load_dword v{vPF}, v{vT0}, {sr(SWG, 4)}, 0 offen", "pf")
        k.e("s_mov_b64 exec, 1")
        k.vmem(f"buffer_load_dword v{vPF + 1}, v{vT1}, {sr(SG, 4)}, 0 offen", "pf")
        k.e("s_mov_b64 exec, -1")

    def l2pf(self, pos):
        k = self.k
        for key, srd, lanes in (("pfw2", SW2, 48), ("pfwf", SWF, 16), ("pfwo", SWO, 16)):
            if self.o.get(key) != pos:
                continue
            if srd == SWO:
                k.e(f"s_lshr_b32 s{sT0}, s2, 3\ns_lshl_b32 s{sT0}, s{sT0}, 14")
            else:
                k.e(f"s_lshl_b32 s{sT0}, s{sML}, 14")
            k.e(f"""
            v_and_b32 v{vT1}, 15, v{vL}
            v_lshlrev_b32 v{vT1}, 10, v{vT1}
            v_lshrrev_b32 v{vT2}, 4, v{vL}
            v_lshl_add_u32 v{vT1}, v{vT2}, 19, v{vT1}
            s_bfm_b64 exec, {lanes}, 0
            """)
            k.vmem(f"buffer_load_dword v{vPF}, v{vT1}, {sr(srd, 4)}, s{sT0} offen", "pf")
            k.e("s_mov_b64 exec, -1")

    def x_quarter(self, qq):
        k = self.k
        a, z = sT0, sT1
        if self.o["rot"]:
            k.e(f"s_add_u32 s{a}, s{sJN}, {qq}\ns_and_b32 s{a}, s{a}, 3")
        else:
            k.e(f"s_mov_b32 s{a}, {qq}")
        k.e(f"""
        s_lshl_b32 s{sT2}, s{a}, 12
        s_add_u32 m0, s{sT2}, s{sRW}
        s_or_b32 s{z}, s{a}, s{sMT}
        s_cmp_eq_u32 s{z}, 0
        s_cselect_b32 s{z}, -1, 0
        s_and_b32 s{sT3}, s{a}, 1
        s_lshl_b32 s{sT3}, s{sT3}, 7
        s_lshl_b32 s{a}, s{a}, 14
        s_or_b32 s{a}, s{a}, s{sT3}
        """)
        for e in range(4):
            t = vXA if e % 2 == 0 else vXZ
            k.e(f"v_xor_b32 v{t}, s{a}, v{vXW + e}")
            if e == 0:
                k.e(f"v_and_or_b32 v{t}, v{vQ0}, s{z}, v{t}")
            o = f" offset:{e * 1024}" if e else ""
            k.vmem(f"buffer_load_dwordx4 v{t}, {sr(SX, 4)}, 0 offen{o}{self.nt(SX)} lds", "x")
            if qq == 0 and self.o.get("probe") == e + 1:
                k.e("s_waitcnt vmcnt(0)")
                self.stamp("probe")

    def x_tail(self):
        k = self.k
        k.e(f"""
        v_lshlrev_b32 v{vXA}, 4, v{vL}
        v_add_u32 v{vXA}, 65536, v{vXA}
        s_add_u32 m0, s{sRW}, 16384
        s_mov_b64 exec, 0xffff
        """)
        k.vmem(f"buffer_load_dwordx4 v{vXA}, {sr(SX, 4)}, 0 offen{self.nt(SX)} lds", "x")
        k.e("s_mov_b64 exec, -1")

    def w1_issue(self, u):
        k = self.k
        i = u % 3
        if i == 0 and u:
            k.e(f"s_add_u32 s{sKI}, s{sKI}, 16384\ns_and_b32 s{sKI}, s{sKI}, 0x1c000")
        if i:
            t = self.tmp()
            k.e(f"s_add_u32 s{t}, s{sKI}, {i * 524288}")
            so = f"s{t}"
        else:
            so = f"s{sKI}"
        self.dma2k(SW1, RB + 2048 * (u % 10), so, ("w1", u))

    def rot4(self):
        k = self.k
        for j in range(4):
            if self.o["rot"]:
                k.e(f"s_add_u32 s{sR4[j]}, s{sML}, {j}\ns_and_b32 s{sR4[j]}, s{sR4[j]}, 3\ns_lshl_b32 s{sR4[j]}, s{sR4[j]}, 10")
            else:
                k.e(f"s_mov_b32 s{sR4[j]}, {j * 1024}")

    def w32_soff(self, j, tap):
        def fn():
            t = self.tmp()
            self.k.e(f"s_lshl_b32 s{t}, s{sR4[j]}, 5")
            if tap:
                self.k.e(f"s_add_u32 s{t}, s{t}, {tap * 524288}")
            return f"s{t}"
        return fn

    def w2_slot(self, v):
        xs = [XS[2], XS[3], XS[0], XS[1]] if self.o["w2mid"] else XS
        return [T4[2], T4[3], T4[4], T4[0], T4[1], xs[0], xs[1], xs[2], xs[3], T4[2], T4[3], T4[4]][v]

    def w2_ops(self, v):
        return self.dma4k_ops(SW2, self.w2_slot(v), self.w32_soff(v // 3, v % 3), ("w2", v))

    def clears(self):
        k = self.k
        self.srd(SWS, 22, None, WS_REC)
        k.e(f"""
        v_mov_b32 v{vONES}, -1
        v_mov_b32 v{vONES + 1}, -1
        v_mov_b32 v{vONES + 2}, -1
        v_mov_b32 v{vONES + 3}, -1
        v_lshlrev_b32 v{vT0}, 4, v{vL}
        s_lshl_b32 s{sT0}, s{sM}, 14
        s_lshl_b32 s{sT2}, s{sW}, 9
        s_add_u32 s{sT0}, s{sT0}, s{sT2}
        """)
        self.tile("x2", sT1)
        k.e(f"""
        s_lshl_b32 s{sT1}, s{sT1}, 11
        s_add_u32 s{sT2}, s{sT0}, {F_OFF}
        s_add_u32 s{sT2}, s{sT2}, s{sT1}
        """)
        self.tile("x3", sT1)
        ex = self.o["ex"]
        if ex:
            k.e(f"""
            s_lshl_b32 s{sT1}, s{sT1}, 11
            s_add_u32 s{sT3}, s{sT0}, s{sT1}
            s_lshl_b32 s{sT3}, s{sT3}, 1
            s_add_u32 s{sT3}, s{sT3}, {FE_OFF}
            """)
            k.vmem(f"buffer_store_dwordx4 {vr(vONES, 4)}, v{vT0}, {sr(SWS, 4)}, s{sT3} offen sc1", "clr")
            k.e("s_mov_b32 exec_hi, 0")
            k.vmem(f"buffer_store_dwordx4 {vr(vONES, 4)}, v{vT0}, {sr(SWS, 4)}, s{sT2} offen sc1", "clr")
        else:
            k.e(f"""
            s_lshl_b32 s{sT1}, s{sT1}, 11
            s_add_u32 s{sT3}, s{sT0}, {FE_OFF}
            s_add_u32 s{sT3}, s{sT3}, s{sT1}
            s_mov_b32 exec_hi, 0
            """)
            k.vmem(f"buffer_store_dwordx4 {vr(vONES, 4)}, v{vT0}, {sr(SWS, 4)}, s{sT2} offen sc1", "clr")
            k.vmem(f"buffer_store_dwordx4 {vr(vONES, 4)}, v{vT0}, {sr(SWS, 4)}, s{sT3} offen sc1", "clr")
        lab = k.label("c0")
        k.e(f"""
        s_mov_b64 exec, -1
        s_cmp_lg_u32 s{sW}, 0
        s_cbranch_scc1 {lab}
        s_lshl_b32 s{sT0}, s{sM}, 15
        s_lshl_b32 s{sT1}, s{sN}, 11
        s_add_u32 s{sT0}, s{sT0}, s{sT1}
        s_add_u32 s{sT0}, s{sT0}, {H_OFF}
        s_add_u32 s{sT1}, s{sT0}, 16384
        buffer_store_dwordx4 {vr(vONES, 4)}, v{vT0}, {sr(SWS, 4)}, s{sT0} offen sc1
        buffer_store_dwordx4 {vr(vONES, 4)}, v{vT0}, {sr(SWS, 4)}, s{sT0} offen offset:1024 sc1
        buffer_store_dwordx4 {vr(vONES, 4)}, v{vT0}, {sr(SWS, 4)}, s{sT1} offen sc1
        buffer_store_dwordx4 {vr(vONES, 4)}, v{vT0}, {sr(SWS, 4)}, s{sT1} offen offset:1024 sc1
        """)
        if self.o["g4"]:
            k.e(f"""
            s_cmp_lg_u32 s{sN}, 0
            s_cbranch_scc1 {lab}
            s_and_b32 s{sT0}, s{sM}, 7
            s_lshr_b32 s{sT1}, s{sM}, 3
            s_lshl_b32 s{sT2}, s{sT0}, 14
            s_lshl_b32 s{sT3}, s{sT1}, 12
            s_add_u32 s{sT2}, s{sT2}, s{sT3}
            s_add_u32 s{sT2}, s{sT2}, {P_OFF}
            s_lshl_b32 s{sT0}, s{sT0}, {10 + ex}
            s_lshl_b32 s{sT1}, s{sT1}, {8 + ex}
            s_add_u32 s{sT0}, s{sT0}, s{sT1}
            s_add_u32 s{sT0}, s{sT0}, {GE_OFF}
            s_add_u32 s{sT1}, s{sT0}, {8192 << ex}
            buffer_store_dwordx4 {vr(vONES, 4)}, v{vT0}, {sr(SWS, 4)}, s{sT2} offen sc1
            buffer_store_dwordx4 {vr(vONES, 4)}, v{vT0}, {sr(SWS, 4)}, s{sT2} offen offset:1024 sc1
            buffer_store_dwordx4 {vr(vONES, 4)}, v{vT0}, {sr(SWS, 4)}, s{sT2} offen offset:2048 sc1
            buffer_store_dwordx4 {vr(vONES, 4)}, v{vT0}, {sr(SWS, 4)}, s{sT2} offen offset:3072 sc1
            s_bfm_b64 exec, {16 << ex}, 0
            buffer_store_dwordx4 {vr(vONES, 4)}, v{vT0}, {sr(SWS, 4)}, s{sT0} offen sc1
            buffer_store_dwordx4 {vr(vONES, 4)}, v{vT0}, {sr(SWS, 4)}, s{sT1} offen sc1
            s_mov_b64 exec, -1
            {lab}:
            """)
            return
        k.e(f"""
        s_cmp_ge_u32 s2, 8
        s_cbranch_scc1 {lab}
        s_lshl_b32 s{sT0}, s2, 10
        s_add_u32 s{sT0}, s{sT0}, {GE_OFF}
        s_add_u32 s{sT1}, s{sT0}, 8192
        buffer_store_dwordx4 {vr(vONES, 4)}, v{vT0}, {sr(SWS, 4)}, s{sT0} offen sc1
        buffer_store_dwordx4 {vr(vONES, 4)}, v{vT0}, {sr(SWS, 4)}, s{sT1} offen sc1
        {lab}:
        """)

    def prologue2(self):
        k = self.k
        for key, d, ptr, size in (("x2", SW2, 8, 1572864), ("x3", SWF, 12, 524288), (None, SWG, 14, 524288)):
            if key is None and self.o["g4"]:
                k.e(f"""
                s_and_b32 s{sT0}, s{sM}, 7
                s_lshl_b32 s{sT0}, s{sT0}, 7
                s_lshr_b32 s{sT1}, s{sM}, 3
                s_lshl_b32 s{sT1}, s{sT1}, 17
                s_add_u32 s{sT0}, s{sT0}, s{sT1}
                s_lshl_b32 s{sT1}, s{sW}, 15
                s_add_u32 s{sT0}, s{sT0}, s{sT1}
                s_sub_u32 s{sT1}, {size}, s{sT0}
                """)
                self.srd(d, ptr, sT0, f"s{sT1}")
                continue
            if key:
                self.tile(key, sT0)
            else:
                k.e(f"s_and_b32 s{sT0}, s2, 7")
            k.e(f"""
            s_lshl_b32 s{sT0}, s{sT0}, 7
            s_lshl_b32 s{sT1}, s{sW}, 17
            s_add_u32 s{sT0}, s{sT0}, s{sT1}
            s_sub_u32 s{sT1}, {size}, s{sT0}
            """)
            self.srd(d, ptr, sT0, f"s{sT1}")
        if self.o["g4"]:
            k.e(f"""
            s_lshr_b32 s{sT0}, s{sM}, 3
            s_lshl_b32 s{sT0}, s{sT0}, 8
            s_lshl_b32 s{sT1}, s{sW}, 6
            s_add_u32 s{sT0}, s{sT0}, s{sT1}
            s_sub_u32 s{sT1}, 16384, s{sT0}
            """)
        else:
            k.e(f"""
            s_lshl_b32 s{sT0}, s{sW}, 8
            s_sub_u32 s{sT1}, 16384, s{sT0}
            """)
        self.srd(SG, 10, sT0, f"s{sT1}")
        k.e(f"""
        s_lshr_b32 s{sT2}, s{sN}, 2
        s_lshl_b32 s{sT0}, s{sT2}, 9
        s_lshl_b32 s{sT1}, s{sW}, 7
        s_add_u32 s{sT0}, s{sT0}, s{sT1}
        s_sub_u32 s{sT1}, 524288, s{sT0}
        """)
        self.srd(SWO, 16, sT0, f"s{sT1}")
        k.e(f"s_mul_i32 s{sT0}, s{sB}, 2048000")
        self.srd(SOUT, 18, sT0, 2048000)
        self.srd(SDBG, 20, None, 256)
        k.e(f"s_lshr_b32 s{sNH}, s{sN}, 2")
        self.rot4()
        k.e(f"""
        v_lshlrev_b32 v{vT0}, 4, v{vL}
        v_add_u32 v{vLIN}, s{sRW}, v{vT0}
        v_bfe_u32 v{vT0}, v{vL}, 2, 2
        v_lshrrev_b32 v{vT1}, 5, v{vL}
        v_lshl_add_u32 v{vT1}, v{vT1}, 3, v{vT0}
        v_lshlrev_b32 v{vT1}, 7, v{vT1}
        v_lshrrev_b32 v{vT2}, 1, v{vT0}
        v_lshl_add_u32 v{vT1}, v{vT2}, 6, v{vT1}
        v_bfe_u32 v{vT2}, v{vL}, 4, 1
        v_lshl_add_u32 v{vT1}, v{vT2}, 5, v{vT1}
        v_and_b32 v{vT2}, 3, v{vL}
        v_lshl_add_u32 v{vT1}, v{vT2}, 3, v{vT1}
        v_add_u32 v{vTR0}, s{sRW}, v{vT1}
        v_xor_b32 v{vT1}, 64, v{vT1}
        v_add_u32 v{vTR1}, s{sRW}, v{vT1}
        """)
        k.e(f"""
        v_and_b32 v{vT0}, 31, v{vL}
        v_lshrrev_b32 v{vT1}, 5, v{vL}
        v_and_b32 v{vT2}, 15, v{vT0}
        v_xor_b32 v{vT2}, v{vT2}, v{vT1}
        v_lshlrev_b32 v{vT2}, 4, v{vT2}
        v_lshl_add_u32 v{vT2}, v{vT0}, 9, v{vT2}
        v_add_u32 v{vXB}, s{sRW}, v{vT2}
        v_add_u32 v{vXB + 1}, 256, v{vXB}
        v_add_u32 v{vT2}, 1, v{vT0}
        v_and_b32 v{vT2}, 15, v{vT2}
        v_xor_b32 v{vT2}, v{vT2}, v{vT1}
        v_lshlrev_b32 v{vT2}, 4, v{vT2}
        v_lshl_add_u32 v{vT2}, v{vT0}, 9, v{vT2}
        v_add_u32 v{vT2}, 512, v{vT2}
        v_add_u32 v{vXB + 2}, s{sRW}, v{vT2}
        """)
        k.e(f"""
        v_lshrrev_b32 v{vT0}, 3, v{vL}
        v_bfe_u32 v{vT1}, v{vT0}, 1, 1
        v_lshlrev_b32 v{vT1}, 1, v{vT1}
        v_and_b32 v{vT2}, 7, v{vL}
        v_xor_b32 v{vT1}, v{vT1}, v{vT2}
        v_lshlrev_b32 v{vT1}, 4, v{vT1}
        v_lshl_add_u32 v{vW2}, v{vT0}, 10, v{vT1}
        v_xor_b32 v{vT1}, 64, v{vW2}
        v_add_u32 v{vW2 + 1}, 7168, v{vT1}
        v_add_u32 v{vW2 + 2}, {2 * 7168}, v{vW2}
        v_add_u32 v{vW2 + 3}, {3 * 7168}, v{vT1}
        v_lshrrev_b32 v{vT0}, 4, v{vL}
        v_bfe_u32 v{vT1}, v{vL}, 2, 2
        v_lshl_add_u32 v{vT2}, v{vT0}, 3, v{vT1}
        v_lshlrev_b32 v{vT2}, 7, v{vT2}
        v_lshrrev_b32 v{vT1}, 1, v{vT1}
        v_and_b32 v{vT0}, 1, v{vT0}
        v_lshl_add_u32 v{vT1}, v{vT0}, 1, v{vT1}
        v_lshl_add_u32 v{vT2}, v{vT1}, 5, v{vT2}
        v_and_b32 v{vT1}, 3, v{vL}
        v_lshl_add_u32 v{vT2}, v{vT1}, 3, v{vT2}
        v_add_u32 v{vT16}, s{sRW}, v{vT2}
        """)
        for ct in range(1, 4):
            k.e(f"v_xor_b32 v{vT0}, {ct * 32}, v{vT2}\nv_add_u32 v{vT16 + ct}, s{sRW}, v{vT0}")
        k.e(f"""
        v_and_b32 v{vT0}, 15, v{vL}
        v_bfe_u32 v{vT1}, v{vL}, 4, 1
        v_lshl_add_u32 v{vT0}, v{vT0}, 1, v{vT1}
        v_lshlrev_b32 v{vT0}, 4, v{vT0}
        v_lshrrev_b32 v{vT1}, 5, v{vL}
        v_lshl_add_u32 v{vT0}, v{vT1}, 10, v{vT0}
        s_lshl_b32 s{sT0}, s{sW}, 11
        v_add_u32 v{vRD}, s{sT0}, v{vT0}
        """)
        if self.o["rot"]:
            k.e(f"s_lshl_b32 s{sKC}, s{sML}, 5")
        else:
            k.e(f"s_mov_b32 s{sKC}, 0")

    def stage1(self):
        k = self.k
        if self.o.get("cpf") == 1:
            self.code_prefetch()
        self.x_quarter(0)
        for u in range(3):
            self.w1_issue(u)
        if self.o.get("cpf") == 2:
            self.code_prefetch()
        self.clears()
        for qq in range(1, 4):
            self.x_quarter(qq)
        self.x_tail()
        self.stamp("iss0")
        self.prologue2()
        if self.o.get("gpf", 1) and not self.o["g4"]:
            self.g_prefetch()
        self.l2pf("iss0")
        for u in range(3, 10):
            self.w1_issue(u)
        self.l2pf("iss")
        self.stamp("iss")
        k.wait(vm="x")
        self.stamp("x0")
        lab = k.label("hs")
        k.e(f"""
        s_cmp_lg_u32 s{sW}, 0
        s_cbranch_scc1 {lab}
        s_and_b32 s{sT0}, s2, 3
        s_lshl_b32 s{sT0}, s{sT0}, 6
        v_mov_b32 v{vT0}, s{sT0}
        v_mov_b32 v{vT1}, 1
        s_mov_b64 exec, 1
        buffer_atomic_add v{vT1}, v{vT0}, {sr(SDBG, 4)}, 0 offen sc1
        s_mov_b64 exec, -1
        {lab}:
        """)

        def mm(u):
            a, b = AF + 8 * (u & 1), BFR + 4 * (u & 1)
            self.mfma32(ACC1, a, b, u == 0)
            self.mfma32(ACC1 + 16, a + 4, b, u == 0)

        def refill(u):
            if u + 10 < 24:
                self.w1_issue(u + 10)
            elif u >= 15 and u % 2 == 1 and (u - 15) // 2 < self.o["w2in"]:
                for op in self.w2_ops((u - 15) // 2):
                    op()
            self.l2pf(u)
            if u == 17:
                k.e(f"v_and_b32 v{vT0}, 3, v{vL}\nv_lshlrev_b32 v{vT0}, 6, v{vT0}")
                k.vmem(f"buffer_load_dword v{vHS}, v{vT0}, {sr(SDBG, 4)}, 0 offen sc1", "hs")

        for u in range(24):
            i = u % 3
            if i == 0 and u:
                k.e(f"s_add_u32 s{sKC}, s{sKC}, 32\ns_and_b32 s{sKC}, s{sKC}, 0xe0")
            k.e(f"v_xor_b32 v{vBA + (u & 1)}, s{sKC}, v{vXB + i}")
            k.wait(vm=("w1", u))
            self.tr32(RB + 2048 * (u % 10), AF + 8 * (u & 1), "v", ("u", u))
            k.ds(f"ds_read_b128 {vr(BFR + 4 * (u & 1), 4)}, v{vBA + (u & 1)}", ("u", u))
            if u:
                k.wait(lg=("u", u - 1))
                mm(u - 1)
                refill(u - 1)
            if u in (5, 11, 17):
                self.stamp(f"u{u}")
        k.wait(lg=("u", 23))
        mm(23)
        refill(23)
        self.stamp("s1mfma")
        if self.o["g4"]:
            self.g4_issue()
        self.l2pf("s1end")
        k.e(f"v_mov_b32 v{vKC3}, {f32(-C3)}")
        k.e(f"v_add_u32 v{vT3}, {2 * RW}, v{vRD}")
        k.nop(10)
        for blk in range(8):
            k.ds(f"ds_write_b128 v{vLIN}, {vr(ACC1 + 4 * blk, 4)} offset:{blk * 1024}")
        k.wait(lg="all")
        k.e("s_barrier")
        for sw in range(4):
            a = vRD if sw < 2 else vT3
            for j in range(2):
                k.ds(f"ds_read_b128 {vr(R1 + 8 * sw + 4 * j, 4)}, v{a} offset:{(sw & 1) * RW + j * 512}", ("r", sw))
        assert self.o["w2in"] + self.o["w2mid"] <= 7
        for v in range(self.o["w2in"], self.o["w2in"] + self.o["w2mid"]):
            for op in self.w2_ops(v):
                op()
        k.wait(lg=("r", 1))
        for i in range(8):
            k.e(f"v_add_f32 v{R1 + i}, v{R1 + i}, v{R1 + 8 + i}")
        k.wait(lg=("r", 3))
        for i in range(8):
            k.e(f"v_add_f32 v{R1 + 16 + i}, v{R1 + 16 + i}, v{R1 + 24 + i}")
        for i in range(8):
            k.e(f"v_add_f32 v{R1 + i}, v{R1 + i}, v{R1 + 16 + i}")
        self.gelu([R1 + i for i in range(8)], R1 + 8, vKC3)
        for i in range(4):
            k.e(f"v_cvt_pk_bf16_f32 v{R1 + 16 + i}, v{R1 + 2 * i}, v{R1 + 2 * i + 1}")
        k.e(f"""
        v_and_b32 v{vT0}, 15, v{vL}
        v_lshlrev_b32 v{vT0}, 4, v{vT0}
        v_bfe_u32 v{vT1}, v{vL}, 4, 1
        v_lshl_add_u32 v{vT0}, v{vT1}, 14, v{vT0}
        v_lshrrev_b32 v{vT1}, 5, v{vL}
        v_lshl_add_u32 v{vT0}, v{vT1}, 8, v{vT0}
        s_lshl_b32 s{sT0}, s{sM}, 15
        s_lshl_b32 s{sT1}, s{sN}, 11
        s_add_u32 s{sT0}, s{sT0}, s{sT1}
        s_lshl_b32 s{sT1}, s{sW}, 9
        s_add_u32 s{sT0}, s{sT0}, s{sT1}
        s_add_u32 s{sT0}, s{sT0}, {H_OFF}
        """)
        k.vmem(f"buffer_store_dwordx4 {vr(R1 + 16, 4)}, v{vT0}, {sr(SWS, 4)}, s{sT0} offen sc1", "hst")
        self.stamp("hst")
        k.e("s_barrier")

    def setup2(self):
        k = self.k
        k.e(f"""
        v_lshlrev_b32 v{vLIN16}, 4, v{vL}
        v_and_b32 v{vT0}, 15, v{vL}
        v_lshrrev_b32 v{vT1}, 4, v{vL}
        v_add_u32 v{vH0}, {32768 - 16}, v{vLIN16}
        v_lshlrev_b32 v{vT2}, 8, v{vT1}
        v_add_u32 v{vT2}, 240, v{vT2}
        s_cmp_eq_u32 s{sMT}, 0
        s_cselect_b32 s{sT0}, {OOB}, 0
        v_add_u32 v{vT2}, s{sT0}, v{vT2}
        v_cmp_eq_u32 vcc, 0, v{vT0}
        v_and_b32 v{vT3}, 7, v{vL}
        v_lshlrev_b32 v{vT3}, 9, v{vT3}
        v_cndmask_b32 v{vH0}, v{vH0}, v{vT2}, vcc
        v_add_u32 v{vFSM}, {256 + 240 + 12}, v{vT3}
        v_add_u32 v{vSMP}, 16384, v{vFSM}
        v_add_u32 v{vT2}, 32768, v{vSMP}
        v_add_u32 v{vT3}, s{sT0}, v{vSMP}
        v_cmp_gt_u32 vcc, 8, v{vL}
        v_bfrev_b32 v{vSV}, 1
        s_nop 0
        v_cndmask_b32 v{vSMP}, v{vT3}, v{vT2}, vcc
        v_cndmask_b32 v{vFSM}, v{vSV}, v{vFSM}, vcc
        v_cmp_gt_u32 vcc, 16, v{vL}
        v_lshrrev_b32 v{vT2}, 1, v{vT1}
        v_lshlrev_b32 v{vT2}, 8, v{vT2}
        v_cndmask_b32 v{vSMP}, v{vSV}, v{vSMP}, vcc
        v_lshl_add_u32 v{vT2}, v{vT0}, 4, v{vT2}
        v_and_b32 v{vT1}, 1, v{vT1}
        v_lshl_add_u32 v{vST}, v{vT1}, 3, v{vT2}
        s_lshl_b32 s{sT0}, s{sW}, 10
        v_add_u32 v{vRD2}, s{sT0}, v{vLIN16}
        s_lshl_b32 s{sT0}, s{sM}, 15
        s_lshl_b32 s{sT1}, s{sW}, 12
        s_add_u32 s{sH}, s{sT0}, s{sT1}
        s_add_u32 s{sH}, s{sH}, {H_OFF}
        s_sub_u32 s{sHS}, s{sH}, 32768
        s_lshl_b32 s{sT0}, s{sM}, 14
        s_add_u32 s{sFL}, s{sT0}, s{sT1}
        s_add_u32 s{sFL}, s{sFL}, {F_OFF}
        s_lshl_b32 s{sT1}, s{sW}, 9
        s_add_u32 s{sT0}, s{sT0}, s{sT1}
        s_xor_b32 s{sT1}, s{sN}, {self.o["x2"]}
        s_lshl_b32 s{sT1}, s{sT1}, 11
        s_add_u32 s{sFS}, s{sT0}, s{sT1}
        s_add_u32 s{sFS}, s{sFS}, {F_OFF}
        s_xor_b32 s{sT1}, s{sN}, {self.o["x3"]}
        s_lshl_b32 s{sT1}, s{sT1}, 11
        s_add_u32 s{sFES}, s{sT0}, s{sT1}
        {f"s_lshl_b32 s{sFES}, s{sFES}, 1" if self.o["ex"] else ""}
        s_add_u32 s{sFES}, s{sFES}, {FE_OFF}
        v_bfrev_b32 v{vGST}, 1
        s_lshl_b32 s{sWQ}, s{sML}, 16
        s_sub_u32 s{sWQ}, s{sWQ}, 16384
        """)
        if self.o["ex"]:
            assert self.o["fdirect"] and self.o["g4"]
            k.e(f"""
            v_lshrrev_b32 v{vT0}, 5, v{vL}
            v_lshlrev_b32 v{vT0}, 9, v{vT0}
            v_bfe_u32 v{vT1}, v{vL}, 2, 2
            v_lshl_add_u32 v{vT0}, v{vT1}, 7, v{vT0}
            v_bfe_u32 v{vT1}, v{vL}, 4, 1
            v_lshl_add_u32 v{vT0}, v{vT1}, 6, v{vT0}
            v_and_b32 v{vT1}, 3, v{vL}
            v_lshl_add_u32 v{vFST}, v{vT1}, 4, v{vT0}
            """)
        if self.o["g4"]:
            ex = self.o["ex"]
            k.e(f"""
            s_or_b32 s{sT0}, s{sN}, s{sW}
            s_cmp_eq_u32 s{sT0}, 0
            s_cselect_b32 s{sT2}, 0, {OOB}
            s_and_b32 s{sT0}, s{sM}, 7
            s_lshr_b32 s{sT1}, s{sM}, 3
            s_lshl_b32 s{sT3}, s{sT0}, 14
            s_add_u32 s{sT3}, s{sT3}, s{sT2}
            s_lshl_b32 s{sA}, s{sT1}, 10
            s_add_u32 s{sT3}, s{sT3}, s{sA}
            s_add_u32 s{sT3}, s{sT3}, {P_OFF}
            v_add_u32 v{vGP}, s{sT3}, v{vLIN16}
            v_bfe_u32 v{vT0}, v{vL}, 3, 1
            v_lshlrev_b32 v{vT0}, {13 + ex}, v{vT0}
            v_and_b32 v{vT1}, 7, v{vL}
            v_lshl_add_u32 v{vT0}, v{vT1}, 4, v{vT0}
            v_lshrrev_b32 v{vT1}, 5, v{vL}
            v_lshl_add_u32 v{vT0}, v{vT1}, {7 + ex}, v{vT0}
            v_bfe_u32 v{vT1}, v{vL}, 4, 1
            v_lshl_add_u32 v{vT0}, v{vT1}, {7 if ex else 3}, v{vT0}
            s_lshl_b32 s{sT0}, s{sT0}, {10 + ex}
            s_lshl_b32 s{sT1}, s{sT1}, {8 + ex}
            s_add_u32 s{sT0}, s{sT0}, s{sT1}
            s_add_u32 s{sT0}, s{sT0}, s{sT2}
            s_add_u32 s{sT0}, s{sT0}, {GE_OFF}
            v_add_u32 v{vGST}, s{sT0}, v{vT0}
            """)

    def w2_finish(self):
        k = self.k
        for v in range(self.o["w2in"] + self.o["w2mid"], 9):
            if v == 8 and self.o["g4"]:
                self.g4_partial()
            for op in self.w2_ops(v):
                op()
        self.setup2()
        for v in range(3):
            k.wait(vm=("w2", v))
            self.tr16(self.w2_slot(v), 16 * v, "a", ("t2", v))
        for v in range(3):
            k.wait(lg=("t2", v))
            for op in self.w2_ops(9 + v):
                op()
        top, done = k.label("hsw"), k.label("hsd")
        k.e(f"""
        v_cmp_gt_u32 vcc, 64, v{vHS}
        s_cbranch_vccnz {top}
        {done}:
        """)
        self.ool.append(("hs", top, done))
        hd = self.o.get("hdirect", 0)
        if not hd:
            k.vmem(f"buffer_load_dword v{vHS}, v{vSMP}, {sr(SWS, 4)}, s{sHS} offen sc1", "smp")
        for v in range(3, 8):
            k.wait(vm=("w2", v))
            self.tr16(self.w2_slot(v), 16 * v, "a", ("t2", v))
            if hd and v == hd + 2 and v < 8:
                self.h_loads(True, not self.o["hplain"])
        if self.o["glate"] or self.o["g4"]:
            self.w2_last()
        else:
            gtop, gjoin = k.label("gblk"), k.label("gjoin")
            k.e(f"s_cmp_lt_u32 s2, 8\ns_cbranch_scc1 {gtop}")
            self.ool.append(("g", gtop, gjoin, list(k.vm), list(k.lg)))
            self.w2_last()
            k.e(f"{gjoin}:")
        self.stamp("w2done")

    def w2_last(self):
        k = self.k
        for v in range(8, 12):
            k.wait(vm=("w2", v))
            self.tr16(self.w2_slot(v), 16 * v, "a", ("t2", v))

    def g4_issue(self):
        k = self.k
        lab = k.label("g4i")
        k.e(f"""
        s_cmp_lg_u32 s{sN}, 0
        s_cbranch_scc1 {lab}
        s_add_u32 m0, s{sRW}, {XS[3]}
        v_and_b32 v{vT0}, 15, v{vL}
        v_lshlrev_b32 v{vT0}, 10, v{vT0}
        v_lshrrev_b32 v{vT1}, 4, v{vL}
        v_lshl_add_u32 v{vT0}, v{vT1}, 4, v{vT0}
        """)
        for q in range(4):
            o = f" offset:{q * 1024}" if q else ""
            k.e(f"buffer_load_dwordx4 v{vW2 + q}, {sr(SWG, 4)}, 0 offen{o} lds")
        k.e(f"""
        s_add_u32 m0, s{sRW}, {GS}
        s_nop 0
        buffer_load_dwordx4 v{vT0}, {sr(SG, 4)}, 0 offen lds
        {lab}:
        """)
        self.g4_mark = k.nvm

    def g4_partial(self):
        k = self.k
        A, B, D = 128, 144, 160
        lab = k.label("g4p")
        k.e(f"""
        s_cmp_lg_u32 s{sN}, 0
        s_cbranch_scc1 {lab}
        v_subrev_u32 v{vT0}, s{sRW}, v{vT16}
        s_lshl_b32 s{sT0}, s{sW}, 5
        v_xor_b32 v{vT0}, s{sT0}, v{vT0}
        v_add_u32 v{vT1}, {2 * RW}, v{vT0}
        v_lshlrev_b32 v{vT2}, 4, v{vL}
        v_add_u32 v{vT2}, {GS}, v{vT2}
        v_add_u32 v{vT3}, {2 * RW}, v{vT2}
        s_waitcnt vmcnt({k.nvm - self.g4_mark}) lgkmcnt(0)
        s_barrier
        """)
        for j in range(4):
            a, b = (vT0, vT2) if j < 2 else (vT1, vT3)
            o = (j & 1) * RW
            k.e(f"ds_read_b64_tr_b16 {vr(A + 4 * j, 2)}, v{a} offset:{o + XS[3]}")
            k.e(f"ds_read_b64_tr_b16 {vr(A + 4 * j + 2, 2)}, v{a} offset:{o + XS[3] + 512}")
            k.e(f"ds_read_b128 {vr(B + 4 * j, 4)}, v{b} offset:{o}")
        k.e(f"""
        s_and_b32 s{sT0}, s{sM}, 7
        s_lshl_b32 s{sT0}, s{sT0}, 14
        s_lshr_b32 s{sT1}, s{sM}, 3
        s_lshl_b32 s{sT1}, s{sT1}, 12
        s_add_u32 s{sT0}, s{sT0}, s{sT1}
        s_lshl_b32 s{sT1}, s{sW}, 10
        s_add_u32 s{sT0}, s{sT0}, s{sT1}
        s_add_u32 s{sT0}, s{sT0}, {P_OFF}
        s_waitcnt lgkmcnt(0)
        s_barrier
        v_lshlrev_b32 v{vT0}, 4, v{vL}
        """)
        for j in range(4):
            self.mfma16(D, A + 4 * j, B + 4 * j, j == 0, ak="v")
        k.nop(12)
        k.e(f"buffer_store_dwordx4 {vr(D, 4)}, v{vT0}, {sr(SWS, 4)}, s{sT0} offen sc1\n{lab}:")

    def g4_loads(self, counted):
        k = self.k
        for q in range(4):
            t = self.tmp()
            k.e(f"s_mov_b32 s{t}, {q * 4096}")
            ins = f"buffer_load_dwordx4 {vr(160 + 4 * q, 4)}, v{vGP}, {sr(SWS, 4)}, s{t} offen sc1"
            if counted:
                k.vmem(ins, "gp")
            else:
                k.e(ins)

    def g4_final(self):
        k = self.k
        P = 160
        k.e(f"s_mov_b32 s{sSPIN}, 0")
        k.wait(vm="gp")
        retry, ok, again = k.label("gpr"), k.label("gpk"), k.label("gpa")
        k.e(f"{again}:")
        k.e(f"v_max_u32 v{vT0}, v{P}, v{P + 1}")
        for i in range(2, 16, 2):
            k.e(f"v_max3_u32 v{vT0}, v{vT0}, v{P + i}, v{P + i + 1}")
        k.e(f"v_cmp_eq_u32 vcc, -1, v{vT0}\ns_cbranch_vccnz {retry}\n{ok}:")
        self.ool.append(("poll", retry, ok, again, self.g4_loads))
        for i in range(4):
            k.e(f"v_add_f32 v{P + i}, v{P + i}, v{P + 4 + i}")
            k.e(f"v_add_f32 v{P + 8 + i}, v{P + 8 + i}, v{P + 12 + i}")
        for i in range(4):
            k.e(f"v_add_f32 v{P + i}, v{P + i}, v{P + 8 + i}")
        if self.o["ex"]:
            self.ex_tail(P, P + 4, P + 8, P + 12, P + 16)
            k.vmem(f"buffer_store_dwordx4 {vr(P + 12, 4)}, v{vGST}, {sr(SWS, 4)}, 0 offen sc1", "gest")
            return
        k.e(f"v_cvt_pk_bf16_f32 v{P + 4}, v{P}, v{P + 1}")
        k.e(f"v_cvt_pk_bf16_f32 v{P + 5}, v{P + 2}, v{P + 3}")
        k.vmem(f"buffer_store_dwordx2 {vr(P + 4, 2)}, v{vGST}, {sr(SWS, 4)}, 0 offen sc1", "gest")

    def ex_tail(self, S, PK, B, T, A):
        k = self.k
        k.e(f"v_cvt_pk_bf16_f32 v{PK}, v{S}, v{S + 1}")
        k.e(f"v_cvt_pk_bf16_f32 v{PK + 1}, v{S + 2}, v{S + 3}")
        for i in range(2):
            k.e(f"v_lshlrev_b32 v{B + 2 * i}, 16, v{PK + i}")
            k.e(f"v_and_b32 v{B + 2 * i + 1}, 0xffff0000, v{PK + i}")
        for i in range(4):
            k.e(f"v_mul_f32 v{T + i}, {f32(CT)}, v{B + i}")
        for i in range(4):
            k.e(f"v_and_b32 v{A + i}, 0x7fffffff, v{T + i}")
        for i in range(4):
            k.e(f"v_exp_f32 v{T + i}, v{T + i}")
        fix, ok = k.label("exf"), k.label("exk")
        k.e(f"""
        v_max3_u32 v{A}, v{A}, v{A + 1}, v{A + 2}
        v_max_u32 v{A}, v{A}, v{A + 3}
        v_cmp_lt_u32 vcc, {f32(EX_MAX)}, v{A}
        s_cbranch_vccnz {fix}
        {ok}:
        """)
        self.ool.append(("exfix", fix, ok, PK, T, A))

    def g_loads(self, GF):
        k = self.k
        k.e(f"""
        v_and_b32 v{vT0}, 15, v{vL}
        v_lshlrev_b32 v{vT0}, 10, v{vT0}
        v_lshrrev_b32 v{vT1}, 4, v{vL}
        v_lshl_add_u32 v{vT0}, v{vT1}, 4, v{vT0}
        """)
        for j in range(4):
            t = self.tmp()
            k.e(f"s_lshr_b32 s{t}, s{sR4[j]}, 4")
            k.e(f"v_add_u32 v{vT1}, s{t}, v{vT0}")
            k.vmem(f"buffer_load_dwordx4 {vr(GF + 4 * j, 4)}, v{vT1}, {sr(SG, 4)}, 0 offen", "g")

    def g_addr(self):
        k = self.k
        k.e(f"""
        v_bfe_u32 v{vT0}, v{vL}, 3, 1
        v_lshlrev_b32 v{vT0}, 13, v{vT0}
        v_and_b32 v{vT1}, 7, v{vL}
        v_lshl_add_u32 v{vT0}, v{vT1}, 4, v{vT0}
        v_lshrrev_b32 v{vT1}, 5, v{vL}
        v_lshl_add_u32 v{vT0}, v{vT1}, 7, v{vT0}
        v_bfe_u32 v{vT1}, v{vL}, 4, 1
        v_lshl_add_u32 v{vT0}, v{vT1}, 3, v{vT0}
        s_lshl_b32 s{sT0}, s2, 10
        s_lshl_b32 s{sT1}, s{sW}, 8
        s_add_u32 s{sT0}, s{sT0}, s{sT1}
        s_add_u32 s{sT0}, s{sT0}, {GE_OFF}
        v_add_u32 v{vGST}, s{sT0}, v{vT0}
        """)

    def g_block(self):
        k = self.k
        GF = HB
        slots = [T4[0], T4[1], XS[2], XS[3]] if self.o["w2mid"] else [T4[0], T4[1], XS[1], XS[2]]
        k.wait(lg=("t2", 7))
        self.stamp("g0")
        for j in range(4):
            self.dma4k(SWG, slots[j], self.w32_soff(j, 0), ("wg", j))
        self.g_loads(GF)
        self.stamp("gdma")
        self.w2_last()
        self.stamp("gw2")
        self.g_addr()
        for j in range(4):
            k.wait(vm=("wg", j))
            self.tr16(slots[j], 192 + 16 * j, "a", ("twg", j))
        self.stamp("gwg")
        k.wait(vm="all")
        self.stamp("gld")
        for j in range(4):
            k.wait(lg=("twg", j))
            for ct in range(4):
                self.mfma16(ACC2 + 4 * ct, 192 + 16 * j + 4 * ct, GF + 4 * j, j == 0)
        self.stamp("gmf")
        self.reduce16(ACC2, False, None, None, None)
        k.e("s_barrier")
        self.stamp("gend")

    def poll_sample(self, stem, vaddr, sbase):
        k = self.k
        top, done = k.label(stem + "p"), k.label(stem + "d")
        k.wait(vm="smp")
        k.e(f"""
        v_cmp_eq_u32 vcc, -1, v{vHS}
        s_cbranch_vccnz {top}
        {done}:
        """)
        self.ool.append(("smp", top, done, vaddr, sbase))

    def reduce16(self, acc, act, vst, sst, tag, mid=None, ex=False):
        k = self.k
        k.e(f"v_add_u32 v{vT3}, {2 * RW}, v{vRD2}")
        k.nop(8)
        for ct in range(4):
            k.ds(f"ds_write_b128 v{vLIN}, {vr(acc + 4 * ct, 4)} offset:{ct * 1024}")
        k.wait(lg="all")
        k.e("s_barrier")
        for sw in range(4):
            a = vRD2 if sw < 2 else vT3
            k.ds(f"ds_read_b128 {vr(R2 + 4 * sw, 4)}, v{a} offset:{(sw & 1) * RW}", ("r", sw))
        if mid:
            mid()
        k.wait(lg=("r", 1))
        for i in range(4):
            k.e(f"v_add_f32 v{R2 + i}, v{R2 + i}, v{R2 + 4 + i}")
        k.wait(lg=("r", 3))
        for i in range(4):
            k.e(f"v_add_f32 v{R2 + 8 + i}, v{R2 + 8 + i}, v{R2 + 12 + i}")
        for i in range(4):
            k.e(f"v_add_f32 v{R2 + i}, v{R2 + i}, v{R2 + 8 + i}")
        if act:
            self.gelu([R2 + i for i in range(4)], R2 + 4, vKC3)
        if ex:
            self.ex_tail(R2, R2 + 4, R2 + 8, R2 + 12, R2 + 16)
            k.vmem(f"buffer_store_dwordx4 {vr(R2 + 12, 4)}, v{vFST}, {sr(SWS, 4)}, s{sst} offen sc1", tag)
            return
        k.e(f"v_cvt_pk_bf16_f32 v{R2 + 8}, v{R2}, v{R2 + 1}")
        k.e(f"v_cvt_pk_bf16_f32 v{R2 + 9}, v{R2 + 2}, v{R2 + 3}")
        if vst is not None:
            k.vmem(f"buffer_store_dwordx2 {vr(R2 + 8, 2)}, v{vst}, {sr(SWS, 4)}, s{sst} offen sc1", tag)

    def h_loads(self, counted, sc):
        k = self.k
        for v in range(12):
            j, i = v // 3, v % 3
            t = self.tmp()
            k.e(f"s_add_u32 s{t}, s{sH}, s{sR4[j]}")
            if i == 0:
                k.e(f"s_sub_u32 s{t}, s{t}, 16384")
            elif i == 2:
                k.e(f"s_add_u32 s{t}, s{t}, 16384")
            ins = (f"buffer_load_dwordx4 {vr(HB + 4 * v, 4)}, v{vH0 if i == 0 else vLIN16}, "
                   f"{sr(SWS, 4)}, s{t} offen" + (" sc1" if sc else ""))
            if counted:
                k.vmem(ins, ("h", v))
            else:
                k.e(ins)

    def stage2(self):
        k = self.k
        hd = self.o.get("hdirect", 0)
        if not hd:
            self.poll_sample("h", vSMP, sHS)
        self.stamp("hpoll")
        loads = self.h_loads
        k.e(f"s_mov_b32 s{sSPIN}, 0")
        if not hd:
            loads(True, not self.o["hplain"])
        if not self.o["glate"] and not self.o["g4"]:
            k.vmem(f"buffer_store_dwordx2 {vr(R2 + 8, 2)}, v{vGST}, {sr(SWS, 4)}, 0 offen sc1", "gest")
        k.wait(lg="all")
        fill = []
        for j in range(4):
            fill += self.dma4k_ops(SWF, T4[j], self.w32_soff(j, 0), ("wf", j))
        for _ in range(self.o.get("wfpre", 4)):
            fill.pop(0)()
        mf, retry, ok = k.label("s2m"), k.label("s2r"), k.label("s2k")
        k.e(f"{mf}:")
        for v in range(12):
            k.wait(vm=("h", v))
            f = HB + 4 * v
            if v == 0:
                k.e(f"v_mov_b32 v{vT0}, v{f + 3}")
            elif v % 2 == 0:
                k.e(f"v_max3_u32 v{vT0}, v{vT0}, v{f - 1}, v{f + 3}")
            for ct in range(4):
                self.mfma16(ACC2 + 4 * ct, 16 * v + 4 * ct, f, v == 0)
            if v < self.o.get("wfloop", 12) and fill:
                fill.pop(0)()
        k.e(f"v_max_u32 v{vT0}, v{vT0}, v{HB + 47}")
        k.e(f"v_cmp_eq_u32 vcc, -1, v{vT0}\ns_cbranch_vccnz {retry}\n{ok}:")
        self.ool.append(("bulk", retry, ok, mf, loads))
        self.stamp("s2mfma")
        if self.o["g4"]:
            self.g4_loads(True)
        self.wf_rest = fill

    def wo_slot(self, bb, e):
        if bb % 2 == 0:
            base = [T4[4], XS[1], XS[2], XS[3]]
        else:
            base = [T4[0], T4[1], T4[2], T4[3]]
        return base[e // 2] + 2048 * (e & 1)

    def wo_issue(self, bb, e0, e1):
        k = self.k
        for e in range(e0, e1):
            assert self.wo_next == 8 * bb + e
            self.wo_next += 1
            k.e(f"s_add_u32 s{sWQ}, s{sWQ}, 16384\ns_and_b32 s{sWQ}, s{sWQ}, 0x7c000")
            self.dma2k(SWO, self.wo_slot(bb, e), f"s{sWQ}", ("wo", bb, e))

    def wo_tr_ops(self, bb):
        ops = []
        for e in range(8):
            for ct, a in enumerate((vTR0, vTR1)):
                for hf in range(2):
                    off = self.wo_slot(bb, e) + 512 * hf
                    dst = 8 * (8 * bb + e) + 4 * ct + 2 * hf
                    ops.append(("ds", f"ds_read_b64_tr_b16 {vr(dst, 2, 'a')}, v{a} offset:{off}", ("two", bb)))
        return ops

    def wo_tr(self, bb):
        k = self.k
        for e in range(8):
            k.wait(vm=("wo", bb, e))
            self.tr32(self.wo_slot(bb, e), 8 * (8 * bb + e), "a", ("two", bb))

    def stage2_tail(self):
        k = self.k
        self.wo_next = 0

        def mid():
            for _ in range(self.o.get("wfmid", 0)):
                if self.wf_rest:
                    self.wf_rest.pop(0)()
        self.reduce16(ACC2, True, vST, sFS, "fst", mid=mid)
        self.stamp("fst")
        while self.wf_rest:
            self.wf_rest.pop(0)()
        k.e("s_barrier")
        if self.o["glate"]:
            gtop, self.gjoin = k.label("gl"), k.label("glj")
            k.e(f"s_cmp_lt_u32 s2, 8\ns_cbranch_scc1 {gtop}")
            self.ool.append(("glate", gtop, self.gjoin, list(k.vm), list(k.lg), self.wo_next))
        self.wo_issue(0, 0, 8)
        self.wo_pattern()
        k.wait(vm=("wf", 3))
        for j in range(4):
            self.tr16(T4[j], 192 + 16 * j, "a", "twf")
        if self.o["g4"]:
            self.g4_final()
        if self.o["b1B"]:
            k.wait(lg="twf")
            self.wo_issue(1, 0, self.o["b1B"])
        if self.o["glate"] and self.stop_after in ("s2", "ge"):
            k.e(f"s_waitcnt vmcnt(0) lgkmcnt(0)\n{self.gjoin}:")

    def glate_block(self, join):
        k = self.k
        GF = HB + 16
        slots = [self.wo_slot(0, 2 * j) for j in range(4)]
        for j in range(4):
            self.dma4k(SWG, slots[j], self.w32_soff(j, 0), ("wg", j))
        self.g_loads(GF)
        self.stamp("gdma")
        self.wo_pattern()
        self.g_addr()
        k.wait(vm=("wf", 3))
        for j in range(4):
            self.tr16(T4[j], 192 + 16 * j, "a", "twf")
        for j in range(4):
            k.wait(vm=("wg", j))
            self.tr16(slots[j], 128 + 16 * j, "a", ("twg", j))
        self.stamp("gwg")
        k.wait(lg="all")
        self.wo_issue(0, 0, 8)
        k.vmem(f"buffer_load_dword v{vHS}, v{vFSM}, {sr(SWS, 4)}, s{sFL} offen sc1", "smp")
        k.wait(vm="g")
        self.stamp("gld")
        for j in range(4):
            for ct in range(4):
                self.mfma16(ACC2 + 4 * ct, 128 + 16 * j + 4 * ct, GF + 4 * j, j == 0)
        self.stamp("gmf")
        self.reduce16(ACC2, False, None, None, None)
        k.vmem(f"buffer_store_dwordx2 {vr(R2 + 8, 2)}, v{vGST}, {sr(SWS, 4)}, 0 offen sc1", "gest")
        k.e("s_barrier")
        self.stamp("gend")
        if self.stop_after in ("s2", "ge"):
            k.e(f"s_waitcnt vmcnt(0) lgkmcnt(0)\ns_branch {join}")
            return
        self.stage3(gpath=True)
        k.wait(vm=("wo", 1, 7))
        k.e(f"s_branch {join}")

    def wo_pattern(self):
        k = self.k
        k.e(f"""
        v_bfe_u32 v{vT0}, v{vL}, 2, 2
        v_lshrrev_b32 v{vT1}, 5, v{vL}
        v_lshl_add_u32 v{vT1}, v{vT1}, 3, v{vT0}
        v_lshlrev_b32 v{vT1}, 7, v{vT1}
        v_lshrrev_b32 v{vT2}, 1, v{vT0}
        v_lshl_add_u32 v{vT1}, v{vT2}, 6, v{vT1}
        v_bfe_u32 v{vT2}, v{vL}, 4, 1
        v_lshl_add_u32 v{vT1}, v{vT2}, 5, v{vT1}
        v_and_b32 v{vT2}, 1, v{vL}
        v_lshl_add_u32 v{vT1}, v{vT2}, 4, v{vT1}
        v_bfe_u32 v{vT2}, v{vL}, 1, 1
        v_lshl_add_u32 v{vT1}, v{vT2}, 3, v{vT1}
        v_add_u32 v{vTR0}, s{sRW}, v{vT1}
        v_xor_b32 v{vT1}, 64, v{vT1}
        v_add_u32 v{vTR1}, s{sRW}, v{vT1}
        """)

    def stage3(self, gpath=False):
        k = self.k
        FB = HB
        b1B = 0 if gpath else self.o["b1B"]

        def loads(counted, sc):
            for j in range(4):
                t = self.tmp()
                k.e(f"s_add_u32 s{t}, s{sFL}, s{sR4[j]}")
                ins = (f"buffer_load_dwordx4 {vr(FB + 4 * j, 4)}, v{vLIN16}, {sr(SWS, 4)}, s{t} offen"
                       + (" sc1" if sc else ""))
                if counted:
                    k.vmem(ins, ("f", j))
                else:
                    k.e(ins)
        fd = self.o.get("fdirect", 0)
        if fd:
            k.e(f"s_mov_b32 s{sSPIN}, 0")
            loads(True, fd != 2)
            self.wo_tr(0)
            k.wait(vm=("f", 3))
            again, retry0, ok0 = k.label("fda"), k.label("fdr"), k.label("fdk")
            k.e(f"{again}:")
            k.e(f"v_max_u32 v{vT0}, v{FB + 1}, v{FB + 3}")
            for j in range(1, 4):
                k.e(f"v_max3_u32 v{vT0}, v{vT0}, v{FB + 4 * j + 1}, v{FB + 4 * j + 3}")
            k.e(f"v_cmp_eq_u32 vcc, -1, v{vT0}\ns_cbranch_vccnz {retry0}\n{ok0}:")
            self.ool.append(("poll", retry0, ok0, again, lambda counted: loads(counted, True)))
            self.stamp("fpoll")
            k.wait(lg="all")
            self.wo_issue(1, b1B, 8)
            for j in range(4):
                for ct in range(4):
                    self.mfma16(ACC2 + 4 * ct, 192 + 16 * j + 4 * ct, FB + 4 * j, j == 0)
            self.stamp("s3mfma")
            self.reduce16(ACC2, False, vST, sFES, "fest", mid=lambda: self.wo_issue(2, 0, self.o["b2C"]),
                          ex=self.o["ex"])
            self.stamp("fest")
            k.e("s_barrier")
            return
        if not gpath:
            k.vmem(f"buffer_load_dword v{vHS}, v{vFSM}, {sr(SWS, 4)}, s{sFL} offen sc1", "smp")
        self.wo_tr(0)
        self.poll_sample("f", vFSM, sFL)
        self.stamp("fpoll")
        k.e(f"s_mov_b32 s{sSPIN}, 0")
        loads(True, not self.o["fplain"])
        k.wait(lg="all")
        mf, retry, ok = k.label("s3m"), k.label("s3r"), k.label("s3k")
        self.wo_issue(1, b1B, 8)
        k.e(f"{mf}:")
        for j in range(4):
            k.wait(vm=("f", j))
            f = FB + 4 * j
            if j == 0:
                k.e(f"v_max_u32 v{vT0}, v{f + 1}, v{f + 3}")
            else:
                k.e(f"v_max3_u32 v{vT0}, v{vT0}, v{f + 1}, v{f + 3}")
            for ct in range(4):
                self.mfma16(ACC2 + 4 * ct, 192 + 16 * j + 4 * ct, f, j == 0)
        k.e(f"v_cmp_eq_u32 vcc, -1, v{vT0}\ns_cbranch_vccnz {retry}\n{ok}:")
        self.ool.append(("bulk", retry, ok, mf, loads))
        self.stamp("s3mfma")
        self.reduce16(ACC2, False, vST, sFES, "fest", mid=lambda: self.wo_issue(2, 0, self.o["b2C"]),
                          ex=self.o["ex"])
        self.stamp("fest")
        if gpath:
            return
        if self.o["glate"]:
            k.e(f"{self.gjoin}:")
        k.e("s_barrier")

    def stage4(self):
        k = self.k
        CB, FR, Z, JP, BF, ACC, OUT = 32, 96, 128, 144, 160, 192, 224
        vGA, vFA, vJ0, vJ2 = 8, 9, 10, 11
        RAW = 160
        ex = self.o["ex"]
        if ex:
            Z, JP = 224, 240
            late_tr, fr_read = self.s4_head_ex(CB, FR, Z)
        else:
            late_tr, fr_read = self.s4_head(CB, FR, RAW), None
        self.stamp("fepoll")
        self.s4_loop(CB, FR, Z, JP, BF, ACC, OUT, late_tr, fr_read)

    def s4_head(self, CB, FR, RAW):
        k = self.k
        ex = 0
        vGA, vFA, vJ0, vJ2 = 8, 9, 10, 11
        k.e(f"""
        v_and_b32 v{vT0}, 7, v{vL}
        v_lshlrev_b32 v{vT0}, 4, v{vT0}
        v_lshrrev_b32 v{vT1}, 5, v{vL}
        v_lshl_add_u32 v{vGA}, v{vT1}, {7 + ex}, v{vT0}
        v_bfe_u32 v{vT0}, v{vL}, 3, 2
        v_lshlrev_b32 v{vT0}, 4, v{vT0}
        v_lshl_add_u32 v{vFA}, v{vT1}, {8 + ex}, v{vT0}
        v_lshlrev_b32 v{vJ0}, 4, v{vL}
        v_add_u32 v{vJ2}, {2 * RW}, v{vJ0}
        s_lshl_b32 s{sGL}, s{sB}, {13 + ex}
        s_lshl_b32 s{sT0}, s{sW}, {8 + ex}
        s_add_u32 s{sGL}, s{sGL}, s{sT0}
        s_add_u32 s{sGL}, s{sGL}, {GE_OFF}
        s_lshl_b32 s{sFE}, s{sM}, {14 + ex}
        s_lshl_b32 s{sT0}, s{sW}, {9 + ex}
        s_add_u32 s{sFE}, s{sFE}, s{sT0}
        s_lshl_b32 s{sT0}, s{sJN}, 6
        s_add_u32 s{sFE}, s{sFE}, s{sT0}
        s_add_u32 s{sFE}, s{sFE}, {FE_OFF}
        """)

        def np_off(r, shift):
            t = self.tmp()
            if self.o["rot"]:
                k.e(f"s_add_u32 s{t}, s{sML}, {r}\ns_and_b32 s{t}, s{t}, 7\ns_lshl_b32 s{t}, s{t}, {shift}")
            else:
                k.e(f"s_mov_b32 s{t}, {r << shift}")
            return t

        def ge_loads(counted):
            for r in range(8):
                t = np_off(r, 10 + ex)
                k.e(f"s_add_u32 s{t}, s{t}, s{sGL}")
                for hf in range(1 + ex):
                    d, o = RAW + (4 << ex) * r + 4 * hf, f" offset:{128 * hf}" if hf else ""
                    sc = "" if counted and self.o.get("geplain") else " sc1"
                    ins = f"buffer_load_dwordx4 {vr(d, 4)}, v{vGA}, {sr(SWS, 4)}, s{t} offen{o}{sc}"
                    if counted:
                        k.vmem(ins, "ge")
                    else:
                        k.e(ins)

        def fe_loads(counted):
            for r in range(8):
                t = np_off(r, 11 + ex)
                k.e(f"s_add_u32 s{t}, s{t}, s{sFE}")
                for hf in range(1 + ex):
                    d, o = FR + (4 << ex) * r + 4 * hf, f" offset:{256 * hf}" if hf else ""
                    ins = f"buffer_load_dwordx4 {vr(d, 4)}, v{vFA}, {sr(SWS, 4)}, s{t} offen{o} sc1"
                    if counted:
                        k.vmem(ins, ("fe", r))
                    else:
                        k.e(ins)

        def check(base, n, dst):
            if ex:
                k.e(f"v_max_u32 v{dst}, v{base + 3}, v{base + 7}")
                for g in range(2, 2 * n, 2):
                    k.e(f"v_max3_u32 v{dst}, v{dst}, v{base + 4 * g + 3}, v{base + 4 * g + 7}")
                return
            k.e(f"v_max_u32 v{dst}, v{base + 1}, v{base + 3}")
            for r in range(1, n):
                k.e(f"v_max3_u32 v{dst}, v{dst}, v{base + 4 * r + 1}, v{base + 4 * r + 3}")

        ge_loads(True)
        self.wo_issue(2, self.o["b2C"], 8)
        self.wo_tr(1)
        k.wait(lg="all")
        self.wo_issue(3, 0, 8)
        k.e(f"s_mov_b32 s{sSPIN}, 0")
        if ex:
            k.e(f"s_mov_b32 s{sA}, 0")
        k.wait(vm="ge")
        retry, ok = k.label("ger"), k.label("gek")
        again = k.label("gea")
        k.e(f"{again}:")
        test = "v_cmp_gt_i32 vcc, 0," if ex else "v_cmp_eq_u32 vcc, -1,"
        check(RAW, 8, vT0)
        k.e(f"{test} v{vT0}\ns_cbranch_vccnz {retry}\n{ok}:")
        self.ool.append(("pollx" if ex else "poll", retry, ok, again, ge_loads))
        if ex:
            fe_loads(True)
        else:
            k.e(f"s_mov_b32 s{sA}, {f32(CT)}")
            fe_loads(True)
            for r in range(8):
                for i in range(4):
                    src = RAW + 4 * r + i
                    k.e(f"v_lshlrev_b32 v{CB + 8 * r + 2 * i}, 16, v{src}")
                    k.e(f"v_and_b32 v{CB + 8 * r + 2 * i + 1}, 0xffff0000, v{src}")
            for i in range(64):
                k.e(f"v_mul_f32 v{CB + i}, s{sA}, v{CB + i}")
        self.stamp("cb")
        self.wo_tr(2)
        late_tr = []
        if self.o["trb3"] == "pre":
            self.wo_tr(3)
        else:
            late_tr = self.wo_tr_ops(3)
        k.e(f"s_mov_b32 s{sSPIN}, 0")
        k.wait(vm=("fe", 7))
        retry, ok = k.label("fer"), k.label("fek")
        again = k.label("fea")
        k.e(f"{again}:")
        check(FR, 8, vT0)
        k.e(f"{test} v{vT0}\ns_cbranch_vccnz {retry}\n{ok}:")
        self.ool.append(("poll", retry, ok, again, fe_loads))
        return late_tr

    def s4_head_ex(self, CB, FR, Z):
        k = self.k
        vGG, vFG, vCRD, vFRD, vJ0, vJ2 = [8, 12, 13, 14], [9, 20], 21, 22, 10, 11
        GR, FB = 160, 176
        k.e(f"""
        v_and_b32 v{vT0}, 7, v{vL}
        v_lshlrev_b32 v{vT0}, 4, v{vT0}
        v_bfe_u32 v{vT1}, v{vL}, 3, 1
        v_lshl_add_u32 v{vT2}, v{vT1}, 8, v{vT0}
        v_lshl_add_u32 v{vT3}, v{vT1}, 9, v{vT0}
        v_bfe_u32 v{vT1}, v{vL}, 4, 1
        v_lshl_add_u32 v{vT2}, v{vT1}, 7, v{vT2}
        v_lshrrev_b32 v{vT1}, 5, v{vL}
        v_lshl_add_u32 v{vCRD}, v{vT1}, 7, v{vT0}
        v_add_u32 v{vCRD}, s{sRW}, v{vCRD}
        v_add_u32 v{vT1}, s{sML}, v{vT1}
        """)
        for j in range(4):
            k.e(f"""
            v_add_u32 v{vT0}, {2 * j}, v{vT1}
            v_and_b32 v{vT0}, 7, v{vT0}
            v_lshl_add_u32 v{vGG[j]}, v{vT0}, 11, v{vT2}
            """)
        k.e(f"""
        s_lshl_b32 s{sGL}, s{sB}, 14
        s_lshl_b32 s{sT0}, s{sW}, 9
        s_add_u32 s{sGL}, s{sGL}, s{sT0}
        s_add_u32 s{sGL}, s{sGL}, {GE_OFF}
        """)

        def ge_loads(counted):
            for j in range(4):
                sc = "" if counted and self.o.get("geplain") else " sc1"
                ins = f"buffer_load_dwordx4 {vr(GR + 4 * j, 4)}, v{vGG[j]}, {sr(SWS, 4)}, s{sGL} offen{sc}"
                if counted:
                    k.vmem(ins, "ge")
                else:
                    k.e(ins)

        def fe_loads(counted):
            for j in range(2):
                ins = f"buffer_load_dwordx4 {vr(FB + 4 * j, 4)}, v{vFG[j]}, {sr(SWS, 4)}, s{sFE} offen sc1"
                if counted:
                    k.vmem(ins, "fe")
                else:
                    k.e(ins)
        ge_loads(True)
        k.e(f"""
        v_lshrrev_b32 v{vT1}, 4, v{vL}
        v_add_u32 v{vT1}, s{sML}, v{vT1}
        v_and_b32 v{vT0}, 7, v{vT1}
        v_lshl_add_u32 v{vFG[0]}, v{vT0}, 12, v{vT3}
        v_xor_b32 v{vFG[1]}, 16384, v{vFG[0]}
        v_lshrrev_b32 v{vT1}, 5, v{vL}
        v_bfe_u32 v{vT0}, v{vL}, 3, 2
        v_lshlrev_b32 v{vT0}, 4, v{vT0}
        v_lshl_add_u32 v{vFRD}, v{vT1}, 7, v{vT0}
        v_add_u32 v{vFRD}, s{sRW}, v{vFRD}
        v_lshlrev_b32 v{vJ0}, 4, v{vL}
        v_add_u32 v{vJ2}, {2 * RW}, v{vJ0}
        s_lshl_b32 s{sFE}, s{sM}, 15
        s_lshl_b32 s{sT0}, s{sW}, 10
        s_add_u32 s{sFE}, s{sFE}, s{sT0}
        s_lshl_b32 s{sT0}, s{sJN}, 7
        s_add_u32 s{sFE}, s{sFE}, s{sT0}
        s_add_u32 s{sFE}, s{sFE}, {FE_OFF}
        """)
        self.wo_issue(2, self.o["b2C"], 8)
        self.wo_tr(1)
        k.wait(lg="all")
        if self.o.get("feat", 0) == -2:
            fe_loads(True)
        if not self.o.get("b3late"):
            self.wo_issue(3, 0, 8)
        if self.o.get("feat", 0) == -1:
            fe_loads(True)
        k.e(f"s_mov_b32 s{sSPIN}, 0\ns_mov_b32 s{sA}, 0")
        k.wait(vm="ge")
        retry, ok, again = k.label("ger"), k.label("gek"), k.label("gea")
        k.e(f"""
        {again}:
        v_max_u32 v{vT0}, v{GR + 3}, v{GR + 7}
        v_max3_u32 v{vT0}, v{vT0}, v{GR + 11}, v{GR + 15}
        v_cmp_gt_i32 vcc, 0, v{vT0}
        s_cbranch_vccnz {retry}
        {ok}:
        """)
        self.ool.append(("pollx", retry, ok, again, ge_loads))
        if self.o.get("feat", 0) == 0:
            fe_loads(True)
        for j in range(4):
            k.ds(f"ds_write_b128 v{vLIN}, {vr(GR + 4 * j, 4)} offset:{j * 1024}", "gw")
        if self.o.get("b3late"):
            self.wo_issue(3, 0, 8)
        k.wait(lg="gw")
        for r in range(8):
            for hf in range(2):
                k.ds(f"ds_read_b128 {vr(CB + 8 * r + 4 * hf, 4)}, v{vCRD} offset:{r * 512 + hf * 256}", "cb")
        if self.o.get("feat", 0) == 1:
            fe_loads(True)
        self.stamp("cb")
        self.wo_tr(2)
        if self.o.get("feat", 0) == 2:
            fe_loads(True)
        late_tr = self.wo_tr_ops(3)
        k.e(f"s_mov_b32 s{sSPIN}, 0")
        k.wait(vm="fe")
        retry, ok, again = k.label("fer"), k.label("fek"), k.label("fea")
        k.e(f"""
        {again}:
        v_max_u32 v{vT0}, v{FB + 3}, v{FB + 7}
        v_cmp_gt_i32 vcc, 0, v{vT0}
        s_cbranch_vccnz {retry}
        {ok}:
        """)
        self.ool.append(("pollx", retry, ok, again, fe_loads))
        for j in range(2):
            k.ds(f"ds_write_b128 v{vLIN}, {vr(FB + 4 * j, 4)} offset:{FS + j * 1024}", "fw")

        def fr_read(r):
            for hf in range(2):
                k.ds(f"ds_read_b128 {vr(FR + 8 * r + 4 * hf, 4)}, v{vFRD} offset:{FS + r * 256 + hf * 64}", ("fr", r))
        slow, fast = k.label("exs"), k.label("exq")
        k.e(f"s_cmp_lg_u32 s{sA}, 0\ns_cbranch_scc1 {slow}\n{fast}:")
        self.ool.append(("exslow", slow, fast, CB, FR, Z, vFRD))
        k.wait(lg="all")
        for r in range(4):
            fr_read(r)
        return late_tr, fr_read

    def s4_loop(self, CB, FR, Z, JP, BF, ACC, OUT, late_tr, fr_read):
        k = self.k
        ex = self.o["ex"]
        vJ0, vJ2 = 10, 11

        def j_ops(r):
            ops = []
            z = Z + 8 * (r & 1)
            jp = JP + 4 * (r & 1)
            if ex:
                for i in range(8):
                    ops.append((f"v_fma_f32 v{z + i}, v{FR + 8 * r + i}, v{CB + 8 * r + i}, 1.0", 4))
                for i in range(8):
                    ops.append((f"v_rcp_f32 v{z + i}, v{z + i}", 8))
                for i in range(8):
                    ops.append((f"v_fma_f32 v{z + i}, v{z + i}, -2.0, 1.0", 4))
                for i in range(4):
                    ops.append((f"v_cvt_pk_bf16_f32 v{jp + i}, v{z + 2 * i}, v{z + 2 * i + 1}", 4))
                ops.append(("ds", f"ds_write_b128 v{vLIN}, {vr(jp, 4)} offset:{r * 1024}", ("jw", r)))
                return ops
            for i in range(4):
                ops.append((f"v_lshlrev_b32 v{z + 2 * i}, 16, v{FR + 4 * r + i}", 4))
                ops.append((f"v_and_b32 v{z + 2 * i + 1}, 0xffff0000, v{FR + 4 * r + i}", 4))
            for i in range(8):
                ops.append((f"v_fma_f32 v{z + i}, v{z + i}, s{sA}, v{CB + 8 * r + i}", 4))
            for i in range(8):
                ops.append((f"v_exp_f32 v{z + i}, v{z + i}", 8))
            for i in range(8):
                ops.append((f"v_add_f32 v{z + i}, 1.0, v{z + i}", 4))
            for i in range(8):
                ops.append((f"v_rcp_f32 v{z + i}, v{z + i}", 8))
            for i in range(8):
                ops.append((f"v_fma_f32 v{z + i}, v{z + i}, -2.0, 1.0", 4))
            for i in range(4):
                ops.append((f"v_cvt_pk_bf16_f32 v{jp + i}, v{z + 2 * i}, v{z + 2 * i + 1}", 4))
            ops.append(("ds", f"ds_write_b128 v{vLIN}, {vr(jp, 4)} offset:{r * 1024}", ("jw", r)))
            return ops

        dbg = self.o.get("s4dbg", "")

        def emit(op):
            if op[0] == "ds":
                k.ds(op[1], op[2])
                return 4
            t = op[0]
            if "notrans" in dbg:
                t = t.replace("v_exp_f32", "v_mov_b32").replace("v_rcp_f32", "v_mov_b32")
            if "novalu" not in dbg and not ("nofma" in dbg and t.startswith("v_fma")):
                k.e(t)
            return op[1]

        def read1(r, jj):
            b = BF + 16 * (r & 1)
            a = vJ0 if jj < 2 else vJ2
            k.ds(f"ds_read_b128 {vr(b + 4 * jj, 4)}, v{a} offset:{(jj & 1) * RW + r * 1024}", ("jr", r, jj))

        def reads(r):
            for jj in range(4):
                read1(r, jj)

        k.wait(lg=("fr", 0) if ex else "all")
        if "twice" in dbg:
            k.e(f"s_mov_b32 s{sSPIN}, 0\nL_twice:\ns_waitcnt lgkmcnt(0)\ns_barrier")
            self.stamp("fepoll2")
        for op in j_ops(0):
            emit(op)
        o1 = j_ops(1)
        n1 = 8 if ex else 16
        if ex:
            k.wait(lg=("fr", 1))
        for op in o1[:n1]:
            emit(op)
        k.wait(lg=("jw", 0))
        k.e("s_barrier")
        reads(0)
        for op in o1[n1:]:
            emit(op)
        self.stamp("j01")
        for r in range(8):
            ops = j_ops(r + 2) if r + 2 < 8 else []
            total = sum(op[1] if op[0] != "ds" else 4 for op in ops)
            spread = self.o.get("s4spread", 0)
            if not spread:
                k.wait(lg=("jr", r, 3))
            b = BF + 16 * (r & 1)
            spent = 0
            bar_at = self.o["s4bar"] + (self.o.get("s4bar0", 2) if r == 0 else 0)
            assert bar_at + 3 * spread <= 7
            for i in range(8):
                jj, ct = i // 2, i % 2
                q = 4 * r + jj
                if r == 6 and i == 0:
                    k.wait(lg=("two", 3))
                if spread and ct == 0:
                    k.wait(lg=("jr", r, jj))
                if "nomfma" not in dbg:
                    self.mfma32(ACC + 16 * ct, 8 * q + 4 * ct, b + 4 * jj, r == 0 and jj == 0, ak="a")
                if ex and r < 2 and i < 2:
                    fr_read(4 + 2 * r + i)
                if i == bar_at and r + 1 < 8:
                    self.stamp(f"ba{r}")
                    k.wait(lg=("jw", r + 1))
                    self.stamp(f"bb{r}")
                    if "nobar" not in dbg:
                        k.e("s_barrier")
                    self.stamp(f"bc{r}")
                    if not spread:
                        reads(r + 1)
                if spread and r + 1 < 8 and 0 <= (i - bar_at) < 4 * spread and (i - bar_at) % spread == 0:
                    read1(r + 1, (i - bar_at) // spread)
                if late_tr and i > bar_at and r >= self.o.get("ltr0", 2 if ex else 0):
                    if (self.o.get("b3late") or self.o.get("feat", 0) == -2) and len(late_tr) == 32:
                        k.wait(vm=("wo", 3, 7))
                    left = sum(7 - self.o["s4bar"] for rr in range(r + 1, 6)) + (8 - i)
                    for _ in range(max(2, -(-len(late_tr) // max(left, 1)))):
                        if late_tr:
                            emit(late_tr.pop(0))
                while ops and spent < total * (i + 1) / 8:
                    spent += emit(ops.pop(0))
            while ops:
                emit(ops.pop(0))
            self.stamp(f"s4r{r}")
        assert not late_tr
        if "twice" in dbg:
            k.e(f"s_add_u32 s{sSPIN}, s{sSPIN}, 1\ns_cmp_lt_u32 s{sSPIN}, 2\ns_cbranch_scc1 L_twice")
        self.stamp("s4mfma")
        k.e(f"""
        s_lshl_b32 s{sT0}, s{sMT}, 7
        s_lshl_b32 s{sT1}, s{sJN}, 5
        s_add_u32 s{sT0}, s{sT0}, s{sT1}
        s_lshl_b32 s{sT0}, s{sT0}, 10
        s_lshl_b32 s{sT1}, s{sNH}, 9
        s_add_u32 s{sT0}, s{sT0}, s{sT1}
        s_lshl_b32 s{sT1}, s{sW}, 7
        s_add_u32 s{sT0}, s{sT0}, s{sT1}
        v_and_b32 v{vT0}, 31, v{vL}
        v_lshlrev_b32 v{vT0}, 10, v{vT0}
        v_lshrrev_b32 v{vT1}, 5, v{vL}
        v_lshl_add_u32 v{vT0}, v{vT1}, 4, v{vT0}
        v_add_u32 v{vT0}, s{sT0}, v{vT0}
        """)
        k.nop(2)
        for ct in range(2):
            for a in range(2):
                src = ACC + 16 * ct + 8 * a
                dst = OUT + 8 * ct + 4 * a
                for i in range(4):
                    k.e(f"v_cvt_pk_bf16_f32 v{dst + i}, v{src + 2 * i}, v{src + 2 * i + 1}")
                o = ct * 64 + a * 32
                os_ = f" offset:{o}" if o else ""
                k.vmem(f"buffer_store_dwordx4 {vr(dst, 4)}, v{vT0}, {sr(SOUT, 4)}, 0 offen{os_}", "out")

    def epilogue(self):
        k = self.k
        if self.stamps:
            self.stamp("end")
            n = self.nst
            k.e("s_waitcnt vmcnt(0) lgkmcnt(0)")
            for i in range(n):
                k.e(f"v_writelane_b32 v{vT1}, s{STAMP0 + 2 * i}, {i}")
            k.e(f"""
            s_lshl_b32 s{sT0}, s2, 2
            s_add_u32 s{sT0}, s{sT0}, s{sW}
            s_lshl_b32 s{sT0}, s{sT0}, 6
            s_add_u32 s{sT0}, s{sT0}, {STAMP_OFF}
            s_mov_b32 s{SWS + 2}, {STAMP_OFF + (1 << 20)}
            v_lshlrev_b32 v{vT0}, 2, v{vL}
            s_mov_b64 exec, 0xffff
            buffer_store_dword v{vT1}, v{vT0}, {sr(SWS, 4)}, s{sT0} offen
            """)
        k.e("s_waitcnt vmcnt(0)\nL_end:\ns_endpgm")
        for item in self.ool:
            if item[0] == "hs":
                _, top, done = item
                k.e(f"""
                {top}:
                s_mov_b32 s{sSPIN}, 0
                v_and_b32 v{vT0}, 3, v{vL}
                v_lshlrev_b32 v{vT0}, 6, v{vT0}
                {top}_l:
                """)
                self.spin_check(done)
                k.e(f"""
                buffer_load_dword v{vHS}, v{vT0}, {sr(SDBG, 4)}, 0 offen sc1
                s_waitcnt vmcnt(0)
                v_cmp_gt_u32 vcc, 64, v{vHS}
                s_cbranch_vccnz {top}_l
                s_branch {done}
                """)
            elif item[0] == "g":
                _, top, join, vm, lg = item
                k.vm, k.lg = vm, lg
                k.e(f"{top}:")
                self.g_block()
                k.e(f"s_branch {join}")
            elif item[0] == "glate":
                _, top, join, vm, lg, self.wo_next = item
                k.vm, k.lg = vm, lg
                k.e(f"{top}:")
                self.glate_block(join)
            elif item[0] == "exfix":
                _, top, ok, PK, T, A = item
                k.e(f"{top}:")
                for i in range(2):
                    k.e(f"v_and_b32 v{A + 2 * i}, 0xffff, v{PK + i}")
                    k.e(f"v_lshrrev_b32 v{A + 2 * i + 1}, 16, v{PK + i}")
                for i in range(4):
                    k.e(f"v_or_b32 v{A + i}, 0x80000000, v{A + i}")
                for i in range(4):
                    k.e(f"v_cndmask_b32 v{T + i}, v{T + i}, v{A + i}, vcc")
                k.e(f"s_branch {ok}")
            elif item[0] == "pollx":
                _, retry, ok, back, loads = item
                real = retry + "_r"
                k.e(f"""
                {retry}:
                v_cmp_eq_u32 vcc, -1, v{vT0}
                s_cbranch_vccnz {real}
                s_mov_b32 s{sA}, 1
                s_branch {ok}
                {real}:
                """)
                self.spin_check(ok)
                loads(False)
                k.e(f"s_waitcnt vmcnt(0)\ns_branch {back}")
            elif item[0] == "exslow":
                _, top, ok, CB, FR, Z, vFRD = item
                k.e(f"{top}:\ns_mov_b32 s{sA}, {f32(CT)}\ns_waitcnt lgkmcnt(0)")
                for r in range(8):
                    for hf in range(2):
                        k.e(f"ds_read_b128 {vr(FR + 8 * r + 4 * hf, 4)}, v{vFRD} offset:{FS + r * 256 + hf * 64}")
                k.e("s_waitcnt lgkmcnt(0)")
                for i in range(64):
                    for src, t in ((CB + i, Z), (FR + i, Z + 2)):
                        k.e(f"""
                        v_cmp_gt_i32 vcc, 0, v{src}
                        v_log_f32 v{t + 1}, v{src}
                        v_lshlrev_b32 v{t}, 16, v{src}
                        v_mul_f32 v{t}, s{sA}, v{t}
                        v_cndmask_b32 v{t}, v{t + 1}, v{t}, vcc
                        """)
                    k.e(f"""
                    v_add_f32 v{Z}, v{Z}, v{Z + 2}
                    s_nop 0
                    v_exp_f32 v{CB + i}, v{Z}
                    """)
                for i in range(4):
                    k.e(f"v_mov_b32 v{Z + 4 + i}, 1.0")
                for j in range(2):
                    k.e(f"ds_write_b128 v{vLIN}, {vr(Z + 4, 4)} offset:{FS + j * 1024}")
                k.e(f"s_branch {ok}")
            elif item[0] == "smp":
                _, top, done, vaddr, sbase = item
                k.e(f"{top}:\ns_mov_b32 s{sSPIN}, 0\n{top}_l:")
                self.spin_check(done)
                k.e(f"""
                buffer_load_dword v{vHS}, v{vaddr}, {sr(SWS, 4)}, s{sbase} offen sc1
                s_waitcnt vmcnt(0)
                v_cmp_eq_u32 vcc, -1, v{vHS}
                s_cbranch_vccnz {top}_l
                s_branch {done}
                """)
            else:
                kind, retry, ok, back, loads = item
                k.e(f"{retry}:")
                self.spin_check(ok)
                if kind == "bulk":
                    loads(False, True)
                else:
                    loads(False)
                k.e(f"s_waitcnt vmcnt(0)\ns_branch {back}")
        k.e("L_last:\ns_endpgm")

    def build(self):
        k = self.k
        stop = self.stop_after
        self.prologue()
        self.stage1()
        self.w2_finish()
        if stop != "s1":
            self.stage2()
            self.stage2_tail()
            if stop not in ("s2", "ge"):
                self.stage3()
                if stop != "s3":
                    self.stage4()
        self.epilogue()
        return self.text()

    def text(self):
        head = f"""; RNN-T joint network: two stride-2 conv stems, w_f / w_g projections, tanh, w_o.
; @launch grid=(256,1,1) block=(256,1,1) lds={LDS_BYTES}
.amdgcn_target "amdgcn-amd-amdhsa--gfx950"
.text
.globl {NAME}
.p2align 8
.type {NAME},@function
{NAME}:
"""
        tail = f"""
.section .rodata,"a"
.p2align 6
.amdhsa_kernel {NAME}
  .amdhsa_next_free_vgpr 512
  .amdhsa_next_free_sgpr 102
  .amdhsa_accum_offset 256
  .amdhsa_group_segment_fixed_size 0
  .amdhsa_kernarg_size 80
  .amdhsa_user_sgpr_count 2
  .amdhsa_user_sgpr_kernarg_segment_ptr 1
  .amdhsa_system_sgpr_workgroup_id_x 1
.end_amdhsa_kernel
"""
        return head + self.k.text() + tail


if __name__ == "__main__":
    out = sys.argv[1] if len(sys.argv) > 1 else "cdna_kernels/" + NAME.replace("_kernel", "") + ".s"
    g = Gen2(stamps=False)
    open(out, "w").write(g.build())
    print("wrote", out)
```

```python
import math
import sys
from kb import K, vr, ar, sr, f32

NAME = "standalone__seq2seq_rnn_t_joint__speech_kernel"

H_OFF = 65536
F_OFF = H_OFF + (1 << 20)
FE_OFF = F_OFF + (1 << 19)
GE_OFF = FE_OFF + (1 << 20)
P_OFF = GE_OFF + 65536
WS_REC = 4 << 20
STAMP_OFF = 8 << 20
OOB = 0x80000000
SPIN_MAX = 4096

RW = 40960
RB = 17408
LDS_BYTES = 163840
T4 = [RB + 4096 * t for t in range(5)]
XS = [4096 * t for t in range(4)]
GS = RB + 20480
FS = GS + 1024

SX, SW1, SW2, SG, SWF, SWG, SWO, SOUT, SDBG, SWS = 24, 28, 32, 36, 40, 44, 48, 52, 56, 60
sW, sM, sN, sB, sMT, sRW, sML, sJN = 64, 65, 66, 67, 68, 69, 70, 71
sKI, sKC = 72, 3
sT0, sT1, sT2, sT3 = 73, 74, 75, 76
sSPIN = 77
STAMP0 = 78
sH, sFL, sFS, sFE, sGL, sGS, sHS, sA, sB2 = 4, 5, 6, 7, 8, 9, 10, 11, 12
sR4 = [13, 14, 15, 16]
sNH = 17
sFES, sWQ = 18, 19

vL, vT0, vT1, vT2, vT3, vLIN, vRD = 1, 2, 3, 4, 5, 6, 7
vXW = 8
vXA, vXZ, vQ0 = 12, 13, 14
vWA0, vWA1, vTR0, vTR1 = 15, 16, 17, 18
vXB = 19
vBA = 22
vW2 = 24
vT16 = 28
vONES = 32
vHS = 36
AF, BFR, ACC1, R1 = 40, 56, 64, 96
vLIN16, vH0, vSMP, vST, vRD2, vKC3, vSV, vFSM, vGST = 8, 9, 10, 11, 12, 13, 14, 19, 20
HB, ACC2, R2 = 128, 176, 192
vPF = 37
vGP = 21
vFST = 19

C1 = 2 * math.log2(math.e) * math.sqrt(2 / math.pi)
C3 = C1 * 0.044715
CT = 2 * math.log2(math.e)
EX_MAX = 125.0

DEFAULT_STAMPS = ("start", "iss", "x0", "s1mfma", "hst", "w2done", "hpoll", "s2mfma", "fst", "s3mfma", "fest", "end")
S1_STAMPS = ("start", "karg", "iss0", "iss", "x0", "u5", "u11", "u17", "s1mfma", "hst", "w2done", "end")
R4_STAMPS = ("start", "fepoll", "j01", "s4r0", "s4r1", "s4r2", "s4r3", "s4r4", "s4r5", "s4r6", "s4r7", "end")
R5_STAMPS = ("start", "fepoll2", "j01", "s4r0", "s4r1", "s4r2", "s4r3", "s4r4", "s4r5", "s4r6", "s4r7", "end")
G_STAMPS = ("start", "hst", "g0", "gdma", "gw2", "gwg", "gld", "gmf", "gend", "w2done", "hpoll", "end")
GL_STAMPS = ("start", "fst", "gdma", "gwg", "gld", "gmf", "gend", "fpoll", "s3mfma", "fest", "fepoll", "end")
S2_STAMPS = ("start", "s1mfma", "hst", "w2done", "hpoll", "s2mfma", "fst", "fpoll", "s3mfma", "fest", "fepoll", "end")
P_STAMPS = ("start", "karg", "probe", "iss0", "iss", "x0", "u5", "u11", "u17", "s1mfma", "hst", "end")
S4_STAMPS = ("start", "hst", "s2mfma", "fst", "fpoll", "s3mfma", "fest", "cb", "fepoll", "s4r3", "s4mfma", "end")


class Gen2:
    def __init__(self, stop_after=None, stamps=True, opts=None):
        self.k = K()
        self.stop_after = stop_after
        self.stamps = stamps
        self.nst = 0
        self.names = []
        self.o = dict(prefetch=False, rot=True, hplain=True, fplain=False, x2=1, x3=2,
                      b1B=4, b2C=4, trb3="loop", s4bar=3, w2in=3, w2mid=0, glate=0, g4=1,
                      fdirect=1, hdirect=3, ex=1, feat=-1, b3loop=4, b3pre=4, ltr0=2)
        self.o.update(opts or {})
        self.rot = 0
        self.ool = []

    def stamp(self, name):
        names = self.o.get("stamps", DEFAULT_STAMPS)
        if not self.stamps or name not in names:
            return
        self.names = list(names)
        self.nst = len(names)
        r = STAMP0 + 2 * names.index(name)
        self.k.e(f"{'s_memtime' if self.o.get('memtime') else 's_memrealtime'} s[{r}:{r + 1}]")

    def tmp(self):
        self.rot = (self.rot + 1) % 4
        return sT0 + self.rot

    def tile(self, key, dst):
        self.k.e(f"s_xor_b32 s{dst}, s{sN}, {self.o[key]}")

    def srd(self, d, ptr, off, nrec):
        k = self.k
        if off is None:
            k.e(f"s_mov_b32 s{d}, s{ptr}\ns_mov_b32 s{d + 1}, s{ptr + 1}")
        else:
            k.e(f"s_add_u32 s{d}, s{ptr}, s{off}\ns_addc_u32 s{d + 1}, s{ptr + 1}, 0")
        k.e(f"s_mov_b32 s{d + 2}, {nrec}\ns_mov_b32 s{d + 3}, 0x20000")

    def nt(self, srd):
        key = {SW1: "ntw1", SW2: "ntw2", SWF: "ntwf", SWG: "ntwg", SWO: "ntwo", SX: "ntx"}[srd]
        return " nt" if self.o.get(key) else ""

    def dma2k(self, srd, lds_off, soff, tag):
        k = self.k
        nt = self.nt(srd)
        k.e(f"s_add_u32 m0, s{sRW}, {lds_off}")
        k.e("s_nop 0")
        k.vmem(f"buffer_load_dwordx4 v{vWA0}, {sr(srd, 4)}, {soff} offen{nt} lds", tag)
        k.vmem(f"buffer_load_dwordx4 v{vWA1}, {sr(srd, 4)}, {soff} offen offset:1024{nt} lds", tag)

    def dma4k_ops(self, srd, lds_off, soff_fn, tag):
        k = self.k
        st = {}

        def op(q):
            if q == 0:
                st["s"] = soff_fn()
                k.e(f"s_add_u32 m0, s{sRW}, {lds_off}")
                k.e("s_nop 0")
            o = f" offset:{q * 1024}" if q else ""
            k.vmem(f"buffer_load_dwordx4 v{vW2 + q}, {sr(srd, 4)}, {st['s']} offen{o}{self.nt(srd)} lds", tag)
        return [lambda q=q: op(q) for q in range(4)]

    def dma4k(self, srd, lds_off, soff_fn, tag):
        for op in self.dma4k_ops(srd, lds_off, soff_fn, tag):
            op()

    def tr32(self, lds_off, dst, kind, tag):
        k = self.k
        for ct, a in enumerate((vTR0, vTR1)):
            k.ds(f"ds_read_b64_tr_b16 {vr(dst + 4 * ct, 2, kind)}, v{a} offset:{lds_off}", tag)
            k.ds(f"ds_read_b64_tr_b16 {vr(dst + 4 * ct + 2, 2, kind)}, v{a} offset:{lds_off + 512}", tag)

    def tr16(self, lds_off, dst, kind, tag):
        k = self.k
        for ct in range(4):
            k.ds(f"ds_read_b64_tr_b16 {vr(dst + 4 * ct, 2, kind)}, v{vT16 + ct} offset:{lds_off}", tag)
            k.ds(f"ds_read_b64_tr_b16 {vr(dst + 4 * ct + 2, 2, kind)}, v{vT16 + ct} offset:{lds_off + 512}", tag)

    def mfma32(self, d, a, b, first, ak="v"):
        c = "0" if first else vr(d, 16)
        self.k.e(f"v_mfma_f32_32x32x16_bf16 {vr(d, 16)}, {vr(a, 4, ak)}, {vr(b, 4)}, {c}")

    def mfma16(self, d, a, b, first, ak="a"):
        c = "0" if first else vr(d, 4)
        self.k.e(f"v_mfma_f32_16x16x32_bf16 {vr(d, 4)}, {vr(a, 4, ak)}, {vr(b, 4)}, {c}")

    def gelu(self, xs, tmp, kc3):
        k = self.k
        ts = [tmp + i for i in range(len(xs))]
        for x, t in zip(xs, ts):
            k.e(f"v_mul_f32 v{t}, v{x}, v{x}")
        for x, t in zip(xs, ts):
            k.e(f"v_fmaak_f32 v{t}, v{t}, v{kc3}, {f32(-C1)}")
        for x, t in zip(xs, ts):
            k.e(f"v_mul_f32 v{t}, v{t}, v{x}")
        for x, t in zip(xs, ts):
            k.e(f"v_exp_f32 v{t}, v{t}")
        for x, t in zip(xs, ts):
            k.e(f"v_add_f32 v{t}, 1.0, v{t}")
        for x, t in zip(xs, ts):
            k.e(f"v_rcp_f32 v{t}, v{t}")
        for x, t in zip(xs, ts):
            k.e(f"v_mul_f32 v{x}, v{x}, v{t}")

    def spin_check(self, done_label):
        self.k.e(f"s_add_u32 s{sSPIN}, s{sSPIN}, 1\ns_cmp_ge_u32 s{sSPIN}, {SPIN_MAX}\ns_cbranch_scc1 {done_label}")

    def prologue(self):
        k = self.k
        rot = self.o["rot"]
        k.e("""
        s_cmp_ge_u32 s2, 256
        s_cbranch_scc1 L_end
        s_load_dwordx16 s[4:19], s[0:1], 0
        s_load_dwordx4 s[20:23], s[0:1], 64
        """)
        self.stamp("start")
        k.e(f"""
        v_lshrrev_b32 v{vT0}, 6, v0
        v_and_b32 v{vL}, 63, v0
        v_readfirstlane_b32 s{sW}, v{vT0}
        s_and_b32 s{sT0}, s2, 7
        s_lshr_b32 s{sT1}, s2, 3
        s_add_u32 s{sJN}, s{sT1}, {self.o.get("jnrot", 0)}
        s_and_b32 s{sJN}, s{sJN}, 3
        s_lshr_b32 s{sML}, s{sT1}, 2
        s_and_b32 s{sT2}, s{sT0}, 1
        s_lshl_b32 s{sN}, s{sT2}, 2
        s_add_u32 s{sN}, s{sN}, s{sJN}
        s_lshr_b32 s{sT0}, s{sT0}, 1
        s_lshl_b32 s{sM}, s{sT0}, 3
        s_add_u32 s{sM}, s{sM}, s{sML}
        s_lshr_b32 s{sB}, s{sM}, 4
        s_and_b32 s{sMT}, s{sM}, 15
        s_mul_i32 s{sRW}, s{sW}, {RW}
        v_lshrrev_b32 v{vT0}, 4, v{vL}
        v_lshrrev_b32 v{vT1}, 5, v{vL}
        v_and_b32 v{vT2}, 15, v{vL}
        v_xor_b32 v{vT2}, v{vT2}, v{vT1}
        v_lshlrev_b32 v{vT2}, 4, v{vT2}
        v_lshl_add_u32 v{vXW}, v{vT0}, 10, v{vT2}
        """)
        for e in range(1, 4):
            k.e(f"v_xor_b32 v{vXW + e}, {e * 32}, v{vXW}")
            k.e(f"v_add_u32 v{vXW + e}, {e * 3072}, v{vXW + e}")
        k.e(f"""
        v_cmp_gt_u32 vcc, 16, v{vL}
        v_bfrev_b32 v{vT0}, 1
        v_lshrrev_b32 v{vT1}, 3, v{vL}
        v_cndmask_b32 v{vQ0}, 0, v{vT0}, vcc
        v_bfe_u32 v{vT2}, v{vT1}, 1, 1
        v_lshlrev_b32 v{vT2}, 2, v{vT2}
        v_and_b32 v{vT3}, 7, v{vL}
        v_xor_b32 v{vT2}, v{vT2}, v{vT3}
        v_lshlrev_b32 v{vT2}, 4, v{vT2}
        v_lshl_add_u32 v{vWA0}, v{vT1}, 10, v{vT2}
        v_add_u32 v{vWA1}, 7168, v{vWA0}
        s_lshl_b32 s{sT0}, s{sW}, 17
        s_lshl_b32 s{sT1}, s{sN}, 7
        s_add_u32 s3, s{sT0}, s{sT1}
        s_mul_i32 s{sT0}, s{sB}, 1000
        s_lshl_b32 s{sT1}, s{sMT}, 6
        s_add_u32 s{sT0}, s{sT0}, s{sT1}
        s_sub_u32 s{sT0}, s{sT0}, 1
        s_lshl_b32 s{sT0}, s{sT0}, 10
        s_lshl_b32 s{sT2}, s{sW}, 8
        s_add_u32 s{sT0}, s{sT0}, s{sT2}
        s_ashr_i32 s{sT3}, s{sT0}, 31
        s_sub_u32 s{sT1}, 1001, s{sT1}
        s_lshl_b32 s{sT1}, s{sT1}, 10
        s_sub_u32 s{SX + 2}, s{sT1}, s{sT2}
        s_mov_b32 s{SX + 3}, 0x20000
        s_sub_u32 s{SW1 + 2}, 1572864, s3
        s_mov_b32 s{SW1 + 3}, 0x20000
        """)
        if rot:
            k.e(f"s_lshl_b32 s{sKI}, s{sML}, 14")
        else:
            k.e(f"s_mov_b32 s{sKI}, 0")
        k.e("s_waitcnt lgkmcnt(0)")
        self.stamp("karg")
        k.e(f"""
        s_add_u32 s{SX}, s4, s{sT0}
        s_addc_u32 s{SX + 1}, s5, s{sT3}
        s_add_u32 s{SW1}, s6, s3
        s_addc_u32 s{SW1 + 1}, s7, 0
        """)

    def code_prefetch(self):
        k = self.k
        mode = self.o.get("cpf", 0)
        if not mode:
            return
        lab = k.label("pf")
        k.e(f"""
        s_cmp_lg_u32 s{sW}, {self.o.get("cpfw", 3)}
        s_cbranch_scc1 {lab}
        s_getpc_b64 s[{sT0 + 1}:{sT0 + 2}]
        L_pc:
        s_lshr_b32 s{sT0}, s2, 3
        s_lshl_b32 s{sT0}, s{sT0}, 11
        v_lshlrev_b32 v{vT0}, 7, v{vL}
        v_add_u32 v{vT0}, s{sT0}, v{vT0}
        v_min_u32 v{vT0}, L_last-L_pc, v{vT0}
        s_mov_b64 exec, 0xffff
        global_load_dword v{vPF}, v{vT0}, s[{sT0 + 1}:{sT0 + 2}]
        s_mov_b64 exec, -1
        {lab}:
        """)

    def g_prefetch(self):
        k = self.k
        k.e(f"""
        s_lshr_b32 s{sT0}, s2, 3
        s_lshl_b32 s{sT1}, s{sT0}, 12
        v_lshlrev_b32 v{vT0}, 10, v{vL}
        v_add_u32 v{vT0}, s{sT1}, v{vT0}
        s_lshr_b32 s{sT1}, s{sT0}, 1
        s_lshl_b32 s{sT1}, s{sT1}, 10
        s_and_b32 s{sT0}, s{sT0}, 1
        s_lshl_b32 s{sT0}, s{sT0}, 7
        s_add_u32 s{sT0}, s{sT0}, s{sT1}
        v_mov_b32 v{vT1}, s{sT0}
        s_mov_b64 exec, 15
        """)
        k.vmem(f"buffer_load_dword v{vPF}, v{vT0}, {sr(SWG, 4)}, 0 offen", "pf")
        k.e("s_mov_b64 exec, 1")
        k.vmem(f"buffer_load_dword v{vPF + 1}, v{vT1}, {sr(SG, 4)}, 0 offen", "pf")
        k.e("s_mov_b64 exec, -1")

    def l2pf(self, pos):
        k = self.k
        for key, srd, lanes in (("pfw2", SW2, 48), ("pfwf", SWF, 16), ("pfwo", SWO, 16)):
            if self.o.get(key) != pos:
                continue
            if srd == SWO:
                k.e(f"s_lshr_b32 s{sT0}, s2, 3\ns_lshl_b32 s{sT0}, s{sT0}, 14")
            else:
                k.e(f"s_lshl_b32 s{sT0}, s{sML}, 14")
            k.e(f"""
            v_and_b32 v{vT1}, 15, v{vL}
            v_lshlrev_b32 v{vT1}, 10, v{vT1}
            v_lshrrev_b32 v{vT2}, 4, v{vL}
            v_lshl_add_u32 v{vT1}, v{vT2}, 19, v{vT1}
            s_bfm_b64 exec, {lanes}, 0
            """)
            k.vmem(f"buffer_load_dword v{vPF}, v{vT1}, {sr(srd, 4)}, s{sT0} offen", "pf")
            k.e("s_mov_b64 exec, -1")

    def x_quarter(self, qq):
        k = self.k
        a, z = sT0, sT1
        if self.o["rot"]:
            k.e(f"s_add_u32 s{a}, s{sJN}, {qq}\ns_and_b32 s{a}, s{a}, 3")
        else:
            k.e(f"s_mov_b32 s{a}, {qq}")
        k.e(f"""
        s_lshl_b32 s{sT2}, s{a}, 12
        s_add_u32 m0, s{sT2}, s{sRW}
        s_or_b32 s{z}, s{a}, s{sMT}
        s_cmp_eq_u32 s{z}, 0
        s_cselect_b32 s{z}, -1, 0
        s_and_b32 s{sT3}, s{a}, 1
        s_lshl_b32 s{sT3}, s{sT3}, 7
        s_lshl_b32 s{a}, s{a}, 14
        s_or_b32 s{a}, s{a}, s{sT3}
        """)
        for e in range(4):
            t = vXA if e % 2 == 0 else vXZ
            k.e(f"v_xor_b32 v{t}, s{a}, v{vXW + e}")
            if e == 0:
                k.e(f"v_and_or_b32 v{t}, v{vQ0}, s{z}, v{t}")
            o = f" offset:{e * 1024}" if e else ""
            k.vmem(f"buffer_load_dwordx4 v{t}, {sr(SX, 4)}, 0 offen{o}{self.nt(SX)} lds", "x")
            if qq == 0 and self.o.get("probe") == e + 1:
                k.e("s_waitcnt vmcnt(0)")
                self.stamp("probe")

    def x_tail(self):
        k = self.k
        k.e(f"""
        v_lshlrev_b32 v{vXA}, 4, v{vL}
        v_add_u32 v{vXA}, 65536, v{vXA}
        s_add_u32 m0, s{sRW}, 16384
        s_mov_b64 exec, 0xffff
        """)
        k.vmem(f"buffer_load_dwordx4 v{vXA}, {sr(SX, 4)}, 0 offen{self.nt(SX)} lds", "x")
        k.e("s_mov_b64 exec, -1")

    def w1_issue(self, u):
        k = self.k
        i = u % 3
        if i == 0 and u:
            k.e(f"s_add_u32 s{sKI}, s{sKI}, 16384\ns_and_b32 s{sKI}, s{sKI}, 0x1c000")
        if i:
            t = self.tmp()
            k.e(f"s_add_u32 s{t}, s{sKI}, {i * 524288}")
            so = f"s{t}"
        else:
            so = f"s{sKI}"
        self.dma2k(SW1, RB + 2048 * (u % 10), so, ("w1", u))

    def rot4(self):
        k = self.k
        for j in range(4):
            if self.o["rot"]:
                k.e(f"s_add_u32 s{sR4[j]}, s{sML}, {j}\ns_and_b32 s{sR4[j]}, s{sR4[j]}, 3\ns_lshl_b32 s{sR4[j]}, s{sR4[j]}, 10")
            else:
                k.e(f"s_mov_b32 s{sR4[j]}, {j * 1024}")

    def w32_soff(self, j, tap):
        def fn():
            t = self.tmp()
            self.k.e(f"s_lshl_b32 s{t}, s{sR4[j]}, 5")
            if tap:
                self.k.e(f"s_add_u32 s{t}, s{t}, {tap * 524288}")
            return f"s{t}"
        return fn

    def w2_slot(self, v):
        xs = [XS[2], XS[3], XS[0], XS[1]] if self.o["w2in"] + self.o["w2mid"] > 5 else XS
        return [T4[2], T4[3], T4[4], T4[0], T4[1], xs[0], xs[1], xs[2], xs[3], T4[2], T4[3], T4[4]][v]

    def w2_ops(self, v):
        return self.dma4k_ops(SW2, self.w2_slot(v), self.w32_soff(v // 3, v % 3), ("w2", v))

    def clears(self):
        k = self.k
        self.srd(SWS, 22, None, WS_REC)
        k.e(f"""
        v_mov_b32 v{vONES}, -1
        v_mov_b32 v{vONES + 1}, -1
        v_mov_b32 v{vONES + 2}, -1
        v_mov_b32 v{vONES + 3}, -1
        v_lshlrev_b32 v{vT0}, 4, v{vL}
        s_lshl_b32 s{sT0}, s{sM}, 14
        s_lshl_b32 s{sT2}, s{sW}, 9
        s_add_u32 s{sT0}, s{sT0}, s{sT2}
        """)
        self.tile("x2", sT1)
        k.e(f"""
        s_lshl_b32 s{sT1}, s{sT1}, 11
        s_add_u32 s{sT2}, s{sT0}, {F_OFF}
        s_add_u32 s{sT2}, s{sT2}, s{sT1}
        """)
        self.tile("x3", sT1)
        ex = self.o["ex"]
        if ex:
            k.e(f"""
            s_lshl_b32 s{sT1}, s{sT1}, 11
            s_add_u32 s{sT3}, s{sT0}, s{sT1}
            s_lshl_b32 s{sT3}, s{sT3}, 1
            s_add_u32 s{sT3}, s{sT3}, {FE_OFF}
            """)
            k.vmem(f"buffer_store_dwordx4 {vr(vONES, 4)}, v{vT0}, {sr(SWS, 4)}, s{sT3} offen sc1", "clr")
            k.e("s_mov_b32 exec_hi, 0")
            k.vmem(f"buffer_store_dwordx4 {vr(vONES, 4)}, v{vT0}, {sr(SWS, 4)}, s{sT2} offen sc1", "clr")
        else:
            k.e(f"""
            s_lshl_b32 s{sT1}, s{sT1}, 11
            s_add_u32 s{sT3}, s{sT0}, {FE_OFF}
            s_add_u32 s{sT3}, s{sT3}, s{sT1}
            s_mov_b32 exec_hi, 0
            """)
            k.vmem(f"buffer_store_dwordx4 {vr(vONES, 4)}, v{vT0}, {sr(SWS, 4)}, s{sT2} offen sc1", "clr")
            k.vmem(f"buffer_store_dwordx4 {vr(vONES, 4)}, v{vT0}, {sr(SWS, 4)}, s{sT3} offen sc1", "clr")
        lab = k.label("c0")
        k.e(f"""
        s_mov_b64 exec, -1
        s_cmp_lg_u32 s{sW}, 0
        s_cbranch_scc1 {lab}
        s_lshl_b32 s{sT0}, s{sM}, 15
        s_lshl_b32 s{sT1}, s{sN}, 11
        s_add_u32 s{sT0}, s{sT0}, s{sT1}
        s_add_u32 s{sT0}, s{sT0}, {H_OFF}
        s_add_u32 s{sT1}, s{sT0}, 16384
        buffer_store_dwordx4 {vr(vONES, 4)}, v{vT0}, {sr(SWS, 4)}, s{sT0} offen sc1
        buffer_store_dwordx4 {vr(vONES, 4)}, v{vT0}, {sr(SWS, 4)}, s{sT0} offen offset:1024 sc1
        buffer_store_dwordx4 {vr(vONES, 4)}, v{vT0}, {sr(SWS, 4)}, s{sT1} offen sc1
        buffer_store_dwordx4 {vr(vONES, 4)}, v{vT0}, {sr(SWS, 4)}, s{sT1} offen offset:1024 sc1
        """)
        if self.o["g4"]:
            k.e(f"""
            s_cmp_lg_u32 s{sN}, 0
            s_cbranch_scc1 {lab}
            s_and_b32 s{sT0}, s{sM}, 7
            s_lshr_b32 s{sT1}, s{sM}, 3
            s_lshl_b32 s{sT2}, s{sT0}, 14
            s_lshl_b32 s{sT3}, s{sT1}, 12
            s_add_u32 s{sT2}, s{sT2}, s{sT3}
            s_add_u32 s{sT2}, s{sT2}, {P_OFF}
            s_lshl_b32 s{sT0}, s{sT0}, {10 + ex}
            s_lshl_b32 s{sT1}, s{sT1}, {8 + ex}
            s_add_u32 s{sT0}, s{sT0}, s{sT1}
            s_add_u32 s{sT0}, s{sT0}, {GE_OFF}
            s_add_u32 s{sT1}, s{sT0}, {8192 << ex}
            buffer_store_dwordx4 {vr(vONES, 4)}, v{vT0}, {sr(SWS, 4)}, s{sT2} offen sc1
            buffer_store_dwordx4 {vr(vONES, 4)}, v{vT0}, {sr(SWS, 4)}, s{sT2} offen offset:1024 sc1
            buffer_store_dwordx4 {vr(vONES, 4)}, v{vT0}, {sr(SWS, 4)}, s{sT2} offen offset:2048 sc1
            buffer_store_dwordx4 {vr(vONES, 4)}, v{vT0}, {sr(SWS, 4)}, s{sT2} offen offset:3072 sc1
            s_bfm_b64 exec, {16 << ex}, 0
            buffer_store_dwordx4 {vr(vONES, 4)}, v{vT0}, {sr(SWS, 4)}, s{sT0} offen sc1
            buffer_store_dwordx4 {vr(vONES, 4)}, v{vT0}, {sr(SWS, 4)}, s{sT1} offen sc1
            s_mov_b64 exec, -1
            {lab}:
            """)
            return
        k.e(f"""
        s_cmp_ge_u32 s2, 8
        s_cbranch_scc1 {lab}
        s_lshl_b32 s{sT0}, s2, 10
        s_add_u32 s{sT0}, s{sT0}, {GE_OFF}
        s_add_u32 s{sT1}, s{sT0}, 8192
        buffer_store_dwordx4 {vr(vONES, 4)}, v{vT0}, {sr(SWS, 4)}, s{sT0} offen sc1
        buffer_store_dwordx4 {vr(vONES, 4)}, v{vT0}, {sr(SWS, 4)}, s{sT1} offen sc1
        {lab}:
        """)

    def prologue2(self):
        k = self.k
        for key, d, ptr, size in (("x2", SW2, 8, 1572864), ("x3", SWF, 12, 524288), (None, SWG, 14, 524288)):
            if key is None and self.o["g4"]:
                k.e(f"""
                s_and_b32 s{sT0}, s{sM}, 7
                s_lshl_b32 s{sT0}, s{sT0}, 7
                s_lshr_b32 s{sT1}, s{sM}, 3
                s_lshl_b32 s{sT1}, s{sT1}, 17
                s_add_u32 s{sT0}, s{sT0}, s{sT1}
                s_lshl_b32 s{sT1}, s{sW}, 15
                s_add_u32 s{sT0}, s{sT0}, s{sT1}
                s_sub_u32 s{sT1}, {size}, s{sT0}
                """)
                self.srd(d, ptr, sT0, f"s{sT1}")
                continue
            if key:
                self.tile(key, sT0)
            else:
                k.e(f"s_and_b32 s{sT0}, s2, 7")
            k.e(f"""
            s_lshl_b32 s{sT0}, s{sT0}, 7
            s_lshl_b32 s{sT1}, s{sW}, 17
            s_add_u32 s{sT0}, s{sT0}, s{sT1}
            s_sub_u32 s{sT1}, {size}, s{sT0}
            """)
            self.srd(d, ptr, sT0, f"s{sT1}")
        if self.o["g4"]:
            k.e(f"""
            s_lshr_b32 s{sT0}, s{sM}, 3
            s_lshl_b32 s{sT0}, s{sT0}, 8
            s_lshl_b32 s{sT1}, s{sW}, 6
            s_add_u32 s{sT0}, s{sT0}, s{sT1}
            s_sub_u32 s{sT1}, 16384, s{sT0}
            """)
        else:
            k.e(f"""
            s_lshl_b32 s{sT0}, s{sW}, 8
            s_sub_u32 s{sT1}, 16384, s{sT0}
            """)
        self.srd(SG, 10, sT0, f"s{sT1}")
        k.e(f"""
        s_lshr_b32 s{sT2}, s{sN}, 2
        s_lshl_b32 s{sT0}, s{sT2}, 9
        s_lshl_b32 s{sT1}, s{sW}, 7
        s_add_u32 s{sT0}, s{sT0}, s{sT1}
        s_sub_u32 s{sT1}, 524288, s{sT0}
        """)
        self.srd(SWO, 16, sT0, f"s{sT1}")
        k.e(f"s_mul_i32 s{sT0}, s{sB}, 2048000")
        self.srd(SOUT, 18, sT0, 2048000)
        self.srd(SDBG, 20, None, 256)
        k.e(f"s_lshr_b32 s{sNH}, s{sN}, 2")
        self.rot4()
        k.e(f"""
        v_lshlrev_b32 v{vT0}, 4, v{vL}
        v_add_u32 v{vLIN}, s{sRW}, v{vT0}
        v_bfe_u32 v{vT0}, v{vL}, 2, 2
        v_lshrrev_b32 v{vT1}, 5, v{vL}
        v_lshl_add_u32 v{vT1}, v{vT1}, 3, v{vT0}
        v_lshlrev_b32 v{vT1}, 7, v{vT1}
        v_lshrrev_b32 v{vT2}, 1, v{vT0}
        v_lshl_add_u32 v{vT1}, v{vT2}, 6, v{vT1}
        v_bfe_u32 v{vT2}, v{vL}, 4, 1
        v_lshl_add_u32 v{vT1}, v{vT2}, 5, v{vT1}
        v_and_b32 v{vT2}, 3, v{vL}
        v_lshl_add_u32 v{vT1}, v{vT2}, 3, v{vT1}
        v_add_u32 v{vTR0}, s{sRW}, v{vT1}
        v_xor_b32 v{vT1}, 64, v{vT1}
        v_add_u32 v{vTR1}, s{sRW}, v{vT1}
        """)
        k.e(f"""
        v_and_b32 v{vT0}, 31, v{vL}
        v_lshrrev_b32 v{vT1}, 5, v{vL}
        v_and_b32 v{vT2}, 15, v{vT0}
        v_xor_b32 v{vT2}, v{vT2}, v{vT1}
        v_lshlrev_b32 v{vT2}, 4, v{vT2}
        v_lshl_add_u32 v{vT2}, v{vT0}, 9, v{vT2}
        v_add_u32 v{vXB}, s{sRW}, v{vT2}
        v_add_u32 v{vXB + 1}, 256, v{vXB}
        v_add_u32 v{vT2}, 1, v{vT0}
        v_and_b32 v{vT2}, 15, v{vT2}
        v_xor_b32 v{vT2}, v{vT2}, v{vT1}
        v_lshlrev_b32 v{vT2}, 4, v{vT2}
        v_lshl_add_u32 v{vT2}, v{vT0}, 9, v{vT2}
        v_add_u32 v{vT2}, 512, v{vT2}
        v_add_u32 v{vXB + 2}, s{sRW}, v{vT2}
        """)
        k.e(f"""
        v_lshrrev_b32 v{vT0}, 3, v{vL}
        v_bfe_u32 v{vT1}, v{vT0}, 1, 1
        v_lshlrev_b32 v{vT1}, 1, v{vT1}
        v_and_b32 v{vT2}, 7, v{vL}
        v_xor_b32 v{vT1}, v{vT1}, v{vT2}
        v_lshlrev_b32 v{vT1}, 4, v{vT1}
        v_lshl_add_u32 v{vW2}, v{vT0}, 10, v{vT1}
        v_xor_b32 v{vT1}, 64, v{vW2}
        v_add_u32 v{vW2 + 1}, 7168, v{vT1}
        v_add_u32 v{vW2 + 2}, {2 * 7168}, v{vW2}
        v_add_u32 v{vW2 + 3}, {3 * 7168}, v{vT1}
        v_lshrrev_b32 v{vT0}, 4, v{vL}
        v_bfe_u32 v{vT1}, v{vL}, 2, 2
        v_lshl_add_u32 v{vT2}, v{vT0}, 3, v{vT1}
        v_lshlrev_b32 v{vT2}, 7, v{vT2}
        v_lshrrev_b32 v{vT1}, 1, v{vT1}
        v_and_b32 v{vT0}, 1, v{vT0}
        v_lshl_add_u32 v{vT1}, v{vT0}, 1, v{vT1}
        v_lshl_add_u32 v{vT2}, v{vT1}, 5, v{vT2}
        v_and_b32 v{vT1}, 3, v{vL}
        v_lshl_add_u32 v{vT2}, v{vT1}, 3, v{vT2}
        v_add_u32 v{vT16}, s{sRW}, v{vT2}
        """)
        for ct in range(1, 4):
            k.e(f"v_xor_b32 v{vT0}, {ct * 32}, v{vT2}\nv_add_u32 v{vT16 + ct}, s{sRW}, v{vT0}")
        k.e(f"""
        v_and_b32 v{vT0}, 15, v{vL}
        v_bfe_u32 v{vT1}, v{vL}, 4, 1
        v_lshl_add_u32 v{vT0}, v{vT0}, 1, v{vT1}
        v_lshlrev_b32 v{vT0}, 4, v{vT0}
        v_lshrrev_b32 v{vT1}, 5, v{vL}
        v_lshl_add_u32 v{vT0}, v{vT1}, 10, v{vT0}
        s_lshl_b32 s{sT0}, s{sW}, 11
        v_add_u32 v{vRD}, s{sT0}, v{vT0}
        """)
        if self.o["rot"]:
            k.e(f"s_lshl_b32 s{sKC}, s{sML}, 5")
        else:
            k.e(f"s_mov_b32 s{sKC}, 0")

    def stage1(self):
        k = self.k
        if self.o.get("cpf") == 1:
            self.code_prefetch()
        self.x_quarter(0)
        for u in range(3):
            self.w1_issue(u)
        if self.o.get("cpf") == 2:
            self.code_prefetch()
        self.clears()
        for qq in range(1, 4):
            self.x_quarter(qq)
        self.x_tail()
        self.stamp("iss0")
        self.prologue2()
        if self.o.get("gpf", 1) and not self.o["g4"]:
            self.g_prefetch()
        self.l2pf("iss0")
        for u in range(3, 10):
            self.w1_issue(u)
        self.l2pf("iss")
        self.stamp("iss")
        k.wait(vm="x")
        self.stamp("x0")
        lab = k.label("hs")
        k.e(f"""
        s_cmp_lg_u32 s{sW}, 0
        s_cbranch_scc1 {lab}
        s_and_b32 s{sT0}, s2, 3
        s_lshl_b32 s{sT0}, s{sT0}, 6
        v_mov_b32 v{vT0}, s{sT0}
        v_mov_b32 v{vT1}, 1
        s_mov_b64 exec, 1
        buffer_atomic_add v{vT1}, v{vT0}, {sr(SDBG, 4)}, 0 offen sc1
        s_mov_b64 exec, -1
        {lab}:
        """)

        def mm(u):
            a, b = AF + 8 * (u & 1), BFR + 4 * (u & 1)
            self.mfma32(ACC1, a, b, u == 0)
            self.mfma32(ACC1 + 16, a + 4, b, u == 0)

        def refill(u):
            if u + 10 < 24:
                self.w1_issue(u + 10)
            elif u >= 15 and u % 2 == 1 and (u - 15) // 2 < self.o["w2in"]:
                for op in self.w2_ops((u - 15) // 2):
                    op()
            self.l2pf(u)
            if u == 17:
                k.e(f"v_and_b32 v{vT0}, 3, v{vL}\nv_lshlrev_b32 v{vT0}, 6, v{vT0}")
                k.vmem(f"buffer_load_dword v{vHS}, v{vT0}, {sr(SDBG, 4)}, 0 offen sc1", "hs")

        for u in range(24):
            i = u % 3
            if i == 0 and u:
                k.e(f"s_add_u32 s{sKC}, s{sKC}, 32\ns_and_b32 s{sKC}, s{sKC}, 0xe0")
            k.e(f"v_xor_b32 v{vBA + (u & 1)}, s{sKC}, v{vXB + i}")
            k.wait(vm=("w1", u))
            self.tr32(RB + 2048 * (u % 10), AF + 8 * (u & 1), "v", ("u", u))
            k.ds(f"ds_read_b128 {vr(BFR + 4 * (u & 1), 4)}, v{vBA + (u & 1)}", ("u", u))
            if u:
                k.wait(lg=("u", u - 1))
                mm(u - 1)
                refill(u - 1)
            if u in (5, 11, 17):
                self.stamp(f"u{u}")
        k.wait(lg=("u", 23))
        mm(23)
        refill(23)
        self.stamp("s1mfma")
        if self.o["g4"]:
            self.g4_issue()
        self.l2pf("s1end")
        k.e(f"v_mov_b32 v{vKC3}, {f32(-C3)}")
        k.e(f"v_add_u32 v{vT3}, {2 * RW}, v{vRD}")
        k.nop(10)
        for blk in range(8):
            k.ds(f"ds_write_b128 v{vLIN}, {vr(ACC1 + 4 * blk, 4)} offset:{blk * 1024}")
        k.wait(lg="all")
        k.e("s_barrier")
        for sw in range(4):
            a = vRD if sw < 2 else vT3
            for j in range(2):
                k.ds(f"ds_read_b128 {vr(R1 + 8 * sw + 4 * j, 4)}, v{a} offset:{(sw & 1) * RW + j * 512}", ("r", sw))
        def h_addr():
            k.e(f"""
            v_and_b32 v{vT0}, 15, v{vL}
            v_lshlrev_b32 v{vT0}, 4, v{vT0}
            v_bfe_u32 v{vT1}, v{vL}, 4, 1
            v_lshl_add_u32 v{vT0}, v{vT1}, 14, v{vT0}
            v_lshrrev_b32 v{vT1}, 5, v{vL}
            v_lshl_add_u32 v{vT0}, v{vT1}, 8, v{vT0}
            s_lshl_b32 s{sT0}, s{sM}, 15
            s_lshl_b32 s{sT1}, s{sN}, 11
            s_add_u32 s{sT0}, s{sT0}, s{sT1}
            s_lshl_b32 s{sT1}, s{sW}, 9
            s_add_u32 s{sT0}, s{sT0}, s{sT1}
            s_add_u32 s{sT0}, s{sT0}, {H_OFF}
            """)
        if self.o.get("hearly"):
            h_addr()
        assert self.o["w2in"] + self.o["w2mid"] <= 7
        for v in range(self.o["w2in"], self.o["w2in"] + self.o["w2mid"]):
            for op in self.w2_ops(v):
                op()
        k.wait(lg=("r", 1))
        for i in range(8):
            k.e(f"v_add_f32 v{R1 + i}, v{R1 + i}, v{R1 + 8 + i}")
        k.wait(lg=("r", 3))
        for i in range(8):
            k.e(f"v_add_f32 v{R1 + 16 + i}, v{R1 + 16 + i}, v{R1 + 24 + i}")
        for i in range(8):
            k.e(f"v_add_f32 v{R1 + i}, v{R1 + i}, v{R1 + 16 + i}")
        self.gelu([R1 + i for i in range(8)], R1 + 8, vKC3)
        for i in range(4):
            k.e(f"v_cvt_pk_bf16_f32 v{R1 + 16 + i}, v{R1 + 2 * i}, v{R1 + 2 * i + 1}")
        if not self.o.get("hearly"):
            h_addr()
        k.vmem(f"buffer_store_dwordx4 {vr(R1 + 16, 4)}, v{vT0}, {sr(SWS, 4)}, s{sT0} offen sc1", "hst")
        self.stamp("hst")
        if not self.o.get("hbar"):
            k.e("s_barrier")

    def setup2(self):
        k = self.k
        k.e(f"""
        v_lshlrev_b32 v{vLIN16}, 4, v{vL}
        v_and_b32 v{vT0}, 15, v{vL}
        v_lshrrev_b32 v{vT1}, 4, v{vL}
        v_add_u32 v{vH0}, {32768 - 16}, v{vLIN16}
        v_lshlrev_b32 v{vT2}, 8, v{vT1}
        v_add_u32 v{vT2}, 240, v{vT2}
        s_cmp_eq_u32 s{sMT}, 0
        s_cselect_b32 s{sT0}, {OOB}, 0
        v_add_u32 v{vT2}, s{sT0}, v{vT2}
        v_cmp_eq_u32 vcc, 0, v{vT0}
        v_and_b32 v{vT3}, 7, v{vL}
        v_lshlrev_b32 v{vT3}, 9, v{vT3}
        v_cndmask_b32 v{vH0}, v{vH0}, v{vT2}, vcc
        v_add_u32 v{vFSM}, {256 + 240 + 12}, v{vT3}
        v_add_u32 v{vSMP}, 16384, v{vFSM}
        v_add_u32 v{vT2}, 32768, v{vSMP}
        v_add_u32 v{vT3}, s{sT0}, v{vSMP}
        v_cmp_gt_u32 vcc, 8, v{vL}
        v_bfrev_b32 v{vSV}, 1
        s_nop 0
        v_cndmask_b32 v{vSMP}, v{vT3}, v{vT2}, vcc
        v_cndmask_b32 v{vFSM}, v{vSV}, v{vFSM}, vcc
        v_cmp_gt_u32 vcc, 16, v{vL}
        v_lshrrev_b32 v{vT2}, 1, v{vT1}
        v_lshlrev_b32 v{vT2}, 8, v{vT2}
        v_cndmask_b32 v{vSMP}, v{vSV}, v{vSMP}, vcc
        v_lshl_add_u32 v{vT2}, v{vT0}, 4, v{vT2}
        v_and_b32 v{vT1}, 1, v{vT1}
        v_lshl_add_u32 v{vST}, v{vT1}, 3, v{vT2}
        s_lshl_b32 s{sT0}, s{sW}, 10
        v_add_u32 v{vRD2}, s{sT0}, v{vLIN16}
        s_lshl_b32 s{sT0}, s{sM}, 15
        s_lshl_b32 s{sT1}, s{sW}, 12
        s_add_u32 s{sH}, s{sT0}, s{sT1}
        s_add_u32 s{sH}, s{sH}, {H_OFF}
        s_sub_u32 s{sHS}, s{sH}, 32768
        s_lshl_b32 s{sT0}, s{sM}, 14
        s_add_u32 s{sFL}, s{sT0}, s{sT1}
        s_add_u32 s{sFL}, s{sFL}, {F_OFF}
        s_lshl_b32 s{sT1}, s{sW}, 9
        s_add_u32 s{sT0}, s{sT0}, s{sT1}
        s_xor_b32 s{sT1}, s{sN}, {self.o["x2"]}
        s_lshl_b32 s{sT1}, s{sT1}, 11
        s_add_u32 s{sFS}, s{sT0}, s{sT1}
        s_add_u32 s{sFS}, s{sFS}, {F_OFF}
        s_xor_b32 s{sT1}, s{sN}, {self.o["x3"]}
        s_lshl_b32 s{sT1}, s{sT1}, 11
        s_add_u32 s{sFES}, s{sT0}, s{sT1}
        {f"s_lshl_b32 s{sFES}, s{sFES}, 1" if self.o["ex"] else ""}
        s_add_u32 s{sFES}, s{sFES}, {FE_OFF}
        v_bfrev_b32 v{vGST}, 1
        s_lshl_b32 s{sWQ}, s{sML}, 16
        s_sub_u32 s{sWQ}, s{sWQ}, 16384
        """)
        if self.o["ex"]:
            assert self.o["fdirect"] and self.o["g4"]
            k.e(f"""
            v_lshrrev_b32 v{vT0}, 5, v{vL}
            v_lshlrev_b32 v{vT0}, 9, v{vT0}
            v_bfe_u32 v{vT1}, v{vL}, 2, 2
            v_lshl_add_u32 v{vT0}, v{vT1}, 7, v{vT0}
            v_bfe_u32 v{vT1}, v{vL}, 4, 1
            v_lshl_add_u32 v{vT0}, v{vT1}, 6, v{vT0}
            v_and_b32 v{vT1}, 3, v{vL}
            v_lshl_add_u32 v{vFST}, v{vT1}, 4, v{vT0}
            """)
        if self.o["g4"]:
            ex = self.o["ex"]
            k.e(f"""
            s_or_b32 s{sT0}, s{sN}, s{sW}
            s_cmp_eq_u32 s{sT0}, 0
            s_cselect_b32 s{sT2}, 0, {OOB}
            s_and_b32 s{sT0}, s{sM}, 7
            s_lshr_b32 s{sT1}, s{sM}, 3
            s_lshl_b32 s{sT3}, s{sT0}, 14
            s_add_u32 s{sT3}, s{sT3}, s{sT2}
            s_lshl_b32 s{sA}, s{sT1}, 10
            s_add_u32 s{sT3}, s{sT3}, s{sA}
            s_add_u32 s{sT3}, s{sT3}, {P_OFF}
            v_add_u32 v{vGP}, s{sT3}, v{vLIN16}
            v_bfe_u32 v{vT0}, v{vL}, 3, 1
            v_lshlrev_b32 v{vT0}, {13 + ex}, v{vT0}
            v_and_b32 v{vT1}, 7, v{vL}
            v_lshl_add_u32 v{vT0}, v{vT1}, 4, v{vT0}
            v_lshrrev_b32 v{vT1}, 5, v{vL}
            v_lshl_add_u32 v{vT0}, v{vT1}, {7 + ex}, v{vT0}
            v_bfe_u32 v{vT1}, v{vL}, 4, 1
            v_lshl_add_u32 v{vT0}, v{vT1}, {7 if ex else 3}, v{vT0}
            s_lshl_b32 s{sT0}, s{sT0}, {10 + ex}
            s_lshl_b32 s{sT1}, s{sT1}, {8 + ex}
            s_add_u32 s{sT0}, s{sT0}, s{sT1}
            s_add_u32 s{sT0}, s{sT0}, s{sT2}
            s_add_u32 s{sT0}, s{sT0}, {GE_OFF}
            v_add_u32 v{vGST}, s{sT0}, v{vT0}
            """)

    def w2_finish(self):
        k = self.k
        for v in range(self.o["w2in"] + self.o["w2mid"], 9):
            if self.o.get("hbar") and v == 5:
                assert self.o["w2in"] + self.o["w2mid"] <= 5
                k.e("s_barrier")
            if v == 8 and self.o["g4"]:
                self.g4_partial()
            for op in self.w2_ops(v):
                op()
        self.setup2()
        for v in range(3):
            k.wait(vm=("w2", v))
            self.tr16(self.w2_slot(v), 16 * v, "a", ("t2", v))
        for v in range(3):
            k.wait(lg=("t2", v))
            for op in self.w2_ops(9 + v):
                op()
        top, done = k.label("hsw"), k.label("hsd")
        k.e(f"""
        v_cmp_gt_u32 vcc, 64, v{vHS}
        s_cbranch_vccnz {top}
        {done}:
        """)
        self.ool.append(("hs", top, done))
        hd = self.o.get("hdirect", 0)
        if not hd:
            k.vmem(f"buffer_load_dword v{vHS}, v{vSMP}, {sr(SWS, 4)}, s{sHS} offen sc1", "smp")
        for v in range(3, 8):
            k.wait(vm=("w2", v))
            self.tr16(self.w2_slot(v), 16 * v, "a", ("t2", v))
            if hd and v == hd + 2 and v < 8:
                self.h_loads(True, not self.o["hplain"])
        if self.o["glate"] or self.o["g4"]:
            self.w2_last()
        else:
            gtop, gjoin = k.label("gblk"), k.label("gjoin")
            k.e(f"s_cmp_lt_u32 s2, 8\ns_cbranch_scc1 {gtop}")
            self.ool.append(("g", gtop, gjoin, list(k.vm), list(k.lg)))
            self.w2_last()
            k.e(f"{gjoin}:")
        self.stamp("w2done")

    def w2_last(self):
        k = self.k
        for v in range(8, 12):
            k.wait(vm=("w2", v))
            self.tr16(self.w2_slot(v), 16 * v, "a", ("t2", v))

    def g4_issue(self):
        k = self.k
        lab = k.label("g4i")
        k.e(f"""
        s_cmp_lg_u32 s{sN}, 0
        s_cbranch_scc1 {lab}
        s_add_u32 m0, s{sRW}, {XS[3]}
        v_and_b32 v{vT0}, 15, v{vL}
        v_lshlrev_b32 v{vT0}, 10, v{vT0}
        v_lshrrev_b32 v{vT1}, 4, v{vL}
        v_lshl_add_u32 v{vT0}, v{vT1}, 4, v{vT0}
        """)
        for q in range(4):
            o = f" offset:{q * 1024}" if q else ""
            k.e(f"buffer_load_dwordx4 v{vW2 + q}, {sr(SWG, 4)}, 0 offen{o} lds")
        k.e(f"""
        s_add_u32 m0, s{sRW}, {GS}
        s_nop 0
        buffer_load_dwordx4 v{vT0}, {sr(SG, 4)}, 0 offen lds
        {lab}:
        """)
        self.g4_mark = k.nvm

    def g4_partial(self):
        k = self.k
        A, B, D = 128, 144, 160
        lab = k.label("g4p")
        k.e(f"""
        s_cmp_lg_u32 s{sN}, 0
        s_cbranch_scc1 {lab}
        v_subrev_u32 v{vT0}, s{sRW}, v{vT16}
        s_lshl_b32 s{sT0}, s{sW}, 5
        v_xor_b32 v{vT0}, s{sT0}, v{vT0}
        v_add_u32 v{vT1}, {2 * RW}, v{vT0}
        v_lshlrev_b32 v{vT2}, 4, v{vL}
        v_add_u32 v{vT2}, {GS}, v{vT2}
        v_add_u32 v{vT3}, {2 * RW}, v{vT2}
        s_waitcnt vmcnt({k.nvm - self.g4_mark}) lgkmcnt(0)
        s_barrier
        """)
        for j in range(4):
            a, b = (vT0, vT2) if j < 2 else (vT1, vT3)
            o = (j & 1) * RW
            k.e(f"ds_read_b64_tr_b16 {vr(A + 4 * j, 2)}, v{a} offset:{o + XS[3]}")
            k.e(f"ds_read_b64_tr_b16 {vr(A + 4 * j + 2, 2)}, v{a} offset:{o + XS[3] + 512}")
            k.e(f"ds_read_b128 {vr(B + 4 * j, 4)}, v{b} offset:{o}")
        k.e(f"""
        s_and_b32 s{sT0}, s{sM}, 7
        s_lshl_b32 s{sT0}, s{sT0}, 14
        s_lshr_b32 s{sT1}, s{sM}, 3
        s_lshl_b32 s{sT1}, s{sT1}, 12
        s_add_u32 s{sT0}, s{sT0}, s{sT1}
        s_lshl_b32 s{sT1}, s{sW}, 10
        s_add_u32 s{sT0}, s{sT0}, s{sT1}
        s_add_u32 s{sT0}, s{sT0}, {P_OFF}
        s_waitcnt lgkmcnt(0)
        s_barrier
        v_lshlrev_b32 v{vT0}, 4, v{vL}
        """)
        for j in range(4):
            self.mfma16(D, A + 4 * j, B + 4 * j, j == 0, ak="v")
        k.nop(12)
        k.e(f"buffer_store_dwordx4 {vr(D, 4)}, v{vT0}, {sr(SWS, 4)}, s{sT0} offen sc1\n{lab}:")

    def g4_loads(self, counted):
        k = self.k
        for q in range(4):
            t = self.tmp()
            k.e(f"s_mov_b32 s{t}, {q * 4096}")
            ins = f"buffer_load_dwordx4 {vr(160 + 4 * q, 4)}, v{vGP}, {sr(SWS, 4)}, s{t} offen sc1"
            if counted:
                k.vmem(ins, "gp")
            else:
                k.e(ins)

    def g4_final(self):
        k = self.k
        P = 160
        k.e(f"s_mov_b32 s{sSPIN}, 0")
        k.wait(vm="gp")
        retry, ok, again = k.label("gpr"), k.label("gpk"), k.label("gpa")
        k.e(f"{again}:")
        k.e(f"v_max_u32 v{vT0}, v{P}, v{P + 1}")
        for i in range(2, 16, 2):
            k.e(f"v_max3_u32 v{vT0}, v{vT0}, v{P + i}, v{P + i + 1}")
        k.e(f"v_cmp_eq_u32 vcc, -1, v{vT0}\ns_cbranch_vccnz {retry}\n{ok}:")
        self.ool.append(("poll", retry, ok, again, self.g4_loads))
        for i in range(4):
            k.e(f"v_add_f32 v{P + i}, v{P + i}, v{P + 4 + i}")
            k.e(f"v_add_f32 v{P + 8 + i}, v{P + 8 + i}, v{P + 12 + i}")
        for i in range(4):
            k.e(f"v_add_f32 v{P + i}, v{P + i}, v{P + 8 + i}")
        if self.o["ex"]:
            self.ex_tail(P, P + 4, P + 8, P + 12, P + 16)
            k.vmem(f"buffer_store_dwordx4 {vr(P + 12, 4)}, v{vGST}, {sr(SWS, 4)}, 0 offen sc1", "gest")
            return
        k.e(f"v_cvt_pk_bf16_f32 v{P + 4}, v{P}, v{P + 1}")
        k.e(f"v_cvt_pk_bf16_f32 v{P + 5}, v{P + 2}, v{P + 3}")
        k.vmem(f"buffer_store_dwordx2 {vr(P + 4, 2)}, v{vGST}, {sr(SWS, 4)}, 0 offen sc1", "gest")

    def ex_tail(self, S, PK, B, T, A):
        k = self.k
        k.e(f"v_cvt_pk_bf16_f32 v{PK}, v{S}, v{S + 1}")
        k.e(f"v_cvt_pk_bf16_f32 v{PK + 1}, v{S + 2}, v{S + 3}")
        for i in range(2):
            k.e(f"v_lshlrev_b32 v{B + 2 * i}, 16, v{PK + i}")
            k.e(f"v_and_b32 v{B + 2 * i + 1}, 0xffff0000, v{PK + i}")
        for i in range(4):
            k.e(f"v_mul_f32 v{T + i}, {f32(CT)}, v{B + i}")
        for i in range(4):
            k.e(f"v_and_b32 v{A + i}, 0x7fffffff, v{T + i}")
        for i in range(4):
            k.e(f"v_exp_f32 v{T + i}, v{T + i}")
        fix, ok = k.label("exf"), k.label("exk")
        k.e(f"""
        v_max3_u32 v{A}, v{A}, v{A + 1}, v{A + 2}
        v_max_u32 v{A}, v{A}, v{A + 3}
        v_cmp_lt_u32 vcc, {f32(EX_MAX)}, v{A}
        s_cbranch_vccnz {fix}
        {ok}:
        """)
        self.ool.append(("exfix", fix, ok, PK, T, A))

    def g_loads(self, GF):
        k = self.k
        k.e(f"""
        v_and_b32 v{vT0}, 15, v{vL}
        v_lshlrev_b32 v{vT0}, 10, v{vT0}
        v_lshrrev_b32 v{vT1}, 4, v{vL}
        v_lshl_add_u32 v{vT0}, v{vT1}, 4, v{vT0}
        """)
        for j in range(4):
            t = self.tmp()
            k.e(f"s_lshr_b32 s{t}, s{sR4[j]}, 4")
            k.e(f"v_add_u32 v{vT1}, s{t}, v{vT0}")
            k.vmem(f"buffer_load_dwordx4 {vr(GF + 4 * j, 4)}, v{vT1}, {sr(SG, 4)}, 0 offen", "g")

    def g_addr(self):
        k = self.k
        k.e(f"""
        v_bfe_u32 v{vT0}, v{vL}, 3, 1
        v_lshlrev_b32 v{vT0}, 13, v{vT0}
        v_and_b32 v{vT1}, 7, v{vL}
        v_lshl_add_u32 v{vT0}, v{vT1}, 4, v{vT0}
        v_lshrrev_b32 v{vT1}, 5, v{vL}
        v_lshl_add_u32 v{vT0}, v{vT1}, 7, v{vT0}
        v_bfe_u32 v{vT1}, v{vL}, 4, 1
        v_lshl_add_u32 v{vT0}, v{vT1}, 3, v{vT0}
        s_lshl_b32 s{sT0}, s2, 10
        s_lshl_b32 s{sT1}, s{sW}, 8
        s_add_u32 s{sT0}, s{sT0}, s{sT1}
        s_add_u32 s{sT0}, s{sT0}, {GE_OFF}
        v_add_u32 v{vGST}, s{sT0}, v{vT0}
        """)

    def g_block(self):
        k = self.k
        GF = HB
        slots = [T4[0], T4[1], XS[2], XS[3]] if self.o["w2mid"] else [T4[0], T4[1], XS[1], XS[2]]
        k.wait(lg=("t2", 7))
        self.stamp("g0")
        for j in range(4):
            self.dma4k(SWG, slots[j], self.w32_soff(j, 0), ("wg", j))
        self.g_loads(GF)
        self.stamp("gdma")
        self.w2_last()
        self.stamp("gw2")
        self.g_addr()
        for j in range(4):
            k.wait(vm=("wg", j))
            self.tr16(slots[j], 192 + 16 * j, "a", ("twg", j))
        self.stamp("gwg")
        k.wait(vm="all")
        self.stamp("gld")
        for j in range(4):
            k.wait(lg=("twg", j))
            for ct in range(4):
                self.mfma16(ACC2 + 4 * ct, 192 + 16 * j + 4 * ct, GF + 4 * j, j == 0)
        self.stamp("gmf")
        self.reduce16(ACC2, False, None, None, None)
        k.e("s_barrier")
        self.stamp("gend")

    def poll_sample(self, stem, vaddr, sbase):
        k = self.k
        top, done = k.label(stem + "p"), k.label(stem + "d")
        k.wait(vm="smp")
        k.e(f"""
        v_cmp_eq_u32 vcc, -1, v{vHS}
        s_cbranch_vccnz {top}
        {done}:
        """)
        self.ool.append(("smp", top, done, vaddr, sbase))

    def reduce16(self, acc, act, vst, sst, tag, mid=None, ex=False):
        k = self.k
        k.e(f"v_add_u32 v{vT3}, {2 * RW}, v{vRD2}")
        k.nop(8)
        for ct in range(4):
            k.ds(f"ds_write_b128 v{vLIN}, {vr(acc + 4 * ct, 4)} offset:{ct * 1024}")
        k.wait(lg="all")
        k.e("s_barrier")
        for sw in range(4):
            a = vRD2 if sw < 2 else vT3
            k.ds(f"ds_read_b128 {vr(R2 + 4 * sw, 4)}, v{a} offset:{(sw & 1) * RW}", ("r", sw))
        if mid:
            mid()
        k.wait(lg=("r", 1))
        for i in range(4):
            k.e(f"v_add_f32 v{R2 + i}, v{R2 + i}, v{R2 + 4 + i}")
        k.wait(lg=("r", 3))
        for i in range(4):
            k.e(f"v_add_f32 v{R2 + 8 + i}, v{R2 + 8 + i}, v{R2 + 12 + i}")
        for i in range(4):
            k.e(f"v_add_f32 v{R2 + i}, v{R2 + i}, v{R2 + 8 + i}")
        if act:
            self.gelu([R2 + i for i in range(4)], R2 + 4, vKC3)
        if ex:
            self.ex_tail(R2, R2 + 4, R2 + 8, R2 + 12, R2 + 16)
            k.vmem(f"buffer_store_dwordx4 {vr(R2 + 12, 4)}, v{vFST}, {sr(SWS, 4)}, s{sst} offen sc1", tag)
            return
        k.e(f"v_cvt_pk_bf16_f32 v{R2 + 8}, v{R2}, v{R2 + 1}")
        k.e(f"v_cvt_pk_bf16_f32 v{R2 + 9}, v{R2 + 2}, v{R2 + 3}")
        if vst is not None:
            k.vmem(f"buffer_store_dwordx2 {vr(R2 + 8, 2)}, v{vst}, {sr(SWS, 4)}, s{sst} offen sc1", tag)

    def h_loads(self, counted, sc):
        k = self.k
        for v in range(12):
            j, i = v // 3, v % 3
            t = self.tmp()
            k.e(f"s_add_u32 s{t}, s{sH}, s{sR4[j]}")
            if i == 0:
                k.e(f"s_sub_u32 s{t}, s{t}, 16384")
            elif i == 2:
                k.e(f"s_add_u32 s{t}, s{t}, 16384")
            ins = (f"buffer_load_dwordx4 {vr(HB + 4 * v, 4)}, v{vH0 if i == 0 else vLIN16}, "
                   f"{sr(SWS, 4)}, s{t} offen" + (" sc1" if sc else ""))
            if counted:
                k.vmem(ins, ("h", v))
            else:
                k.e(ins)

    def stage2(self):
        k = self.k
        hd = self.o.get("hdirect", 0)
        if not hd:
            self.poll_sample("h", vSMP, sHS)
        self.stamp("hpoll")
        loads = self.h_loads
        k.e(f"s_mov_b32 s{sSPIN}, 0")
        if not hd:
            loads(True, not self.o["hplain"])
        if not self.o["glate"] and not self.o["g4"]:
            k.vmem(f"buffer_store_dwordx2 {vr(R2 + 8, 2)}, v{vGST}, {sr(SWS, 4)}, 0 offen sc1", "gest")
        k.wait(lg="all")
        fill = []
        for j in range(4):
            fill += self.dma4k_ops(SWF, T4[j], self.w32_soff(j, 0), ("wf", j))
        for _ in range(self.o.get("wfpre", 4)):
            fill.pop(0)()
        mf, retry, ok = k.label("s2m"), k.label("s2r"), k.label("s2k")
        k.e(f"{mf}:")
        for v in range(12):
            k.wait(vm=("h", v))
            f = HB + 4 * v
            if v == 0:
                k.e(f"v_mov_b32 v{vT0}, v{f + 3}")
            elif v % 2 == 0:
                k.e(f"v_max3_u32 v{vT0}, v{vT0}, v{f - 1}, v{f + 3}")
            for ct in range(4):
                self.mfma16(ACC2 + 4 * ct, 16 * v + 4 * ct, f, v == 0)
            if v < self.o.get("wfloop", 12) and fill:
                fill.pop(0)()
        k.e(f"v_max_u32 v{vT0}, v{vT0}, v{HB + 47}")
        k.e(f"v_cmp_eq_u32 vcc, -1, v{vT0}\ns_cbranch_vccnz {retry}\n{ok}:")
        self.ool.append(("bulk", retry, ok, mf, loads))
        self.stamp("s2mfma")
        if self.o["g4"]:
            self.g4_loads(True)
        self.wf_rest = fill

    def wo_slot(self, bb, e):
        if bb % 2 == 0:
            base = [T4[4], XS[1], XS[2], XS[3]]
        else:
            base = [T4[0], T4[1], T4[2], T4[3]]
        return base[e // 2] + 2048 * (e & 1)

    def wo_issue(self, bb, e0, e1):
        k = self.k
        for e in range(e0, e1):
            assert self.wo_next == 8 * bb + e
            self.wo_next += 1
            k.e(f"s_add_u32 s{sWQ}, s{sWQ}, 16384\ns_and_b32 s{sWQ}, s{sWQ}, 0x7c000")
            self.dma2k(SWO, self.wo_slot(bb, e), f"s{sWQ}", ("wo", bb, e))

    def wo_tr_ops(self, bb):
        ops = []
        for e in range(8):
            for ct, a in enumerate((vTR0, vTR1)):
                for hf in range(2):
                    off = self.wo_slot(bb, e) + 512 * hf
                    dst = 8 * (8 * bb + e) + 4 * ct + 2 * hf
                    ops.append(("ds", f"ds_read_b64_tr_b16 {vr(dst, 2, 'a')}, v{a} offset:{off}", ("two", bb)))
        return ops

    def wo_tr(self, bb):
        k = self.k
        for e in range(8):
            k.wait(vm=("wo", bb, e))
            self.tr32(self.wo_slot(bb, e), 8 * (8 * bb + e), "a", ("two", bb))

    def stage2_tail(self):
        k = self.k
        self.wo_next = 0

        def mid():
            for _ in range(self.o.get("wfmid", 0)):
                if self.wf_rest:
                    self.wf_rest.pop(0)()
        self.reduce16(ACC2, True, vST, sFS, "fst", mid=mid)
        self.stamp("fst")
        while self.wf_rest:
            self.wf_rest.pop(0)()
        k.e("s_barrier")
        if self.o["glate"]:
            gtop, self.gjoin = k.label("gl"), k.label("glj")
            k.e(f"s_cmp_lt_u32 s2, 8\ns_cbranch_scc1 {gtop}")
            self.ool.append(("glate", gtop, self.gjoin, list(k.vm), list(k.lg), self.wo_next))
        self.wo_issue(0, 0, 8)
        self.wo_pattern()
        k.wait(vm=("wf", 3))
        for j in range(4):
            self.tr16(T4[j], 192 + 16 * j, "a", "twf")
        if self.o["g4"]:
            self.g4_final()
        if self.o["b1B"]:
            k.wait(lg="twf")
            self.wo_issue(1, 0, self.o["b1B"])
        if self.o["glate"] and self.stop_after in ("s2", "ge"):
            k.e(f"s_waitcnt vmcnt(0) lgkmcnt(0)\n{self.gjoin}:")

    def glate_block(self, join):
        k = self.k
        GF = HB + 16
        slots = [self.wo_slot(0, 2 * j) for j in range(4)]
        for j in range(4):
            self.dma4k(SWG, slots[j], self.w32_soff(j, 0), ("wg", j))
        self.g_loads(GF)
        self.stamp("gdma")
        self.wo_pattern()
        self.g_addr()
        k.wait(vm=("wf", 3))
        for j in range(4):
            self.tr16(T4[j], 192 + 16 * j, "a", "twf")
        for j in range(4):
            k.wait(vm=("wg", j))
            self.tr16(slots[j], 128 + 16 * j, "a", ("twg", j))
        self.stamp("gwg")
        k.wait(lg="all")
        self.wo_issue(0, 0, 8)
        k.vmem(f"buffer_load_dword v{vHS}, v{vFSM}, {sr(SWS, 4)}, s{sFL} offen sc1", "smp")
        k.wait(vm="g")
        self.stamp("gld")
        for j in range(4):
            for ct in range(4):
                self.mfma16(ACC2 + 4 * ct, 128 + 16 * j + 4 * ct, GF + 4 * j, j == 0)
        self.stamp("gmf")
        self.reduce16(ACC2, False, None, None, None)
        k.vmem(f"buffer_store_dwordx2 {vr(R2 + 8, 2)}, v{vGST}, {sr(SWS, 4)}, 0 offen sc1", "gest")
        k.e("s_barrier")
        self.stamp("gend")
        if self.stop_after in ("s2", "ge"):
            k.e(f"s_waitcnt vmcnt(0) lgkmcnt(0)\ns_branch {join}")
            return
        self.stage3(gpath=True)
        k.wait(vm=("wo", 1, 7))
        k.e(f"s_branch {join}")

    def wo_pattern(self):
        k = self.k
        k.e(f"""
        v_bfe_u32 v{vT0}, v{vL}, 2, 2
        v_lshrrev_b32 v{vT1}, 5, v{vL}
        v_lshl_add_u32 v{vT1}, v{vT1}, 3, v{vT0}
        v_lshlrev_b32 v{vT1}, 7, v{vT1}
        v_lshrrev_b32 v{vT2}, 1, v{vT0}
        v_lshl_add_u32 v{vT1}, v{vT2}, 6, v{vT1}
        v_bfe_u32 v{vT2}, v{vL}, 4, 1
        v_lshl_add_u32 v{vT1}, v{vT2}, 5, v{vT1}
        v_and_b32 v{vT2}, 1, v{vL}
        v_lshl_add_u32 v{vT1}, v{vT2}, 4, v{vT1}
        v_bfe_u32 v{vT2}, v{vL}, 1, 1
        v_lshl_add_u32 v{vT1}, v{vT2}, 3, v{vT1}
        v_add_u32 v{vTR0}, s{sRW}, v{vT1}
        v_xor_b32 v{vT1}, 64, v{vT1}
        v_add_u32 v{vTR1}, s{sRW}, v{vT1}
        """)

    def stage3(self, gpath=False):
        k = self.k
        FB = HB
        b1B = 0 if gpath else self.o["b1B"]

        def loads(counted, sc):
            for j in range(4):
                t = self.tmp()
                k.e(f"s_add_u32 s{t}, s{sFL}, s{sR4[j]}")
                ins = (f"buffer_load_dwordx4 {vr(FB + 4 * j, 4)}, v{vLIN16}, {sr(SWS, 4)}, s{t} offen"
                       + (" sc1" if sc else ""))
                if counted:
                    k.vmem(ins, ("f", j))
                else:
                    k.e(ins)
        fd = self.o.get("fdirect", 0)
        if fd:
            k.e(f"s_mov_b32 s{sSPIN}, 0")
            loads(True, fd != 2)
            self.wo_tr(0)
            k.wait(vm=("f", 3))
            again, retry0, ok0 = k.label("fda"), k.label("fdr"), k.label("fdk")
            k.e(f"{again}:")
            k.e(f"v_max_u32 v{vT0}, v{FB + 1}, v{FB + 3}")
            for j in range(1, 4):
                k.e(f"v_max3_u32 v{vT0}, v{vT0}, v{FB + 4 * j + 1}, v{FB + 4 * j + 3}")
            k.e(f"v_cmp_eq_u32 vcc, -1, v{vT0}\ns_cbranch_vccnz {retry0}\n{ok0}:")
            self.ool.append(("poll", retry0, ok0, again, lambda counted: loads(counted, True)))
            self.stamp("fpoll")
            k.wait(lg="all")
            self.wo_issue(1, b1B, 8)
            for j in range(4):
                for ct in range(4):
                    self.mfma16(ACC2 + 4 * ct, 192 + 16 * j + 4 * ct, FB + 4 * j, j == 0)
            self.stamp("s3mfma")
            self.reduce16(ACC2, False, vST, sFES, "fest", mid=lambda: self.wo_issue(2, 0, self.o["b2C"]),
                          ex=self.o["ex"])
            self.stamp("fest")
            k.e("s_barrier")
            return
        if not gpath:
            k.vmem(f"buffer_load_dword v{vHS}, v{vFSM}, {sr(SWS, 4)}, s{sFL} offen sc1", "smp")
        self.wo_tr(0)
        self.poll_sample("f", vFSM, sFL)
        self.stamp("fpoll")
        k.e(f"s_mov_b32 s{sSPIN}, 0")
        loads(True, not self.o["fplain"])
        k.wait(lg="all")
        mf, retry, ok = k.label("s3m"), k.label("s3r"), k.label("s3k")
        self.wo_issue(1, b1B, 8)
        k.e(f"{mf}:")
        for j in range(4):
            k.wait(vm=("f", j))
            f = FB + 4 * j
            if j == 0:
                k.e(f"v_max_u32 v{vT0}, v{f + 1}, v{f + 3}")
            else:
                k.e(f"v_max3_u32 v{vT0}, v{vT0}, v{f + 1}, v{f + 3}")
            for ct in range(4):
                self.mfma16(ACC2 + 4 * ct, 192 + 16 * j + 4 * ct, f, j == 0)
        k.e(f"v_cmp_eq_u32 vcc, -1, v{vT0}\ns_cbranch_vccnz {retry}\n{ok}:")
        self.ool.append(("bulk", retry, ok, mf, loads))
        self.stamp("s3mfma")
        self.reduce16(ACC2, False, vST, sFES, "fest", mid=lambda: self.wo_issue(2, 0, self.o["b2C"]),
                          ex=self.o["ex"])
        self.stamp("fest")
        if gpath:
            return
        if self.o["glate"]:
            k.e(f"{self.gjoin}:")
        k.e("s_barrier")

    def stage4(self):
        k = self.k
        CB, FR, Z, JP, BF, ACC, OUT = 32, 96, 128, 144, 160, 192, 224
        vGA, vFA, vJ0, vJ2 = 8, 9, 10, 11
        RAW = 160
        ex = self.o["ex"]
        if ex:
            Z, JP = 224, 240
            late_tr, fr_read = self.s4_head_ex(CB, FR, Z)
        else:
            late_tr, fr_read = self.s4_head(CB, FR, RAW), None
        self.stamp("fepoll")
        self.s4_loop(CB, FR, Z, JP, BF, ACC, OUT, late_tr, fr_read)

    def s4_head(self, CB, FR, RAW):
        k = self.k
        ex = 0
        vGA, vFA, vJ0, vJ2 = 8, 9, 10, 11
        k.e(f"""
        v_and_b32 v{vT0}, 7, v{vL}
        v_lshlrev_b32 v{vT0}, 4, v{vT0}
        v_lshrrev_b32 v{vT1}, 5, v{vL}
        v_lshl_add_u32 v{vGA}, v{vT1}, {7 + ex}, v{vT0}
        v_bfe_u32 v{vT0}, v{vL}, 3, 2
        v_lshlrev_b32 v{vT0}, 4, v{vT0}
        v_lshl_add_u32 v{vFA}, v{vT1}, {8 + ex}, v{vT0}
        v_lshlrev_b32 v{vJ0}, 4, v{vL}
        v_add_u32 v{vJ2}, {2 * RW}, v{vJ0}
        s_lshl_b32 s{sGL}, s{sB}, {13 + ex}
        s_lshl_b32 s{sT0}, s{sW}, {8 + ex}
        s_add_u32 s{sGL}, s{sGL}, s{sT0}
        s_add_u32 s{sGL}, s{sGL}, {GE_OFF}
        s_lshl_b32 s{sFE}, s{sM}, {14 + ex}
        s_lshl_b32 s{sT0}, s{sW}, {9 + ex}
        s_add_u32 s{sFE}, s{sFE}, s{sT0}
        s_lshl_b32 s{sT0}, s{sJN}, 6
        s_add_u32 s{sFE}, s{sFE}, s{sT0}
        s_add_u32 s{sFE}, s{sFE}, {FE_OFF}
        """)

        def np_off(r, shift):
            t = self.tmp()
            if self.o["rot"]:
                k.e(f"s_add_u32 s{t}, s{sML}, {r}\ns_and_b32 s{t}, s{t}, 7\ns_lshl_b32 s{t}, s{t}, {shift}")
            else:
                k.e(f"s_mov_b32 s{t}, {r << shift}")
            return t

        def ge_loads(counted):
            for r in range(8):
                t = np_off(r, 10 + ex)
                k.e(f"s_add_u32 s{t}, s{t}, s{sGL}")
                for hf in range(1 + ex):
                    d, o = RAW + (4 << ex) * r + 4 * hf, f" offset:{128 * hf}" if hf else ""
                    sc = "" if counted and self.o.get("geplain") else " sc1"
                    ins = f"buffer_load_dwordx4 {vr(d, 4)}, v{vGA}, {sr(SWS, 4)}, s{t} offen{o}{sc}"
                    if counted:
                        k.vmem(ins, "ge")
                    else:
                        k.e(ins)

        def fe_loads(counted):
            for r in range(8):
                t = np_off(r, 11 + ex)
                k.e(f"s_add_u32 s{t}, s{t}, s{sFE}")
                for hf in range(1 + ex):
                    d, o = FR + (4 << ex) * r + 4 * hf, f" offset:{256 * hf}" if hf else ""
                    ins = f"buffer_load_dwordx4 {vr(d, 4)}, v{vFA}, {sr(SWS, 4)}, s{t} offen{o} sc1"
                    if counted:
                        k.vmem(ins, ("fe", r))
                    else:
                        k.e(ins)

        def check(base, n, dst):
            if ex:
                k.e(f"v_max_u32 v{dst}, v{base + 3}, v{base + 7}")
                for g in range(2, 2 * n, 2):
                    k.e(f"v_max3_u32 v{dst}, v{dst}, v{base + 4 * g + 3}, v{base + 4 * g + 7}")
                return
            k.e(f"v_max_u32 v{dst}, v{base + 1}, v{base + 3}")
            for r in range(1, n):
                k.e(f"v_max3_u32 v{dst}, v{dst}, v{base + 4 * r + 1}, v{base + 4 * r + 3}")

        ge_loads(True)
        self.wo_issue(2, self.o["b2C"], 8)
        self.wo_tr(1)
        k.wait(lg="all")
        self.wo_issue(3, 0, 8)
        k.e(f"s_mov_b32 s{sSPIN}, 0")
        if ex:
            k.e(f"s_mov_b32 s{sA}, 0")
        k.wait(vm="ge")
        retry, ok = k.label("ger"), k.label("gek")
        again = k.label("gea")
        k.e(f"{again}:")
        test = "v_cmp_gt_i32 vcc, 0," if ex else "v_cmp_eq_u32 vcc, -1,"
        check(RAW, 8, vT0)
        k.e(f"{test} v{vT0}\ns_cbranch_vccnz {retry}\n{ok}:")
        self.ool.append(("pollx" if ex else "poll", retry, ok, again, ge_loads))
        if ex:
            fe_loads(True)
        else:
            k.e(f"s_mov_b32 s{sA}, {f32(CT)}")
            fe_loads(True)
            for r in range(8):
                for i in range(4):
                    src = RAW + 4 * r + i
                    k.e(f"v_lshlrev_b32 v{CB + 8 * r + 2 * i}, 16, v{src}")
                    k.e(f"v_and_b32 v{CB + 8 * r + 2 * i + 1}, 0xffff0000, v{src}")
            for i in range(64):
                k.e(f"v_mul_f32 v{CB + i}, s{sA}, v{CB + i}")
        self.stamp("cb")
        self.wo_tr(2)
        late_tr = []
        if self.o["trb3"] == "pre":
            self.wo_tr(3)
        else:
            late_tr = self.wo_tr_ops(3)
        k.e(f"s_mov_b32 s{sSPIN}, 0")
        k.wait(vm=("fe", 7))
        retry, ok = k.label("fer"), k.label("fek")
        again = k.label("fea")
        k.e(f"{again}:")
        check(FR, 8, vT0)
        k.e(f"{test} v{vT0}\ns_cbranch_vccnz {retry}\n{ok}:")
        self.ool.append(("poll", retry, ok, again, fe_loads))
        return late_tr

    def s4_head_ex(self, CB, FR, Z):
        k = self.k
        vGG, vFG, vCRD, vFRD, vJ0, vJ2 = [8, 12, 13, 14], [9, 20], 21, 22, 10, 11
        GR, FB = 160, 176
        k.e(f"""
        v_and_b32 v{vT0}, 7, v{vL}
        v_lshlrev_b32 v{vT0}, 4, v{vT0}
        v_bfe_u32 v{vT1}, v{vL}, 3, 1
        v_lshl_add_u32 v{vT2}, v{vT1}, 8, v{vT0}
        v_lshl_add_u32 v{vT3}, v{vT1}, 9, v{vT0}
        v_bfe_u32 v{vT1}, v{vL}, 4, 1
        v_lshl_add_u32 v{vT2}, v{vT1}, 7, v{vT2}
        v_lshrrev_b32 v{vT1}, 5, v{vL}
        v_lshl_add_u32 v{vCRD}, v{vT1}, 7, v{vT0}
        v_add_u32 v{vCRD}, s{sRW}, v{vCRD}
        v_add_u32 v{vT1}, s{sML}, v{vT1}
        """)
        for j in range(4):
            k.e(f"""
            v_add_u32 v{vT0}, {2 * j}, v{vT1}
            v_and_b32 v{vT0}, 7, v{vT0}
            v_lshl_add_u32 v{vGG[j]}, v{vT0}, 11, v{vT2}
            """)
        k.e(f"""
        s_lshl_b32 s{sGL}, s{sB}, 14
        s_lshl_b32 s{sT0}, s{sW}, 9
        s_add_u32 s{sGL}, s{sGL}, s{sT0}
        s_add_u32 s{sGL}, s{sGL}, {GE_OFF}
        """)

        def ge_loads(counted):
            for j in range(4):
                sc = "" if counted and self.o.get("geplain") else " sc1"
                ins = f"buffer_load_dwordx4 {vr(GR + 4 * j, 4)}, v{vGG[j]}, {sr(SWS, 4)}, s{sGL} offen{sc}"
                if counted:
                    k.vmem(ins, "ge")
                else:
                    k.e(ins)

        def fe_loads(counted):
            for j in range(2):
                ins = f"buffer_load_dwordx4 {vr(FB + 4 * j, 4)}, v{vFG[j]}, {sr(SWS, 4)}, s{sFE} offen sc1"
                if counted:
                    k.vmem(ins, "fe")
                else:
                    k.e(ins)
        ge_loads(True)
        k.e(f"""
        v_lshrrev_b32 v{vT1}, 4, v{vL}
        v_add_u32 v{vT1}, s{sML}, v{vT1}
        v_and_b32 v{vT0}, 7, v{vT1}
        v_lshl_add_u32 v{vFG[0]}, v{vT0}, 12, v{vT3}
        v_xor_b32 v{vFG[1]}, 16384, v{vFG[0]}
        v_lshrrev_b32 v{vT1}, 5, v{vL}
        v_bfe_u32 v{vT0}, v{vL}, 3, 2
        v_lshlrev_b32 v{vT0}, 4, v{vT0}
        v_lshl_add_u32 v{vFRD}, v{vT1}, 7, v{vT0}
        v_add_u32 v{vFRD}, s{sRW}, v{vFRD}
        v_lshlrev_b32 v{vJ0}, 4, v{vL}
        v_add_u32 v{vJ2}, {2 * RW}, v{vJ0}
        s_lshl_b32 s{sFE}, s{sM}, 15
        s_lshl_b32 s{sT0}, s{sW}, 10
        s_add_u32 s{sFE}, s{sFE}, s{sT0}
        s_lshl_b32 s{sT0}, s{sJN}, 7
        s_add_u32 s{sFE}, s{sFE}, s{sT0}
        s_add_u32 s{sFE}, s{sFE}, {FE_OFF}
        """)
        self.wo_issue(2, self.o["b2C"], 8)
        self.wo_tr(1)
        k.wait(lg="all")
        if self.o.get("feat", 0) == -2:
            fe_loads(True)
        if not self.o.get("b3late"):
            self.wo_issue(3, 0, self.o.get("b3pre", 0) if self.o.get("b3loop") else 8)
        if self.o.get("feat", 0) == -1:
            fe_loads(True)
        k.e(f"s_mov_b32 s{sSPIN}, 0\ns_mov_b32 s{sA}, 0")
        k.wait(vm="ge")
        retry, ok, again = k.label("ger"), k.label("gek"), k.label("gea")
        k.e(f"""
        {again}:
        v_max_u32 v{vT0}, v{GR + 3}, v{GR + 7}
        v_max3_u32 v{vT0}, v{vT0}, v{GR + 11}, v{GR + 15}
        v_cmp_gt_i32 vcc, 0, v{vT0}
        s_cbranch_vccnz {retry}
        {ok}:
        """)
        self.ool.append(("pollx", retry, ok, again, ge_loads))
        if self.o.get("feat", 0) == 0:
            fe_loads(True)
        for j in range(4):
            k.ds(f"ds_write_b128 v{vLIN}, {vr(GR + 4 * j, 4)} offset:{j * 1024}", "gw")
        if self.o.get("b3late"):
            self.wo_issue(3, 0, 8)
        k.wait(lg="gw")
        for r in range(8):
            for hf in range(2):
                k.ds(f"ds_read_b128 {vr(CB + 8 * r + 4 * hf, 4)}, v{vCRD} offset:{r * 512 + hf * 256}", "cb")
        if self.o.get("feat", 0) == 1:
            fe_loads(True)
        self.stamp("cb")
        self.wo_tr(2)
        if self.o.get("feat", 0) == 2:
            fe_loads(True)
        late_tr = self.wo_tr_ops(3)
        k.e(f"s_mov_b32 s{sSPIN}, 0")
        k.wait(vm="fe")
        retry, ok, again = k.label("fer"), k.label("fek"), k.label("fea")
        k.e(f"""
        {again}:
        v_max_u32 v{vT0}, v{FB + 3}, v{FB + 7}
        v_cmp_gt_i32 vcc, 0, v{vT0}
        s_cbranch_vccnz {retry}
        {ok}:
        """)
        self.ool.append(("pollx", retry, ok, again, fe_loads))
        for j in range(2):
            k.ds(f"ds_write_b128 v{vLIN}, {vr(FB + 4 * j, 4)} offset:{FS + j * 1024}", "fw")

        def fr_read(r):
            for hf in range(2):
                k.ds(f"ds_read_b128 {vr(FR + 8 * r + 4 * hf, 4)}, v{vFRD} offset:{FS + r * 256 + hf * 64}", ("fr", r))
        slow, fast = k.label("exs"), k.label("exq")
        k.e(f"s_cmp_lg_u32 s{sA}, 0\ns_cbranch_scc1 {slow}\n{fast}:")
        self.ool.append(("exslow", slow, fast, CB, FR, Z, vFRD))
        k.wait(lg="all")
        for r in range(4):
            fr_read(r)
        return late_tr, fr_read

    def s4_loop(self, CB, FR, Z, JP, BF, ACC, OUT, late_tr, fr_read):
        k = self.k
        ex = self.o["ex"]
        vJ0, vJ2 = 10, 11

        def j_ops(r):
            ops = []
            z = Z + 8 * (r & 1)
            jp = JP + 4 * (r & 1)
            if ex:
                for i in range(8):
                    ops.append((f"v_fma_f32 v{z + i}, v{FR + 8 * r + i}, v{CB + 8 * r + i}, 1.0", 4))
                for i in range(8):
                    ops.append((f"v_rcp_f32 v{z + i}, v{z + i}", 8))
                for i in range(8):
                    ops.append((f"v_fma_f32 v{z + i}, v{z + i}, -2.0, 1.0", 4))
                for i in range(4):
                    ops.append((f"v_cvt_pk_bf16_f32 v{jp + i}, v{z + 2 * i}, v{z + 2 * i + 1}", 4))
                ops.append(("ds", f"ds_write_b128 v{vLIN}, {vr(jp, 4)} offset:{r * 1024}", ("jw", r)))
                return ops
            for i in range(4):
                ops.append((f"v_lshlrev_b32 v{z + 2 * i}, 16, v{FR + 4 * r + i}", 4))
                ops.append((f"v_and_b32 v{z + 2 * i + 1}, 0xffff0000, v{FR + 4 * r + i}", 4))
            for i in range(8):
                ops.append((f"v_fma_f32 v{z + i}, v{z + i}, s{sA}, v{CB + 8 * r + i}", 4))
            for i in range(8):
                ops.append((f"v_exp_f32 v{z + i}, v{z + i}", 8))
            for i in range(8):
                ops.append((f"v_add_f32 v{z + i}, 1.0, v{z + i}", 4))
            for i in range(8):
                ops.append((f"v_rcp_f32 v{z + i}, v{z + i}", 8))
            for i in range(8):
                ops.append((f"v_fma_f32 v{z + i}, v{z + i}, -2.0, 1.0", 4))
            for i in range(4):
                ops.append((f"v_cvt_pk_bf16_f32 v{jp + i}, v{z + 2 * i}, v{z + 2 * i + 1}", 4))
            ops.append(("ds", f"ds_write_b128 v{vLIN}, {vr(jp, 4)} offset:{r * 1024}", ("jw", r)))
            return ops

        dbg = self.o.get("s4dbg", "")

        def emit(op):
            if op[0] == "ds":
                k.ds(op[1], op[2])
                return 4
            t = op[0]
            if "notrans" in dbg:
                t = t.replace("v_exp_f32", "v_mov_b32").replace("v_rcp_f32", "v_mov_b32")
            if "novalu" not in dbg and not ("nofma" in dbg and t.startswith("v_fma")):
                k.e(t)
            return op[1]

        def read1(r, jj):
            b = BF + 16 * (r & 1)
            a = vJ0 if jj < 2 else vJ2
            k.ds(f"ds_read_b128 {vr(b + 4 * jj, 4)}, v{a} offset:{(jj & 1) * RW + r * 1024}", ("jr", r, jj))

        def reads(r):
            for jj in range(4):
                read1(r, jj)

        k.wait(lg=("fr", 0) if ex else "all")
        if "twice" in dbg:
            k.e(f"s_mov_b32 s{sSPIN}, 0\nL_twice:\ns_waitcnt lgkmcnt(0)\ns_barrier")
            self.stamp("fepoll2")
        b3 = self.o.get("b3loop", 0)
        b3q = list(range(self.o.get("b3pre", 0), 8)) if b3 else []

        def b3_issue(n):
            for _ in range(n):
                if b3q:
                    e = b3q.pop(0)
                    self.wo_issue(3, e, e + 1)
        b3_issue(self.o.get("b3j0", 1))
        for op in j_ops(0):
            emit(op)
        b3_issue(self.o.get("b3j1", 1))
        o1 = j_ops(1)
        n1 = 8 if ex else 16
        if ex:
            k.wait(lg=("fr", 1))
        for op in o1[:n1]:
            emit(op)
        k.wait(lg=("jw", 0))
        k.e("s_barrier")
        reads(0)
        for op in o1[n1:]:
            emit(op)
        self.stamp("j01")
        for r in range(8):
            ops = j_ops(r + 2) if r + 2 < 8 else []
            total = sum(op[1] if op[0] != "ds" else 4 for op in ops)
            spread = self.o.get("s4spread", 0)
            if not spread:
                k.wait(lg=("jr", r, 3))
            b = BF + 16 * (r & 1)
            spent = 0
            bar_at = self.o["s4bar"] + (self.o.get("s4bar0", 2) if r == 0 else 0)
            assert bar_at + 3 * spread <= 7
            for i in range(8):
                jj, ct = i // 2, i % 2
                q = 4 * r + jj
                if r == 6 and i == 0:
                    k.wait(lg=("two", 3))
                if spread and ct == 0:
                    k.wait(lg=("jr", r, jj))
                if "nomfma" not in dbg:
                    self.mfma32(ACC + 16 * ct, 8 * q + 4 * ct, b + 4 * jj, r == 0 and jj == 0, ak="a")
                if ex and r < 2 and i < 2:
                    fr_read(4 + 2 * r + i)
                if b3 and i % b3 == b3 - 1:
                    b3_issue(1)
                if i == bar_at and r + 1 < 8:
                    self.stamp(f"ba{r}")
                    k.wait(lg=("jw", r + 1))
                    self.stamp(f"bb{r}")
                    if "nobar" not in dbg:
                        k.e("s_barrier")
                    self.stamp(f"bc{r}")
                    if not spread:
                        reads(r + 1)
                if spread and r + 1 < 8 and 0 <= (i - bar_at) < 4 * spread and (i - bar_at) % spread == 0:
                    read1(r + 1, (i - bar_at) // spread)
                if late_tr and i > bar_at and r >= self.o.get("ltr0", 2 if ex else 0):
                    if (self.o.get("b3late") or self.o.get("feat", 0) == -2) and len(late_tr) == 32:
                        k.wait(vm=("wo", 3, 7))
                    left = sum(7 - self.o["s4bar"] for rr in range(r + 1, 6)) + (8 - i)
                    for _ in range(max(2, -(-len(late_tr) // max(left, 1)))):
                        if late_tr:
                            if b3 and len(late_tr) % 4 == 0:
                                e = 8 - len(late_tr) // 4
                                assert e not in b3q
                                k.wait(vm=("wo", 3, e))
                            emit(late_tr.pop(0))
                while ops and spent < total * (i + 1) / 8:
                    spent += emit(ops.pop(0))
            while ops:
                emit(ops.pop(0))
            self.stamp(f"s4r{r}")
        assert not late_tr
        if "twice" in dbg:
            k.e(f"s_add_u32 s{sSPIN}, s{sSPIN}, 1\ns_cmp_lt_u32 s{sSPIN}, 2\ns_cbranch_scc1 L_twice")
        self.stamp("s4mfma")
        k.e(f"""
        s_lshl_b32 s{sT0}, s{sMT}, 7
        s_lshl_b32 s{sT1}, s{sJN}, 5
        s_add_u32 s{sT0}, s{sT0}, s{sT1}
        s_lshl_b32 s{sT0}, s{sT0}, 10
        s_lshl_b32 s{sT1}, s{sNH}, 9
        s_add_u32 s{sT0}, s{sT0}, s{sT1}
        s_lshl_b32 s{sT1}, s{sW}, 7
        s_add_u32 s{sT0}, s{sT0}, s{sT1}
        v_and_b32 v{vT0}, 31, v{vL}
        v_lshlrev_b32 v{vT0}, 10, v{vT0}
        v_lshrrev_b32 v{vT1}, 5, v{vL}
        v_lshl_add_u32 v{vT0}, v{vT1}, 4, v{vT0}
        v_add_u32 v{vT0}, s{sT0}, v{vT0}
        """)
        k.nop(2)
        for ct in range(2):
            for a in range(2):
                src = ACC + 16 * ct + 8 * a
                dst = OUT + 8 * ct + 4 * a
                for i in range(4):
                    k.e(f"v_cvt_pk_bf16_f32 v{dst + i}, v{src + 2 * i}, v{src + 2 * i + 1}")
                o = ct * 64 + a * 32
                os_ = f" offset:{o}" if o else ""
                k.vmem(f"buffer_store_dwordx4 {vr(dst, 4)}, v{vT0}, {sr(SOUT, 4)}, 0 offen{os_}", "out")

    def epilogue(self):
        k = self.k
        if self.stamps:
            self.stamp("end")
            n = self.nst
            k.e("s_waitcnt vmcnt(0) lgkmcnt(0)")
            for i in range(n):
                k.e(f"v_writelane_b32 v{vT1}, s{STAMP0 + 2 * i}, {i}")
            k.e(f"""
            s_lshl_b32 s{sT0}, s2, 2
            s_add_u32 s{sT0}, s{sT0}, s{sW}
            s_lshl_b32 s{sT0}, s{sT0}, 6
            s_add_u32 s{sT0}, s{sT0}, {STAMP_OFF}
            s_mov_b32 s{SWS + 2}, {STAMP_OFF + (1 << 20)}
            v_lshlrev_b32 v{vT0}, 2, v{vL}
            s_mov_b64 exec, 0xffff
            buffer_store_dword v{vT1}, v{vT0}, {sr(SWS, 4)}, s{sT0} offen
            """)
        k.e("s_waitcnt vmcnt(0)\nL_end:\ns_endpgm")
        for item in self.ool:
            if item[0] == "hs":
                _, top, done = item
                k.e(f"""
                {top}:
                s_mov_b32 s{sSPIN}, 0
                v_and_b32 v{vT0}, 3, v{vL}
                v_lshlrev_b32 v{vT0}, 6, v{vT0}
                {top}_l:
                """)
                self.spin_check(done)
                k.e(f"""
                buffer_load_dword v{vHS}, v{vT0}, {sr(SDBG, 4)}, 0 offen sc1
                s_waitcnt vmcnt(0)
                v_cmp_gt_u32 vcc, 64, v{vHS}
                s_cbranch_vccnz {top}_l
                s_branch {done}
                """)
            elif item[0] == "g":
                _, top, join, vm, lg = item
                k.vm, k.lg = vm, lg
                k.e(f"{top}:")
                self.g_block()
                k.e(f"s_branch {join}")
            elif item[0] == "glate":
                _, top, join, vm, lg, self.wo_next = item
                k.vm, k.lg = vm, lg
                k.e(f"{top}:")
                self.glate_block(join)
            elif item[0] == "exfix":
                _, top, ok, PK, T, A = item
                k.e(f"{top}:")
                for i in range(2):
                    k.e(f"v_and_b32 v{A + 2 * i}, 0xffff, v{PK + i}")
                    k.e(f"v_lshrrev_b32 v{A + 2 * i + 1}, 16, v{PK + i}")
                for i in range(4):
                    k.e(f"v_or_b32 v{A + i}, 0x80000000, v{A + i}")
                for i in range(4):
                    k.e(f"v_cndmask_b32 v{T + i}, v{T + i}, v{A + i}, vcc")
                k.e(f"s_branch {ok}")
            elif item[0] == "pollx":
                _, retry, ok, back, loads = item
                real = retry + "_r"
                k.e(f"""
                {retry}:
                v_cmp_eq_u32 vcc, -1, v{vT0}
                s_cbranch_vccnz {real}
                s_mov_b32 s{sA}, 1
                s_branch {ok}
                {real}:
                """)
                self.spin_check(ok)
                loads(False)
                k.e(f"s_waitcnt vmcnt(0)\ns_branch {back}")
            elif item[0] == "exslow":
                _, top, ok, CB, FR, Z, vFRD = item
                k.e(f"{top}:\ns_mov_b32 s{sA}, {f32(CT)}\ns_waitcnt lgkmcnt(0)")
                for r in range(8):
                    for hf in range(2):
                        k.e(f"ds_read_b128 {vr(FR + 8 * r + 4 * hf, 4)}, v{vFRD} offset:{FS + r * 256 + hf * 64}")
                k.e("s_waitcnt lgkmcnt(0)")
                for i in range(64):
                    for src, t in ((CB + i, Z), (FR + i, Z + 2)):
                        k.e(f"""
                        v_cmp_gt_i32 vcc, 0, v{src}
                        v_log_f32 v{t + 1}, v{src}
                        v_lshlrev_b32 v{t}, 16, v{src}
                        v_mul_f32 v{t}, s{sA}, v{t}
                        v_cndmask_b32 v{t}, v{t + 1}, v{t}, vcc
                        """)
                    k.e(f"""
                    v_add_f32 v{Z}, v{Z}, v{Z + 2}
                    s_nop 0
                    v_exp_f32 v{CB + i}, v{Z}
                    """)
                for i in range(4):
                    k.e(f"v_mov_b32 v{Z + 4 + i}, 1.0")
                for j in range(2):
                    k.e(f"ds_write_b128 v{vLIN}, {vr(Z + 4, 4)} offset:{FS + j * 1024}")
                k.e(f"s_branch {ok}")
            elif item[0] == "smp":
                _, top, done, vaddr, sbase = item
                k.e(f"{top}:\ns_mov_b32 s{sSPIN}, 0\n{top}_l:")
                self.spin_check(done)
                k.e(f"""
                buffer_load_dword v{vHS}, v{vaddr}, {sr(SWS, 4)}, s{sbase} offen sc1
                s_waitcnt vmcnt(0)
                v_cmp_eq_u32 vcc, -1, v{vHS}
                s_cbranch_vccnz {top}_l
                s_branch {done}
                """)
            else:
                kind, retry, ok, back, loads = item
                k.e(f"{retry}:")
                self.spin_check(ok)
                if kind == "bulk":
                    loads(False, True)
                else:
                    loads(False)
                k.e(f"s_waitcnt vmcnt(0)\ns_branch {back}")
        k.e("L_last:\ns_endpgm")

    def build(self):
        k = self.k
        stop = self.stop_after
        self.prologue()
        self.stage1()
        self.w2_finish()
        if stop != "s1":
            self.stage2()
            self.stage2_tail()
            if stop not in ("s2", "ge"):
                self.stage3()
                if stop != "s3":
                    self.stage4()
        self.epilogue()
        return self.text()

    def text(self):
        head = f"""; RNN-T joint network: two stride-2 conv stems, w_f / w_g projections, tanh, w_o.
; @launch grid=(256,1,1) block=(256,1,1) lds={LDS_BYTES}
.amdgcn_target "amdgcn-amd-amdhsa--gfx950"
.text
.globl {NAME}
.p2align 8
.type {NAME},@function
{NAME}:
"""
        tail = f"""
.section .rodata,"a"
.p2align 6
.amdhsa_kernel {NAME}
  .amdhsa_next_free_vgpr 512
  .amdhsa_next_free_sgpr 102
  .amdhsa_accum_offset 256
  .amdhsa_group_segment_fixed_size 0
  .amdhsa_kernarg_size 80
  .amdhsa_user_sgpr_count 2
  .amdhsa_user_sgpr_kernarg_segment_ptr 1
  .amdhsa_system_sgpr_workgroup_id_x 1
.end_amdhsa_kernel
"""
        return head + self.k.text() + tail


if __name__ == "__main__":
    out = sys.argv[1] if len(sys.argv) > 1 else "cdna_kernels/" + NAME.replace("_kernel", "") + ".s"
    g = Gen2(stamps=False)
    open(out, "w").write(g.build())
    print("wrote", out)
```

```python
import math
import sys
from kb import K, vr, ar, sr, f32

NAME = "standalone__seq2seq_rnn_t_joint__speech_kernel"

H_OFF = 65536
F_OFF = H_OFF + (1 << 20)
FE_OFF = F_OFF + (1 << 19)
GE_OFF = FE_OFF + (1 << 20)
P_OFF = GE_OFF + 65536
WS_REC = 4 << 20
STAMP_OFF = 8 << 20
OOB = 0x80000000
SPIN_MAX = 4096

RW = 40960
RB = 17408
LDS_BYTES = 163840
T4 = [RB + 4096 * t for t in range(5)]
XS = [4096 * t for t in range(4)]
GS = RB + 20480
FS = GS + 1024

SX, SW1, SW2, SG, SWF, SWG, SWO, SOUT, SDBG, SWS = 24, 28, 32, 36, 40, 44, 48, 52, 56, 60
sW, sM, sN, sB, sMT, sRW, sML, sJN = 64, 65, 66, 67, 68, 69, 70, 71
sKI, sKC = 72, 3
sT0, sT1, sT2, sT3 = 73, 74, 75, 76
sSPIN = 77
STAMP0 = 78
sH, sFL, sFS, sFE, sGL, sGS, sHS, sA, sB2 = 4, 5, 6, 7, 8, 9, 10, 11, 12
sR4 = [13, 14, 15, 16]
sNH = 17
sFES, sWQ = 18, 19

vL, vT0, vT1, vT2, vT3, vLIN, vRD = 1, 2, 3, 4, 5, 6, 7
vXW = 8
vXA, vXZ, vQ0 = 12, 13, 14
vWA0, vWA1, vTR0, vTR1 = 15, 16, 17, 18
vXB = 19
vBA = 22
vW2 = 24
vT16 = 28
vONES = 32
vHS = 36
AF, BFR, ACC1, R1 = 40, 56, 64, 96
vLIN16, vH0, vSMP, vST, vRD2, vKC3, vSV, vFSM, vGST = 8, 9, 10, 11, 12, 13, 14, 19, 20
HB, ACC2, R2 = 128, 176, 192
vPF = 37
vGP = 21
vFST = 19

C1 = 2 * math.log2(math.e) * math.sqrt(2 / math.pi)
C3 = C1 * 0.044715
CT = 2 * math.log2(math.e)
EX_MAX = 125.0

DEFAULT_STAMPS = ("start", "iss", "x0", "s1mfma", "hst", "w2done", "hpoll", "s2mfma", "fst", "s3mfma", "fest", "end")
S1_STAMPS = ("start", "karg", "iss0", "iss", "x0", "u5", "u11", "u17", "s1mfma", "hst", "w2done", "end")
R4_STAMPS = ("start", "fepoll", "j01", "s4r0", "s4r1", "s4r2", "s4r3", "s4r4", "s4r5", "s4r6", "s4r7", "end")
R5_STAMPS = ("start", "fepoll2", "j01", "s4r0", "s4r1", "s4r2", "s4r3", "s4r4", "s4r5", "s4r6", "s4r7", "end")
G_STAMPS = ("start", "hst", "g0", "gdma", "gw2", "gwg", "gld", "gmf", "gend", "w2done", "hpoll", "end")
GL_STAMPS = ("start", "fst", "gdma", "gwg", "gld", "gmf", "gend", "fpoll", "s3mfma", "fest", "fepoll", "end")
S2_STAMPS = ("start", "s1mfma", "hst", "w2done", "hpoll", "s2mfma", "fst", "fpoll", "s3mfma", "fest", "fepoll", "end")
P_STAMPS = ("start", "karg", "probe", "iss0", "iss", "x0", "u5", "u11", "u17", "s1mfma", "hst", "end")
S4_STAMPS = ("start", "hst", "s2mfma", "fst", "fpoll", "s3mfma", "fest", "cb", "fepoll", "s4r3", "s4mfma", "end")


class Gen2:
    def __init__(self, stop_after=None, stamps=True, opts=None):
        self.k = K()
        self.stop_after = stop_after
        self.stamps = stamps
        self.nst = 0
        self.names = []
        self.o = dict(prefetch=False, rot=True, hplain=True, fplain=False, x2=1, x3=2,
                      b1B=4, b2C=4, trb3="loop", s4bar=3, w2in=3, w2mid=0, glate=0, g4=1,
                      fdirect=1, hdirect=3, ex=1, feat=-1, b3loop=4, b3pre=4, ltr0=2,
                      geplain=1, hbar=1, hearly=1)
        self.o.update(opts or {})
        self.rot = 0
        self.ool = []

    def stamp(self, name):
        names = self.o.get("stamps", DEFAULT_STAMPS)
        if not self.stamps or name not in names:
            return
        self.names = list(names)
        self.nst = len(names)
        r = STAMP0 + 2 * names.index(name)
        self.k.e(f"{'s_memtime' if self.o.get('memtime') else 's_memrealtime'} s[{r}:{r + 1}]")

    def tmp(self):
        self.rot = (self.rot + 1) % 4
        return sT0 + self.rot

    def tile(self, key, dst):
        self.k.e(f"s_xor_b32 s{dst}, s{sN}, {self.o[key]}")

    def srd(self, d, ptr, off, nrec):
        k = self.k
        if off is None:
            k.e(f"s_mov_b32 s{d}, s{ptr}\ns_mov_b32 s{d + 1}, s{ptr + 1}")
        else:
            k.e(f"s_add_u32 s{d}, s{ptr}, s{off}\ns_addc_u32 s{d + 1}, s{ptr + 1}, 0")
        k.e(f"s_mov_b32 s{d + 2}, {nrec}\ns_mov_b32 s{d + 3}, 0x20000")

    def nt(self, srd):
        key = {SW1: "ntw1", SW2: "ntw2", SWF: "ntwf", SWG: "ntwg", SWO: "ntwo", SX: "ntx"}[srd]
        return " nt" if self.o.get(key) else ""

    def dma2k(self, srd, lds_off, soff, tag):
        k = self.k
        nt = self.nt(srd)
        k.e(f"s_add_u32 m0, s{sRW}, {lds_off}")
        k.e("s_nop 0")
        k.vmem(f"buffer_load_dwordx4 v{vWA0}, {sr(srd, 4)}, {soff} offen{nt} lds", tag)
        k.vmem(f"buffer_load_dwordx4 v{vWA1}, {sr(srd, 4)}, {soff} offen offset:1024{nt} lds", tag)

    def dma4k_ops(self, srd, lds_off, soff_fn, tag):
        k = self.k
        st = {}

        def op(q):
            if q == 0:
                st["s"] = soff_fn()
                k.e(f"s_add_u32 m0, s{sRW}, {lds_off}")
                k.e("s_nop 0")
            o = f" offset:{q * 1024}" if q else ""
            k.vmem(f"buffer_load_dwordx4 v{vW2 + q}, {sr(srd, 4)}, {st['s']} offen{o}{self.nt(srd)} lds", tag)
        return [lambda q=q: op(q) for q in range(4)]

    def dma4k(self, srd, lds_off, soff_fn, tag):
        for op in self.dma4k_ops(srd, lds_off, soff_fn, tag):
            op()

    def tr32(self, lds_off, dst, kind, tag):
        k = self.k
        for ct, a in enumerate((vTR0, vTR1)):
            k.ds(f"ds_read_b64_tr_b16 {vr(dst + 4 * ct, 2, kind)}, v{a} offset:{lds_off}", tag)
            k.ds(f"ds_read_b64_tr_b16 {vr(dst + 4 * ct + 2, 2, kind)}, v{a} offset:{lds_off + 512}", tag)

    def tr16(self, lds_off, dst, kind, tag):
        k = self.k
        for ct in range(4):
            k.ds(f"ds_read_b64_tr_b16 {vr(dst + 4 * ct, 2, kind)}, v{vT16 + ct} offset:{lds_off}", tag)
            k.ds(f"ds_read_b64_tr_b16 {vr(dst + 4 * ct + 2, 2, kind)}, v{vT16 + ct} offset:{lds_off + 512}", tag)

    def mfma32(self, d, a, b, first, ak="v"):
        c = "0" if first else vr(d, 16)
        self.k.e(f"v_mfma_f32_32x32x16_bf16 {vr(d, 16)}, {vr(a, 4, ak)}, {vr(b, 4)}, {c}")

    def mfma16(self, d, a, b, first, ak="a"):
        c = "0" if first else vr(d, 4)
        self.k.e(f"v_mfma_f32_16x16x32_bf16 {vr(d, 4)}, {vr(a, 4, ak)}, {vr(b, 4)}, {c}")

    def gelu(self, xs, tmp, kc3):
        k = self.k
        ts = [tmp + i for i in range(len(xs))]
        for x, t in zip(xs, ts):
            k.e(f"v_mul_f32 v{t}, v{x}, v{x}")
        for x, t in zip(xs, ts):
            k.e(f"v_fmaak_f32 v{t}, v{t}, v{kc3}, {f32(-C1)}")
        for x, t in zip(xs, ts):
            k.e(f"v_mul_f32 v{t}, v{t}, v{x}")
        for x, t in zip(xs, ts):
            k.e(f"v_exp_f32 v{t}, v{t}")
        for x, t in zip(xs, ts):
            k.e(f"v_add_f32 v{t}, 1.0, v{t}")
        for x, t in zip(xs, ts):
            k.e(f"v_rcp_f32 v{t}, v{t}")
        for x, t in zip(xs, ts):
            k.e(f"v_mul_f32 v{x}, v{x}, v{t}")

    def spin_check(self, done_label):
        self.k.e(f"s_add_u32 s{sSPIN}, s{sSPIN}, 1\ns_cmp_ge_u32 s{sSPIN}, {SPIN_MAX}\ns_cbranch_scc1 {done_label}")

    def prologue(self):
        k = self.k
        rot = self.o["rot"]
        k.e("""
        s_cmp_ge_u32 s2, 256
        s_cbranch_scc1 L_end
        s_load_dwordx16 s[4:19], s[0:1], 0
        s_load_dwordx4 s[20:23], s[0:1], 64
        """)
        self.stamp("start")
        k.e(f"""
        v_lshrrev_b32 v{vT0}, 6, v0
        v_and_b32 v{vL}, 63, v0
        v_readfirstlane_b32 s{sW}, v{vT0}
        s_and_b32 s{sT0}, s2, 7
        s_lshr_b32 s{sT1}, s2, 3
        s_add_u32 s{sJN}, s{sT1}, {self.o.get("jnrot", 0)}
        s_and_b32 s{sJN}, s{sJN}, 3
        s_lshr_b32 s{sML}, s{sT1}, 2
        s_and_b32 s{sT2}, s{sT0}, 1
        s_lshl_b32 s{sN}, s{sT2}, 2
        s_add_u32 s{sN}, s{sN}, s{sJN}
        s_lshr_b32 s{sT0}, s{sT0}, 1
        s_lshl_b32 s{sM}, s{sT0}, 3
        s_add_u32 s{sM}, s{sM}, s{sML}
        s_lshr_b32 s{sB}, s{sM}, 4
        s_and_b32 s{sMT}, s{sM}, 15
        s_mul_i32 s{sRW}, s{sW}, {RW}
        v_lshrrev_b32 v{vT0}, 4, v{vL}
        v_lshrrev_b32 v{vT1}, 5, v{vL}
        v_and_b32 v{vT2}, 15, v{vL}
        v_xor_b32 v{vT2}, v{vT2}, v{vT1}
        v_lshlrev_b32 v{vT2}, 4, v{vT2}
        v_lshl_add_u32 v{vXW}, v{vT0}, 10, v{vT2}
        """)
        for e in range(1, 4):
            k.e(f"v_xor_b32 v{vXW + e}, {e * 32}, v{vXW}")
            k.e(f"v_add_u32 v{vXW + e}, {e * 3072}, v{vXW + e}")
        k.e(f"""
        v_cmp_gt_u32 vcc, 16, v{vL}
        v_bfrev_b32 v{vT0}, 1
        v_lshrrev_b32 v{vT1}, 3, v{vL}
        v_cndmask_b32 v{vQ0}, 0, v{vT0}, vcc
        v_bfe_u32 v{vT2}, v{vT1}, 1, 1
        v_lshlrev_b32 v{vT2}, 2, v{vT2}
        v_and_b32 v{vT3}, 7, v{vL}
        v_xor_b32 v{vT2}, v{vT2}, v{vT3}
        v_lshlrev_b32 v{vT2}, 4, v{vT2}
        v_lshl_add_u32 v{vWA0}, v{vT1}, 10, v{vT2}
        v_add_u32 v{vWA1}, 7168, v{vWA0}
        s_lshl_b32 s{sT0}, s{sW}, 17
        s_lshl_b32 s{sT1}, s{sN}, 7
        s_add_u32 s3, s{sT0}, s{sT1}
        s_mul_i32 s{sT0}, s{sB}, 1000
        s_lshl_b32 s{sT1}, s{sMT}, 6
        s_add_u32 s{sT0}, s{sT0}, s{sT1}
        s_sub_u32 s{sT0}, s{sT0}, 1
        s_lshl_b32 s{sT0}, s{sT0}, 10
        s_lshl_b32 s{sT2}, s{sW}, 8
        s_add_u32 s{sT0}, s{sT0}, s{sT2}
        s_ashr_i32 s{sT3}, s{sT0}, 31
        s_sub_u32 s{sT1}, 1001, s{sT1}
        s_lshl_b32 s{sT1}, s{sT1}, 10
        s_sub_u32 s{SX + 2}, s{sT1}, s{sT2}
        s_mov_b32 s{SX + 3}, 0x20000
        s_sub_u32 s{SW1 + 2}, 1572864, s3
        s_mov_b32 s{SW1 + 3}, 0x20000
        """)
        if rot:
            k.e(f"s_lshl_b32 s{sKI}, s{sML}, 14")
        else:
            k.e(f"s_mov_b32 s{sKI}, 0")
        k.e("s_waitcnt lgkmcnt(0)")
        self.stamp("karg")
        k.e(f"""
        s_add_u32 s{SX}, s4, s{sT0}
        s_addc_u32 s{SX + 1}, s5, s{sT3}
        s_add_u32 s{SW1}, s6, s3
        s_addc_u32 s{SW1 + 1}, s7, 0
        """)

    def code_prefetch(self):
        k = self.k
        mode = self.o.get("cpf", 0)
        if not mode:
            return
        lab = k.label("pf")
        k.e(f"""
        s_cmp_lg_u32 s{sW}, {self.o.get("cpfw", 3)}
        s_cbranch_scc1 {lab}
        s_getpc_b64 s[{sT0 + 1}:{sT0 + 2}]
        L_pc:
        s_lshr_b32 s{sT0}, s2, 3
        s_lshl_b32 s{sT0}, s{sT0}, 11
        v_lshlrev_b32 v{vT0}, 7, v{vL}
        v_add_u32 v{vT0}, s{sT0}, v{vT0}
        v_min_u32 v{vT0}, L_last-L_pc, v{vT0}
        s_mov_b64 exec, 0xffff
        global_load_dword v{vPF}, v{vT0}, s[{sT0 + 1}:{sT0 + 2}]
        s_mov_b64 exec, -1
        {lab}:
        """)

    def g_prefetch(self):
        k = self.k
        k.e(f"""
        s_lshr_b32 s{sT0}, s2, 3
        s_lshl_b32 s{sT1}, s{sT0}, 12
        v_lshlrev_b32 v{vT0}, 10, v{vL}
        v_add_u32 v{vT0}, s{sT1}, v{vT0}
        s_lshr_b32 s{sT1}, s{sT0}, 1
        s_lshl_b32 s{sT1}, s{sT1}, 10
        s_and_b32 s{sT0}, s{sT0}, 1
        s_lshl_b32 s{sT0}, s{sT0}, 7
        s_add_u32 s{sT0}, s{sT0}, s{sT1}
        v_mov_b32 v{vT1}, s{sT0}
        s_mov_b64 exec, 15
        """)
        k.vmem(f"buffer_load_dword v{vPF}, v{vT0}, {sr(SWG, 4)}, 0 offen", "pf")
        k.e("s_mov_b64 exec, 1")
        k.vmem(f"buffer_load_dword v{vPF + 1}, v{vT1}, {sr(SG, 4)}, 0 offen", "pf")
        k.e("s_mov_b64 exec, -1")

    def l2pf(self, pos):
        k = self.k
        for key, srd, lanes in (("pfw2", SW2, 48), ("pfwf", SWF, 16), ("pfwo", SWO, 16)):
            if self.o.get(key) != pos:
                continue
            if srd == SWO:
                k.e(f"s_lshr_b32 s{sT0}, s2, 3\ns_lshl_b32 s{sT0}, s{sT0}, 14")
            else:
                k.e(f"s_lshl_b32 s{sT0}, s{sML}, 14")
            k.e(f"""
            v_and_b32 v{vT1}, 15, v{vL}
            v_lshlrev_b32 v{vT1}, 10, v{vT1}
            v_lshrrev_b32 v{vT2}, 4, v{vL}
            v_lshl_add_u32 v{vT1}, v{vT2}, 19, v{vT1}
            s_bfm_b64 exec, {lanes}, 0
            """)
            k.vmem(f"buffer_load_dword v{vPF}, v{vT1}, {sr(srd, 4)}, s{sT0} offen", "pf")
            k.e("s_mov_b64 exec, -1")

    def x_quarter(self, qq):
        k = self.k
        a, z = sT0, sT1
        if self.o["rot"]:
            k.e(f"s_add_u32 s{a}, s{sJN}, {qq}\ns_and_b32 s{a}, s{a}, 3")
        else:
            k.e(f"s_mov_b32 s{a}, {qq}")
        k.e(f"""
        s_lshl_b32 s{sT2}, s{a}, 12
        s_add_u32 m0, s{sT2}, s{sRW}
        s_or_b32 s{z}, s{a}, s{sMT}
        s_cmp_eq_u32 s{z}, 0
        s_cselect_b32 s{z}, -1, 0
        s_and_b32 s{sT3}, s{a}, 1
        s_lshl_b32 s{sT3}, s{sT3}, 7
        s_lshl_b32 s{a}, s{a}, 14
        s_or_b32 s{a}, s{a}, s{sT3}
        """)
        for e in range(4):
            t = vXA if e % 2 == 0 else vXZ
            k.e(f"v_xor_b32 v{t}, s{a}, v{vXW + e}")
            if e == 0:
                k.e(f"v_and_or_b32 v{t}, v{vQ0}, s{z}, v{t}")
            o = f" offset:{e * 1024}" if e else ""
            k.vmem(f"buffer_load_dwordx4 v{t}, {sr(SX, 4)}, 0 offen{o}{self.nt(SX)} lds", "x")
            if qq == 0 and self.o.get("probe") == e + 1:
                k.e("s_waitcnt vmcnt(0)")
                self.stamp("probe")

    def x_tail(self):
        k = self.k
        k.e(f"""
        v_lshlrev_b32 v{vXA}, 4, v{vL}
        v_add_u32 v{vXA}, 65536, v{vXA}
        s_add_u32 m0, s{sRW}, 16384
        s_mov_b64 exec, 0xffff
        """)
        k.vmem(f"buffer_load_dwordx4 v{vXA}, {sr(SX, 4)}, 0 offen{self.nt(SX)} lds", "x")
        k.e("s_mov_b64 exec, -1")

    def w1_issue(self, u):
        k = self.k
        i = u % 3
        if i == 0 and u:
            k.e(f"s_add_u32 s{sKI}, s{sKI}, 16384\ns_and_b32 s{sKI}, s{sKI}, 0x1c000")
        if i:
            t = self.tmp()
            k.e(f"s_add_u32 s{t}, s{sKI}, {i * 524288}")
            so = f"s{t}"
        else:
            so = f"s{sKI}"
        self.dma2k(SW1, RB + 2048 * (u % 10), so, ("w1", u))

    def rot4(self):
        k = self.k
        for j in range(4):
            if self.o["rot"]:
                k.e(f"s_add_u32 s{sR4[j]}, s{sML}, {j}\ns_and_b32 s{sR4[j]}, s{sR4[j]}, 3\ns_lshl_b32 s{sR4[j]}, s{sR4[j]}, 10")
            else:
                k.e(f"s_mov_b32 s{sR4[j]}, {j * 1024}")

    def w32_soff(self, j, tap):
        def fn():
            t = self.tmp()
            self.k.e(f"s_lshl_b32 s{t}, s{sR4[j]}, 5")
            if tap:
                self.k.e(f"s_add_u32 s{t}, s{t}, {tap * 524288}")
            return f"s{t}"
        return fn

    def w2_slot(self, v):
        xs = [XS[2], XS[3], XS[0], XS[1]] if self.o["w2in"] + self.o["w2mid"] > 5 else XS
        return [T4[2], T4[3], T4[4], T4[0], T4[1], xs[0], xs[1], xs[2], xs[3], T4[2], T4[3], T4[4]][v]

    def w2_ops(self, v):
        return self.dma4k_ops(SW2, self.w2_slot(v), self.w32_soff(v // 3, v % 3), ("w2", v))

    def clears(self):
        k = self.k
        self.srd(SWS, 22, None, WS_REC)
        k.e(f"""
        v_mov_b32 v{vONES}, -1
        v_mov_b32 v{vONES + 1}, -1
        v_mov_b32 v{vONES + 2}, -1
        v_mov_b32 v{vONES + 3}, -1
        v_lshlrev_b32 v{vT0}, 4, v{vL}
        s_lshl_b32 s{sT0}, s{sM}, 14
        s_lshl_b32 s{sT2}, s{sW}, 9
        s_add_u32 s{sT0}, s{sT0}, s{sT2}
        """)
        self.tile("x2", sT1)
        k.e(f"""
        s_lshl_b32 s{sT1}, s{sT1}, 11
        s_add_u32 s{sT2}, s{sT0}, {F_OFF}
        s_add_u32 s{sT2}, s{sT2}, s{sT1}
        """)
        self.tile("x3", sT1)
        ex = self.o["ex"]
        if ex:
            k.e(f"""
            s_lshl_b32 s{sT1}, s{sT1}, 11
            s_add_u32 s{sT3}, s{sT0}, s{sT1}
            s_lshl_b32 s{sT3}, s{sT3}, 1
            s_add_u32 s{sT3}, s{sT3}, {FE_OFF}
            """)
            k.vmem(f"buffer_store_dwordx4 {vr(vONES, 4)}, v{vT0}, {sr(SWS, 4)}, s{sT3} offen sc1", "clr")
            k.e("s_mov_b32 exec_hi, 0")
            k.vmem(f"buffer_store_dwordx4 {vr(vONES, 4)}, v{vT0}, {sr(SWS, 4)}, s{sT2} offen sc1", "clr")
        else:
            k.e(f"""
            s_lshl_b32 s{sT1}, s{sT1}, 11
            s_add_u32 s{sT3}, s{sT0}, {FE_OFF}
            s_add_u32 s{sT3}, s{sT3}, s{sT1}
            s_mov_b32 exec_hi, 0
            """)
            k.vmem(f"buffer_store_dwordx4 {vr(vONES, 4)}, v{vT0}, {sr(SWS, 4)}, s{sT2} offen sc1", "clr")
            k.vmem(f"buffer_store_dwordx4 {vr(vONES, 4)}, v{vT0}, {sr(SWS, 4)}, s{sT3} offen sc1", "clr")
        lab = k.label("c0")
        k.e(f"""
        s_mov_b64 exec, -1
        s_cmp_lg_u32 s{sW}, 0
        s_cbranch_scc1 {lab}
        s_lshl_b32 s{sT0}, s{sM}, 15
        s_lshl_b32 s{sT1}, s{sN}, 11
        s_add_u32 s{sT0}, s{sT0}, s{sT1}
        s_add_u32 s{sT0}, s{sT0}, {H_OFF}
        s_add_u32 s{sT1}, s{sT0}, 16384
        buffer_store_dwordx4 {vr(vONES, 4)}, v{vT0}, {sr(SWS, 4)}, s{sT0} offen sc1
        buffer_store_dwordx4 {vr(vONES, 4)}, v{vT0}, {sr(SWS, 4)}, s{sT0} offen offset:1024 sc1
        buffer_store_dwordx4 {vr(vONES, 4)}, v{vT0}, {sr(SWS, 4)}, s{sT1} offen sc1
        buffer_store_dwordx4 {vr(vONES, 4)}, v{vT0}, {sr(SWS, 4)}, s{sT1} offen offset:1024 sc1
        """)
        if self.o["g4"]:
            k.e(f"""
            s_cmp_lg_u32 s{sN}, 0
            s_cbranch_scc1 {lab}
            s_and_b32 s{sT0}, s{sM}, 7
            s_lshr_b32 s{sT1}, s{sM}, 3
            s_lshl_b32 s{sT2}, s{sT0}, 14
            s_lshl_b32 s{sT3}, s{sT1}, 12
            s_add_u32 s{sT2}, s{sT2}, s{sT3}
            s_add_u32 s{sT2}, s{sT2}, {P_OFF}
            s_lshl_b32 s{sT0}, s{sT0}, {10 + ex}
            s_lshl_b32 s{sT1}, s{sT1}, {8 + ex}
            s_add_u32 s{sT0}, s{sT0}, s{sT1}
            s_add_u32 s{sT0}, s{sT0}, {GE_OFF}
            s_add_u32 s{sT1}, s{sT0}, {8192 << ex}
            buffer_store_dwordx4 {vr(vONES, 4)}, v{vT0}, {sr(SWS, 4)}, s{sT2} offen sc1
            buffer_store_dwordx4 {vr(vONES, 4)}, v{vT0}, {sr(SWS, 4)}, s{sT2} offen offset:1024 sc1
            buffer_store_dwordx4 {vr(vONES, 4)}, v{vT0}, {sr(SWS, 4)}, s{sT2} offen offset:2048 sc1
            buffer_store_dwordx4 {vr(vONES, 4)}, v{vT0}, {sr(SWS, 4)}, s{sT2} offen offset:3072 sc1
            s_bfm_b64 exec, {16 << ex}, 0
            buffer_store_dwordx4 {vr(vONES, 4)}, v{vT0}, {sr(SWS, 4)}, s{sT0} offen sc1
            buffer_store_dwordx4 {vr(vONES, 4)}, v{vT0}, {sr(SWS, 4)}, s{sT1} offen sc1
            s_mov_b64 exec, -1
            {lab}:
            """)
            return
        k.e(f"""
        s_cmp_ge_u32 s2, 8
        s_cbranch_scc1 {lab}
        s_lshl_b32 s{sT0}, s2, 10
        s_add_u32 s{sT0}, s{sT0}, {GE_OFF}
        s_add_u32 s{sT1}, s{sT0}, 8192
        buffer_store_dwordx4 {vr(vONES, 4)}, v{vT0}, {sr(SWS, 4)}, s{sT0} offen sc1
        buffer_store_dwordx4 {vr(vONES, 4)}, v{vT0}, {sr(SWS, 4)}, s{sT1} offen sc1
        {lab}:
        """)

    def prologue2(self):
        k = self.k
        for key, d, ptr, size in (("x2", SW2, 8, 1572864), ("x3", SWF, 12, 524288), (None, SWG, 14, 524288)):
            if key is None and self.o["g4"]:
                k.e(f"""
                s_and_b32 s{sT0}, s{sM}, 7
                s_lshl_b32 s{sT0}, s{sT0}, 7
                s_lshr_b32 s{sT1}, s{sM}, 3
                s_lshl_b32 s{sT1}, s{sT1}, 17
                s_add_u32 s{sT0}, s{sT0}, s{sT1}
                s_lshl_b32 s{sT1}, s{sW}, 15
                s_add_u32 s{sT0}, s{sT0}, s{sT1}
                s_sub_u32 s{sT1}, {size}, s{sT0}
                """)
                self.srd(d, ptr, sT0, f"s{sT1}")
                continue
            if key:
                self.tile(key, sT0)
            else:
                k.e(f"s_and_b32 s{sT0}, s2, 7")
            k.e(f"""
            s_lshl_b32 s{sT0}, s{sT0}, 7
            s_lshl_b32 s{sT1}, s{sW}, 17
            s_add_u32 s{sT0}, s{sT0}, s{sT1}
            s_sub_u32 s{sT1}, {size}, s{sT0}
            """)
            self.srd(d, ptr, sT0, f"s{sT1}")
        if self.o["g4"]:
            k.e(f"""
            s_lshr_b32 s{sT0}, s{sM}, 3
            s_lshl_b32 s{sT0}, s{sT0}, 8
            s_lshl_b32 s{sT1}, s{sW}, 6
            s_add_u32 s{sT0}, s{sT0}, s{sT1}
            s_sub_u32 s{sT1}, 16384, s{sT0}
            """)
        else:
            k.e(f"""
            s_lshl_b32 s{sT0}, s{sW}, 8
            s_sub_u32 s{sT1}, 16384, s{sT0}
            """)
        self.srd(SG, 10, sT0, f"s{sT1}")
        k.e(f"""
        s_lshr_b32 s{sT2}, s{sN}, 2
        s_lshl_b32 s{sT0}, s{sT2}, 9
        s_lshl_b32 s{sT1}, s{sW}, 7
        s_add_u32 s{sT0}, s{sT0}, s{sT1}
        s_sub_u32 s{sT1}, 524288, s{sT0}
        """)
        self.srd(SWO, 16, sT0, f"s{sT1}")
        k.e(f"s_mul_i32 s{sT0}, s{sB}, 2048000")
        self.srd(SOUT, 18, sT0, 2048000)
        self.srd(SDBG, 20, None, 256)
        k.e(f"s_lshr_b32 s{sNH}, s{sN}, 2")
        self.rot4()
        k.e(f"""
        v_lshlrev_b32 v{vT0}, 4, v{vL}
        v_add_u32 v{vLIN}, s{sRW}, v{vT0}
        v_bfe_u32 v{vT0}, v{vL}, 2, 2
        v_lshrrev_b32 v{vT1}, 5, v{vL}
        v_lshl_add_u32 v{vT1}, v{vT1}, 3, v{vT0}
        v_lshlrev_b32 v{vT1}, 7, v{vT1}
        v_lshrrev_b32 v{vT2}, 1, v{vT0}
        v_lshl_add_u32 v{vT1}, v{vT2}, 6, v{vT1}
        v_bfe_u32 v{vT2}, v{vL}, 4, 1
        v_lshl_add_u32 v{vT1}, v{vT2}, 5, v{vT1}
        v_and_b32 v{vT2}, 3, v{vL}
        v_lshl_add_u32 v{vT1}, v{vT2}, 3, v{vT1}
        v_add_u32 v{vTR0}, s{sRW}, v{vT1}
        v_xor_b32 v{vT1}, 64, v{vT1}
        v_add_u32 v{vTR1}, s{sRW}, v{vT1}
        """)
        k.e(f"""
        v_and_b32 v{vT0}, 31, v{vL}
        v_lshrrev_b32 v{vT1}, 5, v{vL}
        v_and_b32 v{vT2}, 15, v{vT0}
        v_xor_b32 v{vT2}, v{vT2}, v{vT1}
        v_lshlrev_b32 v{vT2}, 4, v{vT2}
        v_lshl_add_u32 v{vT2}, v{vT0}, 9, v{vT2}
        v_add_u32 v{vXB}, s{sRW}, v{vT2}
        v_add_u32 v{vXB + 1}, 256, v{vXB}
        v_add_u32 v{vT2}, 1, v{vT0}
        v_and_b32 v{vT2}, 15, v{vT2}
        v_xor_b32 v{vT2}, v{vT2}, v{vT1}
        v_lshlrev_b32 v{vT2}, 4, v{vT2}
        v_lshl_add_u32 v{vT2}, v{vT0}, 9, v{vT2}
        v_add_u32 v{vT2}, 512, v{vT2}
        v_add_u32 v{vXB + 2}, s{sRW}, v{vT2}
        """)
        k.e(f"""
        v_lshrrev_b32 v{vT0}, 3, v{vL}
        v_bfe_u32 v{vT1}, v{vT0}, 1, 1
        v_lshlrev_b32 v{vT1}, 1, v{vT1}
        v_and_b32 v{vT2}, 7, v{vL}
        v_xor_b32 v{vT1}, v{vT1}, v{vT2}
        v_lshlrev_b32 v{vT1}, 4, v{vT1}
        v_lshl_add_u32 v{vW2}, v{vT0}, 10, v{vT1}
        v_xor_b32 v{vT1}, 64, v{vW2}
        v_add_u32 v{vW2 + 1}, 7168, v{vT1}
        v_add_u32 v{vW2 + 2}, {2 * 7168}, v{vW2}
        v_add_u32 v{vW2 + 3}, {3 * 7168}, v{vT1}
        v_lshrrev_b32 v{vT0}, 4, v{vL}
        v_bfe_u32 v{vT1}, v{vL}, 2, 2
        v_lshl_add_u32 v{vT2}, v{vT0}, 3, v{vT1}
        v_lshlrev_b32 v{vT2}, 7, v{vT2}
        v_lshrrev_b32 v{vT1}, 1, v{vT1}
        v_and_b32 v{vT0}, 1, v{vT0}
        v_lshl_add_u32 v{vT1}, v{vT0}, 1, v{vT1}
        v_lshl_add_u32 v{vT2}, v{vT1}, 5, v{vT2}
        v_and_b32 v{vT1}, 3, v{vL}
        v_lshl_add_u32 v{vT2}, v{vT1}, 3, v{vT2}
        v_add_u32 v{vT16}, s{sRW}, v{vT2}
        """)
        for ct in range(1, 4):
            k.e(f"v_xor_b32 v{vT0}, {ct * 32}, v{vT2}\nv_add_u32 v{vT16 + ct}, s{sRW}, v{vT0}")
        k.e(f"""
        v_and_b32 v{vT0}, 15, v{vL}
        v_bfe_u32 v{vT1}, v{vL}, 4, 1
        v_lshl_add_u32 v{vT0}, v{vT0}, 1, v{vT1}
        v_lshlrev_b32 v{vT0}, 4, v{vT0}
        v_lshrrev_b32 v{vT1}, 5, v{vL}
        v_lshl_add_u32 v{vT0}, v{vT1}, 10, v{vT0}
        s_lshl_b32 s{sT0}, s{sW}, 11
        v_add_u32 v{vRD}, s{sT0}, v{vT0}
        """)
        if self.o["rot"]:
            k.e(f"s_lshl_b32 s{sKC}, s{sML}, 5")
        else:
            k.e(f"s_mov_b32 s{sKC}, 0")

    def stage1(self):
        k = self.k
        if self.o.get("cpf") == 1:
            self.code_prefetch()
        self.x_quarter(0)
        for u in range(3):
            self.w1_issue(u)
        if self.o.get("cpf") == 2:
            self.code_prefetch()
        self.clears()
        for qq in range(1, 4):
            self.x_quarter(qq)
        self.x_tail()
        self.stamp("iss0")
        self.prologue2()
        if self.o.get("gpf", 1) and not self.o["g4"]:
            self.g_prefetch()
        self.l2pf("iss0")
        for u in range(3, 10):
            self.w1_issue(u)
        self.l2pf("iss")
        self.stamp("iss")
        k.wait(vm="x")
        self.stamp("x0")
        lab = k.label("hs")
        k.e(f"""
        s_cmp_lg_u32 s{sW}, 0
        s_cbranch_scc1 {lab}
        s_and_b32 s{sT0}, s2, 3
        s_lshl_b32 s{sT0}, s{sT0}, 6
        v_mov_b32 v{vT0}, s{sT0}
        v_mov_b32 v{vT1}, 1
        s_mov_b64 exec, 1
        buffer_atomic_add v{vT1}, v{vT0}, {sr(SDBG, 4)}, 0 offen sc1
        s_mov_b64 exec, -1
        {lab}:
        """)

        def mm(u):
            a, b = AF + 8 * (u & 1), BFR + 4 * (u & 1)
            self.mfma32(ACC1, a, b, u == 0)
            self.mfma32(ACC1 + 16, a + 4, b, u == 0)

        def refill(u):
            if u + 10 < 24:
                self.w1_issue(u + 10)
            elif u >= 15 and u % 2 == 1 and (u - 15) // 2 < self.o["w2in"]:
                for op in self.w2_ops((u - 15) // 2):
                    op()
            self.l2pf(u)
            if u == 17:
                k.e(f"v_and_b32 v{vT0}, 3, v{vL}\nv_lshlrev_b32 v{vT0}, 6, v{vT0}")
                k.vmem(f"buffer_load_dword v{vHS}, v{vT0}, {sr(SDBG, 4)}, 0 offen sc1", "hs")

        for u in range(24):
            i = u % 3
            if i == 0 and u:
                k.e(f"s_add_u32 s{sKC}, s{sKC}, 32\ns_and_b32 s{sKC}, s{sKC}, 0xe0")
            k.e(f"v_xor_b32 v{vBA + (u & 1)}, s{sKC}, v{vXB + i}")
            k.wait(vm=("w1", u))
            self.tr32(RB + 2048 * (u % 10), AF + 8 * (u & 1), "v", ("u", u))
            k.ds(f"ds_read_b128 {vr(BFR + 4 * (u & 1), 4)}, v{vBA + (u & 1)}", ("u", u))
            if u:
                k.wait(lg=("u", u - 1))
                mm(u - 1)
                refill(u - 1)
            if u in (5, 11, 17):
                self.stamp(f"u{u}")
        k.wait(lg=("u", 23))
        mm(23)
        refill(23)
        self.stamp("s1mfma")
        if self.o["g4"]:
            self.g4_issue()
        self.l2pf("s1end")
        k.e(f"v_mov_b32 v{vKC3}, {f32(-C3)}")
        k.e(f"v_add_u32 v{vT3}, {2 * RW}, v{vRD}")
        k.nop(10)
        for blk in range(8):
            k.ds(f"ds_write_b128 v{vLIN}, {vr(ACC1 + 4 * blk, 4)} offset:{blk * 1024}")
        k.wait(lg="all")
        k.e("s_barrier")
        for sw in range(4):
            a = vRD if sw < 2 else vT3
            for j in range(2):
                k.ds(f"ds_read_b128 {vr(R1 + 8 * sw + 4 * j, 4)}, v{a} offset:{(sw & 1) * RW + j * 512}", ("r", sw))
        def h_addr():
            k.e(f"""
            v_and_b32 v{vT0}, 15, v{vL}
            v_lshlrev_b32 v{vT0}, 4, v{vT0}
            v_bfe_u32 v{vT1}, v{vL}, 4, 1
            v_lshl_add_u32 v{vT0}, v{vT1}, 14, v{vT0}
            v_lshrrev_b32 v{vT1}, 5, v{vL}
            v_lshl_add_u32 v{vT0}, v{vT1}, 8, v{vT0}
            s_lshl_b32 s{sT0}, s{sM}, 15
            s_lshl_b32 s{sT1}, s{sN}, 11
            s_add_u32 s{sT0}, s{sT0}, s{sT1}
            s_lshl_b32 s{sT1}, s{sW}, 9
            s_add_u32 s{sT0}, s{sT0}, s{sT1}
            s_add_u32 s{sT0}, s{sT0}, {H_OFF}
            """)
        if self.o.get("hearly"):
            h_addr()
        assert self.o["w2in"] + self.o["w2mid"] <= 7
        for v in range(self.o["w2in"], self.o["w2in"] + self.o["w2mid"]):
            for op in self.w2_ops(v):
                op()
        k.wait(lg=("r", 1))
        for i in range(8):
            k.e(f"v_add_f32 v{R1 + i}, v{R1 + i}, v{R1 + 8 + i}")
        k.wait(lg=("r", 3))
        for i in range(8):
            k.e(f"v_add_f32 v{R1 + 16 + i}, v{R1 + 16 + i}, v{R1 + 24 + i}")
        for i in range(8):
            k.e(f"v_add_f32 v{R1 + i}, v{R1 + i}, v{R1 + 16 + i}")
        self.gelu([R1 + i for i in range(8)], R1 + 8, vKC3)
        for i in range(4):
            k.e(f"v_cvt_pk_bf16_f32 v{R1 + 16 + i}, v{R1 + 2 * i}, v{R1 + 2 * i + 1}")
        if not self.o.get("hearly"):
            h_addr()
        k.vmem(f"buffer_store_dwordx4 {vr(R1 + 16, 4)}, v{vT0}, {sr(SWS, 4)}, s{sT0} offen sc1", "hst")
        self.stamp("hst")
        if not self.o.get("hbar"):
            k.e("s_barrier")

    def setup2(self):
        k = self.k
        k.e(f"""
        v_lshlrev_b32 v{vLIN16}, 4, v{vL}
        v_and_b32 v{vT0}, 15, v{vL}
        v_lshrrev_b32 v{vT1}, 4, v{vL}
        v_add_u32 v{vH0}, {32768 - 16}, v{vLIN16}
        v_lshlrev_b32 v{vT2}, 8, v{vT1}
        v_add_u32 v{vT2}, 240, v{vT2}
        s_cmp_eq_u32 s{sMT}, 0
        s_cselect_b32 s{sT0}, {OOB}, 0
        v_add_u32 v{vT2}, s{sT0}, v{vT2}
        v_cmp_eq_u32 vcc, 0, v{vT0}
        v_and_b32 v{vT3}, 7, v{vL}
        v_lshlrev_b32 v{vT3}, 9, v{vT3}
        v_cndmask_b32 v{vH0}, v{vH0}, v{vT2}, vcc
        v_add_u32 v{vFSM}, {256 + 240 + 12}, v{vT3}
        v_add_u32 v{vSMP}, 16384, v{vFSM}
        v_add_u32 v{vT2}, 32768, v{vSMP}
        v_add_u32 v{vT3}, s{sT0}, v{vSMP}
        v_cmp_gt_u32 vcc, 8, v{vL}
        v_bfrev_b32 v{vSV}, 1
        s_nop 0
        v_cndmask_b32 v{vSMP}, v{vT3}, v{vT2}, vcc
        v_cndmask_b32 v{vFSM}, v{vSV}, v{vFSM}, vcc
        v_cmp_gt_u32 vcc, 16, v{vL}
        v_lshrrev_b32 v{vT2}, 1, v{vT1}
        v_lshlrev_b32 v{vT2}, 8, v{vT2}
        v_cndmask_b32 v{vSMP}, v{vSV}, v{vSMP}, vcc
        v_lshl_add_u32 v{vT2}, v{vT0}, 4, v{vT2}
        v_and_b32 v{vT1}, 1, v{vT1}
        v_lshl_add_u32 v{vST}, v{vT1}, 3, v{vT2}
        s_lshl_b32 s{sT0}, s{sW}, 10
        v_add_u32 v{vRD2}, s{sT0}, v{vLIN16}
        s_lshl_b32 s{sT0}, s{sM}, 15
        s_lshl_b32 s{sT1}, s{sW}, 12
        s_add_u32 s{sH}, s{sT0}, s{sT1}
        s_add_u32 s{sH}, s{sH}, {H_OFF}
        s_sub_u32 s{sHS}, s{sH}, 32768
        s_lshl_b32 s{sT0}, s{sM}, 14
        s_add_u32 s{sFL}, s{sT0}, s{sT1}
        s_add_u32 s{sFL}, s{sFL}, {F_OFF}
        s_lshl_b32 s{sT1}, s{sW}, 9
        s_add_u32 s{sT0}, s{sT0}, s{sT1}
        s_xor_b32 s{sT1}, s{sN}, {self.o["x2"]}
        s_lshl_b32 s{sT1}, s{sT1}, 11
        s_add_u32 s{sFS}, s{sT0}, s{sT1}
        s_add_u32 s{sFS}, s{sFS}, {F_OFF}
        s_xor_b32 s{sT1}, s{sN}, {self.o["x3"]}
        s_lshl_b32 s{sT1}, s{sT1}, 11
        s_add_u32 s{sFES}, s{sT0}, s{sT1}
        {f"s_lshl_b32 s{sFES}, s{sFES}, 1" if self.o["ex"] else ""}
        s_add_u32 s{sFES}, s{sFES}, {FE_OFF}
        v_bfrev_b32 v{vGST}, 1
        s_lshl_b32 s{sWQ}, s{sML}, 16
        s_sub_u32 s{sWQ}, s{sWQ}, 16384
        """)
        if self.o["ex"]:
            assert self.o["fdirect"] and self.o["g4"]
            k.e(f"""
            v_lshrrev_b32 v{vT0}, 5, v{vL}
            v_lshlrev_b32 v{vT0}, 9, v{vT0}
            v_bfe_u32 v{vT1}, v{vL}, 2, 2
            v_lshl_add_u32 v{vT0}, v{vT1}, 7, v{vT0}
            v_bfe_u32 v{vT1}, v{vL}, 4, 1
            v_lshl_add_u32 v{vT0}, v{vT1}, 6, v{vT0}
            v_and_b32 v{vT1}, 3, v{vL}
            v_lshl_add_u32 v{vFST}, v{vT1}, 4, v{vT0}
            """)
        if self.o["g4"]:
            ex = self.o["ex"]
            k.e(f"""
            s_or_b32 s{sT0}, s{sN}, s{sW}
            s_cmp_eq_u32 s{sT0}, 0
            s_cselect_b32 s{sT2}, 0, {OOB}
            s_and_b32 s{sT0}, s{sM}, 7
            s_lshr_b32 s{sT1}, s{sM}, 3
            s_lshl_b32 s{sT3}, s{sT0}, 14
            s_add_u32 s{sT3}, s{sT3}, s{sT2}
            s_lshl_b32 s{sA}, s{sT1}, 10
            s_add_u32 s{sT3}, s{sT3}, s{sA}
            s_add_u32 s{sT3}, s{sT3}, {P_OFF}
            v_add_u32 v{vGP}, s{sT3}, v{vLIN16}
            v_bfe_u32 v{vT0}, v{vL}, 3, 1
            v_lshlrev_b32 v{vT0}, {13 + ex}, v{vT0}
            v_and_b32 v{vT1}, 7, v{vL}
            v_lshl_add_u32 v{vT0}, v{vT1}, 4, v{vT0}
            v_lshrrev_b32 v{vT1}, 5, v{vL}
            v_lshl_add_u32 v{vT0}, v{vT1}, {7 + ex}, v{vT0}
            v_bfe_u32 v{vT1}, v{vL}, 4, 1
            v_lshl_add_u32 v{vT0}, v{vT1}, {7 if ex else 3}, v{vT0}
            s_lshl_b32 s{sT0}, s{sT0}, {10 + ex}
            s_lshl_b32 s{sT1}, s{sT1}, {8 + ex}
            s_add_u32 s{sT0}, s{sT0}, s{sT1}
            s_add_u32 s{sT0}, s{sT0}, s{sT2}
            s_add_u32 s{sT0}, s{sT0}, {GE_OFF}
            v_add_u32 v{vGST}, s{sT0}, v{vT0}
            """)

    def w2_finish(self):
        k = self.k
        for v in range(self.o["w2in"] + self.o["w2mid"], 9):
            if self.o.get("hbar") and v == 5:
                assert self.o["w2in"] + self.o["w2mid"] <= 5
                k.e("s_barrier")
            if v == 8 and self.o["g4"]:
                self.g4_partial()
            for op in self.w2_ops(v):
                op()
        self.setup2()
        for v in range(3):
            k.wait(vm=("w2", v))
            self.tr16(self.w2_slot(v), 16 * v, "a", ("t2", v))
        for v in range(3):
            k.wait(lg=("t2", v))
            for op in self.w2_ops(9 + v):
                op()
        top, done = k.label("hsw"), k.label("hsd")
        k.e(f"""
        v_cmp_gt_u32 vcc, 64, v{vHS}
        s_cbranch_vccnz {top}
        {done}:
        """)
        self.ool.append(("hs", top, done))
        hd = self.o.get("hdirect", 0)
        if not hd:
            k.vmem(f"buffer_load_dword v{vHS}, v{vSMP}, {sr(SWS, 4)}, s{sHS} offen sc1", "smp")
        for v in range(3, 8):
            k.wait(vm=("w2", v))
            self.tr16(self.w2_slot(v), 16 * v, "a", ("t2", v))
            if hd and v == hd + 2 and v < 8:
                self.h_loads(True, not self.o["hplain"])
        if self.o["glate"] or self.o["g4"]:
            self.w2_last()
        else:
            gtop, gjoin = k.label("gblk"), k.label("gjoin")
            k.e(f"s_cmp_lt_u32 s2, 8\ns_cbranch_scc1 {gtop}")
            self.ool.append(("g", gtop, gjoin, list(k.vm), list(k.lg)))
            self.w2_last()
            k.e(f"{gjoin}:")
        self.stamp("w2done")

    def w2_last(self):
        k = self.k
        for v in range(8, 12):
            k.wait(vm=("w2", v))
            self.tr16(self.w2_slot(v), 16 * v, "a", ("t2", v))

    def g4_issue(self):
        k = self.k
        lab = k.label("g4i")
        k.e(f"""
        s_cmp_lg_u32 s{sN}, 0
        s_cbranch_scc1 {lab}
        s_add_u32 m0, s{sRW}, {XS[3]}
        v_and_b32 v{vT0}, 15, v{vL}
        v_lshlrev_b32 v{vT0}, 10, v{vT0}
        v_lshrrev_b32 v{vT1}, 4, v{vL}
        v_lshl_add_u32 v{vT0}, v{vT1}, 4, v{vT0}
        """)
        for q in range(4):
            o = f" offset:{q * 1024}" if q else ""
            k.e(f"buffer_load_dwordx4 v{vW2 + q}, {sr(SWG, 4)}, 0 offen{o} lds")
        k.e(f"""
        s_add_u32 m0, s{sRW}, {GS}
        s_nop 0
        buffer_load_dwordx4 v{vT0}, {sr(SG, 4)}, 0 offen lds
        {lab}:
        """)
        self.g4_mark = k.nvm

    def g4_partial(self):
        k = self.k
        A, B, D = 128, 144, 160
        lab = k.label("g4p")
        k.e(f"""
        s_cmp_lg_u32 s{sN}, 0
        s_cbranch_scc1 {lab}
        v_subrev_u32 v{vT0}, s{sRW}, v{vT16}
        s_lshl_b32 s{sT0}, s{sW}, 5
        v_xor_b32 v{vT0}, s{sT0}, v{vT0}
        v_add_u32 v{vT1}, {2 * RW}, v{vT0}
        v_lshlrev_b32 v{vT2}, 4, v{vL}
        v_add_u32 v{vT2}, {GS}, v{vT2}
        v_add_u32 v{vT3}, {2 * RW}, v{vT2}
        s_waitcnt vmcnt({k.nvm - self.g4_mark}) lgkmcnt(0)
        s_barrier
        """)
        for j in range(4):
            a, b = (vT0, vT2) if j < 2 else (vT1, vT3)
            o = (j & 1) * RW
            k.e(f"ds_read_b64_tr_b16 {vr(A + 4 * j, 2)}, v{a} offset:{o + XS[3]}")
            k.e(f"ds_read_b64_tr_b16 {vr(A + 4 * j + 2, 2)}, v{a} offset:{o + XS[3] + 512}")
            k.e(f"ds_read_b128 {vr(B + 4 * j, 4)}, v{b} offset:{o}")
        k.e(f"""
        s_and_b32 s{sT0}, s{sM}, 7
        s_lshl_b32 s{sT0}, s{sT0}, 14
        s_lshr_b32 s{sT1}, s{sM}, 3
        s_lshl_b32 s{sT1}, s{sT1}, 12
        s_add_u32 s{sT0}, s{sT0}, s{sT1}
        s_lshl_b32 s{sT1}, s{sW}, 10
        s_add_u32 s{sT0}, s{sT0}, s{sT1}
        s_add_u32 s{sT0}, s{sT0}, {P_OFF}
        s_waitcnt lgkmcnt(0)
        s_barrier
        v_lshlrev_b32 v{vT0}, 4, v{vL}
        """)
        for j in range(4):
            self.mfma16(D, A + 4 * j, B + 4 * j, j == 0, ak="v")
        k.nop(12)
        k.e(f"buffer_store_dwordx4 {vr(D, 4)}, v{vT0}, {sr(SWS, 4)}, s{sT0} offen sc1\n{lab}:")

    def g4_loads(self, counted):
        k = self.k
        for q in range(4):
            t = self.tmp()
            k.e(f"s_mov_b32 s{t}, {q * 4096}")
            ins = f"buffer_load_dwordx4 {vr(160 + 4 * q, 4)}, v{vGP}, {sr(SWS, 4)}, s{t} offen sc1"
            if counted:
                k.vmem(ins, "gp")
            else:
                k.e(ins)

    def g4_final(self):
        k = self.k
        P = 160
        k.e(f"s_mov_b32 s{sSPIN}, 0")
        k.wait(vm="gp")
        retry, ok, again = k.label("gpr"), k.label("gpk"), k.label("gpa")
        k.e(f"{again}:")
        k.e(f"v_max_u32 v{vT0}, v{P}, v{P + 1}")
        for i in range(2, 16, 2):
            k.e(f"v_max3_u32 v{vT0}, v{vT0}, v{P + i}, v{P + i + 1}")
        k.e(f"v_cmp_eq_u32 vcc, -1, v{vT0}\ns_cbranch_vccnz {retry}\n{ok}:")
        self.ool.append(("poll", retry, ok, again, self.g4_loads))
        for i in range(4):
            k.e(f"v_add_f32 v{P + i}, v{P + i}, v{P + 4 + i}")
            k.e(f"v_add_f32 v{P + 8 + i}, v{P + 8 + i}, v{P + 12 + i}")
        for i in range(4):
            k.e(f"v_add_f32 v{P + i}, v{P + i}, v{P + 8 + i}")
        if self.o["ex"]:
            self.ex_tail(P, P + 4, P + 8, P + 12, P + 16)
            k.vmem(f"buffer_store_dwordx4 {vr(P + 12, 4)}, v{vGST}, {sr(SWS, 4)}, 0 offen sc1", "gest")
            return
        k.e(f"v_cvt_pk_bf16_f32 v{P + 4}, v{P}, v{P + 1}")
        k.e(f"v_cvt_pk_bf16_f32 v{P + 5}, v{P + 2}, v{P + 3}")
        k.vmem(f"buffer_store_dwordx2 {vr(P + 4, 2)}, v{vGST}, {sr(SWS, 4)}, 0 offen sc1", "gest")

    def ex_tail(self, S, PK, B, T, A):
        k = self.k
        k.e(f"v_cvt_pk_bf16_f32 v{PK}, v{S}, v{S + 1}")
        k.e(f"v_cvt_pk_bf16_f32 v{PK + 1}, v{S + 2}, v{S + 3}")
        for i in range(2):
            k.e(f"v_lshlrev_b32 v{B + 2 * i}, 16, v{PK + i}")
            k.e(f"v_and_b32 v{B + 2 * i + 1}, 0xffff0000, v{PK + i}")
        for i in range(4):
            k.e(f"v_mul_f32 v{T + i}, {f32(CT)}, v{B + i}")
        for i in range(4):
            k.e(f"v_and_b32 v{A + i}, 0x7fffffff, v{T + i}")
        for i in range(4):
            k.e(f"v_exp_f32 v{T + i}, v{T + i}")
        fix, ok = k.label("exf"), k.label("exk")
        k.e(f"""
        v_max3_u32 v{A}, v{A}, v{A + 1}, v{A + 2}
        v_max_u32 v{A}, v{A}, v{A + 3}
        v_cmp_lt_u32 vcc, {f32(EX_MAX)}, v{A}
        s_cbranch_vccnz {fix}
        {ok}:
        """)
        self.ool.append(("exfix", fix, ok, PK, T, A))

    def g_loads(self, GF):
        k = self.k
        k.e(f"""
        v_and_b32 v{vT0}, 15, v{vL}
        v_lshlrev_b32 v{vT0}, 10, v{vT0}
        v_lshrrev_b32 v{vT1}, 4, v{vL}
        v_lshl_add_u32 v{vT0}, v{vT1}, 4, v{vT0}
        """)
        for j in range(4):
            t = self.tmp()
            k.e(f"s_lshr_b32 s{t}, s{sR4[j]}, 4")
            k.e(f"v_add_u32 v{vT1}, s{t}, v{vT0}")
            k.vmem(f"buffer_load_dwordx4 {vr(GF + 4 * j, 4)}, v{vT1}, {sr(SG, 4)}, 0 offen", "g")

    def g_addr(self):
        k = self.k
        k.e(f"""
        v_bfe_u32 v{vT0}, v{vL}, 3, 1
        v_lshlrev_b32 v{vT0}, 13, v{vT0}
        v_and_b32 v{vT1}, 7, v{vL}
        v_lshl_add_u32 v{vT0}, v{vT1}, 4, v{vT0}
        v_lshrrev_b32 v{vT1}, 5, v{vL}
        v_lshl_add_u32 v{vT0}, v{vT1}, 7, v{vT0}
        v_bfe_u32 v{vT1}, v{vL}, 4, 1
        v_lshl_add_u32 v{vT0}, v{vT1}, 3, v{vT0}
        s_lshl_b32 s{sT0}, s2, 10
        s_lshl_b32 s{sT1}, s{sW}, 8
        s_add_u32 s{sT0}, s{sT0}, s{sT1}
        s_add_u32 s{sT0}, s{sT0}, {GE_OFF}
        v_add_u32 v{vGST}, s{sT0}, v{vT0}
        """)

    def g_block(self):
        k = self.k
        GF = HB
        slots = [T4[0], T4[1], XS[2], XS[3]] if self.o["w2mid"] else [T4[0], T4[1], XS[1], XS[2]]
        k.wait(lg=("t2", 7))
        self.stamp("g0")
        for j in range(4):
            self.dma4k(SWG, slots[j], self.w32_soff(j, 0), ("wg", j))
        self.g_loads(GF)
        self.stamp("gdma")
        self.w2_last()
        self.stamp("gw2")
        self.g_addr()
        for j in range(4):
            k.wait(vm=("wg", j))
            self.tr16(slots[j], 192 + 16 * j, "a", ("twg", j))
        self.stamp("gwg")
        k.wait(vm="all")
        self.stamp("gld")
        for j in range(4):
            k.wait(lg=("twg", j))
            for ct in range(4):
                self.mfma16(ACC2 + 4 * ct, 192 + 16 * j + 4 * ct, GF + 4 * j, j == 0)
        self.stamp("gmf")
        self.reduce16(ACC2, False, None, None, None)
        k.e("s_barrier")
        self.stamp("gend")

    def poll_sample(self, stem, vaddr, sbase):
        k = self.k
        top, done = k.label(stem + "p"), k.label(stem + "d")
        k.wait(vm="smp")
        k.e(f"""
        v_cmp_eq_u32 vcc, -1, v{vHS}
        s_cbranch_vccnz {top}
        {done}:
        """)
        self.ool.append(("smp", top, done, vaddr, sbase))

    def reduce16(self, acc, act, vst, sst, tag, mid=None, ex=False):
        k = self.k
        k.e(f"v_add_u32 v{vT3}, {2 * RW}, v{vRD2}")
        k.nop(8)
        for ct in range(4):
            k.ds(f"ds_write_b128 v{vLIN}, {vr(acc + 4 * ct, 4)} offset:{ct * 1024}")
        k.wait(lg="all")
        k.e("s_barrier")
        for sw in range(4):
            a = vRD2 if sw < 2 else vT3
            k.ds(f"ds_read_b128 {vr(R2 + 4 * sw, 4)}, v{a} offset:{(sw & 1) * RW}", ("r", sw))
        if mid:
            mid()
        k.wait(lg=("r", 1))
        for i in range(4):
            k.e(f"v_add_f32 v{R2 + i}, v{R2 + i}, v{R2 + 4 + i}")
        k.wait(lg=("r", 3))
        for i in range(4):
            k.e(f"v_add_f32 v{R2 + 8 + i}, v{R2 + 8 + i}, v{R2 + 12 + i}")
        for i in range(4):
            k.e(f"v_add_f32 v{R2 + i}, v{R2 + i}, v{R2 + 8 + i}")
        if act:
            self.gelu([R2 + i for i in range(4)], R2 + 4, vKC3)
        if ex:
            self.ex_tail(R2, R2 + 4, R2 + 8, R2 + 12, R2 + 16)
            k.vmem(f"buffer_store_dwordx4 {vr(R2 + 12, 4)}, v{vFST}, {sr(SWS, 4)}, s{sst} offen sc1", tag)
            return
        k.e(f"v_cvt_pk_bf16_f32 v{R2 + 8}, v{R2}, v{R2 + 1}")
        k.e(f"v_cvt_pk_bf16_f32 v{R2 + 9}, v{R2 + 2}, v{R2 + 3}")
        if vst is not None:
            k.vmem(f"buffer_store_dwordx2 {vr(R2 + 8, 2)}, v{vst}, {sr(SWS, 4)}, s{sst} offen sc1", tag)

    def h_loads(self, counted, sc):
        k = self.k
        for v in range(12):
            j, i = v // 3, v % 3
            t = self.tmp()
            k.e(f"s_add_u32 s{t}, s{sH}, s{sR4[j]}")
            if i == 0:
                k.e(f"s_sub_u32 s{t}, s{t}, 16384")
            elif i == 2:
                k.e(f"s_add_u32 s{t}, s{t}, 16384")
            ins = (f"buffer_load_dwordx4 {vr(HB + 4 * v, 4)}, v{vH0 if i == 0 else vLIN16}, "
                   f"{sr(SWS, 4)}, s{t} offen" + (" sc1" if sc else ""))
            if counted:
                k.vmem(ins, ("h", v))
            else:
                k.e(ins)

    def stage2(self):
        k = self.k
        hd = self.o.get("hdirect", 0)
        if not hd:
            self.poll_sample("h", vSMP, sHS)
        self.stamp("hpoll")
        loads = self.h_loads
        k.e(f"s_mov_b32 s{sSPIN}, 0")
        if not hd:
            loads(True, not self.o["hplain"])
        if not self.o["glate"] and not self.o["g4"]:
            k.vmem(f"buffer_store_dwordx2 {vr(R2 + 8, 2)}, v{vGST}, {sr(SWS, 4)}, 0 offen sc1", "gest")
        k.wait(lg="all")
        fill = []
        for j in range(4):
            fill += self.dma4k_ops(SWF, T4[j], self.w32_soff(j, 0), ("wf", j))
        for _ in range(self.o.get("wfpre", 4)):
            fill.pop(0)()
        mf, retry, ok = k.label("s2m"), k.label("s2r"), k.label("s2k")
        k.e(f"{mf}:")
        for v in range(12):
            k.wait(vm=("h", v))
            f = HB + 4 * v
            if v == 0:
                k.e(f"v_mov_b32 v{vT0}, v{f + 3}")
            elif v % 2 == 0:
                k.e(f"v_max3_u32 v{vT0}, v{vT0}, v{f - 1}, v{f + 3}")
            for ct in range(4):
                self.mfma16(ACC2 + 4 * ct, 16 * v + 4 * ct, f, v == 0)
            if v < self.o.get("wfloop", 12) and fill:
                fill.pop(0)()
        k.e(f"v_max_u32 v{vT0}, v{vT0}, v{HB + 47}")
        k.e(f"v_cmp_eq_u32 vcc, -1, v{vT0}\ns_cbranch_vccnz {retry}\n{ok}:")
        self.ool.append(("bulk", retry, ok, mf, loads))
        self.stamp("s2mfma")
        if self.o["g4"]:
            self.g4_loads(True)
        self.wf_rest = fill

    def wo_slot(self, bb, e):
        if bb % 2 == 0:
            base = [T4[4], XS[1], XS[2], XS[3]]
        else:
            base = [T4[0], T4[1], T4[2], T4[3]]
        return base[e // 2] + 2048 * (e & 1)

    def wo_issue(self, bb, e0, e1):
        k = self.k
        for e in range(e0, e1):
            assert self.wo_next == 8 * bb + e
            self.wo_next += 1
            k.e(f"s_add_u32 s{sWQ}, s{sWQ}, 16384\ns_and_b32 s{sWQ}, s{sWQ}, 0x7c000")
            self.dma2k(SWO, self.wo_slot(bb, e), f"s{sWQ}", ("wo", bb, e))

    def wo_tr_ops(self, bb):
        ops = []
        for e in range(8):
            for ct, a in enumerate((vTR0, vTR1)):
                for hf in range(2):
                    off = self.wo_slot(bb, e) + 512 * hf
                    dst = 8 * (8 * bb + e) + 4 * ct + 2 * hf
                    ops.append(("ds", f"ds_read_b64_tr_b16 {vr(dst, 2, 'a')}, v{a} offset:{off}", ("two", bb)))
        return ops

    def wo_tr(self, bb):
        k = self.k
        for e in range(8):
            k.wait(vm=("wo", bb, e))
            self.tr32(self.wo_slot(bb, e), 8 * (8 * bb + e), "a", ("two", bb))

    def stage2_tail(self):
        k = self.k
        self.wo_next = 0

        def mid():
            for _ in range(self.o.get("wfmid", 0)):
                if self.wf_rest:
                    self.wf_rest.pop(0)()
        self.reduce16(ACC2, True, vST, sFS, "fst", mid=mid)
        self.stamp("fst")
        while self.wf_rest:
            self.wf_rest.pop(0)()
        k.e("s_barrier")
        if self.o["glate"]:
            gtop, self.gjoin = k.label("gl"), k.label("glj")
            k.e(f"s_cmp_lt_u32 s2, 8\ns_cbranch_scc1 {gtop}")
            self.ool.append(("glate", gtop, self.gjoin, list(k.vm), list(k.lg), self.wo_next))
        self.wo_issue(0, 0, 8)
        self.wo_pattern()
        k.wait(vm=("wf", 3))
        for j in range(4):
            self.tr16(T4[j], 192 + 16 * j, "a", "twf")
        if self.o["g4"]:
            self.g4_final()
        if self.o["b1B"]:
            k.wait(lg="twf")
            self.wo_issue(1, 0, self.o["b1B"])
        if self.o["glate"] and self.stop_after in ("s2", "ge"):
            k.e(f"s_waitcnt vmcnt(0) lgkmcnt(0)\n{self.gjoin}:")

    def glate_block(self, join):
        k = self.k
        GF = HB + 16
        slots = [self.wo_slot(0, 2 * j) for j in range(4)]
        for j in range(4):
            self.dma4k(SWG, slots[j], self.w32_soff(j, 0), ("wg", j))
        self.g_loads(GF)
        self.stamp("gdma")
        self.wo_pattern()
        self.g_addr()
        k.wait(vm=("wf", 3))
        for j in range(4):
            self.tr16(T4[j], 192 + 16 * j, "a", "twf")
        for j in range(4):
            k.wait(vm=("wg", j))
            self.tr16(slots[j], 128 + 16 * j, "a", ("twg", j))
        self.stamp("gwg")
        k.wait(lg="all")
        self.wo_issue(0, 0, 8)
        k.vmem(f"buffer_load_dword v{vHS}, v{vFSM}, {sr(SWS, 4)}, s{sFL} offen sc1", "smp")
        k.wait(vm="g")
        self.stamp("gld")
        for j in range(4):
            for ct in range(4):
                self.mfma16(ACC2 + 4 * ct, 128 + 16 * j + 4 * ct, GF + 4 * j, j == 0)
        self.stamp("gmf")
        self.reduce16(ACC2, False, None, None, None)
        k.vmem(f"buffer_store_dwordx2 {vr(R2 + 8, 2)}, v{vGST}, {sr(SWS, 4)}, 0 offen sc1", "gest")
        k.e("s_barrier")
        self.stamp("gend")
        if self.stop_after in ("s2", "ge"):
            k.e(f"s_waitcnt vmcnt(0) lgkmcnt(0)\ns_branch {join}")
            return
        self.stage3(gpath=True)
        k.wait(vm=("wo", 1, 7))
        k.e(f"s_branch {join}")

    def wo_pattern(self):
        k = self.k
        k.e(f"""
        v_bfe_u32 v{vT0}, v{vL}, 2, 2
        v_lshrrev_b32 v{vT1}, 5, v{vL}
        v_lshl_add_u32 v{vT1}, v{vT1}, 3, v{vT0}
        v_lshlrev_b32 v{vT1}, 7, v{vT1}
        v_lshrrev_b32 v{vT2}, 1, v{vT0}
        v_lshl_add_u32 v{vT1}, v{vT2}, 6, v{vT1}
        v_bfe_u32 v{vT2}, v{vL}, 4, 1
        v_lshl_add_u32 v{vT1}, v{vT2}, 5, v{vT1}
        v_and_b32 v{vT2}, 1, v{vL}
        v_lshl_add_u32 v{vT1}, v{vT2}, 4, v{vT1}
        v_bfe_u32 v{vT2}, v{vL}, 1, 1
        v_lshl_add_u32 v{vT1}, v{vT2}, 3, v{vT1}
        v_add_u32 v{vTR0}, s{sRW}, v{vT1}
        v_xor_b32 v{vT1}, 64, v{vT1}
        v_add_u32 v{vTR1}, s{sRW}, v{vT1}
        """)

    def stage3(self, gpath=False):
        k = self.k
        FB = HB
        b1B = 0 if gpath else self.o["b1B"]

        def loads(counted, sc):
            for j in range(4):
                t = self.tmp()
                k.e(f"s_add_u32 s{t}, s{sFL}, s{sR4[j]}")
                ins = (f"buffer_load_dwordx4 {vr(FB + 4 * j, 4)}, v{vLIN16}, {sr(SWS, 4)}, s{t} offen"
                       + (" sc1" if sc else ""))
                if counted:
                    k.vmem(ins, ("f", j))
                else:
                    k.e(ins)
        fd = self.o.get("fdirect", 0)
        if fd:
            k.e(f"s_mov_b32 s{sSPIN}, 0")
            loads(True, fd != 2)
            self.wo_tr(0)
            k.wait(vm=("f", 3))
            again, retry0, ok0 = k.label("fda"), k.label("fdr"), k.label("fdk")
            k.e(f"{again}:")
            k.e(f"v_max_u32 v{vT0}, v{FB + 1}, v{FB + 3}")
            for j in range(1, 4):
                k.e(f"v_max3_u32 v{vT0}, v{vT0}, v{FB + 4 * j + 1}, v{FB + 4 * j + 3}")
            k.e(f"v_cmp_eq_u32 vcc, -1, v{vT0}\ns_cbranch_vccnz {retry0}\n{ok0}:")
            self.ool.append(("poll", retry0, ok0, again, lambda counted: loads(counted, True)))
            self.stamp("fpoll")
            k.wait(lg="all")
            self.wo_issue(1, b1B, 8)
            for j in range(4):
                for ct in range(4):
                    self.mfma16(ACC2 + 4 * ct, 192 + 16 * j + 4 * ct, FB + 4 * j, j == 0)
            self.stamp("s3mfma")
            self.reduce16(ACC2, False, vST, sFES, "fest", mid=lambda: self.wo_issue(2, 0, self.o["b2C"]),
                          ex=self.o["ex"])
            self.stamp("fest")
            k.e("s_barrier")
            return
        if not gpath:
            k.vmem(f"buffer_load_dword v{vHS}, v{vFSM}, {sr(SWS, 4)}, s{sFL} offen sc1", "smp")
        self.wo_tr(0)
        self.poll_sample("f", vFSM, sFL)
        self.stamp("fpoll")
        k.e(f"s_mov_b32 s{sSPIN}, 0")
        loads(True, not self.o["fplain"])
        k.wait(lg="all")
        mf, retry, ok = k.label("s3m"), k.label("s3r"), k.label("s3k")
        self.wo_issue(1, b1B, 8)
        k.e(f"{mf}:")
        for j in range(4):
            k.wait(vm=("f", j))
            f = FB + 4 * j
            if j == 0:
                k.e(f"v_max_u32 v{vT0}, v{f + 1}, v{f + 3}")
            else:
                k.e(f"v_max3_u32 v{vT0}, v{vT0}, v{f + 1}, v{f + 3}")
            for ct in range(4):
                self.mfma16(ACC2 + 4 * ct, 192 + 16 * j + 4 * ct, f, j == 0)
        k.e(f"v_cmp_eq_u32 vcc, -1, v{vT0}\ns_cbranch_vccnz {retry}\n{ok}:")
        self.ool.append(("bulk", retry, ok, mf, loads))
        self.stamp("s3mfma")
        self.reduce16(ACC2, False, vST, sFES, "fest", mid=lambda: self.wo_issue(2, 0, self.o["b2C"]),
                          ex=self.o["ex"])
        self.stamp("fest")
        if gpath:
            return
        if self.o["glate"]:
            k.e(f"{self.gjoin}:")
        k.e("s_barrier")

    def stage4(self):
        k = self.k
        CB, FR, Z, JP, BF, ACC, OUT = 32, 96, 128, 144, 160, 192, 224
        vGA, vFA, vJ0, vJ2 = 8, 9, 10, 11
        RAW = 160
        ex = self.o["ex"]
        if ex:
            Z, JP = 224, 240
            late_tr, fr_read = self.s4_head_ex(CB, FR, Z)
        else:
            late_tr, fr_read = self.s4_head(CB, FR, RAW), None
        self.stamp("fepoll")
        self.s4_loop(CB, FR, Z, JP, BF, ACC, OUT, late_tr, fr_read)

    def s4_head(self, CB, FR, RAW):
        k = self.k
        ex = 0
        vGA, vFA, vJ0, vJ2 = 8, 9, 10, 11
        k.e(f"""
        v_and_b32 v{vT0}, 7, v{vL}
        v_lshlrev_b32 v{vT0}, 4, v{vT0}
        v_lshrrev_b32 v{vT1}, 5, v{vL}
        v_lshl_add_u32 v{vGA}, v{vT1}, {7 + ex}, v{vT0}
        v_bfe_u32 v{vT0}, v{vL}, 3, 2
        v_lshlrev_b32 v{vT0}, 4, v{vT0}
        v_lshl_add_u32 v{vFA}, v{vT1}, {8 + ex}, v{vT0}
        v_lshlrev_b32 v{vJ0}, 4, v{vL}
        v_add_u32 v{vJ2}, {2 * RW}, v{vJ0}
        s_lshl_b32 s{sGL}, s{sB}, {13 + ex}
        s_lshl_b32 s{sT0}, s{sW}, {8 + ex}
        s_add_u32 s{sGL}, s{sGL}, s{sT0}
        s_add_u32 s{sGL}, s{sGL}, {GE_OFF}
        s_lshl_b32 s{sFE}, s{sM}, {14 + ex}
        s_lshl_b32 s{sT0}, s{sW}, {9 + ex}
        s_add_u32 s{sFE}, s{sFE}, s{sT0}
        s_lshl_b32 s{sT0}, s{sJN}, 6
        s_add_u32 s{sFE}, s{sFE}, s{sT0}
        s_add_u32 s{sFE}, s{sFE}, {FE_OFF}
        """)

        def np_off(r, shift):
            t = self.tmp()
            if self.o["rot"]:
                k.e(f"s_add_u32 s{t}, s{sML}, {r}\ns_and_b32 s{t}, s{t}, 7\ns_lshl_b32 s{t}, s{t}, {shift}")
            else:
                k.e(f"s_mov_b32 s{t}, {r << shift}")
            return t

        def ge_loads(counted):
            for r in range(8):
                t = np_off(r, 10 + ex)
                k.e(f"s_add_u32 s{t}, s{t}, s{sGL}")
                for hf in range(1 + ex):
                    d, o = RAW + (4 << ex) * r + 4 * hf, f" offset:{128 * hf}" if hf else ""
                    sc = "" if counted and self.o.get("geplain") else " sc1"
                    ins = f"buffer_load_dwordx4 {vr(d, 4)}, v{vGA}, {sr(SWS, 4)}, s{t} offen{o}{sc}"
                    if counted:
                        k.vmem(ins, "ge")
                    else:
                        k.e(ins)

        def fe_loads(counted):
            for r in range(8):
                t = np_off(r, 11 + ex)
                k.e(f"s_add_u32 s{t}, s{t}, s{sFE}")
                for hf in range(1 + ex):
                    d, o = FR + (4 << ex) * r + 4 * hf, f" offset:{256 * hf}" if hf else ""
                    ins = f"buffer_load_dwordx4 {vr(d, 4)}, v{vFA}, {sr(SWS, 4)}, s{t} offen{o} sc1"
                    if counted:
                        k.vmem(ins, ("fe", r))
                    else:
                        k.e(ins)

        def check(base, n, dst):
            if ex:
                k.e(f"v_max_u32 v{dst}, v{base + 3}, v{base + 7}")
                for g in range(2, 2 * n, 2):
                    k.e(f"v_max3_u32 v{dst}, v{dst}, v{base + 4 * g + 3}, v{base + 4 * g + 7}")
                return
            k.e(f"v_max_u32 v{dst}, v{base + 1}, v{base + 3}")
            for r in range(1, n):
                k.e(f"v_max3_u32 v{dst}, v{dst}, v{base + 4 * r + 1}, v{base + 4 * r + 3}")

        ge_loads(True)
        self.wo_issue(2, self.o["b2C"], 8)
        self.wo_tr(1)
        k.wait(lg="all")
        self.wo_issue(3, 0, 8)
        k.e(f"s_mov_b32 s{sSPIN}, 0")
        if ex:
            k.e(f"s_mov_b32 s{sA}, 0")
        k.wait(vm="ge")
        retry, ok = k.label("ger"), k.label("gek")
        again = k.label("gea")
        k.e(f"{again}:")
        test = "v_cmp_gt_i32 vcc, 0," if ex else "v_cmp_eq_u32 vcc, -1,"
        check(RAW, 8, vT0)
        k.e(f"{test} v{vT0}\ns_cbranch_vccnz {retry}\n{ok}:")
        self.ool.append(("pollx" if ex else "poll", retry, ok, again, ge_loads))
        if ex:
            fe_loads(True)
        else:
            k.e(f"s_mov_b32 s{sA}, {f32(CT)}")
            fe_loads(True)
            for r in range(8):
                for i in range(4):
                    src = RAW + 4 * r + i
                    k.e(f"v_lshlrev_b32 v{CB + 8 * r + 2 * i}, 16, v{src}")
                    k.e(f"v_and_b32 v{CB + 8 * r + 2 * i + 1}, 0xffff0000, v{src}")
            for i in range(64):
                k.e(f"v_mul_f32 v{CB + i}, s{sA}, v{CB + i}")
        self.stamp("cb")
        self.wo_tr(2)
        late_tr = []
        if self.o["trb3"] == "pre":
            self.wo_tr(3)
        else:
            late_tr = self.wo_tr_ops(3)
        k.e(f"s_mov_b32 s{sSPIN}, 0")
        k.wait(vm=("fe", 7))
        retry, ok = k.label("fer"), k.label("fek")
        again = k.label("fea")
        k.e(f"{again}:")
        check(FR, 8, vT0)
        k.e(f"{test} v{vT0}\ns_cbranch_vccnz {retry}\n{ok}:")
        self.ool.append(("poll", retry, ok, again, fe_loads))
        return late_tr

    def s4_head_ex(self, CB, FR, Z):
        k = self.k
        vGG, vFG, vCRD, vFRD, vJ0, vJ2 = [8, 12, 13, 14], [9, 20], 21, 22, 10, 11
        GR, FB = 160, 176
        k.e(f"""
        v_and_b32 v{vT0}, 7, v{vL}
        v_lshlrev_b32 v{vT0}, 4, v{vT0}
        v_bfe_u32 v{vT1}, v{vL}, 3, 1
        v_lshl_add_u32 v{vT2}, v{vT1}, 8, v{vT0}
        v_lshl_add_u32 v{vT3}, v{vT1}, 9, v{vT0}
        v_bfe_u32 v{vT1}, v{vL}, 4, 1
        v_lshl_add_u32 v{vT2}, v{vT1}, 7, v{vT2}
        v_lshrrev_b32 v{vT1}, 5, v{vL}
        v_lshl_add_u32 v{vCRD}, v{vT1}, 7, v{vT0}
        v_add_u32 v{vCRD}, s{sRW}, v{vCRD}
        v_add_u32 v{vT1}, s{sML}, v{vT1}
        """)
        for j in range(4):
            k.e(f"""
            v_add_u32 v{vT0}, {2 * j}, v{vT1}
            v_and_b32 v{vT0}, 7, v{vT0}
            v_lshl_add_u32 v{vGG[j]}, v{vT0}, 11, v{vT2}
            """)
        k.e(f"""
        s_lshl_b32 s{sGL}, s{sB}, 14
        s_lshl_b32 s{sT0}, s{sW}, 9
        s_add_u32 s{sGL}, s{sGL}, s{sT0}
        s_add_u32 s{sGL}, s{sGL}, {GE_OFF}
        """)

        def ge_loads(counted):
            for j in range(4):
                sc = "" if counted and self.o.get("geplain") else " sc1"
                ins = f"buffer_load_dwordx4 {vr(GR + 4 * j, 4)}, v{vGG[j]}, {sr(SWS, 4)}, s{sGL} offen{sc}"
                if counted:
                    k.vmem(ins, "ge")
                else:
                    k.e(ins)

        def fe_loads(counted):
            for j in range(2):
                ins = f"buffer_load_dwordx4 {vr(FB + 4 * j, 4)}, v{vFG[j]}, {sr(SWS, 4)}, s{sFE} offen sc1"
                if counted:
                    k.vmem(ins, "fe")
                else:
                    k.e(ins)
        ge_loads(True)
        k.e(f"""
        v_lshrrev_b32 v{vT1}, 4, v{vL}
        v_add_u32 v{vT1}, s{sML}, v{vT1}
        v_and_b32 v{vT0}, 7, v{vT1}
        v_lshl_add_u32 v{vFG[0]}, v{vT0}, 12, v{vT3}
        v_xor_b32 v{vFG[1]}, 16384, v{vFG[0]}
        v_lshrrev_b32 v{vT1}, 5, v{vL}
        v_bfe_u32 v{vT0}, v{vL}, 3, 2
        v_lshlrev_b32 v{vT0}, 4, v{vT0}
        v_lshl_add_u32 v{vFRD}, v{vT1}, 7, v{vT0}
        v_add_u32 v{vFRD}, s{sRW}, v{vFRD}
        v_lshlrev_b32 v{vJ0}, 4, v{vL}
        v_add_u32 v{vJ2}, {2 * RW}, v{vJ0}
        s_lshl_b32 s{sFE}, s{sM}, 15
        s_lshl_b32 s{sT0}, s{sW}, 10
        s_add_u32 s{sFE}, s{sFE}, s{sT0}
        s_lshl_b32 s{sT0}, s{sJN}, 7
        s_add_u32 s{sFE}, s{sFE}, s{sT0}
        s_add_u32 s{sFE}, s{sFE}, {FE_OFF}
        """)
        self.wo_issue(2, self.o["b2C"], 8)
        self.wo_tr(1)
        k.wait(lg="all")
        if self.o.get("feat", 0) == -2:
            fe_loads(True)
        if not self.o.get("b3late"):
            self.wo_issue(3, 0, self.o.get("b3pre", 0) if self.o.get("b3loop") else 8)
        if self.o.get("feat", 0) == -1:
            fe_loads(True)
        k.e(f"s_mov_b32 s{sSPIN}, 0\ns_mov_b32 s{sA}, 0")
        k.wait(vm="ge")
        retry, ok, again = k.label("ger"), k.label("gek"), k.label("gea")
        k.e(f"""
        {again}:
        v_max_u32 v{vT0}, v{GR + 3}, v{GR + 7}
        v_max3_u32 v{vT0}, v{vT0}, v{GR + 11}, v{GR + 15}
        v_cmp_gt_i32 vcc, 0, v{vT0}
        s_cbranch_vccnz {retry}
        {ok}:
        """)
        self.ool.append(("pollx", retry, ok, again, ge_loads))
        if self.o.get("feat", 0) == 0:
            fe_loads(True)
        for j in range(4):
            k.ds(f"ds_write_b128 v{vLIN}, {vr(GR + 4 * j, 4)} offset:{j * 1024}", "gw")
        if self.o.get("b3late"):
            self.wo_issue(3, 0, 8)
        k.wait(lg="gw")
        for r in range(8):
            for hf in range(2):
                k.ds(f"ds_read_b128 {vr(CB + 8 * r + 4 * hf, 4)}, v{vCRD} offset:{r * 512 + hf * 256}", "cb")
        if self.o.get("feat", 0) == 1:
            fe_loads(True)
        self.stamp("cb")
        self.wo_tr(2)
        if self.o.get("feat", 0) == 2:
            fe_loads(True)
        late_tr = self.wo_tr_ops(3)
        k.e(f"s_mov_b32 s{sSPIN}, 0")
        k.wait(vm="fe")
        retry, ok, again = k.label("fer"), k.label("fek"), k.label("fea")
        k.e(f"""
        {again}:
        v_max_u32 v{vT0}, v{FB + 3}, v{FB + 7}
        v_cmp_gt_i32 vcc, 0, v{vT0}
        s_cbranch_vccnz {retry}
        {ok}:
        """)
        self.ool.append(("pollx", retry, ok, again, fe_loads))
        for j in range(2):
            k.ds(f"ds_write_b128 v{vLIN}, {vr(FB + 4 * j, 4)} offset:{FS + j * 1024}", "fw")

        def fr_read(r):
            for hf in range(2):
                k.ds(f"ds_read_b128 {vr(FR + 8 * r + 4 * hf, 4)}, v{vFRD} offset:{FS + r * 256 + hf * 64}", ("fr", r))
        slow, fast = k.label("exs"), k.label("exq")
        k.e(f"s_cmp_lg_u32 s{sA}, 0\ns_cbranch_scc1 {slow}\n{fast}:")
        self.ool.append(("exslow", slow, fast, CB, FR, Z, vFRD))
        k.wait(lg="all")
        for r in range(4):
            fr_read(r)
        return late_tr, fr_read

    def s4_loop(self, CB, FR, Z, JP, BF, ACC, OUT, late_tr, fr_read):
        k = self.k
        ex = self.o["ex"]
        vJ0, vJ2 = 10, 11

        def j_ops(r):
            ops = []
            z = Z + 8 * (r & 1)
            jp = JP + 4 * (r & 1)
            if ex:
                for i in range(8):
                    ops.append((f"v_fma_f32 v{z + i}, v{FR + 8 * r + i}, v{CB + 8 * r + i}, 1.0", 4))
                for i in range(8):
                    ops.append((f"v_rcp_f32 v{z + i}, v{z + i}", 8))
                for i in range(8):
                    ops.append((f"v_fma_f32 v{z + i}, v{z + i}, -2.0, 1.0", 4))
                for i in range(4):
                    ops.append((f"v_cvt_pk_bf16_f32 v{jp + i}, v{z + 2 * i}, v{z + 2 * i + 1}", 4))
                ops.append(("ds", f"ds_write_b128 v{vLIN}, {vr(jp, 4)} offset:{r * 1024}", ("jw", r)))
                return ops
            for i in range(4):
                ops.append((f"v_lshlrev_b32 v{z + 2 * i}, 16, v{FR + 4 * r + i}", 4))
                ops.append((f"v_and_b32 v{z + 2 * i + 1}, 0xffff0000, v{FR + 4 * r + i}", 4))
            for i in range(8):
                ops.append((f"v_fma_f32 v{z + i}, v{z + i}, s{sA}, v{CB + 8 * r + i}", 4))
            for i in range(8):
                ops.append((f"v_exp_f32 v{z + i}, v{z + i}", 8))
            for i in range(8):
                ops.append((f"v_add_f32 v{z + i}, 1.0, v{z + i}", 4))
            for i in range(8):
                ops.append((f"v_rcp_f32 v{z + i}, v{z + i}", 8))
            for i in range(8):
                ops.append((f"v_fma_f32 v{z + i}, v{z + i}, -2.0, 1.0", 4))
            for i in range(4):
                ops.append((f"v_cvt_pk_bf16_f32 v{jp + i}, v{z + 2 * i}, v{z + 2 * i + 1}", 4))
            ops.append(("ds", f"ds_write_b128 v{vLIN}, {vr(jp, 4)} offset:{r * 1024}", ("jw", r)))
            return ops

        dbg = self.o.get("s4dbg", "")

        def emit(op):
            if op[0] == "ds":
                k.ds(op[1], op[2])
                return 4
            t = op[0]
            if "notrans" in dbg:
                t = t.replace("v_exp_f32", "v_mov_b32").replace("v_rcp_f32", "v_mov_b32")
            if "novalu" not in dbg and not ("nofma" in dbg and t.startswith("v_fma")):
                k.e(t)
            return op[1]

        def read1(r, jj):
            b = BF + 16 * (r & 1)
            a = vJ0 if jj < 2 else vJ2
            k.ds(f"ds_read_b128 {vr(b + 4 * jj, 4)}, v{a} offset:{(jj & 1) * RW + r * 1024}", ("jr", r, jj))

        def reads(r):
            for jj in range(4):
                read1(r, jj)

        k.wait(lg=("fr", 0) if ex else "all")
        if "twice" in dbg:
            k.e(f"s_mov_b32 s{sSPIN}, 0\nL_twice:\ns_waitcnt lgkmcnt(0)\ns_barrier")
            self.stamp("fepoll2")
        b3 = self.o.get("b3loop", 0)
        b3q = list(range(self.o.get("b3pre", 0), 8)) if b3 else []

        def b3_issue(n):
            for _ in range(n):
                if b3q:
                    e = b3q.pop(0)
                    self.wo_issue(3, e, e + 1)
        b3_issue(self.o.get("b3j0", 1))
        for op in j_ops(0):
            emit(op)
        b3_issue(self.o.get("b3j1", 1))
        o1 = j_ops(1)
        n1 = 8 if ex else 16
        if ex:
            k.wait(lg=("fr", 1))
        for op in o1[:n1]:
            emit(op)
        k.wait(lg=("jw", 0))
        k.e("s_barrier")
        reads(0)
        for op in o1[n1:]:
            emit(op)
        self.stamp("j01")
        for r in range(8):
            ops = j_ops(r + 2) if r + 2 < 8 else []
            total = sum(op[1] if op[0] != "ds" else 4 for op in ops)
            spread = self.o.get("s4spread", 0)
            if not spread:
                k.wait(lg=("jr", r, 3))
            b = BF + 16 * (r & 1)
            spent = 0
            bar_at = self.o["s4bar"] + (self.o.get("s4bar0", 2) if r == 0 else 0)
            assert bar_at + 3 * spread <= 7
            for i in range(8):
                jj, ct = i // 2, i % 2
                q = 4 * r + jj
                if r == 6 and i == 0:
                    k.wait(lg=("two", 3))
                if spread and ct == 0:
                    k.wait(lg=("jr", r, jj))
                if "nomfma" not in dbg:
                    self.mfma32(ACC + 16 * ct, 8 * q + 4 * ct, b + 4 * jj, r == 0 and jj == 0, ak="a")
                if ex and r < 2 and i < 2:
                    fr_read(4 + 2 * r + i)
                if b3 and i % b3 == b3 - 1:
                    b3_issue(1)
                if i == bar_at and r + 1 < 8:
                    self.stamp(f"ba{r}")
                    k.wait(lg=("jw", r + 1))
                    self.stamp(f"bb{r}")
                    if "nobar" not in dbg:
                        k.e("s_barrier")
                    self.stamp(f"bc{r}")
                    if not spread:
                        reads(r + 1)
                if spread and r + 1 < 8 and 0 <= (i - bar_at) < 4 * spread and (i - bar_at) % spread == 0:
                    read1(r + 1, (i - bar_at) // spread)
                if late_tr and i > bar_at and r >= self.o.get("ltr0", 2 if ex else 0):
                    if (self.o.get("b3late") or self.o.get("feat", 0) == -2) and len(late_tr) == 32:
                        k.wait(vm=("wo", 3, 7))
                    left = sum(7 - self.o["s4bar"] for rr in range(r + 1, 6)) + (8 - i)
                    for _ in range(max(2, -(-len(late_tr) // max(left, 1)))):
                        if late_tr:
                            if b3 and len(late_tr) % 4 == 0:
                                e = 8 - len(late_tr) // 4
                                assert e not in b3q
                                k.wait(vm=("wo", 3, e))
                            emit(late_tr.pop(0))
                while ops and spent < total * (i + 1) / 8:
                    spent += emit(ops.pop(0))
            while ops:
                emit(ops.pop(0))
            if r == 6 and self.o.get("otr"):
                self.out_addr()
            self.stamp(f"s4r{r}")
        assert not late_tr
        if "twice" in dbg:
            k.e(f"s_add_u32 s{sSPIN}, s{sSPIN}, 1\ns_cmp_lt_u32 s{sSPIN}, 2\ns_cbranch_scc1 L_twice")
        self.stamp("s4mfma")
        if self.o.get("otr"):
            self.out_rows(ACC, OUT)
            return
        k.e(f"""
        s_lshl_b32 s{sT0}, s{sMT}, 7
        s_lshl_b32 s{sT1}, s{sJN}, 5
        s_add_u32 s{sT0}, s{sT0}, s{sT1}
        s_lshl_b32 s{sT0}, s{sT0}, 10
        s_lshl_b32 s{sT1}, s{sNH}, 9
        s_add_u32 s{sT0}, s{sT0}, s{sT1}
        s_lshl_b32 s{sT1}, s{sW}, 7
        s_add_u32 s{sT0}, s{sT0}, s{sT1}
        v_and_b32 v{vT0}, 31, v{vL}
        v_lshlrev_b32 v{vT0}, 10, v{vT0}
        v_lshrrev_b32 v{vT1}, 5, v{vL}
        v_lshl_add_u32 v{vT0}, v{vT1}, 4, v{vT0}
        v_add_u32 v{vT0}, s{sT0}, v{vT0}
        """)
        k.nop(2)
        for ct in range(2):
            for a in range(2):
                src = ACC + 16 * ct + 8 * a
                dst = OUT + 8 * ct + 4 * a
                for i in range(4):
                    k.e(f"v_cvt_pk_bf16_f32 v{dst + i}, v{src + 2 * i}, v{src + 2 * i + 1}")
                o = ct * 64 + a * 32
                os_ = f" offset:{o}" if o else ""
                k.vmem(f"buffer_store_dwordx4 {vr(dst, 4)}, v{vT0}, {sr(SOUT, 4)}, 0 offen{os_}", "out")

    def out_addr(self):
        k = self.k
        k.e(f"""
        s_lshl_b32 s{sT0}, s{sMT}, 7
        s_lshl_b32 s{sT1}, s{sJN}, 5
        s_add_u32 s{sT0}, s{sT0}, s{sT1}
        s_lshl_b32 s{sT0}, s{sT0}, 10
        s_lshl_b32 s{sT1}, s{sNH}, 9
        s_add_u32 s{sT0}, s{sT0}, s{sT1}
        s_lshl_b32 s{sT1}, s{sW}, 7
        s_add_u32 s{sA}, s{sT0}, s{sT1}
        v_and_b32 v{vT1}, 31, v{vL}
        v_lshrrev_b32 v{vT0}, 5, v{vL}
        v_xor_b32 v{vT0}, v{vT0}, v{vT1}
        v_and_b32 v{vT0}, 7, v{vT0}
        v_lshlrev_b32 v{vT0}, 4, v{vT0}
        v_lshl_add_u32 v{vT0}, v{vT1}, 7, v{vT0}
        v_add_u32 v{vT0}, s{sRW}, v{vT0}
        v_lshrrev_b32 v{vT1}, 3, v{vL}
        v_and_b32 v{vT3}, 7, v{vL}
        v_xor_b32 v{vT2}, v{vT1}, v{vT3}
        v_lshlrev_b32 v{vT2}, 4, v{vT2}
        v_lshl_add_u32 v{vT2}, v{vT1}, 7, v{vT2}
        v_add_u32 v{vT2}, s{sRW}, v{vT2}
        v_lshlrev_b32 v{vT3}, 4, v{vT3}
        v_lshl_add_u32 v{vT3}, v{vT1}, 10, v{vT3}
        """)

    def out_rows(self, ACC, OUT):
        k = self.k
        k.nop(12)
        for ct in range(2):
            for a in range(2):
                src = ACC + 16 * ct + 8 * a
                dst = OUT + 8 * ct + 4 * a
                for i in range(4):
                    k.e(f"v_cvt_pk_bf16_f32 v{dst + i}, v{src + 2 * i}, v{src + 2 * i + 1}")
                p2 = 4 * ct + 2 * a
                if p2:
                    k.e(f"v_xor_b32 v{vT1}, {p2 * 16}, v{vT0}")
                k.ds(f"ds_write_b128 v{vT1 if p2 else vT0}, {vr(dst, 4)} offset:{T4[0]}", "ow")
        k.wait(lg="ow")
        for i in range(4):
            k.ds(f"ds_read_b128 {vr(OUT + 4 * i, 4)}, v{vT2} offset:{T4[0] + i * 1024}", ("or", i))
        for i in range(4):
            t = self.tmp()
            k.e(f"s_add_u32 s{t}, s{sA}, {i * 8192}")
            k.wait(lg=("or", i))
            k.vmem(f"buffer_store_dwordx4 {vr(OUT + 4 * i, 4)}, v{vT3}, {sr(SOUT, 4)}, s{t} offen"
                   + (" sc1" if self.o.get("outsc") == 1 else " nt" if self.o.get("outsc") == 2 else ""), "out")

    def epilogue(self):
        k = self.k
        if self.stamps:
            if self.o.get("endwait"):
                k.e("s_waitcnt vmcnt(0)")
            self.stamp("end")
            n = self.nst
            k.e("s_waitcnt vmcnt(0) lgkmcnt(0)")
            for i in range(n):
                k.e(f"v_writelane_b32 v{vT1}, s{STAMP0 + 2 * i}, {i}")
            k.e(f"""
            s_lshl_b32 s{sT0}, s2, 2
            s_add_u32 s{sT0}, s{sT0}, s{sW}
            s_lshl_b32 s{sT0}, s{sT0}, 6
            s_add_u32 s{sT0}, s{sT0}, {STAMP_OFF}
            s_mov_b32 s{SWS + 2}, {STAMP_OFF + (1 << 20)}
            v_lshlrev_b32 v{vT0}, 2, v{vL}
            s_mov_b64 exec, 0xffff
            buffer_store_dword v{vT1}, v{vT0}, {sr(SWS, 4)}, s{sT0} offen
            """)
        k.e("s_waitcnt vmcnt(0)\nL_end:\ns_endpgm")
        for item in self.ool:
            if item[0] == "hs":
                _, top, done = item
                k.e(f"""
                {top}:
                s_mov_b32 s{sSPIN}, 0
                v_and_b32 v{vT0}, 3, v{vL}
                v_lshlrev_b32 v{vT0}, 6, v{vT0}
                {top}_l:
                """)
                self.spin_check(done)
                k.e(f"""
                buffer_load_dword v{vHS}, v{vT0}, {sr(SDBG, 4)}, 0 offen sc1
                s_waitcnt vmcnt(0)
                v_cmp_gt_u32 vcc, 64, v{vHS}
                s_cbranch_vccnz {top}_l
                s_branch {done}
                """)
            elif item[0] == "g":
                _, top, join, vm, lg = item
                k.vm, k.lg = vm, lg
                k.e(f"{top}:")
                self.g_block()
                k.e(f"s_branch {join}")
            elif item[0] == "glate":
                _, top, join, vm, lg, self.wo_next = item
                k.vm, k.lg = vm, lg
                k.e(f"{top}:")
                self.glate_block(join)
            elif item[0] == "exfix":
                _, top, ok, PK, T, A = item
                k.e(f"{top}:")
                for i in range(2):
                    k.e(f"v_and_b32 v{A + 2 * i}, 0xffff, v{PK + i}")
                    k.e(f"v_lshrrev_b32 v{A + 2 * i + 1}, 16, v{PK + i}")
                for i in range(4):
                    k.e(f"v_or_b32 v{A + i}, 0x80000000, v{A + i}")
                for i in range(4):
                    k.e(f"v_cndmask_b32 v{T + i}, v{T + i}, v{A + i}, vcc")
                k.e(f"s_branch {ok}")
            elif item[0] == "pollx":
                _, retry, ok, back, loads = item
                real = retry + "_r"
                k.e(f"""
                {retry}:
                v_cmp_eq_u32 vcc, -1, v{vT0}
                s_cbranch_vccnz {real}
                s_mov_b32 s{sA}, 1
                s_branch {ok}
                {real}:
                """)
                self.spin_check(ok)
                loads(False)
                k.e(f"s_waitcnt vmcnt(0)\ns_branch {back}")
            elif item[0] == "exslow":
                _, top, ok, CB, FR, Z, vFRD = item
                k.e(f"{top}:\ns_mov_b32 s{sA}, {f32(CT)}\ns_waitcnt lgkmcnt(0)")
                for r in range(8):
                    for hf in range(2):
                        k.e(f"ds_read_b128 {vr(FR + 8 * r + 4 * hf, 4)}, v{vFRD} offset:{FS + r * 256 + hf * 64}")
                k.e("s_waitcnt lgkmcnt(0)")
                for i in range(64):
                    for src, t in ((CB + i, Z), (FR + i, Z + 2)):
                        k.e(f"""
                        v_cmp_gt_i32 vcc, 0, v{src}
                        v_log_f32 v{t + 1}, v{src}
                        v_lshlrev_b32 v{t}, 16, v{src}
                        v_mul_f32 v{t}, s{sA}, v{t}
                        v_cndmask_b32 v{t}, v{t + 1}, v{t}, vcc
                        """)
                    k.e(f"""
                    v_add_f32 v{Z}, v{Z}, v{Z + 2}
                    s_nop 0
                    v_exp_f32 v{CB + i}, v{Z}
                    """)
                for i in range(4):
                    k.e(f"v_mov_b32 v{Z + 4 + i}, 1.0")
                for j in range(2):
                    k.e(f"ds_write_b128 v{vLIN}, {vr(Z + 4, 4)} offset:{FS + j * 1024}")
                k.e(f"s_branch {ok}")
            elif item[0] == "smp":
                _, top, done, vaddr, sbase = item
                k.e(f"{top}:\ns_mov_b32 s{sSPIN}, 0\n{top}_l:")
                self.spin_check(done)
                k.e(f"""
                buffer_load_dword v{vHS}, v{vaddr}, {sr(SWS, 4)}, s{sbase} offen sc1
                s_waitcnt vmcnt(0)
                v_cmp_eq_u32 vcc, -1, v{vHS}
                s_cbranch_vccnz {top}_l
                s_branch {done}
                """)
            else:
                kind, retry, ok, back, loads = item
                k.e(f"{retry}:")
                self.spin_check(ok)
                if kind == "bulk":
                    loads(False, True)
                else:
                    loads(False)
                k.e(f"s_waitcnt vmcnt(0)\ns_branch {back}")
        k.e("L_last:\ns_endpgm")

    def build(self):
        k = self.k
        stop = self.stop_after
        self.prologue()
        self.stage1()
        self.w2_finish()
        if stop != "s1":
            self.stage2()
            self.stage2_tail()
            if stop not in ("s2", "ge"):
                self.stage3()
                if stop != "s3":
                    self.stage4()
        self.epilogue()
        return self.text()

    def text(self):
        head = f"""; RNN-T joint network: two stride-2 conv stems, w_f / w_g projections, tanh, w_o.
; @launch grid=(256,1,1) block=(256,1,1) lds={LDS_BYTES}
.amdgcn_target "amdgcn-amd-amdhsa--gfx950"
.text
.globl {NAME}
.p2align 8
.type {NAME},@function
{NAME}:
"""
        tail = f"""
.section .rodata,"a"
.p2align 6
.amdhsa_kernel {NAME}
  .amdhsa_next_free_vgpr 512
  .amdhsa_next_free_sgpr 102
  .amdhsa_accum_offset 256
  .amdhsa_group_segment_fixed_size 0
  .amdhsa_kernarg_size 80
  .amdhsa_user_sgpr_count 2
  .amdhsa_user_sgpr_kernarg_segment_ptr 1
  .amdhsa_system_sgpr_workgroup_id_x 1
.end_amdhsa_kernel
"""
        return head + self.k.text() + tail


if __name__ == "__main__":
    out = sys.argv[1] if len(sys.argv) > 1 else "cdna_kernels/" + NAME.replace("_kernel", "") + ".s"
    g = Gen2(stamps=False)
    open(out, "w").write(g.build())
    print("wrote", out)
```

```python
import math
import sys
from kb import K, vr, ar, sr, f32

NAME = "standalone__seq2seq_rnn_t_joint__speech_kernel"

H_OFF = 65536
F_OFF = H_OFF + (1 << 20)
FE_OFF = F_OFF + (1 << 19)
GE_OFF = FE_OFF + (1 << 20)
P_OFF = GE_OFF + 65536
WS_REC = 4 << 20
STAMP_OFF = 8 << 20
OOB = 0x80000000
SPIN_MAX = 4096

RW = 40960
RB = 17408
LDS_BYTES = 163840
T4 = [RB + 4096 * t for t in range(5)]
XS = [4096 * t for t in range(4)]
GS = RB + 20480
FS = GS + 1024

SX, SW1, SW2, SG, SWF, SWG, SWO, SOUT, SDBG, SWS = 24, 28, 32, 36, 40, 44, 48, 52, 56, 60
sW, sM, sN, sB, sMT, sRW, sML, sJN = 64, 65, 66, 67, 68, 69, 70, 71
sKI, sKC = 72, 3
sT0, sT1, sT2, sT3 = 73, 74, 75, 76
sSPIN = 77
STAMP0 = 78
sH, sFL, sFS, sFE, sGL, sGS, sHS, sA, sB2 = 4, 5, 6, 7, 8, 9, 10, 11, 12
sR4 = [13, 14, 15, 16]
sNH = 17
sFES, sWQ = 18, 19

vL, vT0, vT1, vT2, vT3, vLIN, vRD = 1, 2, 3, 4, 5, 6, 7
vXW = 8
vXA, vXZ, vQ0 = 12, 13, 14
vWA0, vWA1, vTR0, vTR1 = 15, 16, 17, 18
vXB = 19
vBA = 22
vW2 = 24
vT16 = 28
vONES = 32
vHS = 36
AF, BFR, ACC1, R1 = 40, 56, 64, 96
vLIN16, vH0, vSMP, vST, vRD2, vKC3, vSV, vFSM, vGST = 8, 9, 10, 11, 12, 13, 14, 19, 20
HB, ACC2, R2 = 128, 176, 192
vPF = 37
vGP = 21
vFST = 19

C1 = 2 * math.log2(math.e) * math.sqrt(2 / math.pi)
C3 = C1 * 0.044715
CT = 2 * math.log2(math.e)
EX_MAX = 125.0

DEFAULT_STAMPS = ("start", "iss", "x0", "s1mfma", "hst", "w2done", "hpoll", "s2mfma", "fst", "s3mfma", "fest", "end")
S1_STAMPS = ("start", "karg", "iss0", "iss", "x0", "u5", "u11", "u17", "s1mfma", "hst", "w2done", "end")
R4_STAMPS = ("start", "fepoll", "j01", "s4r0", "s4r1", "s4r2", "s4r3", "s4r4", "s4r5", "s4r6", "s4r7", "end")
R5_STAMPS = ("start", "fepoll2", "j01", "s4r0", "s4r1", "s4r2", "s4r3", "s4r4", "s4r5", "s4r6", "s4r7", "end")
G_STAMPS = ("start", "hst", "g0", "gdma", "gw2", "gwg", "gld", "gmf", "gend", "w2done", "hpoll", "end")
GL_STAMPS = ("start", "fst", "gdma", "gwg", "gld", "gmf", "gend", "fpoll", "s3mfma", "fest", "fepoll", "end")
S2_STAMPS = ("start", "s1mfma", "hst", "w2done", "hpoll", "s2mfma", "fst", "fpoll", "s3mfma", "fest", "fepoll", "end")
P_STAMPS = ("start", "karg", "probe", "iss0", "iss", "x0", "u5", "u11", "u17", "s1mfma", "hst", "end")
S4_STAMPS = ("start", "hst", "s2mfma", "fst", "fpoll", "s3mfma", "fest", "cb", "fepoll", "s4r3", "s4mfma", "end")


class Gen2:
    def __init__(self, stop_after=None, stamps=True, opts=None):
        self.k = K()
        self.stop_after = stop_after
        self.stamps = stamps
        self.nst = 0
        self.names = []
        self.o = dict(prefetch=False, rot=True, hplain=True, fplain=False, x2=1, x3=2,
                      b1B=4, b2C=4, trb3="loop", s4bar=3, w2in=3, w2mid=0, glate=0, g4=1,
                      fdirect=1, hdirect=3, ex=1, feat=-1, b3loop=4, b3pre=4, ltr0=2,
                      geplain=1, hbar=1, hearly=1, otr=1, outsc=1)
        self.o.update(opts or {})
        self.rot = 0
        self.ool = []

    def stamp(self, name):
        names = self.o.get("stamps", DEFAULT_STAMPS)
        if not self.stamps or name not in names:
            return
        self.names = list(names)
        self.nst = len(names)
        r = STAMP0 + 2 * names.index(name)
        self.k.e(f"{'s_memtime' if self.o.get('memtime') else 's_memrealtime'} s[{r}:{r + 1}]")

    def tmp(self):
        self.rot = (self.rot + 1) % 4
        return sT0 + self.rot

    def tile(self, key, dst):
        self.k.e(f"s_xor_b32 s{dst}, s{sN}, {self.o[key]}")

    def srd(self, d, ptr, off, nrec):
        k = self.k
        if off is None:
            k.e(f"s_mov_b32 s{d}, s{ptr}\ns_mov_b32 s{d + 1}, s{ptr + 1}")
        else:
            k.e(f"s_add_u32 s{d}, s{ptr}, s{off}\ns_addc_u32 s{d + 1}, s{ptr + 1}, 0")
        k.e(f"s_mov_b32 s{d + 2}, {nrec}\ns_mov_b32 s{d + 3}, 0x20000")

    def nt(self, srd):
        key = {SW1: "ntw1", SW2: "ntw2", SWF: "ntwf", SWG: "ntwg", SWO: "ntwo", SX: "ntx"}[srd]
        return " nt" if self.o.get(key) else ""

    def dma2k(self, srd, lds_off, soff, tag):
        k = self.k
        nt = self.nt(srd)
        k.e(f"s_add_u32 m0, s{sRW}, {lds_off}")
        k.e("s_nop 0")
        k.vmem(f"buffer_load_dwordx4 v{vWA0}, {sr(srd, 4)}, {soff} offen{nt} lds", tag)
        k.vmem(f"buffer_load_dwordx4 v{vWA1}, {sr(srd, 4)}, {soff} offen offset:1024{nt} lds", tag)

    def dma4k_ops(self, srd, lds_off, soff_fn, tag):
        k = self.k
        st = {}

        def op(q):
            if q == 0:
                st["s"] = soff_fn()
                k.e(f"s_add_u32 m0, s{sRW}, {lds_off}")
                k.e("s_nop 0")
            o = f" offset:{q * 1024}" if q else ""
            k.vmem(f"buffer_load_dwordx4 v{vW2 + q}, {sr(srd, 4)}, {st['s']} offen{o}{self.nt(srd)} lds", tag)
        return [lambda q=q: op(q) for q in range(4)]

    def dma4k(self, srd, lds_off, soff_fn, tag):
        for op in self.dma4k_ops(srd, lds_off, soff_fn, tag):
            op()

    def tr32(self, lds_off, dst, kind, tag):
        k = self.k
        for ct, a in enumerate((vTR0, vTR1)):
            k.ds(f"ds_read_b64_tr_b16 {vr(dst + 4 * ct, 2, kind)}, v{a} offset:{lds_off}", tag)
            k.ds(f"ds_read_b64_tr_b16 {vr(dst + 4 * ct + 2, 2, kind)}, v{a} offset:{lds_off + 512}", tag)

    def tr16(self, lds_off, dst, kind, tag):
        k = self.k
        for ct in range(4):
            k.ds(f"ds_read_b64_tr_b16 {vr(dst + 4 * ct, 2, kind)}, v{vT16 + ct} offset:{lds_off}", tag)
            k.ds(f"ds_read_b64_tr_b16 {vr(dst + 4 * ct + 2, 2, kind)}, v{vT16 + ct} offset:{lds_off + 512}", tag)

    def mfma32(self, d, a, b, first, ak="v"):
        c = "0" if first else vr(d, 16)
        self.k.e(f"v_mfma_f32_32x32x16_bf16 {vr(d, 16)}, {vr(a, 4, ak)}, {vr(b, 4)}, {c}")

    def mfma16(self, d, a, b, first, ak="a"):
        c = "0" if first else vr(d, 4)
        self.k.e(f"v_mfma_f32_16x16x32_bf16 {vr(d, 4)}, {vr(a, 4, ak)}, {vr(b, 4)}, {c}")

    def gelu(self, xs, tmp, kc3):
        k = self.k
        ts = [tmp + i for i in range(len(xs))]
        for x, t in zip(xs, ts):
            k.e(f"v_mul_f32 v{t}, v{x}, v{x}")
        for x, t in zip(xs, ts):
            k.e(f"v_fmaak_f32 v{t}, v{t}, v{kc3}, {f32(-C1)}")
        for x, t in zip(xs, ts):
            k.e(f"v_mul_f32 v{t}, v{t}, v{x}")
        for x, t in zip(xs, ts):
            k.e(f"v_exp_f32 v{t}, v{t}")
        for x, t in zip(xs, ts):
            k.e(f"v_add_f32 v{t}, 1.0, v{t}")
        for x, t in zip(xs, ts):
            k.e(f"v_rcp_f32 v{t}, v{t}")
        for x, t in zip(xs, ts):
            k.e(f"v_mul_f32 v{x}, v{x}, v{t}")

    def spin_check(self, done_label):
        self.k.e(f"s_add_u32 s{sSPIN}, s{sSPIN}, 1\ns_cmp_ge_u32 s{sSPIN}, {SPIN_MAX}\ns_cbranch_scc1 {done_label}")

    def prologue(self):
        k = self.k
        rot = self.o["rot"]
        k.e("""
        s_cmp_ge_u32 s2, 256
        s_cbranch_scc1 L_end
        s_load_dwordx16 s[4:19], s[0:1], 0
        s_load_dwordx4 s[20:23], s[0:1], 64
        """)
        if self.o.get("warm"):
            k.e(f"""
            s_cmp_ge_u32 s2, {8 * self.o["warm"]}
            s_cbranch_scc1 L_nowarm
            s_getpc_b64 s[24:25]
            L_pc:
            v_lshlrev_b32 v38, 7, v0
            v_cmp_gt_u32 vcc, L_textend-L_pc, v38
            s_and_saveexec_b64 s[26:27], vcc
            s_cbranch_execz L_nowarm2
            v_mov_b32 v39, s25
            v_add_co_u32 v38, vcc, s24, v38
            s_nop 1
            v_addc_co_u32 v39, vcc, 0, v39, vcc
            global_load_dword v38, v[38:39], off
            L_nowarm2:
            s_mov_b64 exec, s[26:27]
            L_nowarm:
            """)
        self.stamp("start")
        k.e(f"""
        v_lshrrev_b32 v{vT0}, 6, v0
        v_and_b32 v{vL}, 63, v0
        v_readfirstlane_b32 s{sW}, v{vT0}
        s_and_b32 s{sT0}, s2, 7
        s_lshr_b32 s{sT1}, s2, 3
        s_add_u32 s{sJN}, s{sT1}, {self.o.get("jnrot", 0)}
        s_and_b32 s{sJN}, s{sJN}, 3
        s_lshr_b32 s{sML}, s{sT1}, 2
        s_and_b32 s{sT2}, s{sT0}, 1
        s_lshl_b32 s{sN}, s{sT2}, 2
        s_add_u32 s{sN}, s{sN}, s{sJN}
        s_lshr_b32 s{sT0}, s{sT0}, 1
        s_lshl_b32 s{sM}, s{sT0}, 3
        s_add_u32 s{sM}, s{sM}, s{sML}
        """)
        xs = self.o.get("xsplit", 0)
        if xs == 1:
            k.e(f"""
            s_and_b32 s{sT0}, s2, 3
            s_lshl_b32 s{sT0}, s{sT0}, 1
            s_and_b32 s{sT2}, s{sT1}, 1
            s_add_u32 s{sN}, s{sT0}, s{sT2}
            s_and_b32 s{sJN}, s{sN}, 3
            s_bfe_u32 s{sT0}, s2, 0x10002
            s_lshl_b32 s{sT0}, s{sT0}, 4
            s_lshr_b32 s{sT2}, s{sT1}, 1
            s_add_u32 s{sM}, s{sT0}, s{sT2}
            s_and_b32 s{sML}, s{sM}, 7
            """)
        elif xs == 2:
            k.e(f"""
            s_and_b32 s{sN}, s{sT1}, 7
            s_and_b32 s{sJN}, s{sN}, 3
            s_and_b32 s{sT0}, s2, 7
            s_lshl_b32 s{sT0}, s{sT0}, 2
            s_lshr_b32 s{sT2}, s{sT1}, 3
            s_add_u32 s{sM}, s{sT0}, s{sT2}
            s_and_b32 s{sML}, s{sM}, 7
            """)
        k.e(f"""
        s_lshr_b32 s{sB}, s{sM}, 4
        s_and_b32 s{sMT}, s{sM}, 15
        s_mul_i32 s{sRW}, s{sW}, {RW}
        v_lshrrev_b32 v{vT0}, 4, v{vL}
        v_lshrrev_b32 v{vT1}, 5, v{vL}
        v_and_b32 v{vT2}, 15, v{vL}
        v_xor_b32 v{vT2}, v{vT2}, v{vT1}
        v_lshlrev_b32 v{vT2}, 4, v{vT2}
        v_lshl_add_u32 v{vXW}, v{vT0}, 10, v{vT2}
        """)
        for e in range(1, 4):
            k.e(f"v_xor_b32 v{vXW + e}, {e * 32}, v{vXW}")
            k.e(f"v_add_u32 v{vXW + e}, {e * 3072}, v{vXW + e}")
        k.e(f"""
        v_cmp_gt_u32 vcc, 16, v{vL}
        v_bfrev_b32 v{vT0}, 1
        v_lshrrev_b32 v{vT1}, 3, v{vL}
        v_cndmask_b32 v{vQ0}, 0, v{vT0}, vcc
        v_bfe_u32 v{vT2}, v{vT1}, 1, 1
        v_lshlrev_b32 v{vT2}, 2, v{vT2}
        v_and_b32 v{vT3}, 7, v{vL}
        v_xor_b32 v{vT2}, v{vT2}, v{vT3}
        v_lshlrev_b32 v{vT2}, 4, v{vT2}
        v_lshl_add_u32 v{vWA0}, v{vT1}, 10, v{vT2}
        v_add_u32 v{vWA1}, 7168, v{vWA0}
        s_lshl_b32 s{sT0}, s{sW}, 17
        s_lshl_b32 s{sT1}, s{sN}, 7
        s_add_u32 s3, s{sT0}, s{sT1}
        s_mul_i32 s{sT0}, s{sB}, 1000
        s_lshl_b32 s{sT1}, s{sMT}, 6
        s_add_u32 s{sT0}, s{sT0}, s{sT1}
        s_sub_u32 s{sT0}, s{sT0}, 1
        s_lshl_b32 s{sT0}, s{sT0}, 10
        s_lshl_b32 s{sT2}, s{sW}, 8
        s_add_u32 s{sT0}, s{sT0}, s{sT2}
        s_ashr_i32 s{sT3}, s{sT0}, 31
        s_sub_u32 s{sT1}, 1001, s{sT1}
        s_lshl_b32 s{sT1}, s{sT1}, 10
        s_sub_u32 s{SX + 2}, s{sT1}, s{sT2}
        s_mov_b32 s{SX + 3}, 0x20000
        s_sub_u32 s{SW1 + 2}, 1572864, s3
        s_mov_b32 s{SW1 + 3}, 0x20000
        """)
        if rot:
            k.e(f"s_lshl_b32 s{sKI}, s{sML}, 14")
        else:
            k.e(f"s_mov_b32 s{sKI}, 0")
        k.e("s_waitcnt lgkmcnt(0)")
        self.stamp("karg")
        k.e(f"""
        s_add_u32 s{SX}, s4, s{sT0}
        s_addc_u32 s{SX + 1}, s5, s{sT3}
        s_add_u32 s{SW1}, s6, s3
        s_addc_u32 s{SW1 + 1}, s7, 0
        """)

    def code_prefetch(self):
        k = self.k
        mode = self.o.get("cpf", 0)
        if not mode:
            return
        lab = k.label("pf")
        k.e(f"""
        s_cmp_lg_u32 s{sW}, {self.o.get("cpfw", 3)}
        s_cbranch_scc1 {lab}
        s_getpc_b64 s[{sT0 + 1}:{sT0 + 2}]
        L_pc:
        s_lshr_b32 s{sT0}, s2, 3
        s_lshl_b32 s{sT0}, s{sT0}, 11
        v_lshlrev_b32 v{vT0}, 7, v{vL}
        v_add_u32 v{vT0}, s{sT0}, v{vT0}
        v_min_u32 v{vT0}, L_last-L_pc, v{vT0}
        s_mov_b64 exec, 0xffff
        global_load_dword v{vPF}, v{vT0}, s[{sT0 + 1}:{sT0 + 2}]
        s_mov_b64 exec, -1
        {lab}:
        """)

    def g_prefetch(self):
        k = self.k
        k.e(f"""
        s_lshr_b32 s{sT0}, s2, 3
        s_lshl_b32 s{sT1}, s{sT0}, 12
        v_lshlrev_b32 v{vT0}, 10, v{vL}
        v_add_u32 v{vT0}, s{sT1}, v{vT0}
        s_lshr_b32 s{sT1}, s{sT0}, 1
        s_lshl_b32 s{sT1}, s{sT1}, 10
        s_and_b32 s{sT0}, s{sT0}, 1
        s_lshl_b32 s{sT0}, s{sT0}, 7
        s_add_u32 s{sT0}, s{sT0}, s{sT1}
        v_mov_b32 v{vT1}, s{sT0}
        s_mov_b64 exec, 15
        """)
        k.vmem(f"buffer_load_dword v{vPF}, v{vT0}, {sr(SWG, 4)}, 0 offen", "pf")
        k.e("s_mov_b64 exec, 1")
        k.vmem(f"buffer_load_dword v{vPF + 1}, v{vT1}, {sr(SG, 4)}, 0 offen", "pf")
        k.e("s_mov_b64 exec, -1")

    def l2pf(self, pos):
        k = self.k
        for key, srd, lanes in (("pfw2", SW2, 48), ("pfwf", SWF, 16), ("pfwo", SWO, 16)):
            if self.o.get(key) != pos:
                continue
            if srd == SWO:
                k.e(f"s_lshr_b32 s{sT0}, s2, 3\ns_lshl_b32 s{sT0}, s{sT0}, 14")
            else:
                k.e(f"s_lshl_b32 s{sT0}, s{sML}, 14")
            k.e(f"""
            v_and_b32 v{vT1}, 15, v{vL}
            v_lshlrev_b32 v{vT1}, 10, v{vT1}
            v_lshrrev_b32 v{vT2}, 4, v{vL}
            v_lshl_add_u32 v{vT1}, v{vT2}, 19, v{vT1}
            s_bfm_b64 exec, {lanes}, 0
            """)
            k.vmem(f"buffer_load_dword v{vPF}, v{vT1}, {sr(srd, 4)}, s{sT0} offen", "pf")
            k.e("s_mov_b64 exec, -1")

    def x_quarter(self, qq):
        k = self.k
        a, z = sT0, sT1
        if self.o["rot"]:
            k.e(f"s_add_u32 s{a}, s{sJN}, {qq}\ns_and_b32 s{a}, s{a}, 3")
        else:
            k.e(f"s_mov_b32 s{a}, {qq}")
        k.e(f"""
        s_lshl_b32 s{sT2}, s{a}, 12
        s_add_u32 m0, s{sT2}, s{sRW}
        s_or_b32 s{z}, s{a}, s{sMT}
        s_cmp_eq_u32 s{z}, 0
        s_cselect_b32 s{z}, -1, 0
        s_and_b32 s{sT3}, s{a}, 1
        s_lshl_b32 s{sT3}, s{sT3}, 7
        s_lshl_b32 s{a}, s{a}, 14
        s_or_b32 s{a}, s{a}, s{sT3}
        """)
        for e in range(4):
            t = vXA if e % 2 == 0 else vXZ
            k.e(f"v_xor_b32 v{t}, s{a}, v{vXW + e}")
            if e == 0:
                k.e(f"v_and_or_b32 v{t}, v{vQ0}, s{z}, v{t}")
            o = f" offset:{e * 1024}" if e else ""
            k.vmem(f"buffer_load_dwordx4 v{t}, {sr(SX, 4)}, 0 offen{o}{self.nt(SX)} lds", "x")
            if qq == 0 and self.o.get("probe") == e + 1:
                k.e("s_waitcnt vmcnt(0)")
                self.stamp("probe")

    def x_tail(self):
        k = self.k
        k.e(f"""
        v_lshlrev_b32 v{vXA}, 4, v{vL}
        v_add_u32 v{vXA}, 65536, v{vXA}
        s_add_u32 m0, s{sRW}, 16384
        s_mov_b64 exec, 0xffff
        """)
        k.vmem(f"buffer_load_dwordx4 v{vXA}, {sr(SX, 4)}, 0 offen{self.nt(SX)} lds", "x")
        k.e("s_mov_b64 exec, -1")

    def w1_issue(self, u):
        k = self.k
        i = u % 3
        if i == 0 and u:
            k.e(f"s_add_u32 s{sKI}, s{sKI}, 16384\ns_and_b32 s{sKI}, s{sKI}, 0x1c000")
        if i:
            t = self.tmp()
            k.e(f"s_add_u32 s{t}, s{sKI}, {i * 524288}")
            so = f"s{t}"
        else:
            so = f"s{sKI}"
        self.dma2k(SW1, RB + 2048 * (u % 10), so, ("w1", u))

    def rot4(self):
        k = self.k
        for j in range(4):
            if self.o["rot"]:
                k.e(f"s_add_u32 s{sR4[j]}, s{sML}, {j}\ns_and_b32 s{sR4[j]}, s{sR4[j]}, 3\ns_lshl_b32 s{sR4[j]}, s{sR4[j]}, 10")
            else:
                k.e(f"s_mov_b32 s{sR4[j]}, {j * 1024}")

    def w32_soff(self, j, tap):
        def fn():
            t = self.tmp()
            self.k.e(f"s_lshl_b32 s{t}, s{sR4[j]}, 5")
            if tap:
                self.k.e(f"s_add_u32 s{t}, s{t}, {tap * 524288}")
            return f"s{t}"
        return fn

    def w2_slot(self, v):
        xs = [XS[2], XS[3], XS[0], XS[1]] if self.o["w2in"] + self.o["w2mid"] > 5 else XS
        return [T4[2], T4[3], T4[4], T4[0], T4[1], xs[0], xs[1], xs[2], xs[3], T4[2], T4[3], T4[4]][v]

    def w2_ops(self, v):
        return self.dma4k_ops(SW2, self.w2_slot(v), self.w32_soff(v // 3, v % 3), ("w2", v))

    def clears(self):
        k = self.k
        self.srd(SWS, 22, None, WS_REC)
        k.e(f"""
        v_mov_b32 v{vONES}, -1
        v_mov_b32 v{vONES + 1}, -1
        v_mov_b32 v{vONES + 2}, -1
        v_mov_b32 v{vONES + 3}, -1
        v_lshlrev_b32 v{vT0}, 4, v{vL}
        s_lshl_b32 s{sT0}, s{sM}, 14
        s_lshl_b32 s{sT2}, s{sW}, 9
        s_add_u32 s{sT0}, s{sT0}, s{sT2}
        """)
        self.tile("x2", sT1)
        k.e(f"""
        s_lshl_b32 s{sT1}, s{sT1}, 11
        s_add_u32 s{sT2}, s{sT0}, {F_OFF}
        s_add_u32 s{sT2}, s{sT2}, s{sT1}
        """)
        self.tile("x3", sT1)
        ex = self.o["ex"]
        if ex:
            k.e(f"""
            s_lshl_b32 s{sT1}, s{sT1}, 11
            s_add_u32 s{sT3}, s{sT0}, s{sT1}
            s_lshl_b32 s{sT3}, s{sT3}, 1
            s_add_u32 s{sT3}, s{sT3}, {FE_OFF}
            """)
            k.vmem(f"buffer_store_dwordx4 {vr(vONES, 4)}, v{vT0}, {sr(SWS, 4)}, s{sT3} offen sc1", "clr")
            k.e("s_mov_b32 exec_hi, 0")
            k.vmem(f"buffer_store_dwordx4 {vr(vONES, 4)}, v{vT0}, {sr(SWS, 4)}, s{sT2} offen sc1", "clr")
        else:
            k.e(f"""
            s_lshl_b32 s{sT1}, s{sT1}, 11
            s_add_u32 s{sT3}, s{sT0}, {FE_OFF}
            s_add_u32 s{sT3}, s{sT3}, s{sT1}
            s_mov_b32 exec_hi, 0
            """)
            k.vmem(f"buffer_store_dwordx4 {vr(vONES, 4)}, v{vT0}, {sr(SWS, 4)}, s{sT2} offen sc1", "clr")
            k.vmem(f"buffer_store_dwordx4 {vr(vONES, 4)}, v{vT0}, {sr(SWS, 4)}, s{sT3} offen sc1", "clr")
        lab = k.label("c0")
        k.e(f"""
        s_mov_b64 exec, -1
        s_cmp_lg_u32 s{sW}, 0
        s_cbranch_scc1 {lab}
        s_lshl_b32 s{sT0}, s{sM}, 15
        s_lshl_b32 s{sT1}, s{sN}, 11
        s_add_u32 s{sT0}, s{sT0}, s{sT1}
        s_add_u32 s{sT0}, s{sT0}, {H_OFF}
        s_add_u32 s{sT1}, s{sT0}, 16384
        buffer_store_dwordx4 {vr(vONES, 4)}, v{vT0}, {sr(SWS, 4)}, s{sT0} offen sc1
        buffer_store_dwordx4 {vr(vONES, 4)}, v{vT0}, {sr(SWS, 4)}, s{sT0} offen offset:1024 sc1
        buffer_store_dwordx4 {vr(vONES, 4)}, v{vT0}, {sr(SWS, 4)}, s{sT1} offen sc1
        buffer_store_dwordx4 {vr(vONES, 4)}, v{vT0}, {sr(SWS, 4)}, s{sT1} offen offset:1024 sc1
        """)
        if self.o["g4"]:
            k.e(f"""
            s_cmp_lg_u32 s{sN}, 0
            s_cbranch_scc1 {lab}
            s_and_b32 s{sT0}, s{sM}, 7
            s_lshr_b32 s{sT1}, s{sM}, 3
            s_lshl_b32 s{sT2}, s{sT0}, 14
            s_lshl_b32 s{sT3}, s{sT1}, 12
            s_add_u32 s{sT2}, s{sT2}, s{sT3}
            s_add_u32 s{sT2}, s{sT2}, {P_OFF}
            s_lshl_b32 s{sT0}, s{sT0}, {10 + ex}
            s_lshl_b32 s{sT1}, s{sT1}, {8 + ex}
            s_add_u32 s{sT0}, s{sT0}, s{sT1}
            s_add_u32 s{sT0}, s{sT0}, {GE_OFF}
            s_add_u32 s{sT1}, s{sT0}, {8192 << ex}
            buffer_store_dwordx4 {vr(vONES, 4)}, v{vT0}, {sr(SWS, 4)}, s{sT2} offen sc1
            buffer_store_dwordx4 {vr(vONES, 4)}, v{vT0}, {sr(SWS, 4)}, s{sT2} offen offset:1024 sc1
            buffer_store_dwordx4 {vr(vONES, 4)}, v{vT0}, {sr(SWS, 4)}, s{sT2} offen offset:2048 sc1
            buffer_store_dwordx4 {vr(vONES, 4)}, v{vT0}, {sr(SWS, 4)}, s{sT2} offen offset:3072 sc1
            s_bfm_b64 exec, {16 << ex}, 0
            buffer_store_dwordx4 {vr(vONES, 4)}, v{vT0}, {sr(SWS, 4)}, s{sT0} offen sc1
            buffer_store_dwordx4 {vr(vONES, 4)}, v{vT0}, {sr(SWS, 4)}, s{sT1} offen sc1
            s_mov_b64 exec, -1
            {lab}:
            """)
            return
        k.e(f"""
        s_cmp_ge_u32 s2, 8
        s_cbranch_scc1 {lab}
        s_lshl_b32 s{sT0}, s2, 10
        s_add_u32 s{sT0}, s{sT0}, {GE_OFF}
        s_add_u32 s{sT1}, s{sT0}, 8192
        buffer_store_dwordx4 {vr(vONES, 4)}, v{vT0}, {sr(SWS, 4)}, s{sT0} offen sc1
        buffer_store_dwordx4 {vr(vONES, 4)}, v{vT0}, {sr(SWS, 4)}, s{sT1} offen sc1
        {lab}:
        """)

    def prologue2(self):
        k = self.k
        for key, d, ptr, size in (("x2", SW2, 8, 1572864), ("x3", SWF, 12, 524288), (None, SWG, 14, 524288)):
            if key is None and self.o["g4"]:
                k.e(f"""
                s_and_b32 s{sT0}, s{sM}, 7
                s_lshl_b32 s{sT0}, s{sT0}, 7
                s_lshr_b32 s{sT1}, s{sM}, 3
                s_lshl_b32 s{sT1}, s{sT1}, 17
                s_add_u32 s{sT0}, s{sT0}, s{sT1}
                s_lshl_b32 s{sT1}, s{sW}, 15
                s_add_u32 s{sT0}, s{sT0}, s{sT1}
                s_sub_u32 s{sT1}, {size}, s{sT0}
                """)
                self.srd(d, ptr, sT0, f"s{sT1}")
                continue
            if key:
                self.tile(key, sT0)
            else:
                k.e(f"s_and_b32 s{sT0}, s2, 7")
            k.e(f"""
            s_lshl_b32 s{sT0}, s{sT0}, 7
            s_lshl_b32 s{sT1}, s{sW}, 17
            s_add_u32 s{sT0}, s{sT0}, s{sT1}
            s_sub_u32 s{sT1}, {size}, s{sT0}
            """)
            self.srd(d, ptr, sT0, f"s{sT1}")
        if self.o["g4"]:
            k.e(f"""
            s_lshr_b32 s{sT0}, s{sM}, 3
            s_lshl_b32 s{sT0}, s{sT0}, 8
            s_lshl_b32 s{sT1}, s{sW}, 6
            s_add_u32 s{sT0}, s{sT0}, s{sT1}
            s_sub_u32 s{sT1}, 16384, s{sT0}
            """)
        else:
            k.e(f"""
            s_lshl_b32 s{sT0}, s{sW}, 8
            s_sub_u32 s{sT1}, 16384, s{sT0}
            """)
        self.srd(SG, 10, sT0, f"s{sT1}")
        k.e(f"""
        s_lshr_b32 s{sT2}, s{sN}, 2
        s_lshl_b32 s{sT0}, s{sT2}, 9
        s_lshl_b32 s{sT1}, s{sW}, 7
        s_add_u32 s{sT0}, s{sT0}, s{sT1}
        s_sub_u32 s{sT1}, 524288, s{sT0}
        """)
        self.srd(SWO, 16, sT0, f"s{sT1}")
        k.e(f"s_mul_i32 s{sT0}, s{sB}, 2048000")
        self.srd(SOUT, 18, sT0, 2048000)
        self.srd(SDBG, 20, None, 256)
        k.e(f"s_lshr_b32 s{sNH}, s{sN}, 2")
        self.rot4()
        k.e(f"""
        v_lshlrev_b32 v{vT0}, 4, v{vL}
        v_add_u32 v{vLIN}, s{sRW}, v{vT0}
        v_bfe_u32 v{vT0}, v{vL}, 2, 2
        v_lshrrev_b32 v{vT1}, 5, v{vL}
        v_lshl_add_u32 v{vT1}, v{vT1}, 3, v{vT0}
        v_lshlrev_b32 v{vT1}, 7, v{vT1}
        v_lshrrev_b32 v{vT2}, 1, v{vT0}
        v_lshl_add_u32 v{vT1}, v{vT2}, 6, v{vT1}
        v_bfe_u32 v{vT2}, v{vL}, 4, 1
        v_lshl_add_u32 v{vT1}, v{vT2}, 5, v{vT1}
        v_and_b32 v{vT2}, 3, v{vL}
        v_lshl_add_u32 v{vT1}, v{vT2}, 3, v{vT1}
        v_add_u32 v{vTR0}, s{sRW}, v{vT1}
        v_xor_b32 v{vT1}, 64, v{vT1}
        v_add_u32 v{vTR1}, s{sRW}, v{vT1}
        """)
        k.e(f"""
        v_and_b32 v{vT0}, 31, v{vL}
        v_lshrrev_b32 v{vT1}, 5, v{vL}
        v_and_b32 v{vT2}, 15, v{vT0}
        v_xor_b32 v{vT2}, v{vT2}, v{vT1}
        v_lshlrev_b32 v{vT2}, 4, v{vT2}
        v_lshl_add_u32 v{vT2}, v{vT0}, 9, v{vT2}
        v_add_u32 v{vXB}, s{sRW}, v{vT2}
        v_add_u32 v{vXB + 1}, 256, v{vXB}
        v_add_u32 v{vT2}, 1, v{vT0}
        v_and_b32 v{vT2}, 15, v{vT2}
        v_xor_b32 v{vT2}, v{vT2}, v{vT1}
        v_lshlrev_b32 v{vT2}, 4, v{vT2}
        v_lshl_add_u32 v{vT2}, v{vT0}, 9, v{vT2}
        v_add_u32 v{vT2}, 512, v{vT2}
        v_add_u32 v{vXB + 2}, s{sRW}, v{vT2}
        """)
        k.e(f"""
        v_lshrrev_b32 v{vT0}, 3, v{vL}
        v_bfe_u32 v{vT1}, v{vT0}, 1, 1
        v_lshlrev_b32 v{vT1}, 1, v{vT1}
        v_and_b32 v{vT2}, 7, v{vL}
        v_xor_b32 v{vT1}, v{vT1}, v{vT2}
        v_lshlrev_b32 v{vT1}, 4, v{vT1}
        v_lshl_add_u32 v{vW2}, v{vT0}, 10, v{vT1}
        v_xor_b32 v{vT1}, 64, v{vW2}
        v_add_u32 v{vW2 + 1}, 7168, v{vT1}
        v_add_u32 v{vW2 + 2}, {2 * 7168}, v{vW2}
        v_add_u32 v{vW2 + 3}, {3 * 7168}, v{vT1}
        v_lshrrev_b32 v{vT0}, 4, v{vL}
        v_bfe_u32 v{vT1}, v{vL}, 2, 2
        v_lshl_add_u32 v{vT2}, v{vT0}, 3, v{vT1}
        v_lshlrev_b32 v{vT2}, 7, v{vT2}
        v_lshrrev_b32 v{vT1}, 1, v{vT1}
        v_and_b32 v{vT0}, 1, v{vT0}
        v_lshl_add_u32 v{vT1}, v{vT0}, 1, v{vT1}
        v_lshl_add_u32 v{vT2}, v{vT1}, 5, v{vT2}
        v_and_b32 v{vT1}, 3, v{vL}
        v_lshl_add_u32 v{vT2}, v{vT1}, 3, v{vT2}
        v_add_u32 v{vT16}, s{sRW}, v{vT2}
        """)
        for ct in range(1, 4):
            k.e(f"v_xor_b32 v{vT0}, {ct * 32}, v{vT2}\nv_add_u32 v{vT16 + ct}, s{sRW}, v{vT0}")
        k.e(f"""
        v_and_b32 v{vT0}, 15, v{vL}
        v_bfe_u32 v{vT1}, v{vL}, 4, 1
        v_lshl_add_u32 v{vT0}, v{vT0}, 1, v{vT1}
        v_lshlrev_b32 v{vT0}, 4, v{vT0}
        v_lshrrev_b32 v{vT1}, 5, v{vL}
        v_lshl_add_u32 v{vT0}, v{vT1}, 10, v{vT0}
        s_lshl_b32 s{sT0}, s{sW}, 11
        v_add_u32 v{vRD}, s{sT0}, v{vT0}
        """)
        if self.o["rot"]:
            k.e(f"s_lshl_b32 s{sKC}, s{sML}, 5")
        else:
            k.e(f"s_mov_b32 s{sKC}, 0")

    def stage1(self):
        k = self.k
        if self.o.get("cpf") == 1:
            self.code_prefetch()
        self.x_quarter(0)
        for u in range(3):
            self.w1_issue(u)
        if self.o.get("cpf") == 2:
            self.code_prefetch()
        self.clears()
        for qq in range(1, 4):
            self.x_quarter(qq)
        self.x_tail()
        self.stamp("iss0")
        self.prologue2()
        if self.o.get("gpf", 1) and not self.o["g4"]:
            self.g_prefetch()
        self.l2pf("iss0")
        for u in range(3, 10):
            self.w1_issue(u)
        self.l2pf("iss")
        self.stamp("iss")
        k.wait(vm="x")
        self.stamp("x0")
        lab = k.label("hs")
        k.e(f"""
        s_cmp_lg_u32 s{sW}, 0
        s_cbranch_scc1 {lab}
        s_and_b32 s{sT0}, s2, 3
        s_lshl_b32 s{sT0}, s{sT0}, 6
        v_mov_b32 v{vT0}, s{sT0}
        v_mov_b32 v{vT1}, 1
        s_mov_b64 exec, 1
        buffer_atomic_add v{vT1}, v{vT0}, {sr(SDBG, 4)}, 0 offen sc1
        s_mov_b64 exec, -1
        {lab}:
        """)

        def mm(u):
            a, b = AF + 8 * (u & 1), BFR + 4 * (u & 1)
            self.mfma32(ACC1, a, b, u == 0)
            self.mfma32(ACC1 + 16, a + 4, b, u == 0)

        def refill(u):
            if u + 10 < 24:
                self.w1_issue(u + 10)
            elif u >= 15 and u % 2 == 1 and (u - 15) // 2 < self.o["w2in"]:
                for op in self.w2_ops((u - 15) // 2):
                    op()
            self.l2pf(u)
            if u == 17:
                k.e(f"v_and_b32 v{vT0}, 3, v{vL}\nv_lshlrev_b32 v{vT0}, 6, v{vT0}")
                k.vmem(f"buffer_load_dword v{vHS}, v{vT0}, {sr(SDBG, 4)}, 0 offen sc1", "hs")

        for u in range(24):
            i = u % 3
            if i == 0 and u:
                k.e(f"s_add_u32 s{sKC}, s{sKC}, 32\ns_and_b32 s{sKC}, s{sKC}, 0xe0")
            k.e(f"v_xor_b32 v{vBA + (u & 1)}, s{sKC}, v{vXB + i}")
            k.wait(vm=("w1", u))
            self.tr32(RB + 2048 * (u % 10), AF + 8 * (u & 1), "v", ("u", u))
            k.ds(f"ds_read_b128 {vr(BFR + 4 * (u & 1), 4)}, v{vBA + (u & 1)}", ("u", u))
            if u:
                k.wait(lg=("u", u - 1))
                mm(u - 1)
                refill(u - 1)
            if u in (5, 11, 17):
                self.stamp(f"u{u}")
        k.wait(lg=("u", 23))
        mm(23)
        refill(23)
        self.stamp("s1mfma")
        if self.o["g4"]:
            self.g4_issue()
        self.l2pf("s1end")
        k.e(f"v_mov_b32 v{vKC3}, {f32(-C3)}")
        k.e(f"v_add_u32 v{vT3}, {2 * RW}, v{vRD}")
        k.nop(10)
        for blk in range(8):
            k.ds(f"ds_write_b128 v{vLIN}, {vr(ACC1 + 4 * blk, 4)} offset:{blk * 1024}")
        k.wait(lg="all")
        k.e("s_barrier")
        for sw in range(4):
            a = vRD if sw < 2 else vT3
            for j in range(2):
                k.ds(f"ds_read_b128 {vr(R1 + 8 * sw + 4 * j, 4)}, v{a} offset:{(sw & 1) * RW + j * 512}", ("r", sw))
        def h_addr():
            k.e(f"""
            v_and_b32 v{vT0}, 15, v{vL}
            v_lshlrev_b32 v{vT0}, 4, v{vT0}
            v_bfe_u32 v{vT1}, v{vL}, 4, 1
            v_lshl_add_u32 v{vT0}, v{vT1}, 14, v{vT0}
            v_lshrrev_b32 v{vT1}, 5, v{vL}
            v_lshl_add_u32 v{vT0}, v{vT1}, 8, v{vT0}
            s_lshl_b32 s{sT0}, s{sM}, 15
            s_lshl_b32 s{sT1}, s{sN}, 11
            s_add_u32 s{sT0}, s{sT0}, s{sT1}
            s_lshl_b32 s{sT1}, s{sW}, 9
            s_add_u32 s{sT0}, s{sT0}, s{sT1}
            s_add_u32 s{sT0}, s{sT0}, {H_OFF}
            """)
        if self.o.get("hearly"):
            h_addr()
        assert self.o["w2in"] + self.o["w2mid"] <= 7
        for v in range(self.o["w2in"], self.o["w2in"] + self.o["w2mid"]):
            for op in self.w2_ops(v):
                op()
        k.wait(lg=("r", 1))
        for i in range(8):
            k.e(f"v_add_f32 v{R1 + i}, v{R1 + i}, v{R1 + 8 + i}")
        k.wait(lg=("r", 3))
        for i in range(8):
            k.e(f"v_add_f32 v{R1 + 16 + i}, v{R1 + 16 + i}, v{R1 + 24 + i}")
        for i in range(8):
            k.e(f"v_add_f32 v{R1 + i}, v{R1 + i}, v{R1 + 16 + i}")
        self.gelu([R1 + i for i in range(8)], R1 + 8, vKC3)
        for i in range(4):
            k.e(f"v_cvt_pk_bf16_f32 v{R1 + 16 + i}, v{R1 + 2 * i}, v{R1 + 2 * i + 1}")
        if not self.o.get("hearly"):
            h_addr()
        k.vmem(f"buffer_store_dwordx4 {vr(R1 + 16, 4)}, v{vT0}, {sr(SWS, 4)}, s{sT0} offen sc1", "hst")
        self.stamp("hst")
        if not self.o.get("hbar"):
            k.e("s_barrier")

    def setup2(self):
        k = self.k
        k.e(f"""
        v_lshlrev_b32 v{vLIN16}, 4, v{vL}
        v_and_b32 v{vT0}, 15, v{vL}
        v_lshrrev_b32 v{vT1}, 4, v{vL}
        v_add_u32 v{vH0}, {32768 - 16}, v{vLIN16}
        v_lshlrev_b32 v{vT2}, 8, v{vT1}
        v_add_u32 v{vT2}, 240, v{vT2}
        s_cmp_eq_u32 s{sMT}, 0
        s_cselect_b32 s{sT0}, {OOB}, 0
        v_add_u32 v{vT2}, s{sT0}, v{vT2}
        v_cmp_eq_u32 vcc, 0, v{vT0}
        v_and_b32 v{vT3}, 7, v{vL}
        v_lshlrev_b32 v{vT3}, 9, v{vT3}
        v_cndmask_b32 v{vH0}, v{vH0}, v{vT2}, vcc
        v_add_u32 v{vFSM}, {256 + 240 + 12}, v{vT3}
        v_add_u32 v{vSMP}, 16384, v{vFSM}
        v_add_u32 v{vT2}, 32768, v{vSMP}
        v_add_u32 v{vT3}, s{sT0}, v{vSMP}
        v_cmp_gt_u32 vcc, 8, v{vL}
        v_bfrev_b32 v{vSV}, 1
        s_nop 0
        v_cndmask_b32 v{vSMP}, v{vT3}, v{vT2}, vcc
        v_cndmask_b32 v{vFSM}, v{vSV}, v{vFSM}, vcc
        v_cmp_gt_u32 vcc, 16, v{vL}
        v_lshrrev_b32 v{vT2}, 1, v{vT1}
        v_lshlrev_b32 v{vT2}, 8, v{vT2}
        v_cndmask_b32 v{vSMP}, v{vSV}, v{vSMP}, vcc
        v_lshl_add_u32 v{vT2}, v{vT0}, 4, v{vT2}
        v_and_b32 v{vT1}, 1, v{vT1}
        v_lshl_add_u32 v{vST}, v{vT1}, 3, v{vT2}
        s_lshl_b32 s{sT0}, s{sW}, 10
        v_add_u32 v{vRD2}, s{sT0}, v{vLIN16}
        s_lshl_b32 s{sT0}, s{sM}, 15
        s_lshl_b32 s{sT1}, s{sW}, 12
        s_add_u32 s{sH}, s{sT0}, s{sT1}
        s_add_u32 s{sH}, s{sH}, {H_OFF}
        s_sub_u32 s{sHS}, s{sH}, 32768
        s_lshl_b32 s{sT0}, s{sM}, 14
        s_add_u32 s{sFL}, s{sT0}, s{sT1}
        s_add_u32 s{sFL}, s{sFL}, {F_OFF}
        s_lshl_b32 s{sT1}, s{sW}, 9
        s_add_u32 s{sT0}, s{sT0}, s{sT1}
        s_xor_b32 s{sT1}, s{sN}, {self.o["x2"]}
        s_lshl_b32 s{sT1}, s{sT1}, 11
        s_add_u32 s{sFS}, s{sT0}, s{sT1}
        s_add_u32 s{sFS}, s{sFS}, {F_OFF}
        s_xor_b32 s{sT1}, s{sN}, {self.o["x3"]}
        s_lshl_b32 s{sT1}, s{sT1}, 11
        s_add_u32 s{sFES}, s{sT0}, s{sT1}
        {f"s_lshl_b32 s{sFES}, s{sFES}, 1" if self.o["ex"] else ""}
        s_add_u32 s{sFES}, s{sFES}, {FE_OFF}
        v_bfrev_b32 v{vGST}, 1
        s_lshl_b32 s{sWQ}, s{sML}, 16
        s_sub_u32 s{sWQ}, s{sWQ}, 16384
        """)
        if self.o["ex"]:
            assert self.o["fdirect"] and self.o["g4"]
            k.e(f"""
            v_lshrrev_b32 v{vT0}, 5, v{vL}
            v_lshlrev_b32 v{vT0}, 9, v{vT0}
            v_bfe_u32 v{vT1}, v{vL}, 2, 2
            v_lshl_add_u32 v{vT0}, v{vT1}, 7, v{vT0}
            v_bfe_u32 v{vT1}, v{vL}, 4, 1
            v_lshl_add_u32 v{vT0}, v{vT1}, 6, v{vT0}
            v_and_b32 v{vT1}, 3, v{vL}
            v_lshl_add_u32 v{vFST}, v{vT1}, 4, v{vT0}
            """)
        if self.o["g4"]:
            ex = self.o["ex"]
            k.e(f"""
            s_or_b32 s{sT0}, s{sN}, s{sW}
            s_cmp_eq_u32 s{sT0}, 0
            s_cselect_b32 s{sT2}, 0, {OOB}
            s_and_b32 s{sT0}, s{sM}, 7
            s_lshr_b32 s{sT1}, s{sM}, 3
            s_lshl_b32 s{sT3}, s{sT0}, 14
            s_add_u32 s{sT3}, s{sT3}, s{sT2}
            s_lshl_b32 s{sA}, s{sT1}, 10
            s_add_u32 s{sT3}, s{sT3}, s{sA}
            s_add_u32 s{sT3}, s{sT3}, {P_OFF}
            v_add_u32 v{vGP}, s{sT3}, v{vLIN16}
            v_bfe_u32 v{vT0}, v{vL}, 3, 1
            v_lshlrev_b32 v{vT0}, {13 + ex}, v{vT0}
            v_and_b32 v{vT1}, 7, v{vL}
            v_lshl_add_u32 v{vT0}, v{vT1}, 4, v{vT0}
            v_lshrrev_b32 v{vT1}, 5, v{vL}
            v_lshl_add_u32 v{vT0}, v{vT1}, {7 + ex}, v{vT0}
            v_bfe_u32 v{vT1}, v{vL}, 4, 1
            v_lshl_add_u32 v{vT0}, v{vT1}, {7 if ex else 3}, v{vT0}
            s_lshl_b32 s{sT0}, s{sT0}, {10 + ex}
            s_lshl_b32 s{sT1}, s{sT1}, {8 + ex}
            s_add_u32 s{sT0}, s{sT0}, s{sT1}
            s_add_u32 s{sT0}, s{sT0}, s{sT2}
            s_add_u32 s{sT0}, s{sT0}, {GE_OFF}
            v_add_u32 v{vGST}, s{sT0}, v{vT0}
            """)

    def w2_finish(self):
        k = self.k
        for v in range(self.o["w2in"] + self.o["w2mid"], 9):
            if self.o.get("hbar") and v == 5:
                assert self.o["w2in"] + self.o["w2mid"] <= 5
                k.e("s_barrier")
            if v == 8 and self.o["g4"]:
                self.g4_partial()
            for op in self.w2_ops(v):
                op()
        self.setup2()
        for v in range(3):
            k.wait(vm=("w2", v))
            self.tr16(self.w2_slot(v), 16 * v, "a", ("t2", v))
        for v in range(3):
            k.wait(lg=("t2", v))
            for op in self.w2_ops(9 + v):
                op()
        top, done = k.label("hsw"), k.label("hsd")
        k.e(f"""
        v_cmp_gt_u32 vcc, 64, v{vHS}
        s_cbranch_vccnz {top}
        {done}:
        """)
        self.ool.append(("hs", top, done))
        hd = self.o.get("hdirect", 0)
        if not hd:
            k.vmem(f"buffer_load_dword v{vHS}, v{vSMP}, {sr(SWS, 4)}, s{sHS} offen sc1", "smp")
        for v in range(3, 8):
            k.wait(vm=("w2", v))
            self.tr16(self.w2_slot(v), 16 * v, "a", ("t2", v))
            if hd and v == hd + 2 and v < 8:
                self.h_loads(True, not self.o["hplain"])
        if self.o["glate"] or self.o["g4"]:
            self.w2_last()
        else:
            gtop, gjoin = k.label("gblk"), k.label("gjoin")
            k.e(f"s_cmp_lt_u32 s2, 8\ns_cbranch_scc1 {gtop}")
            self.ool.append(("g", gtop, gjoin, list(k.vm), list(k.lg)))
            self.w2_last()
            k.e(f"{gjoin}:")
        self.stamp("w2done")

    def w2_last(self):
        k = self.k
        for v in range(8, 12):
            k.wait(vm=("w2", v))
            self.tr16(self.w2_slot(v), 16 * v, "a", ("t2", v))

    def g4_issue(self):
        k = self.k
        lab = k.label("g4i")
        k.e(f"""
        s_cmp_lg_u32 s{sN}, 0
        s_cbranch_scc1 {lab}
        s_add_u32 m0, s{sRW}, {XS[3]}
        v_and_b32 v{vT0}, 15, v{vL}
        v_lshlrev_b32 v{vT0}, 10, v{vT0}
        v_lshrrev_b32 v{vT1}, 4, v{vL}
        v_lshl_add_u32 v{vT0}, v{vT1}, 4, v{vT0}
        """)
        for q in range(4):
            o = f" offset:{q * 1024}" if q else ""
            k.e(f"buffer_load_dwordx4 v{vW2 + q}, {sr(SWG, 4)}, 0 offen{o} lds")
        k.e(f"""
        s_add_u32 m0, s{sRW}, {GS}
        s_nop 0
        buffer_load_dwordx4 v{vT0}, {sr(SG, 4)}, 0 offen lds
        {lab}:
        """)
        self.g4_mark = k.nvm

    def g4_partial(self):
        k = self.k
        A, B, D = 128, 144, 160
        lab = k.label("g4p")
        k.e(f"""
        s_cmp_lg_u32 s{sN}, 0
        s_cbranch_scc1 {lab}
        v_subrev_u32 v{vT0}, s{sRW}, v{vT16}
        s_lshl_b32 s{sT0}, s{sW}, 5
        v_xor_b32 v{vT0}, s{sT0}, v{vT0}
        v_add_u32 v{vT1}, {2 * RW}, v{vT0}
        v_lshlrev_b32 v{vT2}, 4, v{vL}
        v_add_u32 v{vT2}, {GS}, v{vT2}
        v_add_u32 v{vT3}, {2 * RW}, v{vT2}
        s_waitcnt vmcnt({k.nvm - self.g4_mark}) lgkmcnt(0)
        s_barrier
        """)
        for j in range(4):
            a, b = (vT0, vT2) if j < 2 else (vT1, vT3)
            o = (j & 1) * RW
            k.e(f"ds_read_b64_tr_b16 {vr(A + 4 * j, 2)}, v{a} offset:{o + XS[3]}")
            k.e(f"ds_read_b64_tr_b16 {vr(A + 4 * j + 2, 2)}, v{a} offset:{o + XS[3] + 512}")
            k.e(f"ds_read_b128 {vr(B + 4 * j, 4)}, v{b} offset:{o}")
        k.e(f"""
        s_and_b32 s{sT0}, s{sM}, 7
        s_lshl_b32 s{sT0}, s{sT0}, 14
        s_lshr_b32 s{sT1}, s{sM}, 3
        s_lshl_b32 s{sT1}, s{sT1}, 12
        s_add_u32 s{sT0}, s{sT0}, s{sT1}
        s_lshl_b32 s{sT1}, s{sW}, 10
        s_add_u32 s{sT0}, s{sT0}, s{sT1}
        s_add_u32 s{sT0}, s{sT0}, {P_OFF}
        s_waitcnt lgkmcnt(0)
        s_barrier
        v_lshlrev_b32 v{vT0}, 4, v{vL}
        """)
        for j in range(4):
            self.mfma16(D, A + 4 * j, B + 4 * j, j == 0, ak="v")
        k.nop(12)
        k.e(f"buffer_store_dwordx4 {vr(D, 4)}, v{vT0}, {sr(SWS, 4)}, s{sT0} offen sc1\n{lab}:")

    def g4_loads(self, counted):
        k = self.k
        for q in range(4):
            t = self.tmp()
            k.e(f"s_mov_b32 s{t}, {q * 4096}")
            ins = f"buffer_load_dwordx4 {vr(160 + 4 * q, 4)}, v{vGP}, {sr(SWS, 4)}, s{t} offen sc1"
            if counted:
                k.vmem(ins, "gp")
            else:
                k.e(ins)

    def g4_final(self):
        k = self.k
        P = 160
        k.e(f"s_mov_b32 s{sSPIN}, 0")
        k.wait(vm="gp")
        retry, ok, again = k.label("gpr"), k.label("gpk"), k.label("gpa")
        k.e(f"{again}:")
        k.e(f"v_max_u32 v{vT0}, v{P}, v{P + 1}")
        for i in range(2, 16, 2):
            k.e(f"v_max3_u32 v{vT0}, v{vT0}, v{P + i}, v{P + i + 1}")
        k.e(f"v_cmp_eq_u32 vcc, -1, v{vT0}\ns_cbranch_vccnz {retry}\n{ok}:")
        self.ool.append(("poll", retry, ok, again, self.g4_loads))
        for i in range(4):
            k.e(f"v_add_f32 v{P + i}, v{P + i}, v{P + 4 + i}")
            k.e(f"v_add_f32 v{P + 8 + i}, v{P + 8 + i}, v{P + 12 + i}")
        for i in range(4):
            k.e(f"v_add_f32 v{P + i}, v{P + i}, v{P + 8 + i}")
        if self.o["ex"]:
            self.ex_tail(P, P + 4, P + 8, P + 12, P + 16)
            k.vmem(f"buffer_store_dwordx4 {vr(P + 12, 4)}, v{vGST}, {sr(SWS, 4)}, 0 offen sc1", "gest")
            return
        k.e(f"v_cvt_pk_bf16_f32 v{P + 4}, v{P}, v{P + 1}")
        k.e(f"v_cvt_pk_bf16_f32 v{P + 5}, v{P + 2}, v{P + 3}")
        k.vmem(f"buffer_store_dwordx2 {vr(P + 4, 2)}, v{vGST}, {sr(SWS, 4)}, 0 offen sc1", "gest")

    def ex_tail(self, S, PK, B, T, A):
        k = self.k
        k.e(f"v_cvt_pk_bf16_f32 v{PK}, v{S}, v{S + 1}")
        k.e(f"v_cvt_pk_bf16_f32 v{PK + 1}, v{S + 2}, v{S + 3}")
        for i in range(2):
            k.e(f"v_lshlrev_b32 v{B + 2 * i}, 16, v{PK + i}")
            k.e(f"v_and_b32 v{B + 2 * i + 1}, 0xffff0000, v{PK + i}")
        for i in range(4):
            k.e(f"v_mul_f32 v{T + i}, {f32(CT)}, v{B + i}")
        for i in range(4):
            k.e(f"v_and_b32 v{A + i}, 0x7fffffff, v{T + i}")
        for i in range(4):
            k.e(f"v_exp_f32 v{T + i}, v{T + i}")
        fix, ok = k.label("exf"), k.label("exk")
        k.e(f"""
        v_max3_u32 v{A}, v{A}, v{A + 1}, v{A + 2}
        v_max_u32 v{A}, v{A}, v{A + 3}
        v_cmp_lt_u32 vcc, {f32(EX_MAX)}, v{A}
        s_cbranch_vccnz {fix}
        {ok}:
        """)
        self.ool.append(("exfix", fix, ok, PK, T, A))

    def g_loads(self, GF):
        k = self.k
        k.e(f"""
        v_and_b32 v{vT0}, 15, v{vL}
        v_lshlrev_b32 v{vT0}, 10, v{vT0}
        v_lshrrev_b32 v{vT1}, 4, v{vL}
        v_lshl_add_u32 v{vT0}, v{vT1}, 4, v{vT0}
        """)
        for j in range(4):
            t = self.tmp()
            k.e(f"s_lshr_b32 s{t}, s{sR4[j]}, 4")
            k.e(f"v_add_u32 v{vT1}, s{t}, v{vT0}")
            k.vmem(f"buffer_load_dwordx4 {vr(GF + 4 * j, 4)}, v{vT1}, {sr(SG, 4)}, 0 offen", "g")

    def g_addr(self):
        k = self.k
        k.e(f"""
        v_bfe_u32 v{vT0}, v{vL}, 3, 1
        v_lshlrev_b32 v{vT0}, 13, v{vT0}
        v_and_b32 v{vT1}, 7, v{vL}
        v_lshl_add_u32 v{vT0}, v{vT1}, 4, v{vT0}
        v_lshrrev_b32 v{vT1}, 5, v{vL}
        v_lshl_add_u32 v{vT0}, v{vT1}, 7, v{vT0}
        v_bfe_u32 v{vT1}, v{vL}, 4, 1
        v_lshl_add_u32 v{vT0}, v{vT1}, 3, v{vT0}
        s_lshl_b32 s{sT0}, s2, 10
        s_lshl_b32 s{sT1}, s{sW}, 8
        s_add_u32 s{sT0}, s{sT0}, s{sT1}
        s_add_u32 s{sT0}, s{sT0}, {GE_OFF}
        v_add_u32 v{vGST}, s{sT0}, v{vT0}
        """)

    def g_block(self):
        k = self.k
        GF = HB
        slots = [T4[0], T4[1], XS[2], XS[3]] if self.o["w2mid"] else [T4[0], T4[1], XS[1], XS[2]]
        k.wait(lg=("t2", 7))
        self.stamp("g0")
        for j in range(4):
            self.dma4k(SWG, slots[j], self.w32_soff(j, 0), ("wg", j))
        self.g_loads(GF)
        self.stamp("gdma")
        self.w2_last()
        self.stamp("gw2")
        self.g_addr()
        for j in range(4):
            k.wait(vm=("wg", j))
            self.tr16(slots[j], 192 + 16 * j, "a", ("twg", j))
        self.stamp("gwg")
        k.wait(vm="all")
        self.stamp("gld")
        for j in range(4):
            k.wait(lg=("twg", j))
            for ct in range(4):
                self.mfma16(ACC2 + 4 * ct, 192 + 16 * j + 4 * ct, GF + 4 * j, j == 0)
        self.stamp("gmf")
        self.reduce16(ACC2, False, None, None, None)
        k.e("s_barrier")
        self.stamp("gend")

    def poll_sample(self, stem, vaddr, sbase):
        k = self.k
        top, done = k.label(stem + "p"), k.label(stem + "d")
        k.wait(vm="smp")
        k.e(f"""
        v_cmp_eq_u32 vcc, -1, v{vHS}
        s_cbranch_vccnz {top}
        {done}:
        """)
        self.ool.append(("smp", top, done, vaddr, sbase))

    def reduce16(self, acc, act, vst, sst, tag, mid=None, ex=False):
        k = self.k
        k.e(f"v_add_u32 v{vT3}, {2 * RW}, v{vRD2}")
        k.nop(8)
        for ct in range(4):
            k.ds(f"ds_write_b128 v{vLIN}, {vr(acc + 4 * ct, 4)} offset:{ct * 1024}")
        k.wait(lg="all")
        k.e("s_barrier")
        for sw in range(4):
            a = vRD2 if sw < 2 else vT3
            k.ds(f"ds_read_b128 {vr(R2 + 4 * sw, 4)}, v{a} offset:{(sw & 1) * RW}", ("r", sw))
        if mid:
            mid()
        k.wait(lg=("r", 1))
        for i in range(4):
            k.e(f"v_add_f32 v{R2 + i}, v{R2 + i}, v{R2 + 4 + i}")
        k.wait(lg=("r", 3))
        for i in range(4):
            k.e(f"v_add_f32 v{R2 + 8 + i}, v{R2 + 8 + i}, v{R2 + 12 + i}")
        for i in range(4):
            k.e(f"v_add_f32 v{R2 + i}, v{R2 + i}, v{R2 + 8 + i}")
        if act:
            self.gelu([R2 + i for i in range(4)], R2 + 4, vKC3)
        if ex:
            self.ex_tail(R2, R2 + 4, R2 + 8, R2 + 12, R2 + 16)
            k.vmem(f"buffer_store_dwordx4 {vr(R2 + 12, 4)}, v{vFST}, {sr(SWS, 4)}, s{sst} offen sc1", tag)
            return
        k.e(f"v_cvt_pk_bf16_f32 v{R2 + 8}, v{R2}, v{R2 + 1}")
        k.e(f"v_cvt_pk_bf16_f32 v{R2 + 9}, v{R2 + 2}, v{R2 + 3}")
        if vst is not None:
            k.vmem(f"buffer_store_dwordx2 {vr(R2 + 8, 2)}, v{vst}, {sr(SWS, 4)}, s{sst} offen sc1", tag)

    def h_loads(self, counted, sc):
        k = self.k
        for v in range(12):
            j, i = v // 3, v % 3
            t = self.tmp()
            k.e(f"s_add_u32 s{t}, s{sH}, s{sR4[j]}")
            if i == 0:
                k.e(f"s_sub_u32 s{t}, s{t}, 16384")
            elif i == 2:
                k.e(f"s_add_u32 s{t}, s{t}, 16384")
            ins = (f"buffer_load_dwordx4 {vr(HB + 4 * v, 4)}, v{vH0 if i == 0 else vLIN16}, "
                   f"{sr(SWS, 4)}, s{t} offen" + (" sc1" if sc else ""))
            if counted:
                k.vmem(ins, ("h", v))
            else:
                k.e(ins)

    def stage2(self):
        k = self.k
        hd = self.o.get("hdirect", 0)
        if not hd:
            self.poll_sample("h", vSMP, sHS)
        self.stamp("hpoll")
        loads = self.h_loads
        k.e(f"s_mov_b32 s{sSPIN}, 0")
        if not hd:
            loads(True, not self.o["hplain"])
        if not self.o["glate"] and not self.o["g4"]:
            k.vmem(f"buffer_store_dwordx2 {vr(R2 + 8, 2)}, v{vGST}, {sr(SWS, 4)}, 0 offen sc1", "gest")
        k.wait(lg="all")
        fill = []
        for j in range(4):
            fill += self.dma4k_ops(SWF, T4[j], self.w32_soff(j, 0), ("wf", j))
        for _ in range(self.o.get("wfpre", 4)):
            fill.pop(0)()
        mf, retry, ok = k.label("s2m"), k.label("s2r"), k.label("s2k")
        k.e(f"{mf}:")
        for v in range(12):
            k.wait(vm=("h", v))
            f = HB + 4 * v
            if v == 0:
                k.e(f"v_mov_b32 v{vT0}, v{f + 3}")
            elif v % 2 == 0:
                k.e(f"v_max3_u32 v{vT0}, v{vT0}, v{f - 1}, v{f + 3}")
            for ct in range(4):
                self.mfma16(ACC2 + 4 * ct, 16 * v + 4 * ct, f, v == 0)
            if v < self.o.get("wfloop", 12) and fill:
                fill.pop(0)()
        k.e(f"v_max_u32 v{vT0}, v{vT0}, v{HB + 47}")
        k.e(f"v_cmp_eq_u32 vcc, -1, v{vT0}\ns_cbranch_vccnz {retry}\n{ok}:")
        self.ool.append(("bulk", retry, ok, mf, loads))
        self.stamp("s2mfma")
        if self.o["g4"]:
            self.g4_loads(True)
        self.wf_rest = fill

    def wo_slot(self, bb, e):
        if bb % 2 == 0:
            base = [T4[4], XS[1], XS[2], XS[3]]
        else:
            base = [T4[0], T4[1], T4[2], T4[3]]
        return base[e // 2] + 2048 * (e & 1)

    def wo_issue(self, bb, e0, e1):
        k = self.k
        for e in range(e0, e1):
            assert self.wo_next == 8 * bb + e
            self.wo_next += 1
            k.e(f"s_add_u32 s{sWQ}, s{sWQ}, 16384\ns_and_b32 s{sWQ}, s{sWQ}, 0x7c000")
            self.dma2k(SWO, self.wo_slot(bb, e), f"s{sWQ}", ("wo", bb, e))

    def wo_tr_ops(self, bb):
        ops = []
        for e in range(8):
            for ct, a in enumerate((vTR0, vTR1)):
                for hf in range(2):
                    off = self.wo_slot(bb, e) + 512 * hf
                    dst = 8 * (8 * bb + e) + 4 * ct + 2 * hf
                    ops.append(("ds", f"ds_read_b64_tr_b16 {vr(dst, 2, 'a')}, v{a} offset:{off}", ("two", bb)))
        return ops

    def wo_tr(self, bb):
        k = self.k
        for e in range(8):
            k.wait(vm=("wo", bb, e))
            self.tr32(self.wo_slot(bb, e), 8 * (8 * bb + e), "a", ("two", bb))

    def stage2_tail(self):
        k = self.k
        self.wo_next = 0

        def mid():
            for _ in range(self.o.get("wfmid", 0)):
                if self.wf_rest:
                    self.wf_rest.pop(0)()
        self.reduce16(ACC2, True, vST, sFS, "fst", mid=mid)
        self.stamp("fst")
        while self.wf_rest:
            self.wf_rest.pop(0)()
        k.e("s_barrier")
        if self.o["glate"]:
            gtop, self.gjoin = k.label("gl"), k.label("glj")
            k.e(f"s_cmp_lt_u32 s2, 8\ns_cbranch_scc1 {gtop}")
            self.ool.append(("glate", gtop, self.gjoin, list(k.vm), list(k.lg), self.wo_next))
        self.wo_issue(0, 0, 8)
        self.wo_pattern()
        k.wait(vm=("wf", 3))
        for j in range(4):
            self.tr16(T4[j], 192 + 16 * j, "a", "twf")
        if self.o["g4"]:
            self.g4_final()
        if self.o["b1B"]:
            k.wait(lg="twf")
            self.wo_issue(1, 0, self.o["b1B"])
        if self.o["glate"] and self.stop_after in ("s2", "ge"):
            k.e(f"s_waitcnt vmcnt(0) lgkmcnt(0)\n{self.gjoin}:")

    def glate_block(self, join):
        k = self.k
        GF = HB + 16
        slots = [self.wo_slot(0, 2 * j) for j in range(4)]
        for j in range(4):
            self.dma4k(SWG, slots[j], self.w32_soff(j, 0), ("wg", j))
        self.g_loads(GF)
        self.stamp("gdma")
        self.wo_pattern()
        self.g_addr()
        k.wait(vm=("wf", 3))
        for j in range(4):
            self.tr16(T4[j], 192 + 16 * j, "a", "twf")
        for j in range(4):
            k.wait(vm=("wg", j))
            self.tr16(slots[j], 128 + 16 * j, "a", ("twg", j))
        self.stamp("gwg")
        k.wait(lg="all")
        self.wo_issue(0, 0, 8)
        k.vmem(f"buffer_load_dword v{vHS}, v{vFSM}, {sr(SWS, 4)}, s{sFL} offen sc1", "smp")
        k.wait(vm="g")
        self.stamp("gld")
        for j in range(4):
            for ct in range(4):
                self.mfma16(ACC2 + 4 * ct, 128 + 16 * j + 4 * ct, GF + 4 * j, j == 0)
        self.stamp("gmf")
        self.reduce16(ACC2, False, None, None, None)
        k.vmem(f"buffer_store_dwordx2 {vr(R2 + 8, 2)}, v{vGST}, {sr(SWS, 4)}, 0 offen sc1", "gest")
        k.e("s_barrier")
        self.stamp("gend")
        if self.stop_after in ("s2", "ge"):
            k.e(f"s_waitcnt vmcnt(0) lgkmcnt(0)\ns_branch {join}")
            return
        self.stage3(gpath=True)
        k.wait(vm=("wo", 1, 7))
        k.e(f"s_branch {join}")

    def wo_pattern(self):
        k = self.k
        k.e(f"""
        v_bfe_u32 v{vT0}, v{vL}, 2, 2
        v_lshrrev_b32 v{vT1}, 5, v{vL}
        v_lshl_add_u32 v{vT1}, v{vT1}, 3, v{vT0}
        v_lshlrev_b32 v{vT1}, 7, v{vT1}
        v_lshrrev_b32 v{vT2}, 1, v{vT0}
        v_lshl_add_u32 v{vT1}, v{vT2}, 6, v{vT1}
        v_bfe_u32 v{vT2}, v{vL}, 4, 1
        v_lshl_add_u32 v{vT1}, v{vT2}, 5, v{vT1}
        v_and_b32 v{vT2}, 1, v{vL}
        v_lshl_add_u32 v{vT1}, v{vT2}, 4, v{vT1}
        v_bfe_u32 v{vT2}, v{vL}, 1, 1
        v_lshl_add_u32 v{vT1}, v{vT2}, 3, v{vT1}
        v_add_u32 v{vTR0}, s{sRW}, v{vT1}
        v_xor_b32 v{vT1}, 64, v{vT1}
        v_add_u32 v{vTR1}, s{sRW}, v{vT1}
        """)

    def stage3(self, gpath=False):
        k = self.k
        FB = HB
        b1B = 0 if gpath else self.o["b1B"]

        def loads(counted, sc):
            for j in range(4):
                t = self.tmp()
                k.e(f"s_add_u32 s{t}, s{sFL}, s{sR4[j]}")
                ins = (f"buffer_load_dwordx4 {vr(FB + 4 * j, 4)}, v{vLIN16}, {sr(SWS, 4)}, s{t} offen"
                       + (" sc1" if sc else ""))
                if counted:
                    k.vmem(ins, ("f", j))
                else:
                    k.e(ins)
        fd = self.o.get("fdirect", 0)
        if fd:
            k.e(f"s_mov_b32 s{sSPIN}, 0")
            loads(True, fd != 2)
            self.wo_tr(0)
            k.wait(vm=("f", 3))
            again, retry0, ok0 = k.label("fda"), k.label("fdr"), k.label("fdk")
            k.e(f"{again}:")
            k.e(f"v_max_u32 v{vT0}, v{FB + 1}, v{FB + 3}")
            for j in range(1, 4):
                k.e(f"v_max3_u32 v{vT0}, v{vT0}, v{FB + 4 * j + 1}, v{FB + 4 * j + 3}")
            k.e(f"v_cmp_eq_u32 vcc, -1, v{vT0}\ns_cbranch_vccnz {retry0}\n{ok0}:")
            self.ool.append(("poll", retry0, ok0, again, lambda counted: loads(counted, True)))
            self.stamp("fpoll")
            k.wait(lg="all")
            self.wo_issue(1, b1B, 8)
            for j in range(4):
                for ct in range(4):
                    self.mfma16(ACC2 + 4 * ct, 192 + 16 * j + 4 * ct, FB + 4 * j, j == 0)
            self.stamp("s3mfma")
            self.reduce16(ACC2, False, vST, sFES, "fest", mid=lambda: self.wo_issue(2, 0, self.o["b2C"]),
                          ex=self.o["ex"])
            self.stamp("fest")
            k.e("s_barrier")
            return
        if not gpath:
            k.vmem(f"buffer_load_dword v{vHS}, v{vFSM}, {sr(SWS, 4)}, s{sFL} offen sc1", "smp")
        self.wo_tr(0)
        self.poll_sample("f", vFSM, sFL)
        self.stamp("fpoll")
        k.e(f"s_mov_b32 s{sSPIN}, 0")
        loads(True, not self.o["fplain"])
        k.wait(lg="all")
        mf, retry, ok = k.label("s3m"), k.label("s3r"), k.label("s3k")
        self.wo_issue(1, b1B, 8)
        k.e(f"{mf}:")
        for j in range(4):
            k.wait(vm=("f", j))
            f = FB + 4 * j
            if j == 0:
                k.e(f"v_max_u32 v{vT0}, v{f + 1}, v{f + 3}")
            else:
                k.e(f"v_max3_u32 v{vT0}, v{vT0}, v{f + 1}, v{f + 3}")
            for ct in range(4):
                self.mfma16(ACC2 + 4 * ct, 192 + 16 * j + 4 * ct, f, j == 0)
        k.e(f"v_cmp_eq_u32 vcc, -1, v{vT0}\ns_cbranch_vccnz {retry}\n{ok}:")
        self.ool.append(("bulk", retry, ok, mf, loads))
        self.stamp("s3mfma")
        self.reduce16(ACC2, False, vST, sFES, "fest", mid=lambda: self.wo_issue(2, 0, self.o["b2C"]),
                          ex=self.o["ex"])
        self.stamp("fest")
        if gpath:
            return
        if self.o["glate"]:
            k.e(f"{self.gjoin}:")
        k.e("s_barrier")

    def stage4(self):
        k = self.k
        CB, FR, Z, JP, BF, ACC, OUT = 32, 96, 128, 144, 160, 192, 224
        vGA, vFA, vJ0, vJ2 = 8, 9, 10, 11
        RAW = 160
        ex = self.o["ex"]
        if ex:
            Z, JP = 224, 240
            late_tr, fr_read = self.s4_head_ex(CB, FR, Z)
        else:
            late_tr, fr_read = self.s4_head(CB, FR, RAW), None
        self.stamp("fepoll")
        self.s4_loop(CB, FR, Z, JP, BF, ACC, OUT, late_tr, fr_read)

    def s4_head(self, CB, FR, RAW):
        k = self.k
        ex = 0
        vGA, vFA, vJ0, vJ2 = 8, 9, 10, 11
        k.e(f"""
        v_and_b32 v{vT0}, 7, v{vL}
        v_lshlrev_b32 v{vT0}, 4, v{vT0}
        v_lshrrev_b32 v{vT1}, 5, v{vL}
        v_lshl_add_u32 v{vGA}, v{vT1}, {7 + ex}, v{vT0}
        v_bfe_u32 v{vT0}, v{vL}, 3, 2
        v_lshlrev_b32 v{vT0}, 4, v{vT0}
        v_lshl_add_u32 v{vFA}, v{vT1}, {8 + ex}, v{vT0}
        v_lshlrev_b32 v{vJ0}, 4, v{vL}
        v_add_u32 v{vJ2}, {2 * RW}, v{vJ0}
        s_lshl_b32 s{sGL}, s{sB}, {13 + ex}
        s_lshl_b32 s{sT0}, s{sW}, {8 + ex}
        s_add_u32 s{sGL}, s{sGL}, s{sT0}
        s_add_u32 s{sGL}, s{sGL}, {GE_OFF}
        s_lshl_b32 s{sFE}, s{sM}, {14 + ex}
        s_lshl_b32 s{sT0}, s{sW}, {9 + ex}
        s_add_u32 s{sFE}, s{sFE}, s{sT0}
        s_lshl_b32 s{sT0}, s{sJN}, 6
        s_add_u32 s{sFE}, s{sFE}, s{sT0}
        s_add_u32 s{sFE}, s{sFE}, {FE_OFF}
        """)

        def np_off(r, shift):
            t = self.tmp()
            if self.o["rot"]:
                k.e(f"s_add_u32 s{t}, s{sML}, {r}\ns_and_b32 s{t}, s{t}, 7\ns_lshl_b32 s{t}, s{t}, {shift}")
            else:
                k.e(f"s_mov_b32 s{t}, {r << shift}")
            return t

        def ge_loads(counted):
            for r in range(8):
                t = np_off(r, 10 + ex)
                k.e(f"s_add_u32 s{t}, s{t}, s{sGL}")
                for hf in range(1 + ex):
                    d, o = RAW + (4 << ex) * r + 4 * hf, f" offset:{128 * hf}" if hf else ""
                    sc = "" if counted and self.o.get("geplain") else " sc1"
                    ins = f"buffer_load_dwordx4 {vr(d, 4)}, v{vGA}, {sr(SWS, 4)}, s{t} offen{o}{sc}"
                    if counted:
                        k.vmem(ins, "ge")
                    else:
                        k.e(ins)

        def fe_loads(counted):
            for r in range(8):
                t = np_off(r, 11 + ex)
                k.e(f"s_add_u32 s{t}, s{t}, s{sFE}")
                for hf in range(1 + ex):
                    d, o = FR + (4 << ex) * r + 4 * hf, f" offset:{256 * hf}" if hf else ""
                    ins = f"buffer_load_dwordx4 {vr(d, 4)}, v{vFA}, {sr(SWS, 4)}, s{t} offen{o} sc1"
                    if counted:
                        k.vmem(ins, ("fe", r))
                    else:
                        k.e(ins)

        def check(base, n, dst):
            if ex:
                k.e(f"v_max_u32 v{dst}, v{base + 3}, v{base + 7}")
                for g in range(2, 2 * n, 2):
                    k.e(f"v_max3_u32 v{dst}, v{dst}, v{base + 4 * g + 3}, v{base + 4 * g + 7}")
                return
            k.e(f"v_max_u32 v{dst}, v{base + 1}, v{base + 3}")
            for r in range(1, n):
                k.e(f"v_max3_u32 v{dst}, v{dst}, v{base + 4 * r + 1}, v{base + 4 * r + 3}")

        ge_loads(True)
        self.wo_issue(2, self.o["b2C"], 8)
        self.wo_tr(1)
        k.wait(lg="all")
        self.wo_issue(3, 0, 8)
        k.e(f"s_mov_b32 s{sSPIN}, 0")
        if ex:
            k.e(f"s_mov_b32 s{sA}, 0")
        k.wait(vm="ge")
        retry, ok = k.label("ger"), k.label("gek")
        again = k.label("gea")
        k.e(f"{again}:")
        test = "v_cmp_gt_i32 vcc, 0," if ex else "v_cmp_eq_u32 vcc, -1,"
        check(RAW, 8, vT0)
        k.e(f"{test} v{vT0}\ns_cbranch_vccnz {retry}\n{ok}:")
        self.ool.append(("pollx" if ex else "poll", retry, ok, again, ge_loads))
        if ex:
            fe_loads(True)
        else:
            k.e(f"s_mov_b32 s{sA}, {f32(CT)}")
            fe_loads(True)
            for r in range(8):
                for i in range(4):
                    src = RAW + 4 * r + i
                    k.e(f"v_lshlrev_b32 v{CB + 8 * r + 2 * i}, 16, v{src}")
                    k.e(f"v_and_b32 v{CB + 8 * r + 2 * i + 1}, 0xffff0000, v{src}")
            for i in range(64):
                k.e(f"v_mul_f32 v{CB + i}, s{sA}, v{CB + i}")
        self.stamp("cb")
        self.wo_tr(2)
        late_tr = []
        if self.o["trb3"] == "pre":
            self.wo_tr(3)
        else:
            late_tr = self.wo_tr_ops(3)
        k.e(f"s_mov_b32 s{sSPIN}, 0")
        k.wait(vm=("fe", 7))
        retry, ok = k.label("fer"), k.label("fek")
        again = k.label("fea")
        k.e(f"{again}:")
        check(FR, 8, vT0)
        k.e(f"{test} v{vT0}\ns_cbranch_vccnz {retry}\n{ok}:")
        self.ool.append(("poll", retry, ok, again, fe_loads))
        return late_tr

    def s4_head_ex(self, CB, FR, Z):
        k = self.k
        vGG, vFG, vCRD, vFRD, vJ0, vJ2 = [8, 12, 13, 14], [9, 20], 21, 22, 10, 11
        GR, FB = 160, 176
        k.e(f"""
        v_and_b32 v{vT0}, 7, v{vL}
        v_lshlrev_b32 v{vT0}, 4, v{vT0}
        v_bfe_u32 v{vT1}, v{vL}, 3, 1
        v_lshl_add_u32 v{vT2}, v{vT1}, 8, v{vT0}
        v_lshl_add_u32 v{vT3}, v{vT1}, 9, v{vT0}
        v_bfe_u32 v{vT1}, v{vL}, 4, 1
        v_lshl_add_u32 v{vT2}, v{vT1}, 7, v{vT2}
        v_lshrrev_b32 v{vT1}, 5, v{vL}
        v_lshl_add_u32 v{vCRD}, v{vT1}, 7, v{vT0}
        v_add_u32 v{vCRD}, s{sRW}, v{vCRD}
        v_add_u32 v{vT1}, s{sML}, v{vT1}
        """)
        for j in range(4):
            k.e(f"""
            v_add_u32 v{vT0}, {2 * j}, v{vT1}
            v_and_b32 v{vT0}, 7, v{vT0}
            v_lshl_add_u32 v{vGG[j]}, v{vT0}, 11, v{vT2}
            """)
        k.e(f"""
        s_lshl_b32 s{sGL}, s{sB}, 14
        s_lshl_b32 s{sT0}, s{sW}, 9
        s_add_u32 s{sGL}, s{sGL}, s{sT0}
        s_add_u32 s{sGL}, s{sGL}, {GE_OFF}
        """)

        def ge_loads(counted):
            for j in range(4):
                sc = "" if counted and self.o.get("geplain") else " sc1"
                ins = f"buffer_load_dwordx4 {vr(GR + 4 * j, 4)}, v{vGG[j]}, {sr(SWS, 4)}, s{sGL} offen{sc}"
                if counted:
                    k.vmem(ins, "ge")
                else:
                    k.e(ins)

        def fe_loads(counted):
            for j in range(2):
                ins = f"buffer_load_dwordx4 {vr(FB + 4 * j, 4)}, v{vFG[j]}, {sr(SWS, 4)}, s{sFE} offen sc1"
                if counted:
                    k.vmem(ins, "fe")
                else:
                    k.e(ins)
        ge_loads(True)
        k.e(f"""
        v_lshrrev_b32 v{vT1}, 4, v{vL}
        v_add_u32 v{vT1}, s{sML}, v{vT1}
        v_and_b32 v{vT0}, 7, v{vT1}
        v_lshl_add_u32 v{vFG[0]}, v{vT0}, 12, v{vT3}
        v_xor_b32 v{vFG[1]}, 16384, v{vFG[0]}
        v_lshrrev_b32 v{vT1}, 5, v{vL}
        v_bfe_u32 v{vT0}, v{vL}, 3, 2
        v_lshlrev_b32 v{vT0}, 4, v{vT0}
        v_lshl_add_u32 v{vFRD}, v{vT1}, 7, v{vT0}
        v_add_u32 v{vFRD}, s{sRW}, v{vFRD}
        v_lshlrev_b32 v{vJ0}, 4, v{vL}
        v_add_u32 v{vJ2}, {2 * RW}, v{vJ0}
        s_lshl_b32 s{sFE}, s{sM}, 15
        s_lshl_b32 s{sT0}, s{sW}, 10
        s_add_u32 s{sFE}, s{sFE}, s{sT0}
        s_lshl_b32 s{sT0}, s{sJN}, 7
        s_add_u32 s{sFE}, s{sFE}, s{sT0}
        s_add_u32 s{sFE}, s{sFE}, {FE_OFF}
        """)
        self.wo_issue(2, self.o["b2C"], 8)
        self.wo_tr(1)
        k.wait(lg="all")
        if self.o.get("feat", 0) == -2:
            fe_loads(True)
        if not self.o.get("b3late"):
            self.wo_issue(3, 0, self.o.get("b3pre", 0) if self.o.get("b3loop") else 8)
        if self.o.get("feat", 0) == -1:
            fe_loads(True)
        k.e(f"s_mov_b32 s{sSPIN}, 0\ns_mov_b32 s{sA}, 0")
        k.wait(vm="ge")
        retry, ok, again = k.label("ger"), k.label("gek"), k.label("gea")
        k.e(f"""
        {again}:
        v_max_u32 v{vT0}, v{GR + 3}, v{GR + 7}
        v_max3_u32 v{vT0}, v{vT0}, v{GR + 11}, v{GR + 15}
        v_cmp_gt_i32 vcc, 0, v{vT0}
        s_cbranch_vccnz {retry}
        {ok}:
        """)
        self.ool.append(("pollx", retry, ok, again, ge_loads))
        if self.o.get("feat", 0) == 0:
            fe_loads(True)
        for j in range(4):
            k.ds(f"ds_write_b128 v{vLIN}, {vr(GR + 4 * j, 4)} offset:{j * 1024}", "gw")
        if self.o.get("b3late"):
            self.wo_issue(3, 0, 8)
        k.wait(lg="gw")
        for r in range(8):
            for hf in range(2):
                k.ds(f"ds_read_b128 {vr(CB + 8 * r + 4 * hf, 4)}, v{vCRD} offset:{r * 512 + hf * 256}", "cb")
        if self.o.get("feat", 0) == 1:
            fe_loads(True)
        self.stamp("cb")
        self.wo_tr(2)
        if self.o.get("feat", 0) == 2:
            fe_loads(True)
        late_tr = self.wo_tr_ops(3)
        k.e(f"s_mov_b32 s{sSPIN}, 0")
        k.wait(vm="fe")
        retry, ok, again = k.label("fer"), k.label("fek"), k.label("fea")
        k.e(f"""
        {again}:
        v_max_u32 v{vT0}, v{FB + 3}, v{FB + 7}
        v_cmp_gt_i32 vcc, 0, v{vT0}
        s_cbranch_vccnz {retry}
        {ok}:
        """)
        self.ool.append(("pollx", retry, ok, again, fe_loads))
        for j in range(2):
            k.ds(f"ds_write_b128 v{vLIN}, {vr(FB + 4 * j, 4)} offset:{FS + j * 1024}", "fw")

        def fr_read(r):
            for hf in range(2):
                k.ds(f"ds_read_b128 {vr(FR + 8 * r + 4 * hf, 4)}, v{vFRD} offset:{FS + r * 256 + hf * 64}", ("fr", r))
        slow, fast = k.label("exs"), k.label("exq")
        k.e(f"s_cmp_lg_u32 s{sA}, 0\ns_cbranch_scc1 {slow}\n{fast}:")
        self.ool.append(("exslow", slow, fast, CB, FR, Z, vFRD))
        k.wait(lg="all")
        for r in range(4):
            fr_read(r)
        return late_tr, fr_read

    def s4_loop(self, CB, FR, Z, JP, BF, ACC, OUT, late_tr, fr_read):
        k = self.k
        ex = self.o["ex"]
        vJ0, vJ2 = 10, 11

        def j_ops(r):
            ops = []
            z = Z + 8 * (r & 1)
            jp = JP + 4 * (r & 1)
            if ex:
                for i in range(8):
                    ops.append((f"v_fma_f32 v{z + i}, v{FR + 8 * r + i}, v{CB + 8 * r + i}, 1.0", 4))
                for i in range(8):
                    ops.append((f"v_rcp_f32 v{z + i}, v{z + i}", 8))
                for i in range(8):
                    ops.append((f"v_fma_f32 v{z + i}, v{z + i}, -2.0, 1.0", 4))
                for i in range(4):
                    ops.append((f"v_cvt_pk_bf16_f32 v{jp + i}, v{z + 2 * i}, v{z + 2 * i + 1}", 4))
                ops.append(("ds", f"ds_write_b128 v{vLIN}, {vr(jp, 4)} offset:{r * 1024}", ("jw", r)))
                return ops
            for i in range(4):
                ops.append((f"v_lshlrev_b32 v{z + 2 * i}, 16, v{FR + 4 * r + i}", 4))
                ops.append((f"v_and_b32 v{z + 2 * i + 1}, 0xffff0000, v{FR + 4 * r + i}", 4))
            for i in range(8):
                ops.append((f"v_fma_f32 v{z + i}, v{z + i}, s{sA}, v{CB + 8 * r + i}", 4))
            for i in range(8):
                ops.append((f"v_exp_f32 v{z + i}, v{z + i}", 8))
            for i in range(8):
                ops.append((f"v_add_f32 v{z + i}, 1.0, v{z + i}", 4))
            for i in range(8):
                ops.append((f"v_rcp_f32 v{z + i}, v{z + i}", 8))
            for i in range(8):
                ops.append((f"v_fma_f32 v{z + i}, v{z + i}, -2.0, 1.0", 4))
            for i in range(4):
                ops.append((f"v_cvt_pk_bf16_f32 v{jp + i}, v{z + 2 * i}, v{z + 2 * i + 1}", 4))
            ops.append(("ds", f"ds_write_b128 v{vLIN}, {vr(jp, 4)} offset:{r * 1024}", ("jw", r)))
            return ops

        dbg = self.o.get("s4dbg", "")

        def emit(op):
            if op[0] == "ds":
                k.ds(op[1], op[2])
                return 4
            t = op[0]
            if "notrans" in dbg:
                t = t.replace("v_exp_f32", "v_mov_b32").replace("v_rcp_f32", "v_mov_b32")
            if "novalu" not in dbg and not ("nofma" in dbg and t.startswith("v_fma")):
                k.e(t)
            return op[1]

        def read1(r, jj):
            b = BF + 16 * (r & 1)
            a = vJ0 if jj < 2 else vJ2
            k.ds(f"ds_read_b128 {vr(b + 4 * jj, 4)}, v{a} offset:{(jj & 1) * RW + r * 1024}", ("jr", r, jj))

        def reads(r):
            for jj in range(4):
                read1(r, jj)

        k.wait(lg=("fr", 0) if ex else "all")
        if "twice" in dbg:
            k.e(f"s_mov_b32 s{sSPIN}, 0\nL_twice:\ns_waitcnt lgkmcnt(0)\ns_barrier")
            self.stamp("fepoll2")
        b3 = self.o.get("b3loop", 0)
        b3q = list(range(self.o.get("b3pre", 0), 8)) if b3 else []

        def b3_issue(n):
            for _ in range(n):
                if b3q:
                    e = b3q.pop(0)
                    self.wo_issue(3, e, e + 1)
        b3_issue(self.o.get("b3j0", 1))
        for op in j_ops(0):
            emit(op)
        b3_issue(self.o.get("b3j1", 1))
        o1 = j_ops(1)
        n1 = 8 if ex else 16
        if ex:
            k.wait(lg=("fr", 1))
        for op in o1[:n1]:
            emit(op)
        k.wait(lg=("jw", 0))
        k.e("s_barrier")
        reads(0)
        for op in o1[n1:]:
            emit(op)
        self.stamp("j01")
        for r in range(8):
            ops = j_ops(r + 2) if r + 2 < 8 else []
            total = sum(op[1] if op[0] != "ds" else 4 for op in ops)
            spread = self.o.get("s4spread", 0)
            if not spread:
                k.wait(lg=("jr", r, 3))
            b = BF + 16 * (r & 1)
            spent = 0
            bar_at = self.o["s4bar"] + (self.o.get("s4bar0", 2) if r == 0 else 0)
            assert bar_at + 3 * spread <= 7
            for i in range(8):
                jj, ct = i // 2, i % 2
                q = 4 * r + jj
                if r == 6 and i == 0:
                    k.wait(lg=("two", 3))
                if spread and ct == 0:
                    k.wait(lg=("jr", r, jj))
                if "nomfma" not in dbg:
                    self.mfma32(ACC + 16 * ct, 8 * q + 4 * ct, b + 4 * jj, r == 0 and jj == 0, ak="a")
                if ex and r < 2 and i < 2:
                    fr_read(4 + 2 * r + i)
                if b3 and i % b3 == b3 - 1:
                    b3_issue(1)
                if i == bar_at and r + 1 < 8:
                    self.stamp(f"ba{r}")
                    k.wait(lg=("jw", r + 1))
                    self.stamp(f"bb{r}")
                    if "nobar" not in dbg:
                        k.e("s_barrier")
                    self.stamp(f"bc{r}")
                    if not spread:
                        reads(r + 1)
                if spread and r + 1 < 8 and 0 <= (i - bar_at) < 4 * spread and (i - bar_at) % spread == 0:
                    read1(r + 1, (i - bar_at) // spread)
                if late_tr and i > bar_at and r >= self.o.get("ltr0", 2 if ex else 0):
                    if (self.o.get("b3late") or self.o.get("feat", 0) == -2) and len(late_tr) == 32:
                        k.wait(vm=("wo", 3, 7))
                    left = sum(7 - self.o["s4bar"] for rr in range(r + 1, 6)) + (8 - i)
                    for _ in range(max(2, -(-len(late_tr) // max(left, 1)))):
                        if late_tr:
                            if b3 and len(late_tr) % 4 == 0:
                                e = 8 - len(late_tr) // 4
                                assert e not in b3q
                                k.wait(vm=("wo", 3, e))
                            emit(late_tr.pop(0))
                while ops and spent < total * (i + 1) / 8:
                    spent += emit(ops.pop(0))
            while ops:
                emit(ops.pop(0))
            if r == 6 and self.o.get("otr"):
                self.out_addr()
            self.stamp(f"s4r{r}")
        assert not late_tr
        if "twice" in dbg:
            k.e(f"s_add_u32 s{sSPIN}, s{sSPIN}, 1\ns_cmp_lt_u32 s{sSPIN}, 2\ns_cbranch_scc1 L_twice")
        self.stamp("s4mfma")
        if self.o.get("otr"):
            self.out_rows(ACC, OUT)
            return
        k.e(f"""
        s_lshl_b32 s{sT0}, s{sMT}, 7
        s_lshl_b32 s{sT1}, s{sJN}, 5
        s_add_u32 s{sT0}, s{sT0}, s{sT1}
        s_lshl_b32 s{sT0}, s{sT0}, 10
        s_lshl_b32 s{sT1}, s{sNH}, 9
        s_add_u32 s{sT0}, s{sT0}, s{sT1}
        s_lshl_b32 s{sT1}, s{sW}, 7
        s_add_u32 s{sT0}, s{sT0}, s{sT1}
        v_and_b32 v{vT0}, 31, v{vL}
        v_lshlrev_b32 v{vT0}, 10, v{vT0}
        v_lshrrev_b32 v{vT1}, 5, v{vL}
        v_lshl_add_u32 v{vT0}, v{vT1}, 4, v{vT0}
        v_add_u32 v{vT0}, s{sT0}, v{vT0}
        """)
        k.nop(2)
        for ct in range(2):
            for a in range(2):
                src = ACC + 16 * ct + 8 * a
                dst = OUT + 8 * ct + 4 * a
                for i in range(4):
                    k.e(f"v_cvt_pk_bf16_f32 v{dst + i}, v{src + 2 * i}, v{src + 2 * i + 1}")
                o = ct * 64 + a * 32
                os_ = f" offset:{o}" if o else ""
                k.vmem(f"buffer_store_dwordx4 {vr(dst, 4)}, v{vT0}, {sr(SOUT, 4)}, 0 offen{os_}" + self.outpol(), "out")

    def outpol(self):
        return {0: "", 1: " sc1", 2: " nt", 3: " sc0 sc1", 4: " sc1 nt", 5: " sc0 sc1 nt"}[self.o.get("outsc", 0)]

    def out_addr(self):
        k = self.k
        k.e(f"""
        s_lshl_b32 s{sT0}, s{sMT}, 7
        s_lshl_b32 s{sT1}, s{sJN}, 5
        s_add_u32 s{sT0}, s{sT0}, s{sT1}
        s_lshl_b32 s{sT0}, s{sT0}, 10
        s_lshl_b32 s{sT1}, s{sNH}, 9
        s_add_u32 s{sT0}, s{sT0}, s{sT1}
        s_lshl_b32 s{sT1}, s{sW}, 7
        s_add_u32 s{sA}, s{sT0}, s{sT1}
        v_and_b32 v{vT1}, 31, v{vL}
        v_lshrrev_b32 v{vT0}, 5, v{vL}
        v_xor_b32 v{vT0}, v{vT0}, v{vT1}
        v_and_b32 v{vT0}, 7, v{vT0}
        v_lshlrev_b32 v{vT0}, 4, v{vT0}
        v_lshl_add_u32 v{vT0}, v{vT1}, 7, v{vT0}
        v_add_u32 v{vT0}, s{sRW}, v{vT0}
        v_lshrrev_b32 v{vT1}, 3, v{vL}
        v_and_b32 v{vT3}, 7, v{vL}
        v_xor_b32 v{vT2}, v{vT1}, v{vT3}
        v_lshlrev_b32 v{vT2}, 4, v{vT2}
        v_lshl_add_u32 v{vT2}, v{vT1}, 7, v{vT2}
        v_add_u32 v{vT2}, s{sRW}, v{vT2}
        v_lshlrev_b32 v{vT3}, 4, v{vT3}
        v_lshl_add_u32 v{vT3}, v{vT1}, 10, v{vT3}
        """)

    def out_rows(self, ACC, OUT):
        k = self.k
        k.nop(12)
        for ct in range(2):
            for a in range(2):
                src = ACC + 16 * ct + 8 * a
                dst = OUT + 8 * ct + 4 * a
                for i in range(4):
                    k.e(f"v_cvt_pk_bf16_f32 v{dst + i}, v{src + 2 * i}, v{src + 2 * i + 1}")
                p2 = 4 * ct + 2 * a
                if p2:
                    k.e(f"v_xor_b32 v{vT1}, {p2 * 16}, v{vT0}")
                k.ds(f"ds_write_b128 v{vT1 if p2 else vT0}, {vr(dst, 4)} offset:{T4[0]}", "ow")
        k.wait(lg="ow")
        for i in range(4):
            k.ds(f"ds_read_b128 {vr(OUT + 4 * i, 4)}, v{vT2} offset:{T4[0] + i * 1024}", ("or", i))
        for i in range(4):
            t = self.tmp()
            k.e(f"s_add_u32 s{t}, s{sA}, {i * 8192}")
            k.wait(lg=("or", i))
            k.vmem(f"buffer_store_dwordx4 {vr(OUT + 4 * i, 4)}, v{vT3}, {sr(SOUT, 4)}, s{t} offen"
                   + self.outpol(), "out")

    def epilogue(self):
        k = self.k
        if self.stamps:
            if self.o.get("endwait"):
                k.e("s_waitcnt vmcnt(0)")
            self.stamp("end")
            n = self.nst
            k.e("s_waitcnt vmcnt(0) lgkmcnt(0)")
            for i in range(n):
                k.e(f"v_writelane_b32 v{vT1}, s{STAMP0 + 2 * i}, {i}")
            k.e(f"""
            s_lshl_b32 s{sT0}, s2, 2
            s_add_u32 s{sT0}, s{sT0}, s{sW}
            s_lshl_b32 s{sT0}, s{sT0}, 6
            s_add_u32 s{sT0}, s{sT0}, {STAMP_OFF}
            s_mov_b32 s{SWS + 2}, {STAMP_OFF + (1 << 20)}
            v_lshlrev_b32 v{vT0}, 2, v{vL}
            s_mov_b64 exec, 0xffff
            buffer_store_dword v{vT1}, v{vT0}, {sr(SWS, 4)}, s{sT0} offen
            """)
        k.e("s_waitcnt vmcnt(0)\nL_end:\ns_endpgm")
        for item in self.ool:
            if item[0] == "hs":
                _, top, done = item
                k.e(f"""
                {top}:
                s_mov_b32 s{sSPIN}, 0
                v_and_b32 v{vT0}, 3, v{vL}
                v_lshlrev_b32 v{vT0}, 6, v{vT0}
                {top}_l:
                """)
                self.spin_check(done)
                k.e(f"""
                buffer_load_dword v{vHS}, v{vT0}, {sr(SDBG, 4)}, 0 offen sc1
                s_waitcnt vmcnt(0)
                v_cmp_gt_u32 vcc, 64, v{vHS}
                s_cbranch_vccnz {top}_l
                s_branch {done}
                """)
            elif item[0] == "g":
                _, top, join, vm, lg = item
                k.vm, k.lg = vm, lg
                k.e(f"{top}:")
                self.g_block()
                k.e(f"s_branch {join}")
            elif item[0] == "glate":
                _, top, join, vm, lg, self.wo_next = item
                k.vm, k.lg = vm, lg
                k.e(f"{top}:")
                self.glate_block(join)
            elif item[0] == "exfix":
                _, top, ok, PK, T, A = item
                k.e(f"{top}:")
                for i in range(2):
                    k.e(f"v_and_b32 v{A + 2 * i}, 0xffff, v{PK + i}")
                    k.e(f"v_lshrrev_b32 v{A + 2 * i + 1}, 16, v{PK + i}")
                for i in range(4):
                    k.e(f"v_or_b32 v{A + i}, 0x80000000, v{A + i}")
                for i in range(4):
                    k.e(f"v_cndmask_b32 v{T + i}, v{T + i}, v{A + i}, vcc")
                k.e(f"s_branch {ok}")
            elif item[0] == "pollx":
                _, retry, ok, back, loads = item
                real = retry + "_r"
                k.e(f"""
                {retry}:
                v_cmp_eq_u32 vcc, -1, v{vT0}
                s_cbranch_vccnz {real}
                s_mov_b32 s{sA}, 1
                s_branch {ok}
                {real}:
                """)
                self.spin_check(ok)
                loads(False)
                k.e(f"s_waitcnt vmcnt(0)\ns_branch {back}")
            elif item[0] == "exslow":
                _, top, ok, CB, FR, Z, vFRD = item
                k.e(f"{top}:\ns_mov_b32 s{sA}, {f32(CT)}\ns_waitcnt lgkmcnt(0)")
                for r in range(8):
                    for hf in range(2):
                        k.e(f"ds_read_b128 {vr(FR + 8 * r + 4 * hf, 4)}, v{vFRD} offset:{FS + r * 256 + hf * 64}")
                k.e("s_waitcnt lgkmcnt(0)")
                for i in range(64):
                    for src, t in ((CB + i, Z), (FR + i, Z + 2)):
                        k.e(f"""
                        v_cmp_gt_i32 vcc, 0, v{src}
                        v_log_f32 v{t + 1}, v{src}
                        v_lshlrev_b32 v{t}, 16, v{src}
                        v_mul_f32 v{t}, s{sA}, v{t}
                        v_cndmask_b32 v{t}, v{t + 1}, v{t}, vcc
                        """)
                    k.e(f"""
                    v_add_f32 v{Z}, v{Z}, v{Z + 2}
                    s_nop 0
                    v_exp_f32 v{CB + i}, v{Z}
                    """)
                for i in range(4):
                    k.e(f"v_mov_b32 v{Z + 4 + i}, 1.0")
                for j in range(2):
                    k.e(f"ds_write_b128 v{vLIN}, {vr(Z + 4, 4)} offset:{FS + j * 1024}")
                k.e(f"s_branch {ok}")
            elif item[0] == "smp":
                _, top, done, vaddr, sbase = item
                k.e(f"{top}:\ns_mov_b32 s{sSPIN}, 0\n{top}_l:")
                self.spin_check(done)
                k.e(f"""
                buffer_load_dword v{vHS}, v{vaddr}, {sr(SWS, 4)}, s{sbase} offen sc1
                s_waitcnt vmcnt(0)
                v_cmp_eq_u32 vcc, -1, v{vHS}
                s_cbranch_vccnz {top}_l
                s_branch {done}
                """)
            else:
                kind, retry, ok, back, loads = item
                k.e(f"{retry}:")
                self.spin_check(ok)
                if kind == "bulk":
                    loads(False, True)
                else:
                    loads(False)
                k.e(f"s_waitcnt vmcnt(0)\ns_branch {back}")
        k.e("L_last:\ns_endpgm" + ("\nL_textend:" if self.o.get("warm") else ""))

    def build(self):
        k = self.k
        stop = self.stop_after
        self.prologue()
        self.stage1()
        self.w2_finish()
        if stop != "s1":
            self.stage2()
            self.stage2_tail()
            if stop not in ("s2", "ge"):
                self.stage3()
                if stop != "s3":
                    self.stage4()
        self.epilogue()
        return self.text()

    def text(self):
        head = f"""; RNN-T joint network: two stride-2 conv stems, w_f / w_g projections, tanh, w_o.
; @launch grid=(256,1,1) block=(256,1,1) lds={LDS_BYTES}
.amdgcn_target "amdgcn-amd-amdhsa--gfx950"
.text
.globl {NAME}
.p2align 8
.type {NAME},@function
{NAME}:
"""
        tail = f"""
.section .rodata,"a"
.p2align 6
.amdhsa_kernel {NAME}
  .amdhsa_next_free_vgpr 512
  .amdhsa_next_free_sgpr 102
  .amdhsa_accum_offset 256
  .amdhsa_group_segment_fixed_size 0
  .amdhsa_kernarg_size 80
  .amdhsa_user_sgpr_count 2
  .amdhsa_user_sgpr_kernarg_segment_ptr 1
  .amdhsa_system_sgpr_workgroup_id_x 1
.end_amdhsa_kernel
"""
        return head + self.k.text() + tail


if __name__ == "__main__":
    out = sys.argv[1] if len(sys.argv) > 1 else "cdna_kernels/" + NAME.replace("_kernel", "") + ".s"
    g = Gen2(stamps=False)
    open(out, "w").write(g.build())
    print("wrote", out)
```

```python
import math
import sys
from kb import K, vr, ar, sr, f32

NAME = "standalone__seq2seq_rnn_t_joint__speech_kernel"

H_OFF = 65536
F_OFF = H_OFF + (1 << 20)
FE_OFF = F_OFF + (1 << 19)
GE_OFF = FE_OFF + (1 << 20)
P_OFF = GE_OFF + 65536
WS_REC = 4 << 20
STAMP_OFF = 8 << 20
OOB = 0x80000000
SPIN_MAX = 4096

RW = 40960
RB = 17408
LDS_BYTES = 163840
T4 = [RB + 4096 * t for t in range(5)]
XS = [4096 * t for t in range(4)]
GS = RB + 20480
FS = GS + 1024

SX, SW1, SW2, SG, SWF, SWG, SWO, SOUT, SDBG, SWS = 24, 28, 32, 36, 40, 44, 48, 52, 56, 60
sW, sM, sN, sB, sMT, sRW, sML, sJN = 64, 65, 66, 67, 68, 69, 70, 71
sKI, sKC = 72, 3
sT0, sT1, sT2, sT3 = 73, 74, 75, 76
sSPIN = 77
STAMP0 = 78
sH, sFL, sFS, sFE, sGL, sGS, sHS, sA, sB2 = 4, 5, 6, 7, 8, 9, 10, 11, 12
sR4 = [13, 14, 15, 16]
sNH = 17
sFES, sWQ = 18, 19

vL, vT0, vT1, vT2, vT3, vLIN, vRD = 1, 2, 3, 4, 5, 6, 7
vXW = 8
vXA, vXZ, vQ0 = 12, 13, 14
vWA0, vWA1, vTR0, vTR1 = 15, 16, 17, 18
vXB = 19
vBA = 22
vW2 = 24
vT16 = 28
vONES = 32
vHS = 36
AF, BFR, ACC1, R1 = 40, 56, 64, 96
vLIN16, vH0, vSMP, vST, vRD2, vKC3, vSV, vFSM, vGST = 8, 9, 10, 11, 12, 13, 14, 19, 20
HB, ACC2, R2 = 128, 176, 192
vPF = 37
vGP = 21
vFST = 19

C1 = 2 * math.log2(math.e) * math.sqrt(2 / math.pi)
C3 = C1 * 0.044715
CT = 2 * math.log2(math.e)
EX_MAX = 125.0

DEFAULT_STAMPS = ("start", "iss", "x0", "s1mfma", "hst", "w2done", "hpoll", "s2mfma", "fst", "s3mfma", "fest", "end")
S1_STAMPS = ("start", "karg", "iss0", "iss", "x0", "u5", "u11", "u17", "s1mfma", "hst", "w2done", "end")
R4_STAMPS = ("start", "fepoll", "j01", "s4r0", "s4r1", "s4r2", "s4r3", "s4r4", "s4r5", "s4r6", "s4r7", "end")
R5_STAMPS = ("start", "fepoll2", "j01", "s4r0", "s4r1", "s4r2", "s4r3", "s4r4", "s4r5", "s4r6", "s4r7", "end")
G_STAMPS = ("start", "hst", "g0", "gdma", "gw2", "gwg", "gld", "gmf", "gend", "w2done", "hpoll", "end")
GL_STAMPS = ("start", "fst", "gdma", "gwg", "gld", "gmf", "gend", "fpoll", "s3mfma", "fest", "fepoll", "end")
S2_STAMPS = ("start", "s1mfma", "hst", "w2done", "hpoll", "s2mfma", "fst", "fpoll", "s3mfma", "fest", "fepoll", "end")
P_STAMPS = ("start", "karg", "probe", "iss0", "iss", "x0", "u5", "u11", "u17", "s1mfma", "hst", "end")
S4_STAMPS = ("start", "hst", "s2mfma", "fst", "fpoll", "s3mfma", "fest", "cb", "fepoll", "s4r3", "s4mfma", "end")


class Gen2:
    def __init__(self, stop_after=None, stamps=True, opts=None):
        self.k = K()
        self.stop_after = stop_after
        self.stamps = stamps
        self.nst = 0
        self.names = []
        self.o = dict(prefetch=False, rot=True, hplain=True, fplain=False, x2=1, x3=2,
                      b1B=4, b2C=4, trb3="loop", s4bar=3, w2in=3, w2mid=0, glate=0, g4=1,
                      fdirect=1, hdirect=3, ex=1, feat=-1, b3loop=4, b3pre=4, ltr0=2,
                      geplain=1, hbar=1, hearly=1, otr=1, outsc=1, xsplit=1)
        self.o.update(opts or {})
        self.rot = 0
        self.ool = []

    def stamp(self, name):
        names = self.o.get("stamps", DEFAULT_STAMPS)
        if not self.stamps or name not in names:
            return
        self.names = list(names)
        self.nst = len(names)
        r = STAMP0 + 2 * names.index(name)
        self.k.e(f"{'s_memtime' if self.o.get('memtime') else 's_memrealtime'} s[{r}:{r + 1}]")

    def tmp(self):
        self.rot = (self.rot + 1) % 4
        return sT0 + self.rot

    def tile(self, key, dst):
        self.k.e(f"s_xor_b32 s{dst}, s{sN}, {self.o[key]}")

    def srd(self, d, ptr, off, nrec):
        k = self.k
        if off is None:
            k.e(f"s_mov_b32 s{d}, s{ptr}\ns_mov_b32 s{d + 1}, s{ptr + 1}")
        else:
            k.e(f"s_add_u32 s{d}, s{ptr}, s{off}\ns_addc_u32 s{d + 1}, s{ptr + 1}, 0")
        k.e(f"s_mov_b32 s{d + 2}, {nrec}\ns_mov_b32 s{d + 3}, 0x20000")

    def nt(self, srd):
        key = {SW1: "ntw1", SW2: "ntw2", SWF: "ntwf", SWG: "ntwg", SWO: "ntwo", SX: "ntx"}[srd]
        return " nt" if self.o.get(key) else ""

    def dma2k(self, srd, lds_off, soff, tag):
        k = self.k
        nt = self.nt(srd)
        k.e(f"s_add_u32 m0, s{sRW}, {lds_off}")
        k.e("s_nop 0")
        k.vmem(f"buffer_load_dwordx4 v{vWA0}, {sr(srd, 4)}, {soff} offen{nt} lds", tag)
        k.vmem(f"buffer_load_dwordx4 v{vWA1}, {sr(srd, 4)}, {soff} offen offset:1024{nt} lds", tag)

    def dma4k_ops(self, srd, lds_off, soff_fn, tag):
        k = self.k
        st = {}

        def op(q):
            if q == 0:
                st["s"] = soff_fn()
                k.e(f"s_add_u32 m0, s{sRW}, {lds_off}")
                k.e("s_nop 0")
            o = f" offset:{q * 1024}" if q else ""
            k.vmem(f"buffer_load_dwordx4 v{vW2 + q}, {sr(srd, 4)}, {st['s']} offen{o}{self.nt(srd)} lds", tag)
        return [lambda q=q: op(q) for q in range(4)]

    def dma4k(self, srd, lds_off, soff_fn, tag):
        for op in self.dma4k_ops(srd, lds_off, soff_fn, tag):
            op()

    def tr32(self, lds_off, dst, kind, tag):
        k = self.k
        for ct, a in enumerate((vTR0, vTR1)):
            k.ds(f"ds_read_b64_tr_b16 {vr(dst + 4 * ct, 2, kind)}, v{a} offset:{lds_off}", tag)
            k.ds(f"ds_read_b64_tr_b16 {vr(dst + 4 * ct + 2, 2, kind)}, v{a} offset:{lds_off + 512}", tag)

    def tr16(self, lds_off, dst, kind, tag):
        k = self.k
        for ct in range(4):
            k.ds(f"ds_read_b64_tr_b16 {vr(dst + 4 * ct, 2, kind)}, v{vT16 + ct} offset:{lds_off}", tag)
            k.ds(f"ds_read_b64_tr_b16 {vr(dst + 4 * ct + 2, 2, kind)}, v{vT16 + ct} offset:{lds_off + 512}", tag)

    def mfma32(self, d, a, b, first, ak="v"):
        c = "0" if first else vr(d, 16)
        self.k.e(f"v_mfma_f32_32x32x16_bf16 {vr(d, 16)}, {vr(a, 4, ak)}, {vr(b, 4)}, {c}")

    def mfma16(self, d, a, b, first, ak="a"):
        c = "0" if first else vr(d, 4)
        self.k.e(f"v_mfma_f32_16x16x32_bf16 {vr(d, 4)}, {vr(a, 4, ak)}, {vr(b, 4)}, {c}")

    def gelu(self, xs, tmp, kc3):
        k = self.k
        ts = [tmp + i for i in range(len(xs))]
        for x, t in zip(xs, ts):
            k.e(f"v_mul_f32 v{t}, v{x}, v{x}")
        for x, t in zip(xs, ts):
            k.e(f"v_fmaak_f32 v{t}, v{t}, v{kc3}, {f32(-C1)}")
        for x, t in zip(xs, ts):
            k.e(f"v_mul_f32 v{t}, v{t}, v{x}")
        for x, t in zip(xs, ts):
            k.e(f"v_exp_f32 v{t}, v{t}")
        for x, t in zip(xs, ts):
            k.e(f"v_add_f32 v{t}, 1.0, v{t}")
        for x, t in zip(xs, ts):
            k.e(f"v_rcp_f32 v{t}, v{t}")
        for x, t in zip(xs, ts):
            k.e(f"v_mul_f32 v{x}, v{x}, v{t}")

    def spin_check(self, done_label):
        self.k.e(f"s_add_u32 s{sSPIN}, s{sSPIN}, 1\ns_cmp_ge_u32 s{sSPIN}, {SPIN_MAX}\ns_cbranch_scc1 {done_label}")

    def prologue(self):
        k = self.k
        rot = self.o["rot"]
        k.e("""
        s_cmp_ge_u32 s2, 256
        s_cbranch_scc1 L_end
        s_load_dwordx16 s[4:19], s[0:1], 0
        s_load_dwordx4 s[20:23], s[0:1], 64
        """)
        if self.o.get("warm"):
            k.e(f"""
            s_cmp_ge_u32 s2, {8 * self.o["warm"]}
            s_cbranch_scc1 L_nowarm
            s_getpc_b64 s[24:25]
            L_pc:
            v_lshlrev_b32 v38, 7, v0
            v_cmp_gt_u32 vcc, L_textend-L_pc, v38
            s_and_saveexec_b64 s[26:27], vcc
            s_cbranch_execz L_nowarm2
            v_mov_b32 v39, s25
            v_add_co_u32 v38, vcc, s24, v38
            s_nop 1
            v_addc_co_u32 v39, vcc, 0, v39, vcc
            global_load_dword v38, v[38:39], off
            L_nowarm2:
            s_mov_b64 exec, s[26:27]
            L_nowarm:
            """)
        self.stamp("start")
        k.e(f"""
        v_lshrrev_b32 v{vT0}, 6, v0
        v_and_b32 v{vL}, 63, v0
        v_readfirstlane_b32 s{sW}, v{vT0}
        s_and_b32 s{sT0}, s2, 7
        s_lshr_b32 s{sT1}, s2, 3
        s_add_u32 s{sJN}, s{sT1}, {self.o.get("jnrot", 0)}
        s_and_b32 s{sJN}, s{sJN}, 3
        s_lshr_b32 s{sML}, s{sT1}, 2
        s_and_b32 s{sT2}, s{sT0}, 1
        s_lshl_b32 s{sN}, s{sT2}, 2
        s_add_u32 s{sN}, s{sN}, s{sJN}
        s_lshr_b32 s{sT0}, s{sT0}, 1
        s_lshl_b32 s{sM}, s{sT0}, 3
        s_add_u32 s{sM}, s{sM}, s{sML}
        """)
        xs = self.o.get("xsplit", 0)
        if xs == 1:
            k.e(f"""
            s_and_b32 s{sT0}, s2, 3
            s_lshl_b32 s{sT0}, s{sT0}, 1
            s_and_b32 s{sT2}, s{sT1}, 1
            s_add_u32 s{sN}, s{sT0}, s{sT2}
            s_and_b32 s{sJN}, s{sN}, 3
            s_bfe_u32 s{sT0}, s2, 0x10002
            s_lshl_b32 s{sT0}, s{sT0}, 4
            s_lshr_b32 s{sT2}, s{sT1}, 1
            s_add_u32 s{sM}, s{sT0}, s{sT2}
            s_and_b32 s{sML}, s{sM}, 7
            """)
        elif xs == 2:
            k.e(f"""
            s_and_b32 s{sN}, s{sT1}, 7
            s_and_b32 s{sJN}, s{sN}, 3
            s_and_b32 s{sT0}, s2, 7
            s_lshl_b32 s{sT0}, s{sT0}, 2
            s_lshr_b32 s{sT2}, s{sT1}, 3
            s_add_u32 s{sM}, s{sT0}, s{sT2}
            s_and_b32 s{sML}, s{sM}, 7
            """)
        k.e(f"""
        s_lshr_b32 s{sB}, s{sM}, 4
        s_and_b32 s{sMT}, s{sM}, 15
        s_mul_i32 s{sRW}, s{sW}, {RW}
        v_lshrrev_b32 v{vT0}, 4, v{vL}
        v_lshrrev_b32 v{vT1}, 5, v{vL}
        v_and_b32 v{vT2}, 15, v{vL}
        v_xor_b32 v{vT2}, v{vT2}, v{vT1}
        v_lshlrev_b32 v{vT2}, 4, v{vT2}
        v_lshl_add_u32 v{vXW}, v{vT0}, 10, v{vT2}
        """)
        for e in range(1, 4):
            k.e(f"v_xor_b32 v{vXW + e}, {e * 32}, v{vXW}")
            k.e(f"v_add_u32 v{vXW + e}, {e * 3072}, v{vXW + e}")
        k.e(f"""
        v_cmp_gt_u32 vcc, 16, v{vL}
        v_bfrev_b32 v{vT0}, 1
        v_lshrrev_b32 v{vT1}, 3, v{vL}
        v_cndmask_b32 v{vQ0}, 0, v{vT0}, vcc
        v_bfe_u32 v{vT2}, v{vT1}, 1, 1
        v_lshlrev_b32 v{vT2}, 2, v{vT2}
        v_and_b32 v{vT3}, 7, v{vL}
        v_xor_b32 v{vT2}, v{vT2}, v{vT3}
        v_lshlrev_b32 v{vT2}, 4, v{vT2}
        v_lshl_add_u32 v{vWA0}, v{vT1}, 10, v{vT2}
        v_add_u32 v{vWA1}, 7168, v{vWA0}
        s_lshl_b32 s{sT0}, s{sW}, 17
        s_lshl_b32 s{sT1}, s{sN}, 7
        s_add_u32 s3, s{sT0}, s{sT1}
        s_mul_i32 s{sT0}, s{sB}, 1000
        s_lshl_b32 s{sT1}, s{sMT}, 6
        s_add_u32 s{sT0}, s{sT0}, s{sT1}
        s_sub_u32 s{sT0}, s{sT0}, 1
        s_lshl_b32 s{sT0}, s{sT0}, 10
        s_lshl_b32 s{sT2}, s{sW}, 8
        s_add_u32 s{sT0}, s{sT0}, s{sT2}
        s_ashr_i32 s{sT3}, s{sT0}, 31
        s_sub_u32 s{sT1}, 1001, s{sT1}
        s_lshl_b32 s{sT1}, s{sT1}, 10
        s_sub_u32 s{SX + 2}, s{sT1}, s{sT2}
        s_mov_b32 s{SX + 3}, 0x20000
        s_sub_u32 s{SW1 + 2}, 1572864, s3
        s_mov_b32 s{SW1 + 3}, 0x20000
        """)
        if rot:
            k.e(f"s_lshl_b32 s{sKI}, s{sML}, 14")
        else:
            k.e(f"s_mov_b32 s{sKI}, 0")
        k.e("s_waitcnt lgkmcnt(0)")
        self.stamp("karg")
        k.e(f"""
        s_add_u32 s{SX}, s4, s{sT0}
        s_addc_u32 s{SX + 1}, s5, s{sT3}
        s_add_u32 s{SW1}, s6, s3
        s_addc_u32 s{SW1 + 1}, s7, 0
        """)

    def code_prefetch(self):
        k = self.k
        mode = self.o.get("cpf", 0)
        if not mode:
            return
        lab = k.label("pf")
        k.e(f"""
        s_cmp_lg_u32 s{sW}, {self.o.get("cpfw", 3)}
        s_cbranch_scc1 {lab}
        s_getpc_b64 s[{sT0 + 1}:{sT0 + 2}]
        L_pc:
        s_lshr_b32 s{sT0}, s2, 3
        s_lshl_b32 s{sT0}, s{sT0}, 11
        v_lshlrev_b32 v{vT0}, 7, v{vL}
        v_add_u32 v{vT0}, s{sT0}, v{vT0}
        v_min_u32 v{vT0}, L_last-L_pc, v{vT0}
        s_mov_b64 exec, 0xffff
        global_load_dword v{vPF}, v{vT0}, s[{sT0 + 1}:{sT0 + 2}]
        s_mov_b64 exec, -1
        {lab}:
        """)

    def g_prefetch(self):
        k = self.k
        k.e(f"""
        s_lshr_b32 s{sT0}, s2, 3
        s_lshl_b32 s{sT1}, s{sT0}, 12
        v_lshlrev_b32 v{vT0}, 10, v{vL}
        v_add_u32 v{vT0}, s{sT1}, v{vT0}
        s_lshr_b32 s{sT1}, s{sT0}, 1
        s_lshl_b32 s{sT1}, s{sT1}, 10
        s_and_b32 s{sT0}, s{sT0}, 1
        s_lshl_b32 s{sT0}, s{sT0}, 7
        s_add_u32 s{sT0}, s{sT0}, s{sT1}
        v_mov_b32 v{vT1}, s{sT0}
        s_mov_b64 exec, 15
        """)
        k.vmem(f"buffer_load_dword v{vPF}, v{vT0}, {sr(SWG, 4)}, 0 offen", "pf")
        k.e("s_mov_b64 exec, 1")
        k.vmem(f"buffer_load_dword v{vPF + 1}, v{vT1}, {sr(SG, 4)}, 0 offen", "pf")
        k.e("s_mov_b64 exec, -1")

    def l2pf(self, pos):
        k = self.k
        for key, srd, lanes in (("pfw2", SW2, 48), ("pfwf", SWF, 16), ("pfwo", SWO, 16)):
            if self.o.get(key) != pos:
                continue
            if srd == SWO:
                k.e(f"s_lshr_b32 s{sT0}, s2, 3\ns_lshl_b32 s{sT0}, s{sT0}, 14")
            else:
                k.e(f"s_lshl_b32 s{sT0}, s{sML}, 14")
            k.e(f"""
            v_and_b32 v{vT1}, 15, v{vL}
            v_lshlrev_b32 v{vT1}, 10, v{vT1}
            v_lshrrev_b32 v{vT2}, 4, v{vL}
            v_lshl_add_u32 v{vT1}, v{vT2}, 19, v{vT1}
            s_bfm_b64 exec, {lanes}, 0
            """)
            k.vmem(f"buffer_load_dword v{vPF}, v{vT1}, {sr(srd, 4)}, s{sT0} offen", "pf")
            k.e("s_mov_b64 exec, -1")

    def x_quarter(self, qq):
        k = self.k
        a, z = sT0, sT1
        if self.o["rot"]:
            k.e(f"s_add_u32 s{a}, s{sJN}, {qq}\ns_and_b32 s{a}, s{a}, 3")
        else:
            k.e(f"s_mov_b32 s{a}, {qq}")
        k.e(f"""
        s_lshl_b32 s{sT2}, s{a}, 12
        s_add_u32 m0, s{sT2}, s{sRW}
        s_or_b32 s{z}, s{a}, s{sMT}
        s_cmp_eq_u32 s{z}, 0
        s_cselect_b32 s{z}, -1, 0
        s_and_b32 s{sT3}, s{a}, 1
        s_lshl_b32 s{sT3}, s{sT3}, 7
        s_lshl_b32 s{a}, s{a}, 14
        s_or_b32 s{a}, s{a}, s{sT3}
        """)
        for e in range(4):
            t = vXA if e % 2 == 0 else vXZ
            k.e(f"v_xor_b32 v{t}, s{a}, v{vXW + e}")
            if e == 0:
                k.e(f"v_and_or_b32 v{t}, v{vQ0}, s{z}, v{t}")
            o = f" offset:{e * 1024}" if e else ""
            k.vmem(f"buffer_load_dwordx4 v{t}, {sr(SX, 4)}, 0 offen{o}{self.nt(SX)} lds", "x")
            if qq == 0 and self.o.get("probe") == e + 1:
                k.e("s_waitcnt vmcnt(0)")
                self.stamp("probe")

    def x_tail(self):
        k = self.k
        k.e(f"""
        v_lshlrev_b32 v{vXA}, 4, v{vL}
        v_add_u32 v{vXA}, 65536, v{vXA}
        s_add_u32 m0, s{sRW}, 16384
        s_mov_b64 exec, 0xffff
        """)
        k.vmem(f"buffer_load_dwordx4 v{vXA}, {sr(SX, 4)}, 0 offen{self.nt(SX)} lds", "x")
        k.e("s_mov_b64 exec, -1")

    def w1_issue(self, u):
        k = self.k
        i = u % 3
        if i == 0 and u:
            k.e(f"s_add_u32 s{sKI}, s{sKI}, 16384\ns_and_b32 s{sKI}, s{sKI}, 0x1c000")
        if i:
            t = self.tmp()
            k.e(f"s_add_u32 s{t}, s{sKI}, {i * 524288}")
            so = f"s{t}"
        else:
            so = f"s{sKI}"
        self.dma2k(SW1, RB + 2048 * (u % 10), so, ("w1", u))

    def rot4(self):
        k = self.k
        for j in range(4):
            if self.o["rot"]:
                k.e(f"s_add_u32 s{sR4[j]}, s{sML}, {j}\ns_and_b32 s{sR4[j]}, s{sR4[j]}, 3\ns_lshl_b32 s{sR4[j]}, s{sR4[j]}, 10")
            else:
                k.e(f"s_mov_b32 s{sR4[j]}, {j * 1024}")

    def w32_soff(self, j, tap):
        def fn():
            t = self.tmp()
            self.k.e(f"s_lshl_b32 s{t}, s{sR4[j]}, 5")
            if tap:
                self.k.e(f"s_add_u32 s{t}, s{t}, {tap * 524288}")
            return f"s{t}"
        return fn

    def w2_slot(self, v):
        xs = [XS[2], XS[3], XS[0], XS[1]] if self.o["w2in"] + self.o["w2mid"] > 5 else XS
        return [T4[2], T4[3], T4[4], T4[0], T4[1], xs[0], xs[1], xs[2], xs[3], T4[2], T4[3], T4[4]][v]

    def w2_ops(self, v):
        return self.dma4k_ops(SW2, self.w2_slot(v), self.w32_soff(v // 3, v % 3), ("w2", v))

    def clears(self):
        k = self.k
        self.srd(SWS, 22, None, WS_REC)
        k.e(f"""
        v_mov_b32 v{vONES}, -1
        v_mov_b32 v{vONES + 1}, -1
        v_mov_b32 v{vONES + 2}, -1
        v_mov_b32 v{vONES + 3}, -1
        v_lshlrev_b32 v{vT0}, 4, v{vL}
        s_lshl_b32 s{sT0}, s{sM}, 14
        s_lshl_b32 s{sT2}, s{sW}, 9
        s_add_u32 s{sT0}, s{sT0}, s{sT2}
        """)
        self.tile("x2", sT1)
        k.e(f"""
        s_lshl_b32 s{sT1}, s{sT1}, 11
        s_add_u32 s{sT2}, s{sT0}, {F_OFF}
        s_add_u32 s{sT2}, s{sT2}, s{sT1}
        """)
        self.tile("x3", sT1)
        ex = self.o["ex"]
        if ex:
            k.e(f"""
            s_lshl_b32 s{sT1}, s{sT1}, 11
            s_add_u32 s{sT3}, s{sT0}, s{sT1}
            s_lshl_b32 s{sT3}, s{sT3}, 1
            s_add_u32 s{sT3}, s{sT3}, {FE_OFF}
            """)
            if self.o.get("noclr"):
                k.e("s_mov_b64 exec, 1")
            if self.o.get("fepos") is None:
                k.vmem(f"buffer_store_dwordx4 {vr(vONES, 4)}, v{vT0}, {sr(SWS, 4)}, s{sT3} offen sc1", "clr")
            if self.o.get("fpos") is None:
                k.e("s_mov_b32 exec_hi, 0")
                k.vmem(f"buffer_store_dwordx4 {vr(vONES, 4)}, v{vT0}, {sr(SWS, 4)}, s{sT2} offen sc1", "clr")
        else:
            k.e(f"""
            s_lshl_b32 s{sT1}, s{sT1}, 11
            s_add_u32 s{sT3}, s{sT0}, {FE_OFF}
            s_add_u32 s{sT3}, s{sT3}, s{sT1}
            s_mov_b32 exec_hi, 0
            """)
            k.vmem(f"buffer_store_dwordx4 {vr(vONES, 4)}, v{vT0}, {sr(SWS, 4)}, s{sT2} offen sc1", "clr")
            k.vmem(f"buffer_store_dwordx4 {vr(vONES, 4)}, v{vT0}, {sr(SWS, 4)}, s{sT3} offen sc1", "clr")
        lab = k.label("c0")
        k.e(f"""
        s_mov_b64 exec, -1
        s_cmp_lg_u32 s{sW}, 0
        s_cbranch_scc1 {lab}
        s_lshl_b32 s{sT0}, s{sM}, 15
        s_lshl_b32 s{sT1}, s{sN}, 11
        s_add_u32 s{sT0}, s{sT0}, s{sT1}
        s_add_u32 s{sT0}, s{sT0}, {H_OFF}
        s_add_u32 s{sT1}, s{sT0}, 16384
        {"s_mov_b64 exec, 1" if self.o.get("noclr") else ""}
        buffer_store_dwordx4 {vr(vONES, 4)}, v{vT0}, {sr(SWS, 4)}, s{sT0} offen sc1
        buffer_store_dwordx4 {vr(vONES, 4)}, v{vT0}, {sr(SWS, 4)}, s{sT0} offen offset:1024 sc1
        buffer_store_dwordx4 {vr(vONES, 4)}, v{vT0}, {sr(SWS, 4)}, s{sT1} offen sc1
        buffer_store_dwordx4 {vr(vONES, 4)}, v{vT0}, {sr(SWS, 4)}, s{sT1} offen offset:1024 sc1
        {"s_mov_b64 exec, -1" if self.o.get("noclr") else ""}
        """)
        if self.o["g4"]:
            k.e(f"""
            s_cmp_lg_u32 s{sN}, 0
            s_cbranch_scc1 {lab}
            s_and_b32 s{sT0}, s{sM}, 7
            s_lshr_b32 s{sT1}, s{sM}, 3
            s_lshl_b32 s{sT2}, s{sT0}, 14
            s_lshl_b32 s{sT3}, s{sT1}, 12
            s_add_u32 s{sT2}, s{sT2}, s{sT3}
            s_add_u32 s{sT2}, s{sT2}, {P_OFF}
            s_lshl_b32 s{sT0}, s{sT0}, {10 + ex}
            s_lshl_b32 s{sT1}, s{sT1}, {8 + ex}
            s_add_u32 s{sT0}, s{sT0}, s{sT1}
            s_add_u32 s{sT0}, s{sT0}, {GE_OFF}
            s_add_u32 s{sT1}, s{sT0}, {8192 << ex}
            buffer_store_dwordx4 {vr(vONES, 4)}, v{vT0}, {sr(SWS, 4)}, s{sT2} offen sc1
            buffer_store_dwordx4 {vr(vONES, 4)}, v{vT0}, {sr(SWS, 4)}, s{sT2} offen offset:1024 sc1
            buffer_store_dwordx4 {vr(vONES, 4)}, v{vT0}, {sr(SWS, 4)}, s{sT2} offen offset:2048 sc1
            buffer_store_dwordx4 {vr(vONES, 4)}, v{vT0}, {sr(SWS, 4)}, s{sT2} offen offset:3072 sc1
            s_bfm_b64 exec, {16 << ex}, 0
            buffer_store_dwordx4 {vr(vONES, 4)}, v{vT0}, {sr(SWS, 4)}, s{sT0} offen sc1
            buffer_store_dwordx4 {vr(vONES, 4)}, v{vT0}, {sr(SWS, 4)}, s{sT1} offen sc1
            s_mov_b64 exec, -1
            {lab}:
            """)
            return
        k.e(f"""
        s_cmp_ge_u32 s2, 8
        s_cbranch_scc1 {lab}
        s_lshl_b32 s{sT0}, s2, 10
        s_add_u32 s{sT0}, s{sT0}, {GE_OFF}
        s_add_u32 s{sT1}, s{sT0}, 8192
        buffer_store_dwordx4 {vr(vONES, 4)}, v{vT0}, {sr(SWS, 4)}, s{sT0} offen sc1
        buffer_store_dwordx4 {vr(vONES, 4)}, v{vT0}, {sr(SWS, 4)}, s{sT1} offen sc1
        {lab}:
        """)

    def late_clear(self, which):
        k = self.k
        A = 38
        a, b = self.tmp(), self.tmp()
        k.e(f"s_lshl_b32 s{a}, s{sM}, 14\ns_lshl_b32 s{b}, s{sW}, 9\ns_add_u32 s{a}, s{a}, s{b}")
        self.tile("x2" if which == "f" else "x3", b)
        k.e(f"s_lshl_b32 s{b}, s{b}, 11\ns_add_u32 s{a}, s{a}, s{b}")
        if which == "fe":
            k.e(f"s_lshl_b32 s{a}, s{a}, 1")
        k.e(f"s_add_u32 s{a}, s{a}, {F_OFF if which == 'f' else FE_OFF}")
        k.e(f"v_lshlrev_b32 v{A}, 4, v{vL}")
        if which == "f":
            k.e("s_mov_b32 exec_hi, 0")
        k.vmem(f"buffer_store_dwordx4 {vr(vONES, 4)}, v{A}, {sr(SWS, 4)}, s{a} offen sc1", "clr" + which)
        if which == "f":
            k.e("s_mov_b32 exec_hi, -1")

    def clear_at(self, pos):
        for which, key in (("f", "fpos"), ("fe", "fepos")):
            if self.o.get(key) == pos:
                self.late_clear(which)

    def prologue2(self):
        k = self.k
        for key, d, ptr, size in (("x2", SW2, 8, 1572864), ("x3", SWF, 12, 524288), (None, SWG, 14, 524288)):
            if key is None and self.o["g4"]:
                k.e(f"""
                s_and_b32 s{sT0}, s{sM}, 7
                s_lshl_b32 s{sT0}, s{sT0}, 7
                s_lshr_b32 s{sT1}, s{sM}, 3
                s_lshl_b32 s{sT1}, s{sT1}, 17
                s_add_u32 s{sT0}, s{sT0}, s{sT1}
                s_lshl_b32 s{sT1}, s{sW}, 15
                s_add_u32 s{sT0}, s{sT0}, s{sT1}
                s_sub_u32 s{sT1}, {size}, s{sT0}
                """)
                self.srd(d, ptr, sT0, f"s{sT1}")
                continue
            if key:
                self.tile(key, sT0)
            else:
                k.e(f"s_and_b32 s{sT0}, s2, 7")
            k.e(f"""
            s_lshl_b32 s{sT0}, s{sT0}, 7
            s_lshl_b32 s{sT1}, s{sW}, 17
            s_add_u32 s{sT0}, s{sT0}, s{sT1}
            s_sub_u32 s{sT1}, {size}, s{sT0}
            """)
            self.srd(d, ptr, sT0, f"s{sT1}")
        if self.o["g4"]:
            k.e(f"""
            s_lshr_b32 s{sT0}, s{sM}, 3
            s_lshl_b32 s{sT0}, s{sT0}, 8
            s_lshl_b32 s{sT1}, s{sW}, 6
            s_add_u32 s{sT0}, s{sT0}, s{sT1}
            s_sub_u32 s{sT1}, 16384, s{sT0}
            """)
        else:
            k.e(f"""
            s_lshl_b32 s{sT0}, s{sW}, 8
            s_sub_u32 s{sT1}, 16384, s{sT0}
            """)
        self.srd(SG, 10, sT0, f"s{sT1}")
        k.e(f"""
        s_lshr_b32 s{sT2}, s{sN}, 2
        s_lshl_b32 s{sT0}, s{sT2}, 9
        s_lshl_b32 s{sT1}, s{sW}, 7
        s_add_u32 s{sT0}, s{sT0}, s{sT1}
        s_sub_u32 s{sT1}, 524288, s{sT0}
        """)
        self.srd(SWO, 16, sT0, f"s{sT1}")
        k.e(f"s_mul_i32 s{sT0}, s{sB}, 2048000")
        self.srd(SOUT, 18, sT0, 2048000)
        self.srd(SDBG, 20, None, 256)
        k.e(f"s_lshr_b32 s{sNH}, s{sN}, 2")
        self.rot4()
        k.e(f"""
        v_lshlrev_b32 v{vT0}, 4, v{vL}
        v_add_u32 v{vLIN}, s{sRW}, v{vT0}
        v_bfe_u32 v{vT0}, v{vL}, 2, 2
        v_lshrrev_b32 v{vT1}, 5, v{vL}
        v_lshl_add_u32 v{vT1}, v{vT1}, 3, v{vT0}
        v_lshlrev_b32 v{vT1}, 7, v{vT1}
        v_lshrrev_b32 v{vT2}, 1, v{vT0}
        v_lshl_add_u32 v{vT1}, v{vT2}, 6, v{vT1}
        v_bfe_u32 v{vT2}, v{vL}, 4, 1
        v_lshl_add_u32 v{vT1}, v{vT2}, 5, v{vT1}
        v_and_b32 v{vT2}, 3, v{vL}
        v_lshl_add_u32 v{vT1}, v{vT2}, 3, v{vT1}
        v_add_u32 v{vTR0}, s{sRW}, v{vT1}
        v_xor_b32 v{vT1}, 64, v{vT1}
        v_add_u32 v{vTR1}, s{sRW}, v{vT1}
        """)
        k.e(f"""
        v_and_b32 v{vT0}, 31, v{vL}
        v_lshrrev_b32 v{vT1}, 5, v{vL}
        v_and_b32 v{vT2}, 15, v{vT0}
        v_xor_b32 v{vT2}, v{vT2}, v{vT1}
        v_lshlrev_b32 v{vT2}, 4, v{vT2}
        v_lshl_add_u32 v{vT2}, v{vT0}, 9, v{vT2}
        v_add_u32 v{vXB}, s{sRW}, v{vT2}
        v_add_u32 v{vXB + 1}, 256, v{vXB}
        v_add_u32 v{vT2}, 1, v{vT0}
        v_and_b32 v{vT2}, 15, v{vT2}
        v_xor_b32 v{vT2}, v{vT2}, v{vT1}
        v_lshlrev_b32 v{vT2}, 4, v{vT2}
        v_lshl_add_u32 v{vT2}, v{vT0}, 9, v{vT2}
        v_add_u32 v{vT2}, 512, v{vT2}
        v_add_u32 v{vXB + 2}, s{sRW}, v{vT2}
        """)
        k.e(f"""
        v_lshrrev_b32 v{vT0}, 3, v{vL}
        v_bfe_u32 v{vT1}, v{vT0}, 1, 1
        v_lshlrev_b32 v{vT1}, 1, v{vT1}
        v_and_b32 v{vT2}, 7, v{vL}
        v_xor_b32 v{vT1}, v{vT1}, v{vT2}
        v_lshlrev_b32 v{vT1}, 4, v{vT1}
        v_lshl_add_u32 v{vW2}, v{vT0}, 10, v{vT1}
        v_xor_b32 v{vT1}, 64, v{vW2}
        v_add_u32 v{vW2 + 1}, 7168, v{vT1}
        v_add_u32 v{vW2 + 2}, {2 * 7168}, v{vW2}
        v_add_u32 v{vW2 + 3}, {3 * 7168}, v{vT1}
        v_lshrrev_b32 v{vT0}, 4, v{vL}
        v_bfe_u32 v{vT1}, v{vL}, 2, 2
        v_lshl_add_u32 v{vT2}, v{vT0}, 3, v{vT1}
        v_lshlrev_b32 v{vT2}, 7, v{vT2}
        v_lshrrev_b32 v{vT1}, 1, v{vT1}
        v_and_b32 v{vT0}, 1, v{vT0}
        v_lshl_add_u32 v{vT1}, v{vT0}, 1, v{vT1}
        v_lshl_add_u32 v{vT2}, v{vT1}, 5, v{vT2}
        v_and_b32 v{vT1}, 3, v{vL}
        v_lshl_add_u32 v{vT2}, v{vT1}, 3, v{vT2}
        v_add_u32 v{vT16}, s{sRW}, v{vT2}
        """)
        for ct in range(1, 4):
            k.e(f"v_xor_b32 v{vT0}, {ct * 32}, v{vT2}\nv_add_u32 v{vT16 + ct}, s{sRW}, v{vT0}")
        k.e(f"""
        v_and_b32 v{vT0}, 15, v{vL}
        v_bfe_u32 v{vT1}, v{vL}, 4, 1
        v_lshl_add_u32 v{vT0}, v{vT0}, 1, v{vT1}
        v_lshlrev_b32 v{vT0}, 4, v{vT0}
        v_lshrrev_b32 v{vT1}, 5, v{vL}
        v_lshl_add_u32 v{vT0}, v{vT1}, 10, v{vT0}
        s_lshl_b32 s{sT0}, s{sW}, 11
        v_add_u32 v{vRD}, s{sT0}, v{vT0}
        """)
        if self.o["rot"]:
            k.e(f"s_lshl_b32 s{sKC}, s{sML}, 5")
        else:
            k.e(f"s_mov_b32 s{sKC}, 0")

    def stage1(self):
        k = self.k
        if self.o.get("cpf") == 1:
            self.code_prefetch()
        self.x_quarter(0)
        for u in range(3):
            self.w1_issue(u)
        if self.o.get("cpf") == 2:
            self.code_prefetch()
        self.clears()
        for qq in range(1, 4):
            self.x_quarter(qq)
        self.x_tail()
        self.stamp("iss0")
        self.prologue2()
        if self.o.get("gpf", 1) and not self.o["g4"]:
            self.g_prefetch()
        self.l2pf("iss0")
        for u in range(3, 10):
            self.w1_issue(u)
        self.l2pf("iss")
        self.stamp("iss")
        k.wait(vm="x")
        self.stamp("x0")
        lab = k.label("hs")
        k.e(f"""
        s_cmp_lg_u32 s{sW}, 0
        s_cbranch_scc1 {lab}
        s_and_b32 s{sT0}, s2, 3
        s_lshl_b32 s{sT0}, s{sT0}, 6
        v_mov_b32 v{vT0}, s{sT0}
        v_mov_b32 v{vT1}, 1
        s_mov_b64 exec, 1
        buffer_atomic_add v{vT1}, v{vT0}, {sr(SDBG, 4)}, 0 offen sc1
        s_mov_b64 exec, -1
        {lab}:
        """)

        def mm(u):
            a, b = AF + 8 * (u & 1), BFR + 4 * (u & 1)
            self.mfma32(ACC1, a, b, u == 0)
            self.mfma32(ACC1 + 16, a + 4, b, u == 0)

        def refill(u):
            if u + 10 < 24:
                self.w1_issue(u + 10)
            elif u >= 15 and u % 2 == 1 and (u - 15) // 2 < self.o["w2in"]:
                for op in self.w2_ops((u - 15) // 2):
                    op()
            self.l2pf(u)
            self.clear_at(u)
            if u == 17:
                k.e(f"v_and_b32 v{vT0}, 3, v{vL}\nv_lshlrev_b32 v{vT0}, 6, v{vT0}")
                k.vmem(f"buffer_load_dword v{vHS}, v{vT0}, {sr(SDBG, 4)}, 0 offen sc1", "hs")

        for u in range(24):
            i = u % 3
            if i == 0 and u:
                k.e(f"s_add_u32 s{sKC}, s{sKC}, 32\ns_and_b32 s{sKC}, s{sKC}, 0xe0")
            k.e(f"v_xor_b32 v{vBA + (u & 1)}, s{sKC}, v{vXB + i}")
            k.wait(vm=("w1", u))
            self.tr32(RB + 2048 * (u % 10), AF + 8 * (u & 1), "v", ("u", u))
            k.ds(f"ds_read_b128 {vr(BFR + 4 * (u & 1), 4)}, v{vBA + (u & 1)}", ("u", u))
            if u:
                k.wait(lg=("u", u - 1))
                mm(u - 1)
                refill(u - 1)
            if u in (5, 11, 17):
                self.stamp(f"u{u}")
        k.wait(lg=("u", 23))
        mm(23)
        refill(23)
        self.stamp("s1mfma")
        if self.o["g4"]:
            self.g4_issue()
        self.l2pf("s1end")
        k.e(f"v_mov_b32 v{vKC3}, {f32(-C3)}")
        k.e(f"v_add_u32 v{vT3}, {2 * RW}, v{vRD}")
        k.nop(10)
        for blk in range(8):
            k.ds(f"ds_write_b128 v{vLIN}, {vr(ACC1 + 4 * blk, 4)} offset:{blk * 1024}")
        k.wait(vm="clrf")
        k.wait(lg="all")
        k.e("s_barrier")
        for sw in range(4):
            a = vRD if sw < 2 else vT3
            for j in range(2):
                k.ds(f"ds_read_b128 {vr(R1 + 8 * sw + 4 * j, 4)}, v{a} offset:{(sw & 1) * RW + j * 512}", ("r", sw))
        def h_addr():
            k.e(f"""
            v_and_b32 v{vT0}, 15, v{vL}
            v_lshlrev_b32 v{vT0}, 4, v{vT0}
            v_bfe_u32 v{vT1}, v{vL}, 4, 1
            v_lshl_add_u32 v{vT0}, v{vT1}, 14, v{vT0}
            v_lshrrev_b32 v{vT1}, 5, v{vL}
            v_lshl_add_u32 v{vT0}, v{vT1}, 8, v{vT0}
            s_lshl_b32 s{sT0}, s{sM}, 15
            s_lshl_b32 s{sT1}, s{sN}, 11
            s_add_u32 s{sT0}, s{sT0}, s{sT1}
            s_lshl_b32 s{sT1}, s{sW}, 9
            s_add_u32 s{sT0}, s{sT0}, s{sT1}
            s_add_u32 s{sT0}, s{sT0}, {H_OFF}
            """)
        if self.o.get("hearly"):
            h_addr()
        assert self.o["w2in"] + self.o["w2mid"] <= 7
        for v in range(self.o["w2in"], self.o["w2in"] + self.o["w2mid"]):
            for op in self.w2_ops(v):
                op()
        k.wait(lg=("r", 1))
        for i in range(8):
            k.e(f"v_add_f32 v{R1 + i}, v{R1 + i}, v{R1 + 8 + i}")
        k.wait(lg=("r", 3))
        for i in range(8):
            k.e(f"v_add_f32 v{R1 + 16 + i}, v{R1 + 16 + i}, v{R1 + 24 + i}")
        for i in range(8):
            k.e(f"v_add_f32 v{R1 + i}, v{R1 + i}, v{R1 + 16 + i}")
        self.gelu([R1 + i for i in range(8)], R1 + 8, vKC3)
        for i in range(4):
            k.e(f"v_cvt_pk_bf16_f32 v{R1 + 16 + i}, v{R1 + 2 * i}, v{R1 + 2 * i + 1}")
        if not self.o.get("hearly"):
            h_addr()
        k.vmem(f"buffer_store_dwordx4 {vr(R1 + 16, 4)}, v{vT0}, {sr(SWS, 4)}, s{sT0} offen sc1", "hst")
        self.stamp("hst")
        self.clear_at("hst")
        if not self.o.get("hbar"):
            k.e("s_barrier")

    def setup2(self):
        k = self.k
        k.e(f"""
        v_lshlrev_b32 v{vLIN16}, 4, v{vL}
        v_and_b32 v{vT0}, 15, v{vL}
        v_lshrrev_b32 v{vT1}, 4, v{vL}
        v_add_u32 v{vH0}, {32768 - 16}, v{vLIN16}
        v_lshlrev_b32 v{vT2}, 8, v{vT1}
        v_add_u32 v{vT2}, 240, v{vT2}
        s_cmp_eq_u32 s{sMT}, 0
        s_cselect_b32 s{sT0}, {OOB}, 0
        v_add_u32 v{vT2}, s{sT0}, v{vT2}
        v_cmp_eq_u32 vcc, 0, v{vT0}
        v_and_b32 v{vT3}, 7, v{vL}
        v_lshlrev_b32 v{vT3}, 9, v{vT3}
        v_cndmask_b32 v{vH0}, v{vH0}, v{vT2}, vcc
        v_add_u32 v{vFSM}, {256 + 240 + 12}, v{vT3}
        v_add_u32 v{vSMP}, 16384, v{vFSM}
        v_add_u32 v{vT2}, 32768, v{vSMP}
        v_add_u32 v{vT3}, s{sT0}, v{vSMP}
        v_cmp_gt_u32 vcc, 8, v{vL}
        v_bfrev_b32 v{vSV}, 1
        s_nop 0
        v_cndmask_b32 v{vSMP}, v{vT3}, v{vT2}, vcc
        v_cndmask_b32 v{vFSM}, v{vSV}, v{vFSM}, vcc
        v_cmp_gt_u32 vcc, 16, v{vL}
        v_lshrrev_b32 v{vT2}, 1, v{vT1}
        v_lshlrev_b32 v{vT2}, 8, v{vT2}
        v_cndmask_b32 v{vSMP}, v{vSV}, v{vSMP}, vcc
        v_lshl_add_u32 v{vT2}, v{vT0}, 4, v{vT2}
        v_and_b32 v{vT1}, 1, v{vT1}
        v_lshl_add_u32 v{vST}, v{vT1}, 3, v{vT2}
        s_lshl_b32 s{sT0}, s{sW}, 10
        v_add_u32 v{vRD2}, s{sT0}, v{vLIN16}
        s_lshl_b32 s{sT0}, s{sM}, 15
        s_lshl_b32 s{sT1}, s{sW}, 12
        s_add_u32 s{sH}, s{sT0}, s{sT1}
        s_add_u32 s{sH}, s{sH}, {H_OFF}
        s_sub_u32 s{sHS}, s{sH}, 32768
        s_lshl_b32 s{sT0}, s{sM}, 14
        s_add_u32 s{sFL}, s{sT0}, s{sT1}
        s_add_u32 s{sFL}, s{sFL}, {F_OFF}
        s_lshl_b32 s{sT1}, s{sW}, 9
        s_add_u32 s{sT0}, s{sT0}, s{sT1}
        s_xor_b32 s{sT1}, s{sN}, {self.o["x2"]}
        s_lshl_b32 s{sT1}, s{sT1}, 11
        s_add_u32 s{sFS}, s{sT0}, s{sT1}
        s_add_u32 s{sFS}, s{sFS}, {F_OFF}
        s_xor_b32 s{sT1}, s{sN}, {self.o["x3"]}
        s_lshl_b32 s{sT1}, s{sT1}, 11
        s_add_u32 s{sFES}, s{sT0}, s{sT1}
        {f"s_lshl_b32 s{sFES}, s{sFES}, 1" if self.o["ex"] else ""}
        s_add_u32 s{sFES}, s{sFES}, {FE_OFF}
        v_bfrev_b32 v{vGST}, 1
        s_lshl_b32 s{sWQ}, s{sML}, 16
        s_sub_u32 s{sWQ}, s{sWQ}, 16384
        """)
        if self.o["ex"]:
            assert self.o["fdirect"] and self.o["g4"]
            k.e(f"""
            v_lshrrev_b32 v{vT0}, 5, v{vL}
            v_lshlrev_b32 v{vT0}, 9, v{vT0}
            v_bfe_u32 v{vT1}, v{vL}, 2, 2
            v_lshl_add_u32 v{vT0}, v{vT1}, 7, v{vT0}
            v_bfe_u32 v{vT1}, v{vL}, 4, 1
            v_lshl_add_u32 v{vT0}, v{vT1}, 6, v{vT0}
            v_and_b32 v{vT1}, 3, v{vL}
            v_lshl_add_u32 v{vFST}, v{vT1}, 4, v{vT0}
            """)
        if self.o["g4"]:
            ex = self.o["ex"]
            k.e(f"""
            s_or_b32 s{sT0}, s{sN}, s{sW}
            s_cmp_eq_u32 s{sT0}, 0
            s_cselect_b32 s{sT2}, 0, {OOB}
            s_and_b32 s{sT0}, s{sM}, 7
            s_lshr_b32 s{sT1}, s{sM}, 3
            s_lshl_b32 s{sT3}, s{sT0}, 14
            s_add_u32 s{sT3}, s{sT3}, s{sT2}
            s_lshl_b32 s{sA}, s{sT1}, 10
            s_add_u32 s{sT3}, s{sT3}, s{sA}
            s_add_u32 s{sT3}, s{sT3}, {P_OFF}
            v_add_u32 v{vGP}, s{sT3}, v{vLIN16}
            v_bfe_u32 v{vT0}, v{vL}, 3, 1
            v_lshlrev_b32 v{vT0}, {13 + ex}, v{vT0}
            v_and_b32 v{vT1}, 7, v{vL}
            v_lshl_add_u32 v{vT0}, v{vT1}, 4, v{vT0}
            v_lshrrev_b32 v{vT1}, 5, v{vL}
            v_lshl_add_u32 v{vT0}, v{vT1}, {7 + ex}, v{vT0}
            v_bfe_u32 v{vT1}, v{vL}, 4, 1
            v_lshl_add_u32 v{vT0}, v{vT1}, {7 if ex else 3}, v{vT0}
            s_lshl_b32 s{sT0}, s{sT0}, {10 + ex}
            s_lshl_b32 s{sT1}, s{sT1}, {8 + ex}
            s_add_u32 s{sT0}, s{sT0}, s{sT1}
            s_add_u32 s{sT0}, s{sT0}, s{sT2}
            s_add_u32 s{sT0}, s{sT0}, {GE_OFF}
            v_add_u32 v{vGST}, s{sT0}, v{vT0}
            """)

    def w2_finish(self):
        k = self.k
        for v in range(self.o["w2in"] + self.o["w2mid"], 9):
            if self.o.get("hbar") and v == 5:
                assert self.o["w2in"] + self.o["w2mid"] <= 5
                k.e("s_barrier")
            if v == 8 and self.o["g4"]:
                self.g4_partial()
            for op in self.w2_ops(v):
                op()
        self.setup2()
        for v in range(3):
            k.wait(vm=("w2", v))
            self.tr16(self.w2_slot(v), 16 * v, "a", ("t2", v))
        for v in range(3):
            k.wait(lg=("t2", v))
            for op in self.w2_ops(9 + v):
                op()
        top, done = k.label("hsw"), k.label("hsd")
        k.e(f"""
        v_cmp_gt_u32 vcc, 64, v{vHS}
        s_cbranch_vccnz {top}
        {done}:
        """)
        self.ool.append(("hs", top, done))
        hd = self.o.get("hdirect", 0)
        if not hd:
            k.vmem(f"buffer_load_dword v{vHS}, v{vSMP}, {sr(SWS, 4)}, s{sHS} offen sc1", "smp")
        for v in range(3, 8):
            k.wait(vm=("w2", v))
            self.tr16(self.w2_slot(v), 16 * v, "a", ("t2", v))
            if hd and v == hd + 2 and v < 8:
                self.h_loads(True, not self.o["hplain"])
                self.clear_at("hld")
        if self.o["glate"] or self.o["g4"]:
            self.w2_last()
        else:
            gtop, gjoin = k.label("gblk"), k.label("gjoin")
            k.e(f"s_cmp_lt_u32 s2, 8\ns_cbranch_scc1 {gtop}")
            self.ool.append(("g", gtop, gjoin, list(k.vm), list(k.lg)))
            self.w2_last()
            k.e(f"{gjoin}:")
        self.clear_at("w2d")
        self.stamp("w2done")

    def w2_last(self):
        k = self.k
        for v in range(8, 12):
            k.wait(vm=("w2", v))
            self.tr16(self.w2_slot(v), 16 * v, "a", ("t2", v))

    def g4_issue(self):
        k = self.k
        lab = k.label("g4i")
        k.e(f"""
        s_cmp_lg_u32 s{sN}, 0
        s_cbranch_scc1 {lab}
        s_add_u32 m0, s{sRW}, {XS[3]}
        v_and_b32 v{vT0}, 15, v{vL}
        v_lshlrev_b32 v{vT0}, 10, v{vT0}
        v_lshrrev_b32 v{vT1}, 4, v{vL}
        v_lshl_add_u32 v{vT0}, v{vT1}, 4, v{vT0}
        """)
        for q in range(4):
            o = f" offset:{q * 1024}" if q else ""
            k.e(f"buffer_load_dwordx4 v{vW2 + q}, {sr(SWG, 4)}, 0 offen{o} lds")
        k.e(f"""
        s_add_u32 m0, s{sRW}, {GS}
        s_nop 0
        buffer_load_dwordx4 v{vT0}, {sr(SG, 4)}, 0 offen lds
        {lab}:
        """)
        self.g4_mark = k.nvm

    def g4_partial(self):
        k = self.k
        A, B, D = 128, 144, 160
        lab = k.label("g4p")
        k.e(f"""
        s_cmp_lg_u32 s{sN}, 0
        s_cbranch_scc1 {lab}
        v_subrev_u32 v{vT0}, s{sRW}, v{vT16}
        s_lshl_b32 s{sT0}, s{sW}, 5
        v_xor_b32 v{vT0}, s{sT0}, v{vT0}
        v_add_u32 v{vT1}, {2 * RW}, v{vT0}
        v_lshlrev_b32 v{vT2}, 4, v{vL}
        v_add_u32 v{vT2}, {GS}, v{vT2}
        v_add_u32 v{vT3}, {2 * RW}, v{vT2}
        s_waitcnt vmcnt({k.nvm - self.g4_mark}) lgkmcnt(0)
        s_barrier
        """)
        for j in range(4):
            a, b = (vT0, vT2) if j < 2 else (vT1, vT3)
            o = (j & 1) * RW
            k.e(f"ds_read_b64_tr_b16 {vr(A + 4 * j, 2)}, v{a} offset:{o + XS[3]}")
            k.e(f"ds_read_b64_tr_b16 {vr(A + 4 * j + 2, 2)}, v{a} offset:{o + XS[3] + 512}")
            k.e(f"ds_read_b128 {vr(B + 4 * j, 4)}, v{b} offset:{o}")
        k.e(f"""
        s_and_b32 s{sT0}, s{sM}, 7
        s_lshl_b32 s{sT0}, s{sT0}, 14
        s_lshr_b32 s{sT1}, s{sM}, 3
        s_lshl_b32 s{sT1}, s{sT1}, 12
        s_add_u32 s{sT0}, s{sT0}, s{sT1}
        s_lshl_b32 s{sT1}, s{sW}, 10
        s_add_u32 s{sT0}, s{sT0}, s{sT1}
        s_add_u32 s{sT0}, s{sT0}, {P_OFF}
        s_waitcnt lgkmcnt(0)
        s_barrier
        v_lshlrev_b32 v{vT0}, 4, v{vL}
        """)
        for j in range(4):
            self.mfma16(D, A + 4 * j, B + 4 * j, j == 0, ak="v")
        k.nop(12)
        k.e(f"buffer_store_dwordx4 {vr(D, 4)}, v{vT0}, {sr(SWS, 4)}, s{sT0} offen sc1\n{lab}:")

    def g4_loads(self, counted):
        k = self.k
        for q in range(4):
            t = self.tmp()
            k.e(f"s_mov_b32 s{t}, {q * 4096}")
            ins = f"buffer_load_dwordx4 {vr(160 + 4 * q, 4)}, v{vGP}, {sr(SWS, 4)}, s{t} offen sc1"
            if counted:
                k.vmem(ins, "gp")
            else:
                k.e(ins)

    def g4_final(self):
        k = self.k
        P = 160
        k.e(f"s_mov_b32 s{sSPIN}, 0")
        k.wait(vm="gp")
        retry, ok, again = k.label("gpr"), k.label("gpk"), k.label("gpa")
        k.e(f"{again}:")
        k.e(f"v_max_u32 v{vT0}, v{P}, v{P + 1}")
        for i in range(2, 16, 2):
            k.e(f"v_max3_u32 v{vT0}, v{vT0}, v{P + i}, v{P + i + 1}")
        k.e(f"v_cmp_eq_u32 vcc, -1, v{vT0}\ns_cbranch_vccnz {retry}\n{ok}:")
        self.ool.append(("poll", retry, ok, again, self.g4_loads))
        for i in range(4):
            k.e(f"v_add_f32 v{P + i}, v{P + i}, v{P + 4 + i}")
            k.e(f"v_add_f32 v{P + 8 + i}, v{P + 8 + i}, v{P + 12 + i}")
        for i in range(4):
            k.e(f"v_add_f32 v{P + i}, v{P + i}, v{P + 8 + i}")
        if self.o["ex"]:
            self.ex_tail(P, P + 4, P + 8, P + 12, P + 16)
            k.vmem(f"buffer_store_dwordx4 {vr(P + 12, 4)}, v{vGST}, {sr(SWS, 4)}, 0 offen sc1", "gest")
            return
        k.e(f"v_cvt_pk_bf16_f32 v{P + 4}, v{P}, v{P + 1}")
        k.e(f"v_cvt_pk_bf16_f32 v{P + 5}, v{P + 2}, v{P + 3}")
        k.vmem(f"buffer_store_dwordx2 {vr(P + 4, 2)}, v{vGST}, {sr(SWS, 4)}, 0 offen sc1", "gest")

    def ex_tail(self, S, PK, B, T, A):
        k = self.k
        k.e(f"v_cvt_pk_bf16_f32 v{PK}, v{S}, v{S + 1}")
        k.e(f"v_cvt_pk_bf16_f32 v{PK + 1}, v{S + 2}, v{S + 3}")
        for i in range(2):
            k.e(f"v_lshlrev_b32 v{B + 2 * i}, 16, v{PK + i}")
            k.e(f"v_and_b32 v{B + 2 * i + 1}, 0xffff0000, v{PK + i}")
        for i in range(4):
            k.e(f"v_mul_f32 v{T + i}, {f32(CT)}, v{B + i}")
        for i in range(4):
            k.e(f"v_and_b32 v{A + i}, 0x7fffffff, v{T + i}")
        for i in range(4):
            k.e(f"v_exp_f32 v{T + i}, v{T + i}")
        fix, ok = k.label("exf"), k.label("exk")
        k.e(f"""
        v_max3_u32 v{A}, v{A}, v{A + 1}, v{A + 2}
        v_max_u32 v{A}, v{A}, v{A + 3}
        v_cmp_lt_u32 vcc, {f32(EX_MAX)}, v{A}
        s_cbranch_vccnz {fix}
        {ok}:
        """)
        self.ool.append(("exfix", fix, ok, PK, T, A))

    def g_loads(self, GF):
        k = self.k
        k.e(f"""
        v_and_b32 v{vT0}, 15, v{vL}
        v_lshlrev_b32 v{vT0}, 10, v{vT0}
        v_lshrrev_b32 v{vT1}, 4, v{vL}
        v_lshl_add_u32 v{vT0}, v{vT1}, 4, v{vT0}
        """)
        for j in range(4):
            t = self.tmp()
            k.e(f"s_lshr_b32 s{t}, s{sR4[j]}, 4")
            k.e(f"v_add_u32 v{vT1}, s{t}, v{vT0}")
            k.vmem(f"buffer_load_dwordx4 {vr(GF + 4 * j, 4)}, v{vT1}, {sr(SG, 4)}, 0 offen", "g")

    def g_addr(self):
        k = self.k
        k.e(f"""
        v_bfe_u32 v{vT0}, v{vL}, 3, 1
        v_lshlrev_b32 v{vT0}, 13, v{vT0}
        v_and_b32 v{vT1}, 7, v{vL}
        v_lshl_add_u32 v{vT0}, v{vT1}, 4, v{vT0}
        v_lshrrev_b32 v{vT1}, 5, v{vL}
        v_lshl_add_u32 v{vT0}, v{vT1}, 7, v{vT0}
        v_bfe_u32 v{vT1}, v{vL}, 4, 1
        v_lshl_add_u32 v{vT0}, v{vT1}, 3, v{vT0}
        s_lshl_b32 s{sT0}, s2, 10
        s_lshl_b32 s{sT1}, s{sW}, 8
        s_add_u32 s{sT0}, s{sT0}, s{sT1}
        s_add_u32 s{sT0}, s{sT0}, {GE_OFF}
        v_add_u32 v{vGST}, s{sT0}, v{vT0}
        """)

    def g_block(self):
        k = self.k
        GF = HB
        slots = [T4[0], T4[1], XS[2], XS[3]] if self.o["w2mid"] else [T4[0], T4[1], XS[1], XS[2]]
        k.wait(lg=("t2", 7))
        self.stamp("g0")
        for j in range(4):
            self.dma4k(SWG, slots[j], self.w32_soff(j, 0), ("wg", j))
        self.g_loads(GF)
        self.stamp("gdma")
        self.w2_last()
        self.stamp("gw2")
        self.g_addr()
        for j in range(4):
            k.wait(vm=("wg", j))
            self.tr16(slots[j], 192 + 16 * j, "a", ("twg", j))
        self.stamp("gwg")
        k.wait(vm="all")
        self.stamp("gld")
        for j in range(4):
            k.wait(lg=("twg", j))
            for ct in range(4):
                self.mfma16(ACC2 + 4 * ct, 192 + 16 * j + 4 * ct, GF + 4 * j, j == 0)
        self.stamp("gmf")
        self.reduce16(ACC2, False, None, None, None)
        k.e("s_barrier")
        self.stamp("gend")

    def poll_sample(self, stem, vaddr, sbase):
        k = self.k
        top, done = k.label(stem + "p"), k.label(stem + "d")
        k.wait(vm="smp")
        k.e(f"""
        v_cmp_eq_u32 vcc, -1, v{vHS}
        s_cbranch_vccnz {top}
        {done}:
        """)
        self.ool.append(("smp", top, done, vaddr, sbase))

    def reduce16(self, acc, act, vst, sst, tag, mid=None, ex=False):
        k = self.k
        k.e(f"v_add_u32 v{vT3}, {2 * RW}, v{vRD2}")
        k.nop(8)
        for ct in range(4):
            k.ds(f"ds_write_b128 v{vLIN}, {vr(acc + 4 * ct, 4)} offset:{ct * 1024}")
        if tag == "fst":
            k.wait(vm="clrfe")
        k.wait(lg="all")
        k.e("s_barrier")
        for sw in range(4):
            a = vRD2 if sw < 2 else vT3
            k.ds(f"ds_read_b128 {vr(R2 + 4 * sw, 4)}, v{a} offset:{(sw & 1) * RW}", ("r", sw))
        if mid:
            mid()
        k.wait(lg=("r", 1))
        for i in range(4):
            k.e(f"v_add_f32 v{R2 + i}, v{R2 + i}, v{R2 + 4 + i}")
        k.wait(lg=("r", 3))
        for i in range(4):
            k.e(f"v_add_f32 v{R2 + 8 + i}, v{R2 + 8 + i}, v{R2 + 12 + i}")
        for i in range(4):
            k.e(f"v_add_f32 v{R2 + i}, v{R2 + i}, v{R2 + 8 + i}")
        if act:
            self.gelu([R2 + i for i in range(4)], R2 + 4, vKC3)
        if ex:
            self.ex_tail(R2, R2 + 4, R2 + 8, R2 + 12, R2 + 16)
            k.vmem(f"buffer_store_dwordx4 {vr(R2 + 12, 4)}, v{vFST}, {sr(SWS, 4)}, s{sst} offen sc1", tag)
            return
        k.e(f"v_cvt_pk_bf16_f32 v{R2 + 8}, v{R2}, v{R2 + 1}")
        k.e(f"v_cvt_pk_bf16_f32 v{R2 + 9}, v{R2 + 2}, v{R2 + 3}")
        if vst is not None:
            k.vmem(f"buffer_store_dwordx2 {vr(R2 + 8, 2)}, v{vst}, {sr(SWS, 4)}, s{sst} offen sc1", tag)

    def h_loads(self, counted, sc):
        k = self.k
        for v in range(12):
            j, i = v // 3, v % 3
            t = self.tmp()
            k.e(f"s_add_u32 s{t}, s{sH}, s{sR4[j]}")
            if i == 0:
                k.e(f"s_sub_u32 s{t}, s{t}, 16384")
            elif i == 2:
                k.e(f"s_add_u32 s{t}, s{t}, 16384")
            ins = (f"buffer_load_dwordx4 {vr(HB + 4 * v, 4)}, v{vH0 if i == 0 else vLIN16}, "
                   f"{sr(SWS, 4)}, s{t} offen" + (" sc1" if sc else ""))
            if counted:
                k.vmem(ins, ("h", v))
            else:
                k.e(ins)

    def stage2(self):
        k = self.k
        hd = self.o.get("hdirect", 0)
        if not hd:
            self.poll_sample("h", vSMP, sHS)
        self.stamp("hpoll")
        loads = self.h_loads
        k.e(f"s_mov_b32 s{sSPIN}, 0")
        if not hd:
            loads(True, not self.o["hplain"])
        if not self.o["glate"] and not self.o["g4"]:
            k.vmem(f"buffer_store_dwordx2 {vr(R2 + 8, 2)}, v{vGST}, {sr(SWS, 4)}, 0 offen sc1", "gest")
        k.wait(lg="all")
        fill = []
        for j in range(4):
            fill += self.dma4k_ops(SWF, T4[j], self.w32_soff(j, 0), ("wf", j))
        for _ in range(self.o.get("wfpre", 4)):
            fill.pop(0)()
        mf, retry, ok = k.label("s2m"), k.label("s2r"), k.label("s2k")
        k.e(f"{mf}:")
        for v in range(12):
            k.wait(vm=("h", v))
            f = HB + 4 * v
            if v == 0:
                k.e(f"v_mov_b32 v{vT0}, v{f + 3}")
            elif v % 2 == 0:
                k.e(f"v_max3_u32 v{vT0}, v{vT0}, v{f - 1}, v{f + 3}")
            for ct in range(4):
                self.mfma16(ACC2 + 4 * ct, 16 * v + 4 * ct, f, v == 0)
            if v < self.o.get("wfloop", 12) and fill:
                fill.pop(0)()
        k.e(f"v_max_u32 v{vT0}, v{vT0}, v{HB + 47}")
        k.e(f"v_cmp_eq_u32 vcc, -1, v{vT0}\ns_cbranch_vccnz {retry}\n{ok}:")
        self.ool.append(("bulk", retry, ok, mf, loads))
        self.stamp("s2mfma")
        if self.o["g4"]:
            self.g4_loads(True)
        self.wf_rest = fill

    def wo_slot(self, bb, e):
        if bb % 2 == 0:
            base = [T4[4], XS[1], XS[2], XS[3]]
        else:
            base = [T4[0], T4[1], T4[2], T4[3]]
        return base[e // 2] + 2048 * (e & 1)

    def wo_issue(self, bb, e0, e1):
        k = self.k
        for e in range(e0, e1):
            assert self.wo_next == 8 * bb + e
            self.wo_next += 1
            k.e(f"s_add_u32 s{sWQ}, s{sWQ}, 16384\ns_and_b32 s{sWQ}, s{sWQ}, 0x7c000")
            self.dma2k(SWO, self.wo_slot(bb, e), f"s{sWQ}", ("wo", bb, e))

    def wo_tr_ops(self, bb):
        ops = []
        for e in range(8):
            for ct, a in enumerate((vTR0, vTR1)):
                for hf in range(2):
                    off = self.wo_slot(bb, e) + 512 * hf
                    dst = 8 * (8 * bb + e) + 4 * ct + 2 * hf
                    ops.append(("ds", f"ds_read_b64_tr_b16 {vr(dst, 2, 'a')}, v{a} offset:{off}", ("two", bb)))
        return ops

    def wo_tr(self, bb):
        k = self.k
        for e in range(8):
            k.wait(vm=("wo", bb, e))
            self.tr32(self.wo_slot(bb, e), 8 * (8 * bb + e), "a", ("two", bb))

    def stage2_tail(self):
        k = self.k
        self.wo_next = 0

        def mid():
            for _ in range(self.o.get("wfmid", 0)):
                if self.wf_rest:
                    self.wf_rest.pop(0)()
        self.reduce16(ACC2, True, vST, sFS, "fst", mid=mid)
        self.stamp("fst")
        while self.wf_rest:
            self.wf_rest.pop(0)()
        k.e("s_barrier")
        if self.o["glate"]:
            gtop, self.gjoin = k.label("gl"), k.label("glj")
            k.e(f"s_cmp_lt_u32 s2, 8\ns_cbranch_scc1 {gtop}")
            self.ool.append(("glate", gtop, self.gjoin, list(k.vm), list(k.lg), self.wo_next))
        self.wo_issue(0, 0, 8)
        self.wo_pattern()
        k.wait(vm=("wf", 3))
        for j in range(4):
            self.tr16(T4[j], 192 + 16 * j, "a", "twf")
        if self.o["g4"]:
            self.g4_final()
        if self.o["b1B"]:
            k.wait(lg="twf")
            self.wo_issue(1, 0, self.o["b1B"])
        if self.o["glate"] and self.stop_after in ("s2", "ge"):
            k.e(f"s_waitcnt vmcnt(0) lgkmcnt(0)\n{self.gjoin}:")

    def glate_block(self, join):
        k = self.k
        GF = HB + 16
        slots = [self.wo_slot(0, 2 * j) for j in range(4)]
        for j in range(4):
            self.dma4k(SWG, slots[j], self.w32_soff(j, 0), ("wg", j))
        self.g_loads(GF)
        self.stamp("gdma")
        self.wo_pattern()
        self.g_addr()
        k.wait(vm=("wf", 3))
        for j in range(4):
            self.tr16(T4[j], 192 + 16 * j, "a", "twf")
        for j in range(4):
            k.wait(vm=("wg", j))
            self.tr16(slots[j], 128 + 16 * j, "a", ("twg", j))
        self.stamp("gwg")
        k.wait(lg="all")
        self.wo_issue(0, 0, 8)
        k.vmem(f"buffer_load_dword v{vHS}, v{vFSM}, {sr(SWS, 4)}, s{sFL} offen sc1", "smp")
        k.wait(vm="g")
        self.stamp("gld")
        for j in range(4):
            for ct in range(4):
                self.mfma16(ACC2 + 4 * ct, 128 + 16 * j + 4 * ct, GF + 4 * j, j == 0)
        self.stamp("gmf")
        self.reduce16(ACC2, False, None, None, None)
        k.vmem(f"buffer_store_dwordx2 {vr(R2 + 8, 2)}, v{vGST}, {sr(SWS, 4)}, 0 offen sc1", "gest")
        k.e("s_barrier")
        self.stamp("gend")
        if self.stop_after in ("s2", "ge"):
            k.e(f"s_waitcnt vmcnt(0) lgkmcnt(0)\ns_branch {join}")
            return
        self.stage3(gpath=True)
        k.wait(vm=("wo", 1, 7))
        k.e(f"s_branch {join}")

    def wo_pattern(self):
        k = self.k
        k.e(f"""
        v_bfe_u32 v{vT0}, v{vL}, 2, 2
        v_lshrrev_b32 v{vT1}, 5, v{vL}
        v_lshl_add_u32 v{vT1}, v{vT1}, 3, v{vT0}
        v_lshlrev_b32 v{vT1}, 7, v{vT1}
        v_lshrrev_b32 v{vT2}, 1, v{vT0}
        v_lshl_add_u32 v{vT1}, v{vT2}, 6, v{vT1}
        v_bfe_u32 v{vT2}, v{vL}, 4, 1
        v_lshl_add_u32 v{vT1}, v{vT2}, 5, v{vT1}
        v_and_b32 v{vT2}, 1, v{vL}
        v_lshl_add_u32 v{vT1}, v{vT2}, 4, v{vT1}
        v_bfe_u32 v{vT2}, v{vL}, 1, 1
        v_lshl_add_u32 v{vT1}, v{vT2}, 3, v{vT1}
        v_add_u32 v{vTR0}, s{sRW}, v{vT1}
        v_xor_b32 v{vT1}, 64, v{vT1}
        v_add_u32 v{vTR1}, s{sRW}, v{vT1}
        """)

    def stage3(self, gpath=False):
        k = self.k
        FB = HB
        b1B = 0 if gpath else self.o["b1B"]

        def loads(counted, sc):
            for j in range(4):
                t = self.tmp()
                k.e(f"s_add_u32 s{t}, s{sFL}, s{sR4[j]}")
                ins = (f"buffer_load_dwordx4 {vr(FB + 4 * j, 4)}, v{vLIN16}, {sr(SWS, 4)}, s{t} offen"
                       + (" sc1" if sc else ""))
                if counted:
                    k.vmem(ins, ("f", j))
                else:
                    k.e(ins)
        fd = self.o.get("fdirect", 0)
        if fd:
            k.e(f"s_mov_b32 s{sSPIN}, 0")
            loads(True, fd != 2)
            self.wo_tr(0)
            k.wait(vm=("f", 3))
            again, retry0, ok0 = k.label("fda"), k.label("fdr"), k.label("fdk")
            k.e(f"{again}:")
            k.e(f"v_max_u32 v{vT0}, v{FB + 1}, v{FB + 3}")
            for j in range(1, 4):
                k.e(f"v_max3_u32 v{vT0}, v{vT0}, v{FB + 4 * j + 1}, v{FB + 4 * j + 3}")
            k.e(f"v_cmp_eq_u32 vcc, -1, v{vT0}\ns_cbranch_vccnz {retry0}\n{ok0}:")
            self.ool.append(("poll", retry0, ok0, again, lambda counted: loads(counted, True)))
            self.stamp("fpoll")
            k.wait(lg="all")
            self.wo_issue(1, b1B, 8)
            for j in range(4):
                for ct in range(4):
                    self.mfma16(ACC2 + 4 * ct, 192 + 16 * j + 4 * ct, FB + 4 * j, j == 0)
            self.stamp("s3mfma")
            self.reduce16(ACC2, False, vST, sFES, "fest", mid=lambda: self.wo_issue(2, 0, self.o["b2C"]),
                          ex=self.o["ex"])
            self.stamp("fest")
            k.e("s_barrier")
            return
        if not gpath:
            k.vmem(f"buffer_load_dword v{vHS}, v{vFSM}, {sr(SWS, 4)}, s{sFL} offen sc1", "smp")
        self.wo_tr(0)
        self.poll_sample("f", vFSM, sFL)
        self.stamp("fpoll")
        k.e(f"s_mov_b32 s{sSPIN}, 0")
        loads(True, not self.o["fplain"])
        k.wait(lg="all")
        mf, retry, ok = k.label("s3m"), k.label("s3r"), k.label("s3k")
        self.wo_issue(1, b1B, 8)
        k.e(f"{mf}:")
        for j in range(4):
            k.wait(vm=("f", j))
            f = FB + 4 * j
            if j == 0:
                k.e(f"v_max_u32 v{vT0}, v{f + 1}, v{f + 3}")
            else:
                k.e(f"v_max3_u32 v{vT0}, v{vT0}, v{f + 1}, v{f + 3}")
            for ct in range(4):
                self.mfma16(ACC2 + 4 * ct, 192 + 16 * j + 4 * ct, f, j == 0)
        k.e(f"v_cmp_eq_u32 vcc, -1, v{vT0}\ns_cbranch_vccnz {retry}\n{ok}:")
        self.ool.append(("bulk", retry, ok, mf, loads))
        self.stamp("s3mfma")
        self.reduce16(ACC2, False, vST, sFES, "fest", mid=lambda: self.wo_issue(2, 0, self.o["b2C"]),
                          ex=self.o["ex"])
        self.stamp("fest")
        if gpath:
            return
        if self.o["glate"]:
            k.e(f"{self.gjoin}:")
        k.e("s_barrier")

    def stage4(self):
        k = self.k
        CB, FR, Z, JP, BF, ACC, OUT = 32, 96, 128, 144, 160, 192, 224
        vGA, vFA, vJ0, vJ2 = 8, 9, 10, 11
        RAW = 160
        ex = self.o["ex"]
        if ex:
            Z, JP = 224, 240
            late_tr, fr_read = self.s4_head_ex(CB, FR, Z)
        else:
            late_tr, fr_read = self.s4_head(CB, FR, RAW), None
        self.stamp("fepoll")
        self.s4_loop(CB, FR, Z, JP, BF, ACC, OUT, late_tr, fr_read)

    def s4_head(self, CB, FR, RAW):
        k = self.k
        ex = 0
        vGA, vFA, vJ0, vJ2 = 8, 9, 10, 11
        k.e(f"""
        v_and_b32 v{vT0}, 7, v{vL}
        v_lshlrev_b32 v{vT0}, 4, v{vT0}
        v_lshrrev_b32 v{vT1}, 5, v{vL}
        v_lshl_add_u32 v{vGA}, v{vT1}, {7 + ex}, v{vT0}
        v_bfe_u32 v{vT0}, v{vL}, 3, 2
        v_lshlrev_b32 v{vT0}, 4, v{vT0}
        v_lshl_add_u32 v{vFA}, v{vT1}, {8 + ex}, v{vT0}
        v_lshlrev_b32 v{vJ0}, 4, v{vL}
        v_add_u32 v{vJ2}, {2 * RW}, v{vJ0}
        s_lshl_b32 s{sGL}, s{sB}, {13 + ex}
        s_lshl_b32 s{sT0}, s{sW}, {8 + ex}
        s_add_u32 s{sGL}, s{sGL}, s{sT0}
        s_add_u32 s{sGL}, s{sGL}, {GE_OFF}
        s_lshl_b32 s{sFE}, s{sM}, {14 + ex}
        s_lshl_b32 s{sT0}, s{sW}, {9 + ex}
        s_add_u32 s{sFE}, s{sFE}, s{sT0}
        s_lshl_b32 s{sT0}, s{sJN}, 6
        s_add_u32 s{sFE}, s{sFE}, s{sT0}
        s_add_u32 s{sFE}, s{sFE}, {FE_OFF}
        """)

        def np_off(r, shift):
            t = self.tmp()
            if self.o["rot"]:
                k.e(f"s_add_u32 s{t}, s{sML}, {r}\ns_and_b32 s{t}, s{t}, 7\ns_lshl_b32 s{t}, s{t}, {shift}")
            else:
                k.e(f"s_mov_b32 s{t}, {r << shift}")
            return t

        def ge_loads(counted):
            for r in range(8):
                t = np_off(r, 10 + ex)
                k.e(f"s_add_u32 s{t}, s{t}, s{sGL}")
                for hf in range(1 + ex):
                    d, o = RAW + (4 << ex) * r + 4 * hf, f" offset:{128 * hf}" if hf else ""
                    sc = "" if counted and self.o.get("geplain") else " sc1"
                    ins = f"buffer_load_dwordx4 {vr(d, 4)}, v{vGA}, {sr(SWS, 4)}, s{t} offen{o}{sc}"
                    if counted:
                        k.vmem(ins, "ge")
                    else:
                        k.e(ins)

        def fe_loads(counted):
            for r in range(8):
                t = np_off(r, 11 + ex)
                k.e(f"s_add_u32 s{t}, s{t}, s{sFE}")
                for hf in range(1 + ex):
                    d, o = FR + (4 << ex) * r + 4 * hf, f" offset:{256 * hf}" if hf else ""
                    ins = f"buffer_load_dwordx4 {vr(d, 4)}, v{vFA}, {sr(SWS, 4)}, s{t} offen{o} sc1"
                    if counted:
                        k.vmem(ins, ("fe", r))
                    else:
                        k.e(ins)

        def check(base, n, dst):
            if ex:
                k.e(f"v_max_u32 v{dst}, v{base + 3}, v{base + 7}")
                for g in range(2, 2 * n, 2):
                    k.e(f"v_max3_u32 v{dst}, v{dst}, v{base + 4 * g + 3}, v{base + 4 * g + 7}")
                return
            k.e(f"v_max_u32 v{dst}, v{base + 1}, v{base + 3}")
            for r in range(1, n):
                k.e(f"v_max3_u32 v{dst}, v{dst}, v{base + 4 * r + 1}, v{base + 4 * r + 3}")

        ge_loads(True)
        self.wo_issue(2, self.o["b2C"], 8)
        self.wo_tr(1)
        k.wait(lg="all")
        self.wo_issue(3, 0, 8)
        k.e(f"s_mov_b32 s{sSPIN}, 0")
        if ex:
            k.e(f"s_mov_b32 s{sA}, 0")
        k.wait(vm="ge")
        retry, ok = k.label("ger"), k.label("gek")
        again = k.label("gea")
        k.e(f"{again}:")
        test = "v_cmp_gt_i32 vcc, 0," if ex else "v_cmp_eq_u32 vcc, -1,"
        check(RAW, 8, vT0)
        k.e(f"{test} v{vT0}\ns_cbranch_vccnz {retry}\n{ok}:")
        self.ool.append(("pollx" if ex else "poll", retry, ok, again, ge_loads))
        if ex:
            fe_loads(True)
        else:
            k.e(f"s_mov_b32 s{sA}, {f32(CT)}")
            fe_loads(True)
            for r in range(8):
                for i in range(4):
                    src = RAW + 4 * r + i
                    k.e(f"v_lshlrev_b32 v{CB + 8 * r + 2 * i}, 16, v{src}")
                    k.e(f"v_and_b32 v{CB + 8 * r + 2 * i + 1}, 0xffff0000, v{src}")
            for i in range(64):
                k.e(f"v_mul_f32 v{CB + i}, s{sA}, v{CB + i}")
        self.stamp("cb")
        self.wo_tr(2)
        late_tr = []
        if self.o["trb3"] == "pre":
            self.wo_tr(3)
        else:
            late_tr = self.wo_tr_ops(3)
        k.e(f"s_mov_b32 s{sSPIN}, 0")
        k.wait(vm=("fe", 7))
        retry, ok = k.label("fer"), k.label("fek")
        again = k.label("fea")
        k.e(f"{again}:")
        check(FR, 8, vT0)
        k.e(f"{test} v{vT0}\ns_cbranch_vccnz {retry}\n{ok}:")
        self.ool.append(("poll", retry, ok, again, fe_loads))
        return late_tr

    def s4_head_ex(self, CB, FR, Z):
        k = self.k
        vGG, vFG, vCRD, vFRD, vJ0, vJ2 = [8, 12, 13, 14], [9, 20], 21, 22, 10, 11
        GR, FB = 160, 176
        k.e(f"""
        v_and_b32 v{vT0}, 7, v{vL}
        v_lshlrev_b32 v{vT0}, 4, v{vT0}
        v_bfe_u32 v{vT1}, v{vL}, 3, 1
        v_lshl_add_u32 v{vT2}, v{vT1}, 8, v{vT0}
        v_lshl_add_u32 v{vT3}, v{vT1}, 9, v{vT0}
        v_bfe_u32 v{vT1}, v{vL}, 4, 1
        v_lshl_add_u32 v{vT2}, v{vT1}, 7, v{vT2}
        v_lshrrev_b32 v{vT1}, 5, v{vL}
        v_lshl_add_u32 v{vCRD}, v{vT1}, 7, v{vT0}
        v_add_u32 v{vCRD}, s{sRW}, v{vCRD}
        v_add_u32 v{vT1}, s{sML}, v{vT1}
        """)
        for j in range(4):
            k.e(f"""
            v_add_u32 v{vT0}, {2 * j}, v{vT1}
            v_and_b32 v{vT0}, 7, v{vT0}
            v_lshl_add_u32 v{vGG[j]}, v{vT0}, 11, v{vT2}
            """)
        k.e(f"""
        s_lshl_b32 s{sGL}, s{sB}, 14
        s_lshl_b32 s{sT0}, s{sW}, 9
        s_add_u32 s{sGL}, s{sGL}, s{sT0}
        s_add_u32 s{sGL}, s{sGL}, {GE_OFF}
        """)

        def ge_loads(counted):
            for j in range(4):
                sc = "" if counted and self.o.get("geplain") else " sc1"
                ins = f"buffer_load_dwordx4 {vr(GR + 4 * j, 4)}, v{vGG[j]}, {sr(SWS, 4)}, s{sGL} offen{sc}"
                if counted:
                    k.vmem(ins, "ge")
                else:
                    k.e(ins)

        def fe_loads(counted):
            for j in range(2):
                ins = f"buffer_load_dwordx4 {vr(FB + 4 * j, 4)}, v{vFG[j]}, {sr(SWS, 4)}, s{sFE} offen sc1"
                if counted:
                    k.vmem(ins, "fe")
                else:
                    k.e(ins)
        ge_loads(True)
        k.e(f"""
        v_lshrrev_b32 v{vT1}, 4, v{vL}
        v_add_u32 v{vT1}, s{sML}, v{vT1}
        v_and_b32 v{vT0}, 7, v{vT1}
        v_lshl_add_u32 v{vFG[0]}, v{vT0}, 12, v{vT3}
        v_xor_b32 v{vFG[1]}, 16384, v{vFG[0]}
        v_lshrrev_b32 v{vT1}, 5, v{vL}
        v_bfe_u32 v{vT0}, v{vL}, 3, 2
        v_lshlrev_b32 v{vT0}, 4, v{vT0}
        v_lshl_add_u32 v{vFRD}, v{vT1}, 7, v{vT0}
        v_add_u32 v{vFRD}, s{sRW}, v{vFRD}
        v_lshlrev_b32 v{vJ0}, 4, v{vL}
        v_add_u32 v{vJ2}, {2 * RW}, v{vJ0}
        s_lshl_b32 s{sFE}, s{sM}, 15
        s_lshl_b32 s{sT0}, s{sW}, 10
        s_add_u32 s{sFE}, s{sFE}, s{sT0}
        s_lshl_b32 s{sT0}, s{sJN}, 7
        s_add_u32 s{sFE}, s{sFE}, s{sT0}
        s_add_u32 s{sFE}, s{sFE}, {FE_OFF}
        """)
        self.wo_issue(2, self.o["b2C"], 8)
        self.wo_tr(1)
        k.wait(lg="all")
        if self.o.get("feat", 0) == -2:
            fe_loads(True)
        if not self.o.get("b3late"):
            self.wo_issue(3, 0, self.o.get("b3pre", 0) if self.o.get("b3loop") else 8)
        if self.o.get("feat", 0) == -1:
            fe_loads(True)
        k.e(f"s_mov_b32 s{sSPIN}, 0\ns_mov_b32 s{sA}, 0")
        k.wait(vm="ge")
        retry, ok, again = k.label("ger"), k.label("gek"), k.label("gea")
        k.e(f"""
        {again}:
        v_max_u32 v{vT0}, v{GR + 3}, v{GR + 7}
        v_max3_u32 v{vT0}, v{vT0}, v{GR + 11}, v{GR + 15}
        v_cmp_gt_i32 vcc, 0, v{vT0}
        s_cbranch_vccnz {retry}
        {ok}:
        """)
        self.ool.append(("pollx", retry, ok, again, ge_loads))
        if self.o.get("feat", 0) == 0:
            fe_loads(True)
        for j in range(4):
            k.ds(f"ds_write_b128 v{vLIN}, {vr(GR + 4 * j, 4)} offset:{j * 1024}", "gw")
        if self.o.get("b3late"):
            self.wo_issue(3, 0, 8)
        k.wait(lg="gw")
        for r in range(8):
            for hf in range(2):
                k.ds(f"ds_read_b128 {vr(CB + 8 * r + 4 * hf, 4)}, v{vCRD} offset:{r * 512 + hf * 256}", "cb")
        if self.o.get("feat", 0) == 1:
            fe_loads(True)
        self.stamp("cb")
        self.wo_tr(2)
        if self.o.get("feat", 0) == 2:
            fe_loads(True)
        late_tr = self.wo_tr_ops(3)
        k.e(f"s_mov_b32 s{sSPIN}, 0")
        k.wait(vm="fe")
        retry, ok, again = k.label("fer"), k.label("fek"), k.label("fea")
        k.e(f"""
        {again}:
        v_max_u32 v{vT0}, v{FB + 3}, v{FB + 7}
        v_cmp_gt_i32 vcc, 0, v{vT0}
        s_cbranch_vccnz {retry}
        {ok}:
        """)
        self.ool.append(("pollx", retry, ok, again, fe_loads))
        for j in range(2):
            k.ds(f"ds_write_b128 v{vLIN}, {vr(FB + 4 * j, 4)} offset:{FS + j * 1024}", "fw")

        def fr_read(r):
            for hf in range(2):
                k.ds(f"ds_read_b128 {vr(FR + 8 * r + 4 * hf, 4)}, v{vFRD} offset:{FS + r * 256 + hf * 64}", ("fr", r))
        slow, fast = k.label("exs"), k.label("exq")
        k.e(f"s_cmp_lg_u32 s{sA}, 0\ns_cbranch_scc1 {slow}\n{fast}:")
        self.ool.append(("exslow", slow, fast, CB, FR, Z, vFRD))
        k.wait(lg="all")
        for r in range(4):
            fr_read(r)
        return late_tr, fr_read

    def s4_loop(self, CB, FR, Z, JP, BF, ACC, OUT, late_tr, fr_read):
        k = self.k
        ex = self.o["ex"]
        vJ0, vJ2 = 10, 11

        def j_ops(r):
            ops = []
            z = Z + 8 * (r & 1)
            jp = JP + 4 * (r & 1)
            if ex:
                for i in range(8):
                    ops.append((f"v_fma_f32 v{z + i}, v{FR + 8 * r + i}, v{CB + 8 * r + i}, 1.0", 4))
                for i in range(8):
                    ops.append((f"v_rcp_f32 v{z + i}, v{z + i}", 8))
                for i in range(8):
                    ops.append((f"v_fma_f32 v{z + i}, v{z + i}, -2.0, 1.0", 4))
                for i in range(4):
                    ops.append((f"v_cvt_pk_bf16_f32 v{jp + i}, v{z + 2 * i}, v{z + 2 * i + 1}", 4))
                ops.append(("ds", f"ds_write_b128 v{vLIN}, {vr(jp, 4)} offset:{r * 1024}", ("jw", r)))
                return ops
            for i in range(4):
                ops.append((f"v_lshlrev_b32 v{z + 2 * i}, 16, v{FR + 4 * r + i}", 4))
                ops.append((f"v_and_b32 v{z + 2 * i + 1}, 0xffff0000, v{FR + 4 * r + i}", 4))
            for i in range(8):
                ops.append((f"v_fma_f32 v{z + i}, v{z + i}, s{sA}, v{CB + 8 * r + i}", 4))
            for i in range(8):
                ops.append((f"v_exp_f32 v{z + i}, v{z + i}", 8))
            for i in range(8):
                ops.append((f"v_add_f32 v{z + i}, 1.0, v{z + i}", 4))
            for i in range(8):
                ops.append((f"v_rcp_f32 v{z + i}, v{z + i}", 8))
            for i in range(8):
                ops.append((f"v_fma_f32 v{z + i}, v{z + i}, -2.0, 1.0", 4))
            for i in range(4):
                ops.append((f"v_cvt_pk_bf16_f32 v{jp + i}, v{z + 2 * i}, v{z + 2 * i + 1}", 4))
            ops.append(("ds", f"ds_write_b128 v{vLIN}, {vr(jp, 4)} offset:{r * 1024}", ("jw", r)))
            return ops

        dbg = self.o.get("s4dbg", "")

        def emit(op):
            if op[0] == "ds":
                k.ds(op[1], op[2])
                return 4
            t = op[0]
            if "notrans" in dbg:
                t = t.replace("v_exp_f32", "v_mov_b32").replace("v_rcp_f32", "v_mov_b32")
            if "novalu" not in dbg and not ("nofma" in dbg and t.startswith("v_fma")):
                k.e(t)
            return op[1]

        def read1(r, jj):
            b = BF + 16 * (r & 1)
            a = vJ0 if jj < 2 else vJ2
            k.ds(f"ds_read_b128 {vr(b + 4 * jj, 4)}, v{a} offset:{(jj & 1) * RW + r * 1024}", ("jr", r, jj))

        def reads(r):
            for jj in range(4):
                read1(r, jj)

        k.wait(lg=("fr", 0) if ex else "all")
        if "twice" in dbg:
            k.e(f"s_mov_b32 s{sSPIN}, 0\nL_twice:\ns_waitcnt lgkmcnt(0)\ns_barrier")
            self.stamp("fepoll2")
        b3 = self.o.get("b3loop", 0)
        b3q = list(range(self.o.get("b3pre", 0), 8)) if b3 else []

        def b3_issue(n):
            for _ in range(n):
                if b3q:
                    e = b3q.pop(0)
                    self.wo_issue(3, e, e + 1)
        b3_issue(self.o.get("b3j0", 1))
        for op in j_ops(0):
            emit(op)
        b3_issue(self.o.get("b3j1", 1))
        o1 = j_ops(1)
        n1 = 8 if ex else 16
        if ex:
            k.wait(lg=("fr", 1))
        for op in o1[:n1]:
            emit(op)
        k.wait(lg=("jw", 0))
        k.e("s_barrier")
        reads(0)
        for op in o1[n1:]:
            emit(op)
        self.stamp("j01")
        for r in range(8):
            ops = j_ops(r + 2) if r + 2 < 8 else []
            total = sum(op[1] if op[0] != "ds" else 4 for op in ops)
            spread = self.o.get("s4spread", 0)
            if not spread:
                k.wait(lg=("jr", r, 3))
            b = BF + 16 * (r & 1)
            spent = 0
            bar_at = self.o["s4bar"] + (self.o.get("s4bar0", 2) if r == 0 else 0)
            assert bar_at + 3 * spread <= 7
            for i in range(8):
                jj, ct = i // 2, i % 2
                q = 4 * r + jj
                if r == 6 and i == 0:
                    k.wait(lg=("two", 3))
                if spread and ct == 0:
                    k.wait(lg=("jr", r, jj))
                if "nomfma" not in dbg:
                    self.mfma32(ACC + 16 * ct, 8 * q + 4 * ct, b + 4 * jj, r == 0 and jj == 0, ak="a")
                if ex and r < 2 and i < 2:
                    fr_read(4 + 2 * r + i)
                if b3 and i % b3 == b3 - 1:
                    b3_issue(1)
                if i == bar_at and r + 1 < 8:
                    self.stamp(f"ba{r}")
                    k.wait(lg=("jw", r + 1))
                    self.stamp(f"bb{r}")
                    if "nobar" not in dbg:
                        k.e("s_barrier")
                    self.stamp(f"bc{r}")
                    if not spread:
                        reads(r + 1)
                if spread and r + 1 < 8 and 0 <= (i - bar_at) < 4 * spread and (i - bar_at) % spread == 0:
                    read1(r + 1, (i - bar_at) // spread)
                if late_tr and i > bar_at and r >= self.o.get("ltr0", 2 if ex else 0):
                    if (self.o.get("b3late") or self.o.get("feat", 0) == -2) and len(late_tr) == 32:
                        k.wait(vm=("wo", 3, 7))
                    left = sum(7 - self.o["s4bar"] for rr in range(r + 1, 6)) + (8 - i)
                    for _ in range(max(2, -(-len(late_tr) // max(left, 1)))):
                        if late_tr:
                            if b3 and len(late_tr) % 4 == 0:
                                e = 8 - len(late_tr) // 4
                                assert e not in b3q
                                k.wait(vm=("wo", 3, e))
                            emit(late_tr.pop(0))
                while ops and spent < total * (i + 1) / 8:
                    spent += emit(ops.pop(0))
            while ops:
                emit(ops.pop(0))
            if r == 6 and self.o.get("otr"):
                self.out_addr()
            self.stamp(f"s4r{r}")
        assert not late_tr
        if "twice" in dbg:
            k.e(f"s_add_u32 s{sSPIN}, s{sSPIN}, 1\ns_cmp_lt_u32 s{sSPIN}, 2\ns_cbranch_scc1 L_twice")
        self.stamp("s4mfma")
        if self.o.get("otr"):
            self.out_rows(ACC, OUT)
            return
        k.e(f"""
        s_lshl_b32 s{sT0}, s{sMT}, 7
        s_lshl_b32 s{sT1}, s{sJN}, 5
        s_add_u32 s{sT0}, s{sT0}, s{sT1}
        s_lshl_b32 s{sT0}, s{sT0}, 10
        s_lshl_b32 s{sT1}, s{sNH}, 9
        s_add_u32 s{sT0}, s{sT0}, s{sT1}
        s_lshl_b32 s{sT1}, s{sW}, 7
        s_add_u32 s{sT0}, s{sT0}, s{sT1}
        v_and_b32 v{vT0}, 31, v{vL}
        v_lshlrev_b32 v{vT0}, 10, v{vT0}
        v_lshrrev_b32 v{vT1}, 5, v{vL}
        v_lshl_add_u32 v{vT0}, v{vT1}, 4, v{vT0}
        v_add_u32 v{vT0}, s{sT0}, v{vT0}
        """)
        k.nop(2)
        for ct in range(2):
            for a in range(2):
                src = ACC + 16 * ct + 8 * a
                dst = OUT + 8 * ct + 4 * a
                for i in range(4):
                    k.e(f"v_cvt_pk_bf16_f32 v{dst + i}, v{src + 2 * i}, v{src + 2 * i + 1}")
                o = ct * 64 + a * 32
                os_ = f" offset:{o}" if o else ""
                k.vmem(f"buffer_store_dwordx4 {vr(dst, 4)}, v{vT0}, {sr(SOUT, 4)}, 0 offen{os_}" + self.outpol(), "out")

    def outpol(self):
        return {0: "", 1: " sc1", 2: " nt", 3: " sc0 sc1", 4: " sc1 nt", 5: " sc0 sc1 nt"}[self.o.get("outsc", 0)]

    def out_addr(self):
        k = self.k
        k.e(f"""
        s_lshl_b32 s{sT0}, s{sMT}, 7
        s_lshl_b32 s{sT1}, s{sJN}, 5
        s_add_u32 s{sT0}, s{sT0}, s{sT1}
        s_lshl_b32 s{sT0}, s{sT0}, 10
        s_lshl_b32 s{sT1}, s{sNH}, 9
        s_add_u32 s{sT0}, s{sT0}, s{sT1}
        s_lshl_b32 s{sT1}, s{sW}, 7
        s_add_u32 s{sA}, s{sT0}, s{sT1}
        v_and_b32 v{vT1}, 31, v{vL}
        v_lshrrev_b32 v{vT0}, 5, v{vL}
        v_xor_b32 v{vT0}, v{vT0}, v{vT1}
        v_and_b32 v{vT0}, 7, v{vT0}
        v_lshlrev_b32 v{vT0}, 4, v{vT0}
        v_lshl_add_u32 v{vT0}, v{vT1}, 7, v{vT0}
        v_add_u32 v{vT0}, s{sRW}, v{vT0}
        v_lshrrev_b32 v{vT1}, 3, v{vL}
        v_and_b32 v{vT3}, 7, v{vL}
        v_xor_b32 v{vT2}, v{vT1}, v{vT3}
        v_lshlrev_b32 v{vT2}, 4, v{vT2}
        v_lshl_add_u32 v{vT2}, v{vT1}, 7, v{vT2}
        v_add_u32 v{vT2}, s{sRW}, v{vT2}
        v_lshlrev_b32 v{vT3}, 4, v{vT3}
        v_lshl_add_u32 v{vT3}, v{vT1}, 10, v{vT3}
        """)

    def out_rows(self, ACC, OUT):
        k = self.k
        k.nop(12)
        for ct in range(2):
            for a in range(2):
                src = ACC + 16 * ct + 8 * a
                dst = OUT + 8 * ct + 4 * a
                for i in range(4):
                    k.e(f"v_cvt_pk_bf16_f32 v{dst + i}, v{src + 2 * i}, v{src + 2 * i + 1}")
                p2 = 4 * ct + 2 * a
                if p2:
                    k.e(f"v_xor_b32 v{vT1}, {p2 * 16}, v{vT0}")
                k.ds(f"ds_write_b128 v{vT1 if p2 else vT0}, {vr(dst, 4)} offset:{T4[0]}", "ow")
        k.wait(lg="ow")
        for i in range(4):
            k.ds(f"ds_read_b128 {vr(OUT + 4 * i, 4)}, v{vT2} offset:{T4[0] + i * 1024}", ("or", i))
        for i in range(4):
            t = self.tmp()
            k.e(f"s_add_u32 s{t}, s{sA}, {i * 8192}")
            k.wait(lg=("or", i))
            k.vmem(f"buffer_store_dwordx4 {vr(OUT + 4 * i, 4)}, v{vT3}, {sr(SOUT, 4)}, s{t} offen"
                   + self.outpol(), "out")

    def epilogue(self):
        k = self.k
        if self.stamps:
            if self.o.get("endwait"):
                k.e("s_waitcnt vmcnt(0)")
            self.stamp("end")
            n = self.nst
            k.e("s_waitcnt vmcnt(0) lgkmcnt(0)")
            for i in range(n):
                k.e(f"v_writelane_b32 v{vT1}, s{STAMP0 + 2 * i}, {i}")
            k.e(f"""
            s_lshl_b32 s{sT0}, s2, 2
            s_add_u32 s{sT0}, s{sT0}, s{sW}
            s_lshl_b32 s{sT0}, s{sT0}, 6
            s_add_u32 s{sT0}, s{sT0}, {STAMP_OFF}
            s_mov_b32 s{SWS + 2}, {STAMP_OFF + (1 << 20)}
            v_lshlrev_b32 v{vT0}, 2, v{vL}
            s_mov_b64 exec, 0xffff
            buffer_store_dword v{vT1}, v{vT0}, {sr(SWS, 4)}, s{sT0} offen
            """)
        k.e("s_waitcnt vmcnt(0)\nL_end:\ns_endpgm")
        for item in self.ool:
            if item[0] == "hs":
                _, top, done = item
                k.e(f"""
                {top}:
                s_mov_b32 s{sSPIN}, 0
                v_and_b32 v{vT0}, 3, v{vL}
                v_lshlrev_b32 v{vT0}, 6, v{vT0}
                {top}_l:
                """)
                self.spin_check(done)
                k.e(f"""
                buffer_load_dword v{vHS}, v{vT0}, {sr(SDBG, 4)}, 0 offen sc1
                s_waitcnt vmcnt(0)
                v_cmp_gt_u32 vcc, 64, v{vHS}
                s_cbranch_vccnz {top}_l
                s_branch {done}
                """)
            elif item[0] == "g":
                _, top, join, vm, lg = item
                k.vm, k.lg = vm, lg
                k.e(f"{top}:")
                self.g_block()
                k.e(f"s_branch {join}")
            elif item[0] == "glate":
                _, top, join, vm, lg, self.wo_next = item
                k.vm, k.lg = vm, lg
                k.e(f"{top}:")
                self.glate_block(join)
            elif item[0] == "exfix":
                _, top, ok, PK, T, A = item
                k.e(f"{top}:")
                for i in range(2):
                    k.e(f"v_and_b32 v{A + 2 * i}, 0xffff, v{PK + i}")
                    k.e(f"v_lshrrev_b32 v{A + 2 * i + 1}, 16, v{PK + i}")
                for i in range(4):
                    k.e(f"v_or_b32 v{A + i}, 0x80000000, v{A + i}")
                for i in range(4):
                    k.e(f"v_cndmask_b32 v{T + i}, v{T + i}, v{A + i}, vcc")
                k.e(f"s_branch {ok}")
            elif item[0] == "pollx":
                _, retry, ok, back, loads = item
                real = retry + "_r"
                k.e(f"""
                {retry}:
                v_cmp_eq_u32 vcc, -1, v{vT0}
                s_cbranch_vccnz {real}
                s_mov_b32 s{sA}, 1
                s_branch {ok}
                {real}:
                """)
                self.spin_check(ok)
                loads(False)
                k.e(f"s_waitcnt vmcnt(0)\ns_branch {back}")
            elif item[0] == "exslow":
                _, top, ok, CB, FR, Z, vFRD = item
                k.e(f"{top}:\ns_mov_b32 s{sA}, {f32(CT)}\ns_waitcnt lgkmcnt(0)")
                for r in range(8):
                    for hf in range(2):
                        k.e(f"ds_read_b128 {vr(FR + 8 * r + 4 * hf, 4)}, v{vFRD} offset:{FS + r * 256 + hf * 64}")
                k.e("s_waitcnt lgkmcnt(0)")
                for i in range(64):
                    for src, t in ((CB + i, Z), (FR + i, Z + 2)):
                        k.e(f"""
                        v_cmp_gt_i32 vcc, 0, v{src}
                        v_log_f32 v{t + 1}, v{src}
                        v_lshlrev_b32 v{t}, 16, v{src}
                        v_mul_f32 v{t}, s{sA}, v{t}
                        v_cndmask_b32 v{t}, v{t + 1}, v{t}, vcc
                        """)
                    k.e(f"""
                    v_add_f32 v{Z}, v{Z}, v{Z + 2}
                    s_nop 0
                    v_exp_f32 v{CB + i}, v{Z}
                    """)
                for i in range(4):
                    k.e(f"v_mov_b32 v{Z + 4 + i}, 1.0")
                for j in range(2):
                    k.e(f"ds_write_b128 v{vLIN}, {vr(Z + 4, 4)} offset:{FS + j * 1024}")
                k.e(f"s_branch {ok}")
            elif item[0] == "smp":
                _, top, done, vaddr, sbase = item
                k.e(f"{top}:\ns_mov_b32 s{sSPIN}, 0\n{top}_l:")
                self.spin_check(done)
                k.e(f"""
                buffer_load_dword v{vHS}, v{vaddr}, {sr(SWS, 4)}, s{sbase} offen sc1
                s_waitcnt vmcnt(0)
                v_cmp_eq_u32 vcc, -1, v{vHS}
                s_cbranch_vccnz {top}_l
                s_branch {done}
                """)
            else:
                kind, retry, ok, back, loads = item
                k.e(f"{retry}:")
                self.spin_check(ok)
                if kind == "bulk":
                    loads(False, True)
                else:
                    loads(False)
                k.e(f"s_waitcnt vmcnt(0)\ns_branch {back}")
        k.e("L_last:\ns_endpgm" + ("\nL_textend:" if self.o.get("warm") else ""))

    def build(self):
        k = self.k
        stop = self.stop_after
        self.prologue()
        self.stage1()
        self.w2_finish()
        if stop != "s1":
            self.stage2()
            self.stage2_tail()
            if stop not in ("s2", "ge"):
                self.stage3()
                if stop != "s3":
                    self.stage4()
        self.epilogue()
        return self.text()

    def text(self):
        head = f"""; RNN-T joint network: two stride-2 conv stems, w_f / w_g projections, tanh, w_o.
; @launch grid=(256,1,1) block=(256,1,1) lds={LDS_BYTES}
.amdgcn_target "amdgcn-amd-amdhsa--gfx950"
.text
.globl {NAME}
.p2align 8
.type {NAME},@function
{NAME}:
"""
        tail = f"""
.section .rodata,"a"
.p2align 6
.amdhsa_kernel {NAME}
  .amdhsa_next_free_vgpr 512
  .amdhsa_next_free_sgpr 102
  .amdhsa_accum_offset 256
  .amdhsa_group_segment_fixed_size 0
  .amdhsa_kernarg_size 80
  .amdhsa_user_sgpr_count 2
  .amdhsa_user_sgpr_kernarg_segment_ptr 1
  .amdhsa_system_sgpr_workgroup_id_x 1
.end_amdhsa_kernel
"""
        return head + self.k.text() + tail


if __name__ == "__main__":
    out = sys.argv[1] if len(sys.argv) > 1 else "cdna_kernels/" + NAME.replace("_kernel", "") + ".s"
    g = Gen2(stamps=False)
    open(out, "w").write(g.build())
    print("wrote", out)
```

```python
import math
import sys
from kb import K, vr, ar, sr, f32

NAME = "standalone__seq2seq_rnn_t_joint__speech_kernel"

H_OFF = 65536
F_OFF = H_OFF + (1 << 20)
FE_OFF = F_OFF + (1 << 19)
GE_OFF = FE_OFF + (1 << 20)
P_OFF = GE_OFF + 65536
WS_REC = 4 << 20
STAMP_OFF = 8 << 20
OOB = 0x80000000
SPIN_MAX = 4096

RW = 40960
RB = 17408
LDS_BYTES = 163840
T4 = [RB + 4096 * t for t in range(5)]
XS = [4096 * t for t in range(4)]
GS = RB + 20480
FS = GS + 1024

SX, SW1, SW2, SG, SWF, SWG, SWO, SOUT, SDBG, SWS = 24, 28, 32, 36, 40, 44, 48, 52, 56, 60
sW, sM, sN, sB, sMT, sRW, sML, sJN = 64, 65, 66, 67, 68, 69, 70, 71
sKI, sKC = 72, 3
sT0, sT1, sT2, sT3 = 73, 74, 75, 76
sSPIN = 77
STAMP0 = 78
sH, sFL, sFS, sFE, sGL, sGS, sHS, sA, sB2 = 4, 5, 6, 7, 8, 9, 10, 11, 12
sR4 = [13, 14, 15, 16]
sNH = 17
sFES, sWQ = 18, 19

vL, vT0, vT1, vT2, vT3, vLIN, vRD = 1, 2, 3, 4, 5, 6, 7
vXW = 8
vXA, vXZ, vQ0 = 12, 13, 14
vWA0, vWA1, vTR0, vTR1 = 15, 16, 17, 18
vXB = 19
vBA = 22
vW2 = 24
vT16 = 28
vONES = 32
vHS = 36
AF, BFR, ACC1, R1 = 40, 56, 64, 96
vLIN16, vH0, vSMP, vST, vRD2, vKC3, vSV, vFSM, vGST = 8, 9, 10, 11, 12, 13, 14, 19, 20
HB, ACC2, R2 = 128, 176, 192
vPF = 37
vGP = 21
vFST = 19

C1 = 2 * math.log2(math.e) * math.sqrt(2 / math.pi)
C3 = C1 * 0.044715
CT = 2 * math.log2(math.e)
EX_MAX = 125.0

DEFAULT_STAMPS = ("start", "iss", "x0", "s1mfma", "hst", "w2done", "hpoll", "s2mfma", "fst", "s3mfma", "fest", "end")
S1_STAMPS = ("start", "karg", "iss0", "iss", "x0", "u5", "u11", "u17", "s1mfma", "hst", "w2done", "end")
R4_STAMPS = ("start", "fepoll", "j01", "s4r0", "s4r1", "s4r2", "s4r3", "s4r4", "s4r5", "s4r6", "s4r7", "end")
R5_STAMPS = ("start", "fepoll2", "j01", "s4r0", "s4r1", "s4r2", "s4r3", "s4r4", "s4r5", "s4r6", "s4r7", "end")
G_STAMPS = ("start", "hst", "g0", "gdma", "gw2", "gwg", "gld", "gmf", "gend", "w2done", "hpoll", "end")
GL_STAMPS = ("start", "fst", "gdma", "gwg", "gld", "gmf", "gend", "fpoll", "s3mfma", "fest", "fepoll", "end")
S2_STAMPS = ("start", "s1mfma", "hst", "w2done", "hpoll", "s2mfma", "fst", "fpoll", "s3mfma", "fest", "fepoll", "end")
P_STAMPS = ("start", "karg", "probe", "iss0", "iss", "x0", "u5", "u11", "u17", "s1mfma", "hst", "end")
S4_STAMPS = ("start", "hst", "s2mfma", "fst", "fpoll", "s3mfma", "fest", "cb", "fepoll", "s4r3", "s4mfma", "end")


class Gen2:
    def __init__(self, stop_after=None, stamps=True, opts=None):
        self.k = K()
        self.stop_after = stop_after
        self.stamps = stamps
        self.nst = 0
        self.names = []
        self.o = dict(prefetch=False, rot=True, hplain=True, fplain=False, x2=1, x3=2,
                      b1B=4, b2C=4, trb3="loop", s4bar=3, w2in=3, w2mid=0, glate=0, g4=1,
                      fdirect=1, hdirect=3, ex=1, feat=-1, b3loop=4, b3pre=4, ltr0=2,
                      geplain=1, hbar=1, hearly=1, otr=1, outsc=1, xsplit=1, clrw=1, fepos='hld')
        self.o.update(opts or {})
        self.rot = 0
        self.ool = []

    def stamp(self, name):
        names = self.o.get("stamps", DEFAULT_STAMPS)
        if not self.stamps or name not in names:
            return
        self.names = list(names)
        self.nst = len(names)
        r = STAMP0 + 2 * names.index(name)
        self.k.e(f"{'s_memtime' if self.o.get('memtime') else 's_memrealtime'} s[{r}:{r + 1}]")

    def tmp(self):
        self.rot = (self.rot + 1) % 4
        return sT0 + self.rot

    def tile(self, key, dst):
        self.k.e(f"s_xor_b32 s{dst}, s{sN}, {self.o[key]}")

    def srd(self, d, ptr, off, nrec):
        k = self.k
        if off is None:
            k.e(f"s_mov_b32 s{d}, s{ptr}\ns_mov_b32 s{d + 1}, s{ptr + 1}")
        else:
            k.e(f"s_add_u32 s{d}, s{ptr}, s{off}\ns_addc_u32 s{d + 1}, s{ptr + 1}, 0")
        k.e(f"s_mov_b32 s{d + 2}, {nrec}\ns_mov_b32 s{d + 3}, 0x20000")

    def nt(self, srd):
        key = {SW1: "ntw1", SW2: "ntw2", SWF: "ntwf", SWG: "ntwg", SWO: "ntwo", SX: "ntx"}[srd]
        return " nt" if self.o.get(key) else ""

    def dma2k(self, srd, lds_off, soff, tag):
        k = self.k
        nt = self.nt(srd)
        k.e(f"s_add_u32 m0, s{sRW}, {lds_off}")
        k.e("s_nop 0")
        k.vmem(f"buffer_load_dwordx4 v{vWA0}, {sr(srd, 4)}, {soff} offen{nt} lds", tag)
        k.vmem(f"buffer_load_dwordx4 v{vWA1}, {sr(srd, 4)}, {soff} offen offset:1024{nt} lds", tag)

    def dma4k_ops(self, srd, lds_off, soff_fn, tag):
        k = self.k
        st = {}

        def op(q):
            if q == 0:
                st["s"] = soff_fn()
                k.e(f"s_add_u32 m0, s{sRW}, {lds_off}")
                k.e("s_nop 0")
            o = f" offset:{q * 1024}" if q else ""
            k.vmem(f"buffer_load_dwordx4 v{vW2 + q}, {sr(srd, 4)}, {st['s']} offen{o}{self.nt(srd)} lds", tag)
        return [lambda q=q: op(q) for q in range(4)]

    def dma4k(self, srd, lds_off, soff_fn, tag):
        for op in self.dma4k_ops(srd, lds_off, soff_fn, tag):
            op()

    def tr32(self, lds_off, dst, kind, tag):
        k = self.k
        for ct, a in enumerate((vTR0, vTR1)):
            k.ds(f"ds_read_b64_tr_b16 {vr(dst + 4 * ct, 2, kind)}, v{a} offset:{lds_off}", tag)
            k.ds(f"ds_read_b64_tr_b16 {vr(dst + 4 * ct + 2, 2, kind)}, v{a} offset:{lds_off + 512}", tag)

    def tr16(self, lds_off, dst, kind, tag):
        k = self.k
        for ct in range(4):
            k.ds(f"ds_read_b64_tr_b16 {vr(dst + 4 * ct, 2, kind)}, v{vT16 + ct} offset:{lds_off}", tag)
            k.ds(f"ds_read_b64_tr_b16 {vr(dst + 4 * ct + 2, 2, kind)}, v{vT16 + ct} offset:{lds_off + 512}", tag)

    def mfma32(self, d, a, b, first, ak="v"):
        c = "0" if first else vr(d, 16)
        self.k.e(f"v_mfma_f32_32x32x16_bf16 {vr(d, 16)}, {vr(a, 4, ak)}, {vr(b, 4)}, {c}")

    def mfma16(self, d, a, b, first, ak="a"):
        c = "0" if first else vr(d, 4)
        self.k.e(f"v_mfma_f32_16x16x32_bf16 {vr(d, 4)}, {vr(a, 4, ak)}, {vr(b, 4)}, {c}")

    def gelu(self, xs, tmp, kc3):
        k = self.k
        ts = [tmp + i for i in range(len(xs))]
        for x, t in zip(xs, ts):
            k.e(f"v_mul_f32 v{t}, v{x}, v{x}")
        for x, t in zip(xs, ts):
            k.e(f"v_fmaak_f32 v{t}, v{t}, v{kc3}, {f32(-C1)}")
        for x, t in zip(xs, ts):
            k.e(f"v_mul_f32 v{t}, v{t}, v{x}")
        for x, t in zip(xs, ts):
            k.e(f"v_exp_f32 v{t}, v{t}")
        for x, t in zip(xs, ts):
            k.e(f"v_add_f32 v{t}, 1.0, v{t}")
        for x, t in zip(xs, ts):
            k.e(f"v_rcp_f32 v{t}, v{t}")
        for x, t in zip(xs, ts):
            k.e(f"v_mul_f32 v{x}, v{x}, v{t}")

    def spin_check(self, done_label):
        self.k.e(f"s_add_u32 s{sSPIN}, s{sSPIN}, 1\ns_cmp_ge_u32 s{sSPIN}, {SPIN_MAX}\ns_cbranch_scc1 {done_label}")

    def prologue(self):
        k = self.k
        rot = self.o["rot"]
        k.e("""
        s_cmp_ge_u32 s2, 256
        s_cbranch_scc1 L_end
        s_load_dwordx16 s[4:19], s[0:1], 0
        s_load_dwordx4 s[20:23], s[0:1], 64
        """)
        if self.o.get("warm"):
            k.e(f"""
            s_cmp_ge_u32 s2, {8 * self.o["warm"]}
            s_cbranch_scc1 L_nowarm
            s_getpc_b64 s[24:25]
            L_pc:
            v_lshlrev_b32 v38, 7, v0
            v_cmp_gt_u32 vcc, L_textend-L_pc, v38
            s_and_saveexec_b64 s[26:27], vcc
            s_cbranch_execz L_nowarm2
            v_mov_b32 v39, s25
            v_add_co_u32 v38, vcc, s24, v38
            s_nop 1
            v_addc_co_u32 v39, vcc, 0, v39, vcc
            global_load_dword v38, v[38:39], off
            L_nowarm2:
            s_mov_b64 exec, s[26:27]
            L_nowarm:
            """)
        self.stamp("start")
        k.e(f"""
        v_lshrrev_b32 v{vT0}, 6, v0
        v_and_b32 v{vL}, 63, v0
        v_readfirstlane_b32 s{sW}, v{vT0}
        s_and_b32 s{sT0}, s2, 7
        s_lshr_b32 s{sT1}, s2, 3
        s_add_u32 s{sJN}, s{sT1}, {self.o.get("jnrot", 0)}
        s_and_b32 s{sJN}, s{sJN}, 3
        s_lshr_b32 s{sML}, s{sT1}, 2
        s_and_b32 s{sT2}, s{sT0}, 1
        s_lshl_b32 s{sN}, s{sT2}, 2
        s_add_u32 s{sN}, s{sN}, s{sJN}
        s_lshr_b32 s{sT0}, s{sT0}, 1
        s_lshl_b32 s{sM}, s{sT0}, 3
        s_add_u32 s{sM}, s{sM}, s{sML}
        """)
        xs = self.o.get("xsplit", 0)
        if xs == 1:
            k.e(f"""
            s_and_b32 s{sT0}, s2, 3
            s_lshl_b32 s{sT0}, s{sT0}, 1
            s_and_b32 s{sT2}, s{sT1}, 1
            s_add_u32 s{sN}, s{sT0}, s{sT2}
            s_and_b32 s{sJN}, s{sN}, 3
            s_bfe_u32 s{sT0}, s2, 0x10002
            s_lshl_b32 s{sT0}, s{sT0}, 4
            s_lshr_b32 s{sT2}, s{sT1}, 1
            s_add_u32 s{sM}, s{sT0}, s{sT2}
            s_and_b32 s{sML}, s{sM}, 7
            """)
        elif xs == 2:
            k.e(f"""
            s_and_b32 s{sN}, s{sT1}, 7
            s_and_b32 s{sJN}, s{sN}, 3
            s_and_b32 s{sT0}, s2, 7
            s_lshl_b32 s{sT0}, s{sT0}, 2
            s_lshr_b32 s{sT2}, s{sT1}, 3
            s_add_u32 s{sM}, s{sT0}, s{sT2}
            s_and_b32 s{sML}, s{sM}, 7
            """)
        k.e(f"""
        s_lshr_b32 s{sB}, s{sM}, 4
        s_and_b32 s{sMT}, s{sM}, 15
        s_mul_i32 s{sRW}, s{sW}, {RW}
        v_lshrrev_b32 v{vT0}, 4, v{vL}
        v_lshrrev_b32 v{vT1}, 5, v{vL}
        v_and_b32 v{vT2}, 15, v{vL}
        v_xor_b32 v{vT2}, v{vT2}, v{vT1}
        v_lshlrev_b32 v{vT2}, 4, v{vT2}
        v_lshl_add_u32 v{vXW}, v{vT0}, 10, v{vT2}
        """)
        for e in range(1, 4):
            k.e(f"v_xor_b32 v{vXW + e}, {e * 32}, v{vXW}")
            k.e(f"v_add_u32 v{vXW + e}, {e * 3072}, v{vXW + e}")
        k.e(f"""
        v_cmp_gt_u32 vcc, 16, v{vL}
        v_bfrev_b32 v{vT0}, 1
        v_lshrrev_b32 v{vT1}, 3, v{vL}
        v_cndmask_b32 v{vQ0}, 0, v{vT0}, vcc
        v_bfe_u32 v{vT2}, v{vT1}, 1, 1
        v_lshlrev_b32 v{vT2}, 2, v{vT2}
        v_and_b32 v{vT3}, 7, v{vL}
        v_xor_b32 v{vT2}, v{vT2}, v{vT3}
        v_lshlrev_b32 v{vT2}, 4, v{vT2}
        v_lshl_add_u32 v{vWA0}, v{vT1}, 10, v{vT2}
        v_add_u32 v{vWA1}, 7168, v{vWA0}
        s_lshl_b32 s{sT0}, s{sW}, 17
        s_lshl_b32 s{sT1}, s{sN}, 7
        s_add_u32 s3, s{sT0}, s{sT1}
        s_mul_i32 s{sT0}, s{sB}, 1000
        s_lshl_b32 s{sT1}, s{sMT}, 6
        s_add_u32 s{sT0}, s{sT0}, s{sT1}
        s_sub_u32 s{sT0}, s{sT0}, 1
        s_lshl_b32 s{sT0}, s{sT0}, 10
        s_lshl_b32 s{sT2}, s{sW}, 8
        s_add_u32 s{sT0}, s{sT0}, s{sT2}
        s_ashr_i32 s{sT3}, s{sT0}, 31
        s_sub_u32 s{sT1}, 1001, s{sT1}
        s_lshl_b32 s{sT1}, s{sT1}, 10
        s_sub_u32 s{SX + 2}, s{sT1}, s{sT2}
        s_mov_b32 s{SX + 3}, 0x20000
        s_sub_u32 s{SW1 + 2}, 1572864, s3
        s_mov_b32 s{SW1 + 3}, 0x20000
        """)
        if rot:
            k.e(f"s_lshl_b32 s{sKI}, s{sML}, 14")
        else:
            k.e(f"s_mov_b32 s{sKI}, 0")
        k.e("s_waitcnt lgkmcnt(0)")
        self.stamp("karg")
        k.e(f"""
        s_add_u32 s{SX}, s4, s{sT0}
        s_addc_u32 s{SX + 1}, s5, s{sT3}
        s_add_u32 s{SW1}, s6, s3
        s_addc_u32 s{SW1 + 1}, s7, 0
        """)

    def code_prefetch(self):
        k = self.k
        mode = self.o.get("cpf", 0)
        if not mode:
            return
        lab = k.label("pf")
        k.e(f"""
        s_cmp_lg_u32 s{sW}, {self.o.get("cpfw", 3)}
        s_cbranch_scc1 {lab}
        s_getpc_b64 s[{sT0 + 1}:{sT0 + 2}]
        L_pc:
        s_lshr_b32 s{sT0}, s2, 3
        s_lshl_b32 s{sT0}, s{sT0}, 11
        v_lshlrev_b32 v{vT0}, 7, v{vL}
        v_add_u32 v{vT0}, s{sT0}, v{vT0}
        v_min_u32 v{vT0}, L_last-L_pc, v{vT0}
        s_mov_b64 exec, 0xffff
        global_load_dword v{vPF}, v{vT0}, s[{sT0 + 1}:{sT0 + 2}]
        s_mov_b64 exec, -1
        {lab}:
        """)

    def g_prefetch(self):
        k = self.k
        k.e(f"""
        s_lshr_b32 s{sT0}, s2, 3
        s_lshl_b32 s{sT1}, s{sT0}, 12
        v_lshlrev_b32 v{vT0}, 10, v{vL}
        v_add_u32 v{vT0}, s{sT1}, v{vT0}
        s_lshr_b32 s{sT1}, s{sT0}, 1
        s_lshl_b32 s{sT1}, s{sT1}, 10
        s_and_b32 s{sT0}, s{sT0}, 1
        s_lshl_b32 s{sT0}, s{sT0}, 7
        s_add_u32 s{sT0}, s{sT0}, s{sT1}
        v_mov_b32 v{vT1}, s{sT0}
        s_mov_b64 exec, 15
        """)
        k.vmem(f"buffer_load_dword v{vPF}, v{vT0}, {sr(SWG, 4)}, 0 offen", "pf")
        k.e("s_mov_b64 exec, 1")
        k.vmem(f"buffer_load_dword v{vPF + 1}, v{vT1}, {sr(SG, 4)}, 0 offen", "pf")
        k.e("s_mov_b64 exec, -1")

    def l2pf(self, pos):
        k = self.k
        for key, srd, lanes in (("pfw2", SW2, 48), ("pfwf", SWF, 16), ("pfwo", SWO, 16)):
            if self.o.get(key) != pos:
                continue
            if srd == SWO:
                k.e(f"s_lshr_b32 s{sT0}, s2, 3\ns_lshl_b32 s{sT0}, s{sT0}, 14")
            else:
                k.e(f"s_lshl_b32 s{sT0}, s{sML}, 14")
            k.e(f"""
            v_and_b32 v{vT1}, 15, v{vL}
            v_lshlrev_b32 v{vT1}, 10, v{vT1}
            v_lshrrev_b32 v{vT2}, 4, v{vL}
            v_lshl_add_u32 v{vT1}, v{vT2}, 19, v{vT1}
            s_bfm_b64 exec, {lanes}, 0
            """)
            k.vmem(f"buffer_load_dword v{vPF}, v{vT1}, {sr(srd, 4)}, s{sT0} offen", "pf")
            k.e("s_mov_b64 exec, -1")

    def x_quarter(self, qq):
        k = self.k
        a, z = sT0, sT1
        if self.o["rot"]:
            k.e(f"s_add_u32 s{a}, s{sJN}, {qq}\ns_and_b32 s{a}, s{a}, 3")
        else:
            k.e(f"s_mov_b32 s{a}, {qq}")
        k.e(f"""
        s_lshl_b32 s{sT2}, s{a}, 12
        s_add_u32 m0, s{sT2}, s{sRW}
        s_or_b32 s{z}, s{a}, s{sMT}
        s_cmp_eq_u32 s{z}, 0
        s_cselect_b32 s{z}, -1, 0
        s_and_b32 s{sT3}, s{a}, 1
        s_lshl_b32 s{sT3}, s{sT3}, 7
        s_lshl_b32 s{a}, s{a}, 14
        s_or_b32 s{a}, s{a}, s{sT3}
        """)
        for e in range(4):
            t = vXA if e % 2 == 0 else vXZ
            k.e(f"v_xor_b32 v{t}, s{a}, v{vXW + e}")
            if e == 0:
                k.e(f"v_and_or_b32 v{t}, v{vQ0}, s{z}, v{t}")
            o = f" offset:{e * 1024}" if e else ""
            k.vmem(f"buffer_load_dwordx4 v{t}, {sr(SX, 4)}, 0 offen{o}{self.nt(SX)} lds", "x")
            if qq == 0 and self.o.get("probe") == e + 1:
                k.e("s_waitcnt vmcnt(0)")
                self.stamp("probe")

    def x_tail(self):
        k = self.k
        k.e(f"""
        v_lshlrev_b32 v{vXA}, 4, v{vL}
        v_add_u32 v{vXA}, 65536, v{vXA}
        s_add_u32 m0, s{sRW}, 16384
        s_mov_b64 exec, 0xffff
        """)
        k.vmem(f"buffer_load_dwordx4 v{vXA}, {sr(SX, 4)}, 0 offen{self.nt(SX)} lds", "x")
        k.e("s_mov_b64 exec, -1")

    def w1_issue(self, u):
        k = self.k
        i = u % 3
        if i == 0 and u:
            k.e(f"s_add_u32 s{sKI}, s{sKI}, 16384\ns_and_b32 s{sKI}, s{sKI}, 0x1c000")
        if i:
            t = self.tmp()
            k.e(f"s_add_u32 s{t}, s{sKI}, {i * 524288}")
            so = f"s{t}"
        else:
            so = f"s{sKI}"
        self.dma2k(SW1, RB + 2048 * (u % 10), so, ("w1", u))

    def rot4(self):
        k = self.k
        for j in range(4):
            if self.o["rot"]:
                k.e(f"s_add_u32 s{sR4[j]}, s{sML}, {j}\ns_and_b32 s{sR4[j]}, s{sR4[j]}, 3\ns_lshl_b32 s{sR4[j]}, s{sR4[j]}, 10")
            else:
                k.e(f"s_mov_b32 s{sR4[j]}, {j * 1024}")

    def w32_soff(self, j, tap):
        def fn():
            t = self.tmp()
            self.k.e(f"s_lshl_b32 s{t}, s{sR4[j]}, 5")
            if tap:
                self.k.e(f"s_add_u32 s{t}, s{t}, {tap * 524288}")
            return f"s{t}"
        return fn

    def w2_slot(self, v):
        xs = [XS[2], XS[3], XS[0], XS[1]] if self.o["w2in"] + self.o["w2mid"] > 5 else XS
        return [T4[2], T4[3], T4[4], T4[0], T4[1], xs[0], xs[1], xs[2], xs[3], T4[2], T4[3], T4[4]][v]

    def w2_ops(self, v):
        return self.dma4k_ops(SW2, self.w2_slot(v), self.w32_soff(v // 3, v % 3), ("w2", v))

    def clears(self):
        k = self.k
        self.srd(SWS, 22, None, WS_REC)
        k.e(f"""
        v_mov_b32 v{vONES}, -1
        v_mov_b32 v{vONES + 1}, -1
        v_mov_b32 v{vONES + 2}, -1
        v_mov_b32 v{vONES + 3}, -1
        v_lshlrev_b32 v{vT0}, 4, v{vL}
        s_lshl_b32 s{sT0}, s{sM}, 14
        s_lshl_b32 s{sT2}, s{sW}, 9
        s_add_u32 s{sT0}, s{sT0}, s{sT2}
        """)
        self.tile("x2", sT1)
        k.e(f"""
        s_lshl_b32 s{sT1}, s{sT1}, 11
        s_add_u32 s{sT2}, s{sT0}, {F_OFF}
        s_add_u32 s{sT2}, s{sT2}, s{sT1}
        """)
        self.tile("x3", sT1)
        ex = self.o["ex"]
        if ex:
            k.e(f"""
            s_lshl_b32 s{sT1}, s{sT1}, 11
            s_add_u32 s{sT3}, s{sT0}, s{sT1}
            s_lshl_b32 s{sT3}, s{sT3}, 1
            s_add_u32 s{sT3}, s{sT3}, {FE_OFF}
            """)
            if self.o.get("noclr"):
                k.e("s_mov_b64 exec, 1")
            if self.o.get("fepos") is None:
                k.vmem(f"buffer_store_dwordx4 {vr(vONES, 4)}, v{vT0}, {sr(SWS, 4)}, s{sT3} offen sc1", "clr")
            if self.o.get("fpos") is None:
                k.e("s_mov_b32 exec_hi, 0")
                k.vmem(f"buffer_store_dwordx4 {vr(vONES, 4)}, v{vT0}, {sr(SWS, 4)}, s{sT2} offen sc1", "clr")
        else:
            k.e(f"""
            s_lshl_b32 s{sT1}, s{sT1}, 11
            s_add_u32 s{sT3}, s{sT0}, {FE_OFF}
            s_add_u32 s{sT3}, s{sT3}, s{sT1}
            s_mov_b32 exec_hi, 0
            """)
            k.vmem(f"buffer_store_dwordx4 {vr(vONES, 4)}, v{vT0}, {sr(SWS, 4)}, s{sT2} offen sc1", "clr")
            k.vmem(f"buffer_store_dwordx4 {vr(vONES, 4)}, v{vT0}, {sr(SWS, 4)}, s{sT3} offen sc1", "clr")
        lab = k.label("c0")
        if self.o.get("clrw"):
            assert self.o["g4"] and ex
            k.e(f"""
            s_mov_b64 exec, -1
            s_lshl_b32 s{sT0}, s{sM}, 15
            s_lshl_b32 s{sT1}, s{sN}, 11
            s_add_u32 s{sT0}, s{sT0}, s{sT1}
            s_lshr_b32 s{sT1}, s{sW}, 1
            s_lshl_b32 s{sT1}, s{sT1}, 14
            s_add_u32 s{sT0}, s{sT0}, s{sT1}
            s_and_b32 s{sT1}, s{sW}, 1
            s_lshl_b32 s{sT1}, s{sT1}, 10
            s_add_u32 s{sT0}, s{sT0}, s{sT1}
            s_add_u32 s{sT0}, s{sT0}, {H_OFF}
            """)
            k.vmem(f"buffer_store_dwordx4 {vr(vONES, 4)}, v{vT0}, {sr(SWS, 4)}, s{sT0} offen sc1", "clr")
            k.e(f"""
            s_cmp_lg_u32 s{sN}, 0
            s_cbranch_scc1 {lab}
            s_and_b32 s{sT0}, s{sM}, 7
            s_lshr_b32 s{sT1}, s{sM}, 3
            s_lshl_b32 s{sT2}, s{sT0}, 14
            s_lshl_b32 s{sT3}, s{sT1}, 12
            s_add_u32 s{sT2}, s{sT2}, s{sT3}
            s_lshl_b32 s{sT3}, s{sW}, 10
            s_add_u32 s{sT2}, s{sT2}, s{sT3}
            s_add_u32 s{sT2}, s{sT2}, {P_OFF}
            buffer_store_dwordx4 {vr(vONES, 4)}, v{vT0}, {sr(SWS, 4)}, s{sT2} offen sc1
            s_cmp_ge_u32 s{sW}, 2
            s_cbranch_scc1 {lab}
            s_lshl_b32 s{sT0}, s{sT0}, {10 + ex}
            s_lshl_b32 s{sT1}, s{sT1}, {8 + ex}
            s_add_u32 s{sT0}, s{sT0}, s{sT1}
            s_lshl_b32 s{sT1}, s{sW}, {13 + ex}
            s_add_u32 s{sT0}, s{sT0}, s{sT1}
            s_add_u32 s{sT0}, s{sT0}, {GE_OFF}
            s_bfm_b64 exec, {16 << ex}, 0
            buffer_store_dwordx4 {vr(vONES, 4)}, v{vT0}, {sr(SWS, 4)}, s{sT0} offen sc1
            s_mov_b64 exec, -1
            {lab}:
            """)
            return
        k.e(f"""
        s_mov_b64 exec, -1
        s_cmp_lg_u32 s{sW}, 0
        s_cbranch_scc1 {lab}
        s_lshl_b32 s{sT0}, s{sM}, 15
        s_lshl_b32 s{sT1}, s{sN}, 11
        s_add_u32 s{sT0}, s{sT0}, s{sT1}
        s_add_u32 s{sT0}, s{sT0}, {H_OFF}
        s_add_u32 s{sT1}, s{sT0}, 16384
        {"s_mov_b64 exec, 1" if self.o.get("noclr") else ""}
        buffer_store_dwordx4 {vr(vONES, 4)}, v{vT0}, {sr(SWS, 4)}, s{sT0} offen sc1
        buffer_store_dwordx4 {vr(vONES, 4)}, v{vT0}, {sr(SWS, 4)}, s{sT0} offen offset:1024 sc1
        buffer_store_dwordx4 {vr(vONES, 4)}, v{vT0}, {sr(SWS, 4)}, s{sT1} offen sc1
        buffer_store_dwordx4 {vr(vONES, 4)}, v{vT0}, {sr(SWS, 4)}, s{sT1} offen offset:1024 sc1
        {"s_mov_b64 exec, -1" if self.o.get("noclr") else ""}
        """)
        if self.o["g4"]:
            k.e(f"""
            s_cmp_lg_u32 s{sN}, 0
            s_cbranch_scc1 {lab}
            s_and_b32 s{sT0}, s{sM}, 7
            s_lshr_b32 s{sT1}, s{sM}, 3
            s_lshl_b32 s{sT2}, s{sT0}, 14
            s_lshl_b32 s{sT3}, s{sT1}, 12
            s_add_u32 s{sT2}, s{sT2}, s{sT3}
            s_add_u32 s{sT2}, s{sT2}, {P_OFF}
            s_lshl_b32 s{sT0}, s{sT0}, {10 + ex}
            s_lshl_b32 s{sT1}, s{sT1}, {8 + ex}
            s_add_u32 s{sT0}, s{sT0}, s{sT1}
            s_add_u32 s{sT0}, s{sT0}, {GE_OFF}
            s_add_u32 s{sT1}, s{sT0}, {8192 << ex}
            buffer_store_dwordx4 {vr(vONES, 4)}, v{vT0}, {sr(SWS, 4)}, s{sT2} offen sc1
            buffer_store_dwordx4 {vr(vONES, 4)}, v{vT0}, {sr(SWS, 4)}, s{sT2} offen offset:1024 sc1
            buffer_store_dwordx4 {vr(vONES, 4)}, v{vT0}, {sr(SWS, 4)}, s{sT2} offen offset:2048 sc1
            buffer_store_dwordx4 {vr(vONES, 4)}, v{vT0}, {sr(SWS, 4)}, s{sT2} offen offset:3072 sc1
            s_bfm_b64 exec, {16 << ex}, 0
            buffer_store_dwordx4 {vr(vONES, 4)}, v{vT0}, {sr(SWS, 4)}, s{sT0} offen sc1
            buffer_store_dwordx4 {vr(vONES, 4)}, v{vT0}, {sr(SWS, 4)}, s{sT1} offen sc1
            s_mov_b64 exec, -1
            {lab}:
            """)
            return
        k.e(f"""
        s_cmp_ge_u32 s2, 8
        s_cbranch_scc1 {lab}
        s_lshl_b32 s{sT0}, s2, 10
        s_add_u32 s{sT0}, s{sT0}, {GE_OFF}
        s_add_u32 s{sT1}, s{sT0}, 8192
        buffer_store_dwordx4 {vr(vONES, 4)}, v{vT0}, {sr(SWS, 4)}, s{sT0} offen sc1
        buffer_store_dwordx4 {vr(vONES, 4)}, v{vT0}, {sr(SWS, 4)}, s{sT1} offen sc1
        {lab}:
        """)

    def late_clear(self, which):
        k = self.k
        A = 38
        a, b = self.tmp(), self.tmp()
        k.e(f"s_lshl_b32 s{a}, s{sM}, 14\ns_lshl_b32 s{b}, s{sW}, 9\ns_add_u32 s{a}, s{a}, s{b}")
        self.tile("x2" if which == "f" else "x3", b)
        k.e(f"s_lshl_b32 s{b}, s{b}, 11\ns_add_u32 s{a}, s{a}, s{b}")
        if which == "fe":
            k.e(f"s_lshl_b32 s{a}, s{a}, 1")
        k.e(f"s_add_u32 s{a}, s{a}, {F_OFF if which == 'f' else FE_OFF}")
        k.e(f"v_lshlrev_b32 v{A}, 4, v{vL}")
        if which == "f":
            k.e("s_mov_b32 exec_hi, 0")
        k.vmem(f"buffer_store_dwordx4 {vr(vONES, 4)}, v{A}, {sr(SWS, 4)}, s{a} offen sc1", "clr" + which)
        if which == "f":
            k.e("s_mov_b32 exec_hi, -1")

    def clear_at(self, pos):
        for which, key in (("f", "fpos"), ("fe", "fepos")):
            if self.o.get(key) == pos:
                self.late_clear(which)

    def prologue2(self):
        k = self.k
        for key, d, ptr, size in (("x2", SW2, 8, 1572864), ("x3", SWF, 12, 524288), (None, SWG, 14, 524288)):
            if key is None and self.o["g4"]:
                k.e(f"""
                s_and_b32 s{sT0}, s{sM}, 7
                s_lshl_b32 s{sT0}, s{sT0}, 7
                s_lshr_b32 s{sT1}, s{sM}, 3
                s_lshl_b32 s{sT1}, s{sT1}, 17
                s_add_u32 s{sT0}, s{sT0}, s{sT1}
                s_lshl_b32 s{sT1}, s{sW}, 15
                s_add_u32 s{sT0}, s{sT0}, s{sT1}
                s_sub_u32 s{sT1}, {size}, s{sT0}
                """)
                self.srd(d, ptr, sT0, f"s{sT1}")
                continue
            if key:
                self.tile(key, sT0)
            else:
                k.e(f"s_and_b32 s{sT0}, s2, 7")
            k.e(f"""
            s_lshl_b32 s{sT0}, s{sT0}, 7
            s_lshl_b32 s{sT1}, s{sW}, 17
            s_add_u32 s{sT0}, s{sT0}, s{sT1}
            s_sub_u32 s{sT1}, {size}, s{sT0}
            """)
            self.srd(d, ptr, sT0, f"s{sT1}")
        if self.o["g4"]:
            k.e(f"""
            s_lshr_b32 s{sT0}, s{sM}, 3
            s_lshl_b32 s{sT0}, s{sT0}, 8
            s_lshl_b32 s{sT1}, s{sW}, 6
            s_add_u32 s{sT0}, s{sT0}, s{sT1}
            s_sub_u32 s{sT1}, 16384, s{sT0}
            """)
        else:
            k.e(f"""
            s_lshl_b32 s{sT0}, s{sW}, 8
            s_sub_u32 s{sT1}, 16384, s{sT0}
            """)
        self.srd(SG, 10, sT0, f"s{sT1}")
        k.e(f"""
        s_lshr_b32 s{sT2}, s{sN}, 2
        s_lshl_b32 s{sT0}, s{sT2}, 9
        s_lshl_b32 s{sT1}, s{sW}, 7
        s_add_u32 s{sT0}, s{sT0}, s{sT1}
        s_sub_u32 s{sT1}, 524288, s{sT0}
        """)
        self.srd(SWO, 16, sT0, f"s{sT1}")
        k.e(f"s_mul_i32 s{sT0}, s{sB}, 2048000")
        self.srd(SOUT, 18, sT0, 2048000)
        self.srd(SDBG, 20, None, 256)
        k.e(f"s_lshr_b32 s{sNH}, s{sN}, 2")
        self.rot4()
        k.e(f"""
        v_lshlrev_b32 v{vT0}, 4, v{vL}
        v_add_u32 v{vLIN}, s{sRW}, v{vT0}
        v_bfe_u32 v{vT0}, v{vL}, 2, 2
        v_lshrrev_b32 v{vT1}, 5, v{vL}
        v_lshl_add_u32 v{vT1}, v{vT1}, 3, v{vT0}
        v_lshlrev_b32 v{vT1}, 7, v{vT1}
        v_lshrrev_b32 v{vT2}, 1, v{vT0}
        v_lshl_add_u32 v{vT1}, v{vT2}, 6, v{vT1}
        v_bfe_u32 v{vT2}, v{vL}, 4, 1
        v_lshl_add_u32 v{vT1}, v{vT2}, 5, v{vT1}
        v_and_b32 v{vT2}, 3, v{vL}
        v_lshl_add_u32 v{vT1}, v{vT2}, 3, v{vT1}
        v_add_u32 v{vTR0}, s{sRW}, v{vT1}
        v_xor_b32 v{vT1}, 64, v{vT1}
        v_add_u32 v{vTR1}, s{sRW}, v{vT1}
        """)
        k.e(f"""
        v_and_b32 v{vT0}, 31, v{vL}
        v_lshrrev_b32 v{vT1}, 5, v{vL}
        v_and_b32 v{vT2}, 15, v{vT0}
        v_xor_b32 v{vT2}, v{vT2}, v{vT1}
        v_lshlrev_b32 v{vT2}, 4, v{vT2}
        v_lshl_add_u32 v{vT2}, v{vT0}, 9, v{vT2}
        v_add_u32 v{vXB}, s{sRW}, v{vT2}
        v_add_u32 v{vXB + 1}, 256, v{vXB}
        v_add_u32 v{vT2}, 1, v{vT0}
        v_and_b32 v{vT2}, 15, v{vT2}
        v_xor_b32 v{vT2}, v{vT2}, v{vT1}
        v_lshlrev_b32 v{vT2}, 4, v{vT2}
        v_lshl_add_u32 v{vT2}, v{vT0}, 9, v{vT2}
        v_add_u32 v{vT2}, 512, v{vT2}
        v_add_u32 v{vXB + 2}, s{sRW}, v{vT2}
        """)
        k.e(f"""
        v_lshrrev_b32 v{vT0}, 3, v{vL}
        v_bfe_u32 v{vT1}, v{vT0}, 1, 1
        v_lshlrev_b32 v{vT1}, 1, v{vT1}
        v_and_b32 v{vT2}, 7, v{vL}
        v_xor_b32 v{vT1}, v{vT1}, v{vT2}
        v_lshlrev_b32 v{vT1}, 4, v{vT1}
        v_lshl_add_u32 v{vW2}, v{vT0}, 10, v{vT1}
        v_xor_b32 v{vT1}, 64, v{vW2}
        v_add_u32 v{vW2 + 1}, 7168, v{vT1}
        v_add_u32 v{vW2 + 2}, {2 * 7168}, v{vW2}
        v_add_u32 v{vW2 + 3}, {3 * 7168}, v{vT1}
        v_lshrrev_b32 v{vT0}, 4, v{vL}
        v_bfe_u32 v{vT1}, v{vL}, 2, 2
        v_lshl_add_u32 v{vT2}, v{vT0}, 3, v{vT1}
        v_lshlrev_b32 v{vT2}, 7, v{vT2}
        v_lshrrev_b32 v{vT1}, 1, v{vT1}
        v_and_b32 v{vT0}, 1, v{vT0}
        v_lshl_add_u32 v{vT1}, v{vT0}, 1, v{vT1}
        v_lshl_add_u32 v{vT2}, v{vT1}, 5, v{vT2}
        v_and_b32 v{vT1}, 3, v{vL}
        v_lshl_add_u32 v{vT2}, v{vT1}, 3, v{vT2}
        v_add_u32 v{vT16}, s{sRW}, v{vT2}
        """)
        for ct in range(1, 4):
            k.e(f"v_xor_b32 v{vT0}, {ct * 32}, v{vT2}\nv_add_u32 v{vT16 + ct}, s{sRW}, v{vT0}")
        k.e(f"""
        v_and_b32 v{vT0}, 15, v{vL}
        v_bfe_u32 v{vT1}, v{vL}, 4, 1
        v_lshl_add_u32 v{vT0}, v{vT0}, 1, v{vT1}
        v_lshlrev_b32 v{vT0}, 4, v{vT0}
        v_lshrrev_b32 v{vT1}, 5, v{vL}
        v_lshl_add_u32 v{vT0}, v{vT1}, 10, v{vT0}
        s_lshl_b32 s{sT0}, s{sW}, 11
        v_add_u32 v{vRD}, s{sT0}, v{vT0}
        """)
        if self.o["rot"]:
            k.e(f"s_lshl_b32 s{sKC}, s{sML}, 5")
        else:
            k.e(f"s_mov_b32 s{sKC}, 0")

    def stage1(self):
        k = self.k
        if self.o.get("cpf") == 1:
            self.code_prefetch()
        self.x_quarter(0)
        for u in range(3):
            self.w1_issue(u)
        if self.o.get("cpf") == 2:
            self.code_prefetch()
        cp = self.o.get("clrpos", 0)
        if cp == 0:
            self.clears()
        for qq in range(1, 4):
            self.x_quarter(qq)
        self.x_tail()
        if cp == 1:
            self.clears()
        self.stamp("iss0")
        self.prologue2()
        if self.o.get("gpf", 1) and not self.o["g4"]:
            self.g_prefetch()
        self.l2pf("iss0")
        for u in range(3, 10):
            self.w1_issue(u)
            if cp == 3 and u == 6:
                self.clears()
        if cp == 2:
            self.clears()
        self.l2pf("iss")
        self.stamp("iss")
        k.wait(vm="x")
        self.stamp("x0")

        def arrive():
            if self.o.get("clrw"):
                k.e("s_barrier")
            lab = k.label("hs")
            k.e(f"""
            s_cmp_lg_u32 s{sW}, 0
            s_cbranch_scc1 {lab}
            s_and_b32 s{sT0}, s2, 3
            s_lshl_b32 s{sT0}, s{sT0}, 6
            v_mov_b32 v{vT0}, s{sT0}
            v_mov_b32 v{vT1}, 1
            s_mov_b64 exec, 1
            buffer_atomic_add v{vT1}, v{vT0}, {sr(SDBG, 4)}, 0 offen sc1
            s_mov_b64 exec, -1
            {lab}:
            """)
        atom_u = {0: None, 1: 3, 2: 10, 3: 7}[cp]
        if atom_u is None:
            arrive()

        def mm(u):
            a, b = AF + 8 * (u & 1), BFR + 4 * (u & 1)
            self.mfma32(ACC1, a, b, u == 0)
            self.mfma32(ACC1 + 16, a + 4, b, u == 0)

        def refill(u):
            if u + 10 < 24:
                self.w1_issue(u + 10)
            elif u >= 15 and u % 2 == 1 and (u - 15) // 2 < self.o["w2in"]:
                for op in self.w2_ops((u - 15) // 2):
                    op()
            self.l2pf(u)
            self.clear_at(u)
            if u == self.o.get("hsu", 17):
                k.e(f"v_and_b32 v{vT0}, 3, v{vL}\nv_lshlrev_b32 v{vT0}, 6, v{vT0}")
                k.vmem(f"buffer_load_dword v{vHS}, v{vT0}, {sr(SDBG, 4)}, 0 offen sc1", "hs")

        for u in range(24):
            i = u % 3
            if i == 0 and u:
                k.e(f"s_add_u32 s{sKC}, s{sKC}, 32\ns_and_b32 s{sKC}, s{sKC}, 0xe0")
            k.e(f"v_xor_b32 v{vBA + (u & 1)}, s{sKC}, v{vXB + i}")
            k.wait(vm=("w1", u))
            if u == atom_u:
                arrive()
            self.tr32(RB + 2048 * (u % 10), AF + 8 * (u & 1), "v", ("u", u))
            k.ds(f"ds_read_b128 {vr(BFR + 4 * (u & 1), 4)}, v{vBA + (u & 1)}", ("u", u))
            if u:
                k.wait(lg=("u", u - 1))
                mm(u - 1)
                refill(u - 1)
            if u in (5, 11, 17):
                self.stamp(f"u{u}")
        k.wait(lg=("u", 23))
        mm(23)
        refill(23)
        self.stamp("s1mfma")
        if self.o["g4"]:
            self.g4_issue()
        self.l2pf("s1end")
        k.e(f"v_mov_b32 v{vKC3}, {f32(-C3)}")
        k.e(f"v_add_u32 v{vT3}, {2 * RW}, v{vRD}")
        k.nop(10)
        for blk in range(8):
            k.ds(f"ds_write_b128 v{vLIN}, {vr(ACC1 + 4 * blk, 4)} offset:{blk * 1024}")
        k.wait(vm="clrf")
        k.wait(lg="all")
        k.e("s_barrier")
        for sw in range(4):
            a = vRD if sw < 2 else vT3
            for j in range(2):
                k.ds(f"ds_read_b128 {vr(R1 + 8 * sw + 4 * j, 4)}, v{a} offset:{(sw & 1) * RW + j * 512}", ("r", sw))
        def h_addr():
            k.e(f"""
            v_and_b32 v{vT0}, 15, v{vL}
            v_lshlrev_b32 v{vT0}, 4, v{vT0}
            v_bfe_u32 v{vT1}, v{vL}, 4, 1
            v_lshl_add_u32 v{vT0}, v{vT1}, 14, v{vT0}
            v_lshrrev_b32 v{vT1}, 5, v{vL}
            v_lshl_add_u32 v{vT0}, v{vT1}, 8, v{vT0}
            s_lshl_b32 s{sT0}, s{sM}, 15
            s_lshl_b32 s{sT1}, s{sN}, 11
            s_add_u32 s{sT0}, s{sT0}, s{sT1}
            s_lshl_b32 s{sT1}, s{sW}, 9
            s_add_u32 s{sT0}, s{sT0}, s{sT1}
            s_add_u32 s{sT0}, s{sT0}, {H_OFF}
            """)
        if self.o.get("hearly"):
            h_addr()
        assert self.o["w2in"] + self.o["w2mid"] <= 7
        for v in range(self.o["w2in"], self.o["w2in"] + self.o["w2mid"]):
            for op in self.w2_ops(v):
                op()
        k.wait(lg=("r", 1))
        for i in range(8):
            k.e(f"v_add_f32 v{R1 + i}, v{R1 + i}, v{R1 + 8 + i}")
        k.wait(lg=("r", 3))
        for i in range(8):
            k.e(f"v_add_f32 v{R1 + 16 + i}, v{R1 + 16 + i}, v{R1 + 24 + i}")
        for i in range(8):
            k.e(f"v_add_f32 v{R1 + i}, v{R1 + i}, v{R1 + 16 + i}")
        self.gelu([R1 + i for i in range(8)], R1 + 8, vKC3)
        for i in range(4):
            k.e(f"v_cvt_pk_bf16_f32 v{R1 + 16 + i}, v{R1 + 2 * i}, v{R1 + 2 * i + 1}")
        if not self.o.get("hearly"):
            h_addr()
        k.vmem(f"buffer_store_dwordx4 {vr(R1 + 16, 4)}, v{vT0}, {sr(SWS, 4)}, s{sT0} offen sc1", "hst")
        self.stamp("hst")
        self.clear_at("hst")
        if not self.o.get("hbar"):
            k.e("s_barrier")

    def setup2(self):
        k = self.k
        k.e(f"""
        v_lshlrev_b32 v{vLIN16}, 4, v{vL}
        v_and_b32 v{vT0}, 15, v{vL}
        v_lshrrev_b32 v{vT1}, 4, v{vL}
        v_add_u32 v{vH0}, {32768 - 16}, v{vLIN16}
        v_lshlrev_b32 v{vT2}, 8, v{vT1}
        v_add_u32 v{vT2}, 240, v{vT2}
        s_cmp_eq_u32 s{sMT}, 0
        s_cselect_b32 s{sT0}, {OOB}, 0
        v_add_u32 v{vT2}, s{sT0}, v{vT2}
        v_cmp_eq_u32 vcc, 0, v{vT0}
        v_and_b32 v{vT3}, 7, v{vL}
        v_lshlrev_b32 v{vT3}, 9, v{vT3}
        v_cndmask_b32 v{vH0}, v{vH0}, v{vT2}, vcc
        v_add_u32 v{vFSM}, {256 + 240 + 12}, v{vT3}
        v_add_u32 v{vSMP}, 16384, v{vFSM}
        v_add_u32 v{vT2}, 32768, v{vSMP}
        v_add_u32 v{vT3}, s{sT0}, v{vSMP}
        v_cmp_gt_u32 vcc, 8, v{vL}
        v_bfrev_b32 v{vSV}, 1
        s_nop 0
        v_cndmask_b32 v{vSMP}, v{vT3}, v{vT2}, vcc
        v_cndmask_b32 v{vFSM}, v{vSV}, v{vFSM}, vcc
        v_cmp_gt_u32 vcc, 16, v{vL}
        v_lshrrev_b32 v{vT2}, 1, v{vT1}
        v_lshlrev_b32 v{vT2}, 8, v{vT2}
        v_cndmask_b32 v{vSMP}, v{vSV}, v{vSMP}, vcc
        v_lshl_add_u32 v{vT2}, v{vT0}, 4, v{vT2}
        v_and_b32 v{vT1}, 1, v{vT1}
        v_lshl_add_u32 v{vST}, v{vT1}, 3, v{vT2}
        s_lshl_b32 s{sT0}, s{sW}, 10
        v_add_u32 v{vRD2}, s{sT0}, v{vLIN16}
        s_lshl_b32 s{sT0}, s{sM}, 15
        s_lshl_b32 s{sT1}, s{sW}, 12
        s_add_u32 s{sH}, s{sT0}, s{sT1}
        s_add_u32 s{sH}, s{sH}, {H_OFF}
        s_sub_u32 s{sHS}, s{sH}, 32768
        s_lshl_b32 s{sT0}, s{sM}, 14
        s_add_u32 s{sFL}, s{sT0}, s{sT1}
        s_add_u32 s{sFL}, s{sFL}, {F_OFF}
        s_lshl_b32 s{sT1}, s{sW}, 9
        s_add_u32 s{sT0}, s{sT0}, s{sT1}
        s_xor_b32 s{sT1}, s{sN}, {self.o["x2"]}
        s_lshl_b32 s{sT1}, s{sT1}, 11
        s_add_u32 s{sFS}, s{sT0}, s{sT1}
        s_add_u32 s{sFS}, s{sFS}, {F_OFF}
        s_xor_b32 s{sT1}, s{sN}, {self.o["x3"]}
        s_lshl_b32 s{sT1}, s{sT1}, 11
        s_add_u32 s{sFES}, s{sT0}, s{sT1}
        {f"s_lshl_b32 s{sFES}, s{sFES}, 1" if self.o["ex"] else ""}
        s_add_u32 s{sFES}, s{sFES}, {FE_OFF}
        v_bfrev_b32 v{vGST}, 1
        s_lshl_b32 s{sWQ}, s{sML}, 16
        s_sub_u32 s{sWQ}, s{sWQ}, 16384
        """)
        if self.o["ex"]:
            assert self.o["fdirect"] and self.o["g4"]
            k.e(f"""
            v_lshrrev_b32 v{vT0}, 5, v{vL}
            v_lshlrev_b32 v{vT0}, 9, v{vT0}
            v_bfe_u32 v{vT1}, v{vL}, 2, 2
            v_lshl_add_u32 v{vT0}, v{vT1}, 7, v{vT0}
            v_bfe_u32 v{vT1}, v{vL}, 4, 1
            v_lshl_add_u32 v{vT0}, v{vT1}, 6, v{vT0}
            v_and_b32 v{vT1}, 3, v{vL}
            v_lshl_add_u32 v{vFST}, v{vT1}, 4, v{vT0}
            """)
        if self.o["g4"]:
            ex = self.o["ex"]
            k.e(f"""
            s_or_b32 s{sT0}, s{sN}, s{sW}
            s_cmp_eq_u32 s{sT0}, 0
            s_cselect_b32 s{sT2}, 0, {OOB}
            s_and_b32 s{sT0}, s{sM}, 7
            s_lshr_b32 s{sT1}, s{sM}, 3
            s_lshl_b32 s{sT3}, s{sT0}, 14
            s_add_u32 s{sT3}, s{sT3}, s{sT2}
            s_lshl_b32 s{sA}, s{sT1}, 10
            s_add_u32 s{sT3}, s{sT3}, s{sA}
            s_add_u32 s{sT3}, s{sT3}, {P_OFF}
            v_add_u32 v{vGP}, s{sT3}, v{vLIN16}
            v_bfe_u32 v{vT0}, v{vL}, 3, 1
            v_lshlrev_b32 v{vT0}, {13 + ex}, v{vT0}
            v_and_b32 v{vT1}, 7, v{vL}
            v_lshl_add_u32 v{vT0}, v{vT1}, 4, v{vT0}
            v_lshrrev_b32 v{vT1}, 5, v{vL}
            v_lshl_add_u32 v{vT0}, v{vT1}, {7 + ex}, v{vT0}
            v_bfe_u32 v{vT1}, v{vL}, 4, 1
            v_lshl_add_u32 v{vT0}, v{vT1}, {7 if ex else 3}, v{vT0}
            s_lshl_b32 s{sT0}, s{sT0}, {10 + ex}
            s_lshl_b32 s{sT1}, s{sT1}, {8 + ex}
            s_add_u32 s{sT0}, s{sT0}, s{sT1}
            s_add_u32 s{sT0}, s{sT0}, s{sT2}
            s_add_u32 s{sT0}, s{sT0}, {GE_OFF}
            v_add_u32 v{vGST}, s{sT0}, v{vT0}
            """)

    def w2_finish(self):
        k = self.k
        for v in range(self.o["w2in"] + self.o["w2mid"], 9):
            if self.o.get("hbar") and v == 5:
                assert self.o["w2in"] + self.o["w2mid"] <= 5
                k.e("s_barrier")
            if v == 8 and self.o["g4"]:
                self.g4_partial()
            for op in self.w2_ops(v):
                op()
        self.setup2()
        for v in range(3):
            k.wait(vm=("w2", v))
            self.tr16(self.w2_slot(v), 16 * v, "a", ("t2", v))
        for v in range(3):
            k.wait(lg=("t2", v))
            for op in self.w2_ops(9 + v):
                op()
        top, done = k.label("hsw"), k.label("hsd")
        k.e(f"""
        v_cmp_gt_u32 vcc, 64, v{vHS}
        s_cbranch_vccnz {top}
        {done}:
        """)
        self.ool.append(("hs", top, done))
        hd = self.o.get("hdirect", 0)
        if not hd:
            k.vmem(f"buffer_load_dword v{vHS}, v{vSMP}, {sr(SWS, 4)}, s{sHS} offen sc1", "smp")
        for v in range(3, 8):
            k.wait(vm=("w2", v))
            self.tr16(self.w2_slot(v), 16 * v, "a", ("t2", v))
            if hd and v == hd + 2 and v < 8:
                self.h_loads(True, not self.o["hplain"])
                self.clear_at("hld")
        if self.o["glate"] or self.o["g4"]:
            self.w2_last()
        else:
            gtop, gjoin = k.label("gblk"), k.label("gjoin")
            k.e(f"s_cmp_lt_u32 s2, 8\ns_cbranch_scc1 {gtop}")
            self.ool.append(("g", gtop, gjoin, list(k.vm), list(k.lg)))
            self.w2_last()
            k.e(f"{gjoin}:")
        self.clear_at("w2d")
        self.stamp("w2done")

    def w2_last(self):
        k = self.k
        for v in range(8, 12):
            k.wait(vm=("w2", v))
            self.tr16(self.w2_slot(v), 16 * v, "a", ("t2", v))

    def g4_issue(self):
        k = self.k
        lab = k.label("g4i")
        k.e(f"""
        s_cmp_lg_u32 s{sN}, 0
        s_cbranch_scc1 {lab}
        s_add_u32 m0, s{sRW}, {XS[3]}
        v_and_b32 v{vT0}, 15, v{vL}
        v_lshlrev_b32 v{vT0}, 10, v{vT0}
        v_lshrrev_b32 v{vT1}, 4, v{vL}
        v_lshl_add_u32 v{vT0}, v{vT1}, 4, v{vT0}
        """)
        for q in range(4):
            o = f" offset:{q * 1024}" if q else ""
            k.e(f"buffer_load_dwordx4 v{vW2 + q}, {sr(SWG, 4)}, 0 offen{o} lds")
        k.e(f"""
        s_add_u32 m0, s{sRW}, {GS}
        s_nop 0
        buffer_load_dwordx4 v{vT0}, {sr(SG, 4)}, 0 offen lds
        {lab}:
        """)
        self.g4_mark = k.nvm

    def g4_partial(self):
        k = self.k
        A, B, D = 128, 144, 160
        lab = k.label("g4p")
        k.e(f"""
        s_cmp_lg_u32 s{sN}, 0
        s_cbranch_scc1 {lab}
        v_subrev_u32 v{vT0}, s{sRW}, v{vT16}
        s_lshl_b32 s{sT0}, s{sW}, 5
        v_xor_b32 v{vT0}, s{sT0}, v{vT0}
        v_add_u32 v{vT1}, {2 * RW}, v{vT0}
        v_lshlrev_b32 v{vT2}, 4, v{vL}
        v_add_u32 v{vT2}, {GS}, v{vT2}
        v_add_u32 v{vT3}, {2 * RW}, v{vT2}
        s_waitcnt vmcnt({k.nvm - self.g4_mark}) lgkmcnt(0)
        s_barrier
        """)
        for j in range(4):
            a, b = (vT0, vT2) if j < 2 else (vT1, vT3)
            o = (j & 1) * RW
            k.e(f"ds_read_b64_tr_b16 {vr(A + 4 * j, 2)}, v{a} offset:{o + XS[3]}")
            k.e(f"ds_read_b64_tr_b16 {vr(A + 4 * j + 2, 2)}, v{a} offset:{o + XS[3] + 512}")
            k.e(f"ds_read_b128 {vr(B + 4 * j, 4)}, v{b} offset:{o}")
        k.e(f"""
        s_and_b32 s{sT0}, s{sM}, 7
        s_lshl_b32 s{sT0}, s{sT0}, 14
        s_lshr_b32 s{sT1}, s{sM}, 3
        s_lshl_b32 s{sT1}, s{sT1}, 12
        s_add_u32 s{sT0}, s{sT0}, s{sT1}
        s_lshl_b32 s{sT1}, s{sW}, 10
        s_add_u32 s{sT0}, s{sT0}, s{sT1}
        s_add_u32 s{sT0}, s{sT0}, {P_OFF}
        s_waitcnt lgkmcnt(0)
        s_barrier
        v_lshlrev_b32 v{vT0}, 4, v{vL}
        """)
        for j in range(4):
            self.mfma16(D, A + 4 * j, B + 4 * j, j == 0, ak="v")
        k.nop(12)
        k.e(f"buffer_store_dwordx4 {vr(D, 4)}, v{vT0}, {sr(SWS, 4)}, s{sT0} offen sc1\n{lab}:")

    def g4_loads(self, counted):
        k = self.k
        for q in range(4):
            t = self.tmp()
            k.e(f"s_mov_b32 s{t}, {q * 4096}")
            ins = f"buffer_load_dwordx4 {vr(160 + 4 * q, 4)}, v{vGP}, {sr(SWS, 4)}, s{t} offen sc1"
            if counted:
                k.vmem(ins, "gp")
            else:
                k.e(ins)

    def g4_final(self):
        k = self.k
        P = 160
        k.e(f"s_mov_b32 s{sSPIN}, 0")
        k.wait(vm="gp")
        retry, ok, again = k.label("gpr"), k.label("gpk"), k.label("gpa")
        k.e(f"{again}:")
        k.e(f"v_max_u32 v{vT0}, v{P}, v{P + 1}")
        for i in range(2, 16, 2):
            k.e(f"v_max3_u32 v{vT0}, v{vT0}, v{P + i}, v{P + i + 1}")
        k.e(f"v_cmp_eq_u32 vcc, -1, v{vT0}\ns_cbranch_vccnz {retry}\n{ok}:")
        self.ool.append(("poll", retry, ok, again, self.g4_loads))
        for i in range(4):
            k.e(f"v_add_f32 v{P + i}, v{P + i}, v{P + 4 + i}")
            k.e(f"v_add_f32 v{P + 8 + i}, v{P + 8 + i}, v{P + 12 + i}")
        for i in range(4):
            k.e(f"v_add_f32 v{P + i}, v{P + i}, v{P + 8 + i}")
        if self.o["ex"]:
            self.ex_tail(P, P + 4, P + 8, P + 12, P + 16)
            k.vmem(f"buffer_store_dwordx4 {vr(P + 12, 4)}, v{vGST}, {sr(SWS, 4)}, 0 offen sc1", "gest")
            return
        k.e(f"v_cvt_pk_bf16_f32 v{P + 4}, v{P}, v{P + 1}")
        k.e(f"v_cvt_pk_bf16_f32 v{P + 5}, v{P + 2}, v{P + 3}")
        k.vmem(f"buffer_store_dwordx2 {vr(P + 4, 2)}, v{vGST}, {sr(SWS, 4)}, 0 offen sc1", "gest")

    def ex_tail(self, S, PK, B, T, A):
        k = self.k
        k.e(f"v_cvt_pk_bf16_f32 v{PK}, v{S}, v{S + 1}")
        k.e(f"v_cvt_pk_bf16_f32 v{PK + 1}, v{S + 2}, v{S + 3}")
        for i in range(2):
            k.e(f"v_lshlrev_b32 v{B + 2 * i}, 16, v{PK + i}")
            k.e(f"v_and_b32 v{B + 2 * i + 1}, 0xffff0000, v{PK + i}")
        for i in range(4):
            k.e(f"v_mul_f32 v{T + i}, {f32(CT)}, v{B + i}")
        for i in range(4):
            k.e(f"v_and_b32 v{A + i}, 0x7fffffff, v{T + i}")
        for i in range(4):
            k.e(f"v_exp_f32 v{T + i}, v{T + i}")
        fix, ok = k.label("exf"), k.label("exk")
        k.e(f"""
        v_max3_u32 v{A}, v{A}, v{A + 1}, v{A + 2}
        v_max_u32 v{A}, v{A}, v{A + 3}
        v_cmp_lt_u32 vcc, {f32(EX_MAX)}, v{A}
        s_cbranch_vccnz {fix}
        {ok}:
        """)
        self.ool.append(("exfix", fix, ok, PK, T, A))

    def g_loads(self, GF):
        k = self.k
        k.e(f"""
        v_and_b32 v{vT0}, 15, v{vL}
        v_lshlrev_b32 v{vT0}, 10, v{vT0}
        v_lshrrev_b32 v{vT1}, 4, v{vL}
        v_lshl_add_u32 v{vT0}, v{vT1}, 4, v{vT0}
        """)
        for j in range(4):
            t = self.tmp()
            k.e(f"s_lshr_b32 s{t}, s{sR4[j]}, 4")
            k.e(f"v_add_u32 v{vT1}, s{t}, v{vT0}")
            k.vmem(f"buffer_load_dwordx4 {vr(GF + 4 * j, 4)}, v{vT1}, {sr(SG, 4)}, 0 offen", "g")

    def g_addr(self):
        k = self.k
        k.e(f"""
        v_bfe_u32 v{vT0}, v{vL}, 3, 1
        v_lshlrev_b32 v{vT0}, 13, v{vT0}
        v_and_b32 v{vT1}, 7, v{vL}
        v_lshl_add_u32 v{vT0}, v{vT1}, 4, v{vT0}
        v_lshrrev_b32 v{vT1}, 5, v{vL}
        v_lshl_add_u32 v{vT0}, v{vT1}, 7, v{vT0}
        v_bfe_u32 v{vT1}, v{vL}, 4, 1
        v_lshl_add_u32 v{vT0}, v{vT1}, 3, v{vT0}
        s_lshl_b32 s{sT0}, s2, 10
        s_lshl_b32 s{sT1}, s{sW}, 8
        s_add_u32 s{sT0}, s{sT0}, s{sT1}
        s_add_u32 s{sT0}, s{sT0}, {GE_OFF}
        v_add_u32 v{vGST}, s{sT0}, v{vT0}
        """)

    def g_block(self):
        k = self.k
        GF = HB
        slots = [T4[0], T4[1], XS[2], XS[3]] if self.o["w2mid"] else [T4[0], T4[1], XS[1], XS[2]]
        k.wait(lg=("t2", 7))
        self.stamp("g0")
        for j in range(4):
            self.dma4k(SWG, slots[j], self.w32_soff(j, 0), ("wg", j))
        self.g_loads(GF)
        self.stamp("gdma")
        self.w2_last()
        self.stamp("gw2")
        self.g_addr()
        for j in range(4):
            k.wait(vm=("wg", j))
            self.tr16(slots[j], 192 + 16 * j, "a", ("twg", j))
        self.stamp("gwg")
        k.wait(vm="all")
        self.stamp("gld")
        for j in range(4):
            k.wait(lg=("twg", j))
            for ct in range(4):
                self.mfma16(ACC2 + 4 * ct, 192 + 16 * j + 4 * ct, GF + 4 * j, j == 0)
        self.stamp("gmf")
        self.reduce16(ACC2, False, None, None, None)
        k.e("s_barrier")
        self.stamp("gend")

    def poll_sample(self, stem, vaddr, sbase):
        k = self.k
        top, done = k.label(stem + "p"), k.label(stem + "d")
        k.wait(vm="smp")
        k.e(f"""
        v_cmp_eq_u32 vcc, -1, v{vHS}
        s_cbranch_vccnz {top}
        {done}:
        """)
        self.ool.append(("smp", top, done, vaddr, sbase))

    def reduce16(self, acc, act, vst, sst, tag, mid=None, ex=False):
        k = self.k
        k.e(f"v_add_u32 v{vT3}, {2 * RW}, v{vRD2}")
        k.nop(8)
        for ct in range(4):
            k.ds(f"ds_write_b128 v{vLIN}, {vr(acc + 4 * ct, 4)} offset:{ct * 1024}")
        if tag == "fst":
            k.wait(vm="clrfe")
        k.wait(lg="all")
        k.e("s_barrier")
        for sw in range(4):
            a = vRD2 if sw < 2 else vT3
            k.ds(f"ds_read_b128 {vr(R2 + 4 * sw, 4)}, v{a} offset:{(sw & 1) * RW}", ("r", sw))
        if mid:
            mid()
        k.wait(lg=("r", 1))
        for i in range(4):
            k.e(f"v_add_f32 v{R2 + i}, v{R2 + i}, v{R2 + 4 + i}")
        k.wait(lg=("r", 3))
        for i in range(4):
            k.e(f"v_add_f32 v{R2 + 8 + i}, v{R2 + 8 + i}, v{R2 + 12 + i}")
        for i in range(4):
            k.e(f"v_add_f32 v{R2 + i}, v{R2 + i}, v{R2 + 8 + i}")
        if act:
            self.gelu([R2 + i for i in range(4)], R2 + 4, vKC3)
        if ex:
            self.ex_tail(R2, R2 + 4, R2 + 8, R2 + 12, R2 + 16)
            k.vmem(f"buffer_store_dwordx4 {vr(R2 + 12, 4)}, v{vFST}, {sr(SWS, 4)}, s{sst} offen sc1", tag)
            return
        k.e(f"v_cvt_pk_bf16_f32 v{R2 + 8}, v{R2}, v{R2 + 1}")
        k.e(f"v_cvt_pk_bf16_f32 v{R2 + 9}, v{R2 + 2}, v{R2 + 3}")
        if vst is not None:
            k.vmem(f"buffer_store_dwordx2 {vr(R2 + 8, 2)}, v{vst}, {sr(SWS, 4)}, s{sst} offen sc1", tag)

    def h_loads(self, counted, sc):
        k = self.k
        for v in range(12):
            j, i = v // 3, v % 3
            t = self.tmp()
            k.e(f"s_add_u32 s{t}, s{sH}, s{sR4[j]}")
            if i == 0:
                k.e(f"s_sub_u32 s{t}, s{t}, 16384")
            elif i == 2:
                k.e(f"s_add_u32 s{t}, s{t}, 16384")
            ins = (f"buffer_load_dwordx4 {vr(HB + 4 * v, 4)}, v{vH0 if i == 0 else vLIN16}, "
                   f"{sr(SWS, 4)}, s{t} offen" + (" sc1" if sc else ""))
            if counted:
                k.vmem(ins, ("h", v))
            else:
                k.e(ins)

    def stage2(self):
        k = self.k
        hd = self.o.get("hdirect", 0)
        if not hd:
            self.poll_sample("h", vSMP, sHS)
        self.stamp("hpoll")
        loads = self.h_loads
        k.e(f"s_mov_b32 s{sSPIN}, 0")
        if not hd:
            loads(True, not self.o["hplain"])
        if not self.o["glate"] and not self.o["g4"]:
            k.vmem(f"buffer_store_dwordx2 {vr(R2 + 8, 2)}, v{vGST}, {sr(SWS, 4)}, 0 offen sc1", "gest")
        k.wait(lg="all")
        fill = []
        for j in range(4):
            fill += self.dma4k_ops(SWF, T4[j], self.w32_soff(j, 0), ("wf", j))
        for _ in range(self.o.get("wfpre", 4)):
            fill.pop(0)()
        mf, retry, ok = k.label("s2m"), k.label("s2r"), k.label("s2k")
        k.e(f"{mf}:")
        for v in range(12):
            k.wait(vm=("h", v))
            f = HB + 4 * v
            if v == 0:
                k.e(f"v_mov_b32 v{vT0}, v{f + 3}")
            elif v % 2 == 0:
                k.e(f"v_max3_u32 v{vT0}, v{vT0}, v{f - 1}, v{f + 3}")
            for ct in range(4):
                self.mfma16(ACC2 + 4 * ct, 16 * v + 4 * ct, f, v == 0)
            if v < self.o.get("wfloop", 12) and fill:
                fill.pop(0)()
        k.e(f"v_max_u32 v{vT0}, v{vT0}, v{HB + 47}")
        k.e(f"v_cmp_eq_u32 vcc, -1, v{vT0}\ns_cbranch_vccnz {retry}\n{ok}:")
        self.ool.append(("bulk", retry, ok, mf, loads))
        self.stamp("s2mfma")
        if self.o["g4"]:
            self.g4_loads(True)
        self.wf_rest = fill

    def wo_slot(self, bb, e):
        if bb % 2 == 0:
            base = [T4[4], XS[1], XS[2], XS[3]]
        else:
            base = [T4[0], T4[1], T4[2], T4[3]]
        return base[e // 2] + 2048 * (e & 1)

    def wo_issue(self, bb, e0, e1):
        k = self.k
        for e in range(e0, e1):
            assert self.wo_next == 8 * bb + e
            self.wo_next += 1
            k.e(f"s_add_u32 s{sWQ}, s{sWQ}, 16384\ns_and_b32 s{sWQ}, s{sWQ}, 0x7c000")
            self.dma2k(SWO, self.wo_slot(bb, e), f"s{sWQ}", ("wo", bb, e))

    def wo_tr_ops(self, bb):
        ops = []
        for e in range(8):
            for ct, a in enumerate((vTR0, vTR1)):
                for hf in range(2):
                    off = self.wo_slot(bb, e) + 512 * hf
                    dst = 8 * (8 * bb + e) + 4 * ct + 2 * hf
                    ops.append(("ds", f"ds_read_b64_tr_b16 {vr(dst, 2, 'a')}, v{a} offset:{off}", ("two", bb)))
        return ops

    def wo_tr(self, bb):
        k = self.k
        for e in range(8):
            k.wait(vm=("wo", bb, e))
            self.tr32(self.wo_slot(bb, e), 8 * (8 * bb + e), "a", ("two", bb))

    def stage2_tail(self):
        k = self.k
        self.wo_next = 0

        def mid():
            for _ in range(self.o.get("wfmid", 0)):
                if self.wf_rest:
                    self.wf_rest.pop(0)()
        self.reduce16(ACC2, True, vST, sFS, "fst", mid=mid)
        self.stamp("fst")
        while self.wf_rest:
            self.wf_rest.pop(0)()
        k.e("s_barrier")
        if self.o["glate"]:
            gtop, self.gjoin = k.label("gl"), k.label("glj")
            k.e(f"s_cmp_lt_u32 s2, 8\ns_cbranch_scc1 {gtop}")
            self.ool.append(("glate", gtop, self.gjoin, list(k.vm), list(k.lg), self.wo_next))
        self.wo_issue(0, 0, 8)
        self.wo_pattern()
        k.wait(vm=("wf", 3))
        for j in range(4):
            self.tr16(T4[j], 192 + 16 * j, "a", "twf")
        if self.o["g4"]:
            self.g4_final()
        if self.o["b1B"]:
            k.wait(lg="twf")
            self.wo_issue(1, 0, self.o["b1B"])
        if self.o["glate"] and self.stop_after in ("s2", "ge"):
            k.e(f"s_waitcnt vmcnt(0) lgkmcnt(0)\n{self.gjoin}:")

    def glate_block(self, join):
        k = self.k
        GF = HB + 16
        slots = [self.wo_slot(0, 2 * j) for j in range(4)]
        for j in range(4):
            self.dma4k(SWG, slots[j], self.w32_soff(j, 0), ("wg", j))
        self.g_loads(GF)
        self.stamp("gdma")
        self.wo_pattern()
        self.g_addr()
        k.wait(vm=("wf", 3))
        for j in range(4):
            self.tr16(T4[j], 192 + 16 * j, "a", "twf")
        for j in range(4):
            k.wait(vm=("wg", j))
            self.tr16(slots[j], 128 + 16 * j, "a", ("twg", j))
        self.stamp("gwg")
        k.wait(lg="all")
        self.wo_issue(0, 0, 8)
        k.vmem(f"buffer_load_dword v{vHS}, v{vFSM}, {sr(SWS, 4)}, s{sFL} offen sc1", "smp")
        k.wait(vm="g")
        self.stamp("gld")
        for j in range(4):
            for ct in range(4):
                self.mfma16(ACC2 + 4 * ct, 128 + 16 * j + 4 * ct, GF + 4 * j, j == 0)
        self.stamp("gmf")
        self.reduce16(ACC2, False, None, None, None)
        k.vmem(f"buffer_store_dwordx2 {vr(R2 + 8, 2)}, v{vGST}, {sr(SWS, 4)}, 0 offen sc1", "gest")
        k.e("s_barrier")
        self.stamp("gend")
        if self.stop_after in ("s2", "ge"):
            k.e(f"s_waitcnt vmcnt(0) lgkmcnt(0)\ns_branch {join}")
            return
        self.stage3(gpath=True)
        k.wait(vm=("wo", 1, 7))
        k.e(f"s_branch {join}")

    def wo_pattern(self):
        k = self.k
        k.e(f"""
        v_bfe_u32 v{vT0}, v{vL}, 2, 2
        v_lshrrev_b32 v{vT1}, 5, v{vL}
        v_lshl_add_u32 v{vT1}, v{vT1}, 3, v{vT0}
        v_lshlrev_b32 v{vT1}, 7, v{vT1}
        v_lshrrev_b32 v{vT2}, 1, v{vT0}
        v_lshl_add_u32 v{vT1}, v{vT2}, 6, v{vT1}
        v_bfe_u32 v{vT2}, v{vL}, 4, 1
        v_lshl_add_u32 v{vT1}, v{vT2}, 5, v{vT1}
        v_and_b32 v{vT2}, 1, v{vL}
        v_lshl_add_u32 v{vT1}, v{vT2}, 4, v{vT1}
        v_bfe_u32 v{vT2}, v{vL}, 1, 1
        v_lshl_add_u32 v{vT1}, v{vT2}, 3, v{vT1}
        v_add_u32 v{vTR0}, s{sRW}, v{vT1}
        v_xor_b32 v{vT1}, 64, v{vT1}
        v_add_u32 v{vTR1}, s{sRW}, v{vT1}
        """)

    def stage3(self, gpath=False):
        k = self.k
        FB = HB
        b1B = 0 if gpath else self.o["b1B"]

        def loads(counted, sc):
            for j in range(4):
                t = self.tmp()
                k.e(f"s_add_u32 s{t}, s{sFL}, s{sR4[j]}")
                ins = (f"buffer_load_dwordx4 {vr(FB + 4 * j, 4)}, v{vLIN16}, {sr(SWS, 4)}, s{t} offen"
                       + (" sc1" if sc else ""))
                if counted:
                    k.vmem(ins, ("f", j))
                else:
                    k.e(ins)
        fd = self.o.get("fdirect", 0)
        if fd:
            k.e(f"s_mov_b32 s{sSPIN}, 0")
            loads(True, fd != 2)
            self.wo_tr(0)
            k.wait(vm=("f", 3))
            again, retry0, ok0 = k.label("fda"), k.label("fdr"), k.label("fdk")
            k.e(f"{again}:")
            k.e(f"v_max_u32 v{vT0}, v{FB + 1}, v{FB + 3}")
            for j in range(1, 4):
                k.e(f"v_max3_u32 v{vT0}, v{vT0}, v{FB + 4 * j + 1}, v{FB + 4 * j + 3}")
            k.e(f"v_cmp_eq_u32 vcc, -1, v{vT0}\ns_cbranch_vccnz {retry0}\n{ok0}:")
            self.ool.append(("poll", retry0, ok0, again, lambda counted: loads(counted, True)))
            self.stamp("fpoll")
            k.wait(lg="all")
            self.wo_issue(1, b1B, 8)
            for j in range(4):
                for ct in range(4):
                    self.mfma16(ACC2 + 4 * ct, 192 + 16 * j + 4 * ct, FB + 4 * j, j == 0)
            self.stamp("s3mfma")
            self.reduce16(ACC2, False, vST, sFES, "fest", mid=lambda: self.wo_issue(2, 0, self.o["b2C"]),
                          ex=self.o["ex"])
            self.stamp("fest")
            k.e("s_barrier")
            return
        if not gpath:
            k.vmem(f"buffer_load_dword v{vHS}, v{vFSM}, {sr(SWS, 4)}, s{sFL} offen sc1", "smp")
        self.wo_tr(0)
        self.poll_sample("f", vFSM, sFL)
        self.stamp("fpoll")
        k.e(f"s_mov_b32 s{sSPIN}, 0")
        loads(True, not self.o["fplain"])
        k.wait(lg="all")
        mf, retry, ok = k.label("s3m"), k.label("s3r"), k.label("s3k")
        self.wo_issue(1, b1B, 8)
        k.e(f"{mf}:")
        for j in range(4):
            k.wait(vm=("f", j))
            f = FB + 4 * j
            if j == 0:
                k.e(f"v_max_u32 v{vT0}, v{f + 1}, v{f + 3}")
            else:
                k.e(f"v_max3_u32 v{vT0}, v{vT0}, v{f + 1}, v{f + 3}")
            for ct in range(4):
                self.mfma16(ACC2 + 4 * ct, 192 + 16 * j + 4 * ct, f, j == 0)
        k.e(f"v_cmp_eq_u32 vcc, -1, v{vT0}\ns_cbranch_vccnz {retry}\n{ok}:")
        self.ool.append(("bulk", retry, ok, mf, loads))
        self.stamp("s3mfma")
        self.reduce16(ACC2, False, vST, sFES, "fest", mid=lambda: self.wo_issue(2, 0, self.o["b2C"]),
                          ex=self.o["ex"])
        self.stamp("fest")
        if gpath:
            return
        if self.o["glate"]:
            k.e(f"{self.gjoin}:")
        k.e("s_barrier")

    def stage4(self):
        k = self.k
        CB, FR, Z, JP, BF, ACC, OUT = 32, 96, 128, 144, 160, 192, 224
        vGA, vFA, vJ0, vJ2 = 8, 9, 10, 11
        RAW = 160
        ex = self.o["ex"]
        if ex:
            Z, JP = 224, 240
            late_tr, fr_read = self.s4_head_ex(CB, FR, Z)
        else:
            late_tr, fr_read = self.s4_head(CB, FR, RAW), None
        self.stamp("fepoll")
        self.s4_loop(CB, FR, Z, JP, BF, ACC, OUT, late_tr, fr_read)

    def s4_head(self, CB, FR, RAW):
        k = self.k
        ex = 0
        vGA, vFA, vJ0, vJ2 = 8, 9, 10, 11
        k.e(f"""
        v_and_b32 v{vT0}, 7, v{vL}
        v_lshlrev_b32 v{vT0}, 4, v{vT0}
        v_lshrrev_b32 v{vT1}, 5, v{vL}
        v_lshl_add_u32 v{vGA}, v{vT1}, {7 + ex}, v{vT0}
        v_bfe_u32 v{vT0}, v{vL}, 3, 2
        v_lshlrev_b32 v{vT0}, 4, v{vT0}
        v_lshl_add_u32 v{vFA}, v{vT1}, {8 + ex}, v{vT0}
        v_lshlrev_b32 v{vJ0}, 4, v{vL}
        v_add_u32 v{vJ2}, {2 * RW}, v{vJ0}
        s_lshl_b32 s{sGL}, s{sB}, {13 + ex}
        s_lshl_b32 s{sT0}, s{sW}, {8 + ex}
        s_add_u32 s{sGL}, s{sGL}, s{sT0}
        s_add_u32 s{sGL}, s{sGL}, {GE_OFF}
        s_lshl_b32 s{sFE}, s{sM}, {14 + ex}
        s_lshl_b32 s{sT0}, s{sW}, {9 + ex}
        s_add_u32 s{sFE}, s{sFE}, s{sT0}
        s_lshl_b32 s{sT0}, s{sJN}, 6
        s_add_u32 s{sFE}, s{sFE}, s{sT0}
        s_add_u32 s{sFE}, s{sFE}, {FE_OFF}
        """)

        def np_off(r, shift):
            t = self.tmp()
            if self.o["rot"]:
                k.e(f"s_add_u32 s{t}, s{sML}, {r}\ns_and_b32 s{t}, s{t}, 7\ns_lshl_b32 s{t}, s{t}, {shift}")
            else:
                k.e(f"s_mov_b32 s{t}, {r << shift}")
            return t

        def ge_loads(counted):
            for r in range(8):
                t = np_off(r, 10 + ex)
                k.e(f"s_add_u32 s{t}, s{t}, s{sGL}")
                for hf in range(1 + ex):
                    d, o = RAW + (4 << ex) * r + 4 * hf, f" offset:{128 * hf}" if hf else ""
                    sc = "" if counted and self.o.get("geplain") else " sc1"
                    ins = f"buffer_load_dwordx4 {vr(d, 4)}, v{vGA}, {sr(SWS, 4)}, s{t} offen{o}{sc}"
                    if counted:
                        k.vmem(ins, "ge")
                    else:
                        k.e(ins)

        def fe_loads(counted):
            for r in range(8):
                t = np_off(r, 11 + ex)
                k.e(f"s_add_u32 s{t}, s{t}, s{sFE}")
                for hf in range(1 + ex):
                    d, o = FR + (4 << ex) * r + 4 * hf, f" offset:{256 * hf}" if hf else ""
                    ins = f"buffer_load_dwordx4 {vr(d, 4)}, v{vFA}, {sr(SWS, 4)}, s{t} offen{o} sc1"
                    if counted:
                        k.vmem(ins, ("fe", r))
                    else:
                        k.e(ins)

        def check(base, n, dst):
            if ex:
                k.e(f"v_max_u32 v{dst}, v{base + 3}, v{base + 7}")
                for g in range(2, 2 * n, 2):
                    k.e(f"v_max3_u32 v{dst}, v{dst}, v{base + 4 * g + 3}, v{base + 4 * g + 7}")
                return
            k.e(f"v_max_u32 v{dst}, v{base + 1}, v{base + 3}")
            for r in range(1, n):
                k.e(f"v_max3_u32 v{dst}, v{dst}, v{base + 4 * r + 1}, v{base + 4 * r + 3}")

        ge_loads(True)
        self.wo_issue(2, self.o["b2C"], 8)
        self.wo_tr(1)
        k.wait(lg="all")
        self.wo_issue(3, 0, 8)
        k.e(f"s_mov_b32 s{sSPIN}, 0")
        if ex:
            k.e(f"s_mov_b32 s{sA}, 0")
        k.wait(vm="ge")
        retry, ok = k.label("ger"), k.label("gek")
        again = k.label("gea")
        k.e(f"{again}:")
        test = "v_cmp_gt_i32 vcc, 0," if ex else "v_cmp_eq_u32 vcc, -1,"
        check(RAW, 8, vT0)
        k.e(f"{test} v{vT0}\ns_cbranch_vccnz {retry}\n{ok}:")
        self.ool.append(("pollx" if ex else "poll", retry, ok, again, ge_loads))
        if ex:
            fe_loads(True)
        else:
            k.e(f"s_mov_b32 s{sA}, {f32(CT)}")
            fe_loads(True)
            for r in range(8):
                for i in range(4):
                    src = RAW + 4 * r + i
                    k.e(f"v_lshlrev_b32 v{CB + 8 * r + 2 * i}, 16, v{src}")
                    k.e(f"v_and_b32 v{CB + 8 * r + 2 * i + 1}, 0xffff0000, v{src}")
            for i in range(64):
                k.e(f"v_mul_f32 v{CB + i}, s{sA}, v{CB + i}")
        self.stamp("cb")
        self.wo_tr(2)
        late_tr = []
        if self.o["trb3"] == "pre":
            self.wo_tr(3)
        else:
            late_tr = self.wo_tr_ops(3)
        k.e(f"s_mov_b32 s{sSPIN}, 0")
        k.wait(vm=("fe", 7))
        retry, ok = k.label("fer"), k.label("fek")
        again = k.label("fea")
        k.e(f"{again}:")
        check(FR, 8, vT0)
        k.e(f"{test} v{vT0}\ns_cbranch_vccnz {retry}\n{ok}:")
        self.ool.append(("poll", retry, ok, again, fe_loads))
        return late_tr

    def s4_head_ex(self, CB, FR, Z):
        k = self.k
        vGG, vFG, vCRD, vFRD, vJ0, vJ2 = [8, 12, 13, 14], [9, 20], 21, 22, 10, 11
        GR, FB = 160, 176
        k.e(f"""
        v_and_b32 v{vT0}, 7, v{vL}
        v_lshlrev_b32 v{vT0}, 4, v{vT0}
        v_bfe_u32 v{vT1}, v{vL}, 3, 1
        v_lshl_add_u32 v{vT2}, v{vT1}, 8, v{vT0}
        v_lshl_add_u32 v{vT3}, v{vT1}, 9, v{vT0}
        v_bfe_u32 v{vT1}, v{vL}, 4, 1
        v_lshl_add_u32 v{vT2}, v{vT1}, 7, v{vT2}
        v_lshrrev_b32 v{vT1}, 5, v{vL}
        v_lshl_add_u32 v{vCRD}, v{vT1}, 7, v{vT0}
        v_add_u32 v{vCRD}, s{sRW}, v{vCRD}
        v_add_u32 v{vT1}, s{sML}, v{vT1}
        """)
        for j in range(4):
            k.e(f"""
            v_add_u32 v{vT0}, {2 * j}, v{vT1}
            v_and_b32 v{vT0}, 7, v{vT0}
            v_lshl_add_u32 v{vGG[j]}, v{vT0}, 11, v{vT2}
            """)
        k.e(f"""
        s_lshl_b32 s{sGL}, s{sB}, 14
        s_lshl_b32 s{sT0}, s{sW}, 9
        s_add_u32 s{sGL}, s{sGL}, s{sT0}
        s_add_u32 s{sGL}, s{sGL}, {GE_OFF}
        """)

        def ge_loads(counted):
            for j in range(4):
                sc = "" if counted and self.o.get("geplain") else " sc1"
                ins = f"buffer_load_dwordx4 {vr(GR + 4 * j, 4)}, v{vGG[j]}, {sr(SWS, 4)}, s{sGL} offen{sc}"
                if counted:
                    k.vmem(ins, "ge")
                else:
                    k.e(ins)

        def fe_loads(counted):
            for j in range(2):
                ins = f"buffer_load_dwordx4 {vr(FB + 4 * j, 4)}, v{vFG[j]}, {sr(SWS, 4)}, s{sFE} offen sc1"
                if counted:
                    k.vmem(ins, "fe")
                else:
                    k.e(ins)
        ge_loads(True)
        k.e(f"""
        v_lshrrev_b32 v{vT1}, 4, v{vL}
        v_add_u32 v{vT1}, s{sML}, v{vT1}
        v_and_b32 v{vT0}, 7, v{vT1}
        v_lshl_add_u32 v{vFG[0]}, v{vT0}, 12, v{vT3}
        v_xor_b32 v{vFG[1]}, 16384, v{vFG[0]}
        v_lshrrev_b32 v{vT1}, 5, v{vL}
        v_bfe_u32 v{vT0}, v{vL}, 3, 2
        v_lshlrev_b32 v{vT0}, 4, v{vT0}
        v_lshl_add_u32 v{vFRD}, v{vT1}, 7, v{vT0}
        v_add_u32 v{vFRD}, s{sRW}, v{vFRD}
        v_lshlrev_b32 v{vJ0}, 4, v{vL}
        v_add_u32 v{vJ2}, {2 * RW}, v{vJ0}
        s_lshl_b32 s{sFE}, s{sM}, 15
        s_lshl_b32 s{sT0}, s{sW}, 10
        s_add_u32 s{sFE}, s{sFE}, s{sT0}
        s_lshl_b32 s{sT0}, s{sJN}, 7
        s_add_u32 s{sFE}, s{sFE}, s{sT0}
        s_add_u32 s{sFE}, s{sFE}, {FE_OFF}
        """)
        self.wo_issue(2, self.o["b2C"], 8)
        self.wo_tr(1)
        k.wait(lg="all")
        if self.o.get("feat", 0) == -2:
            fe_loads(True)
        if not self.o.get("b3late"):
            self.wo_issue(3, 0, self.o.get("b3pre", 0) if self.o.get("b3loop") else 8)
        if self.o.get("feat", 0) == -1:
            fe_loads(True)
        k.e(f"s_mov_b32 s{sSPIN}, 0\ns_mov_b32 s{sA}, 0")
        k.wait(vm="ge")
        retry, ok, again = k.label("ger"), k.label("gek"), k.label("gea")
        k.e(f"""
        {again}:
        v_max_u32 v{vT0}, v{GR + 3}, v{GR + 7}
        v_max3_u32 v{vT0}, v{vT0}, v{GR + 11}, v{GR + 15}
        v_cmp_gt_i32 vcc, 0, v{vT0}
        s_cbranch_vccnz {retry}
        {ok}:
        """)
        self.ool.append(("pollx", retry, ok, again, ge_loads))
        if self.o.get("feat", 0) == 0:
            fe_loads(True)
        for j in range(4):
            k.ds(f"ds_write_b128 v{vLIN}, {vr(GR + 4 * j, 4)} offset:{j * 1024}", "gw")
        if self.o.get("b3late"):
            self.wo_issue(3, 0, 8)
        k.wait(lg="gw")
        for r in range(8):
            for hf in range(2):
                k.ds(f"ds_read_b128 {vr(CB + 8 * r + 4 * hf, 4)}, v{vCRD} offset:{r * 512 + hf * 256}", "cb")
        if self.o.get("feat", 0) == 1:
            fe_loads(True)
        self.stamp("cb")
        self.wo_tr(2)
        if self.o.get("feat", 0) == 2:
            fe_loads(True)
        late_tr = self.wo_tr_ops(3)
        k.e(f"s_mov_b32 s{sSPIN}, 0")
        k.wait(vm="fe")
        retry, ok, again = k.label("fer"), k.label("fek"), k.label("fea")
        k.e(f"""
        {again}:
        v_max_u32 v{vT0}, v{FB + 3}, v{FB + 7}
        v_cmp_gt_i32 vcc, 0, v{vT0}
        s_cbranch_vccnz {retry}
        {ok}:
        """)
        self.ool.append(("pollx", retry, ok, again, fe_loads))
        for j in range(2):
            k.ds(f"ds_write_b128 v{vLIN}, {vr(FB + 4 * j, 4)} offset:{FS + j * 1024}", "fw")

        def fr_read(r):
            for hf in range(2):
                k.ds(f"ds_read_b128 {vr(FR + 8 * r + 4 * hf, 4)}, v{vFRD} offset:{FS + r * 256 + hf * 64}", ("fr", r))
        slow, fast = k.label("exs"), k.label("exq")
        k.e(f"s_cmp_lg_u32 s{sA}, 0\ns_cbranch_scc1 {slow}\n{fast}:")
        self.ool.append(("exslow", slow, fast, CB, FR, Z, vFRD))
        k.wait(lg="all")
        for r in range(4):
            fr_read(r)
        return late_tr, fr_read

    def s4_loop(self, CB, FR, Z, JP, BF, ACC, OUT, late_tr, fr_read):
        k = self.k
        ex = self.o["ex"]
        vJ0, vJ2 = 10, 11

        def j_ops(r):
            ops = []
            z = Z + 8 * (r & 1)
            jp = JP + 4 * (r & 1)
            if ex:
                for i in range(8):
                    ops.append((f"v_fma_f32 v{z + i}, v{FR + 8 * r + i}, v{CB + 8 * r + i}, 1.0", 4))
                for i in range(8):
                    ops.append((f"v_rcp_f32 v{z + i}, v{z + i}", 8))
                for i in range(8):
                    ops.append((f"v_fma_f32 v{z + i}, v{z + i}, -2.0, 1.0", 4))
                for i in range(4):
                    ops.append((f"v_cvt_pk_bf16_f32 v{jp + i}, v{z + 2 * i}, v{z + 2 * i + 1}", 4))
                ops.append(("ds", f"ds_write_b128 v{vLIN}, {vr(jp, 4)} offset:{r * 1024}", ("jw", r)))
                return ops
            for i in range(4):
                ops.append((f"v_lshlrev_b32 v{z + 2 * i}, 16, v{FR + 4 * r + i}", 4))
                ops.append((f"v_and_b32 v{z + 2 * i + 1}, 0xffff0000, v{FR + 4 * r + i}", 4))
            for i in range(8):
                ops.append((f"v_fma_f32 v{z + i}, v{z + i}, s{sA}, v{CB + 8 * r + i}", 4))
            for i in range(8):
                ops.append((f"v_exp_f32 v{z + i}, v{z + i}", 8))
            for i in range(8):
                ops.append((f"v_add_f32 v{z + i}, 1.0, v{z + i}", 4))
            for i in range(8):
                ops.append((f"v_rcp_f32 v{z + i}, v{z + i}", 8))
            for i in range(8):
                ops.append((f"v_fma_f32 v{z + i}, v{z + i}, -2.0, 1.0", 4))
            for i in range(4):
                ops.append((f"v_cvt_pk_bf16_f32 v{jp + i}, v{z + 2 * i}, v{z + 2 * i + 1}", 4))
            ops.append(("ds", f"ds_write_b128 v{vLIN}, {vr(jp, 4)} offset:{r * 1024}", ("jw", r)))
            return ops

        dbg = self.o.get("s4dbg", "")

        def emit(op):
            if op[0] == "ds":
                k.ds(op[1], op[2])
                return 4
            t = op[0]
            if "notrans" in dbg:
                t = t.replace("v_exp_f32", "v_mov_b32").replace("v_rcp_f32", "v_mov_b32")
            if "novalu" not in dbg and not ("nofma" in dbg and t.startswith("v_fma")):
                k.e(t)
            return op[1]

        def read1(r, jj):
            b = BF + 16 * (r & 1)
            a = vJ0 if jj < 2 else vJ2
            k.ds(f"ds_read_b128 {vr(b + 4 * jj, 4)}, v{a} offset:{(jj & 1) * RW + r * 1024}", ("jr", r, jj))

        def reads(r):
            for jj in range(4):
                read1(r, jj)

        k.wait(lg=("fr", 0) if ex else "all")
        if "twice" in dbg:
            k.e(f"s_mov_b32 s{sSPIN}, 0\nL_twice:\ns_waitcnt lgkmcnt(0)\ns_barrier")
            self.stamp("fepoll2")
        b3 = self.o.get("b3loop", 0)
        b3q = list(range(self.o.get("b3pre", 0), 8)) if b3 else []

        def b3_issue(n):
            for _ in range(n):
                if b3q:
                    e = b3q.pop(0)
                    self.wo_issue(3, e, e + 1)
        b3_issue(self.o.get("b3j0", 1))
        for op in j_ops(0):
            emit(op)
        b3_issue(self.o.get("b3j1", 1))
        o1 = j_ops(1)
        n1 = 8 if ex else 16
        if ex:
            k.wait(lg=("fr", 1))
        for op in o1[:n1]:
            emit(op)
        k.wait(lg=("jw", 0))
        k.e("s_barrier")
        reads(0)
        for op in o1[n1:]:
            emit(op)
        self.stamp("j01")
        for r in range(8):
            ops = j_ops(r + 2) if r + 2 < 8 else []
            total = sum(op[1] if op[0] != "ds" else 4 for op in ops)
            spread = self.o.get("s4spread", 0)
            if not spread:
                k.wait(lg=("jr", r, 3))
            b = BF + 16 * (r & 1)
            spent = 0
            bar_at = self.o["s4bar"] + (self.o.get("s4bar0", 2) if r == 0 else 0)
            assert bar_at + 3 * spread <= 7
            for i in range(8):
                jj, ct = i // 2, i % 2
                q = 4 * r + jj
                if r == 6 and i == 0:
                    k.wait(lg=("two", 3))
                if spread and ct == 0:
                    k.wait(lg=("jr", r, jj))
                if "nomfma" not in dbg:
                    self.mfma32(ACC + 16 * ct, 8 * q + 4 * ct, b + 4 * jj, r == 0 and jj == 0, ak="a")
                if ex and r < 2 and i < 2:
                    fr_read(4 + 2 * r + i)
                if b3 and i % b3 == b3 - 1:
                    b3_issue(1)
                if i == bar_at and r + 1 < 8:
                    self.stamp(f"ba{r}")
                    k.wait(lg=("jw", r + 1))
                    self.stamp(f"bb{r}")
                    if "nobar" not in dbg:
                        k.e("s_barrier")
                    self.stamp(f"bc{r}")
                    if not spread:
                        reads(r + 1)
                if spread and r + 1 < 8 and 0 <= (i - bar_at) < 4 * spread and (i - bar_at) % spread == 0:
                    read1(r + 1, (i - bar_at) // spread)
                if late_tr and i > bar_at and r >= self.o.get("ltr0", 2 if ex else 0):
                    if (self.o.get("b3late") or self.o.get("feat", 0) == -2) and len(late_tr) == 32:
                        k.wait(vm=("wo", 3, 7))
                    left = sum(7 - self.o["s4bar"] for rr in range(r + 1, 6)) + (8 - i)
                    for _ in range(max(2, -(-len(late_tr) // max(left, 1)))):
                        if late_tr:
                            if b3 and len(late_tr) % 4 == 0:
                                e = 8 - len(late_tr) // 4
                                assert e not in b3q
                                k.wait(vm=("wo", 3, e))
                            emit(late_tr.pop(0))
                while ops and spent < total * (i + 1) / 8:
                    spent += emit(ops.pop(0))
            while ops:
                emit(ops.pop(0))
            if r == 6 and self.o.get("otr"):
                self.out_addr()
            self.stamp(f"s4r{r}")
        assert not late_tr
        if "twice" in dbg:
            k.e(f"s_add_u32 s{sSPIN}, s{sSPIN}, 1\ns_cmp_lt_u32 s{sSPIN}, 2\ns_cbranch_scc1 L_twice")
        self.stamp("s4mfma")
        if self.o.get("otr"):
            self.out_rows(ACC, OUT)
            return
        k.e(f"""
        s_lshl_b32 s{sT0}, s{sMT}, 7
        s_lshl_b32 s{sT1}, s{sJN}, 5
        s_add_u32 s{sT0}, s{sT0}, s{sT1}
        s_lshl_b32 s{sT0}, s{sT0}, 10
        s_lshl_b32 s{sT1}, s{sNH}, 9
        s_add_u32 s{sT0}, s{sT0}, s{sT1}
        s_lshl_b32 s{sT1}, s{sW}, 7
        s_add_u32 s{sT0}, s{sT0}, s{sT1}
        v_and_b32 v{vT0}, 31, v{vL}
        v_lshlrev_b32 v{vT0}, 10, v{vT0}
        v_lshrrev_b32 v{vT1}, 5, v{vL}
        v_lshl_add_u32 v{vT0}, v{vT1}, 4, v{vT0}
        v_add_u32 v{vT0}, s{sT0}, v{vT0}
        """)
        k.nop(2)
        for ct in range(2):
            for a in range(2):
                src = ACC + 16 * ct + 8 * a
                dst = OUT + 8 * ct + 4 * a
                for i in range(4):
                    k.e(f"v_cvt_pk_bf16_f32 v{dst + i}, v{src + 2 * i}, v{src + 2 * i + 1}")
                o = ct * 64 + a * 32
                os_ = f" offset:{o}" if o else ""
                k.vmem(f"buffer_store_dwordx4 {vr(dst, 4)}, v{vT0}, {sr(SOUT, 4)}, 0 offen{os_}" + self.outpol(), "out")

    def outpol(self):
        return {0: "", 1: " sc1", 2: " nt", 3: " sc0 sc1", 4: " sc1 nt", 5: " sc0 sc1 nt"}[self.o.get("outsc", 0)]

    def out_addr(self):
        k = self.k
        k.e(f"""
        s_lshl_b32 s{sT0}, s{sMT}, 7
        s_lshl_b32 s{sT1}, s{sJN}, 5
        s_add_u32 s{sT0}, s{sT0}, s{sT1}
        s_lshl_b32 s{sT0}, s{sT0}, 10
        s_lshl_b32 s{sT1}, s{sNH}, 9
        s_add_u32 s{sT0}, s{sT0}, s{sT1}
        s_lshl_b32 s{sT1}, s{sW}, 7
        s_add_u32 s{sA}, s{sT0}, s{sT1}
        v_and_b32 v{vT1}, 31, v{vL}
        v_lshrrev_b32 v{vT0}, 5, v{vL}
        v_xor_b32 v{vT0}, v{vT0}, v{vT1}
        v_and_b32 v{vT0}, 7, v{vT0}
        v_lshlrev_b32 v{vT0}, 4, v{vT0}
        v_lshl_add_u32 v{vT0}, v{vT1}, 7, v{vT0}
        v_add_u32 v{vT0}, s{sRW}, v{vT0}
        v_lshrrev_b32 v{vT1}, 3, v{vL}
        v_and_b32 v{vT3}, 7, v{vL}
        v_xor_b32 v{vT2}, v{vT1}, v{vT3}
        v_lshlrev_b32 v{vT2}, 4, v{vT2}
        v_lshl_add_u32 v{vT2}, v{vT1}, 7, v{vT2}
        v_add_u32 v{vT2}, s{sRW}, v{vT2}
        v_lshlrev_b32 v{vT3}, 4, v{vT3}
        v_lshl_add_u32 v{vT3}, v{vT1}, 10, v{vT3}
        """)

    def out_rows(self, ACC, OUT):
        k = self.k
        k.nop(12)
        for ct in range(2):
            for a in range(2):
                src = ACC + 16 * ct + 8 * a
                dst = OUT + 8 * ct + 4 * a
                for i in range(4):
                    k.e(f"v_cvt_pk_bf16_f32 v{dst + i}, v{src + 2 * i}, v{src + 2 * i + 1}")
                p2 = 4 * ct + 2 * a
                if p2:
                    k.e(f"v_xor_b32 v{vT1}, {p2 * 16}, v{vT0}")
                k.ds(f"ds_write_b128 v{vT1 if p2 else vT0}, {vr(dst, 4)} offset:{T4[0]}", "ow")
        k.wait(lg="ow")
        for i in range(4):
            k.ds(f"ds_read_b128 {vr(OUT + 4 * i, 4)}, v{vT2} offset:{T4[0] + i * 1024}", ("or", i))
        for i in range(4):
            t = self.tmp()
            k.e(f"s_add_u32 s{t}, s{sA}, {i * 8192}")
            k.wait(lg=("or", i))
            k.vmem(f"buffer_store_dwordx4 {vr(OUT + 4 * i, 4)}, v{vT3}, {sr(SOUT, 4)}, s{t} offen"
                   + self.outpol(), "out")

    def epilogue(self):
        k = self.k
        if self.stamps:
            if self.o.get("endwait"):
                k.e("s_waitcnt vmcnt(0)")
            self.stamp("end")
            n = self.nst
            k.e("s_waitcnt vmcnt(0) lgkmcnt(0)")
            for i in range(n):
                k.e(f"v_writelane_b32 v{vT1}, s{STAMP0 + 2 * i}, {i}")
            k.e(f"""
            s_lshl_b32 s{sT0}, s2, 2
            s_add_u32 s{sT0}, s{sT0}, s{sW}
            s_lshl_b32 s{sT0}, s{sT0}, 6
            s_add_u32 s{sT0}, s{sT0}, {STAMP_OFF}
            s_mov_b32 s{SWS + 2}, {STAMP_OFF + (1 << 20)}
            v_lshlrev_b32 v{vT0}, 2, v{vL}
            s_mov_b64 exec, 0xffff
            buffer_store_dword v{vT1}, v{vT0}, {sr(SWS, 4)}, s{sT0} offen
            """)
        k.e("s_waitcnt vmcnt(0)\nL_end:\ns_endpgm")
        for item in self.ool:
            if item[0] == "hs":
                _, top, done = item
                k.e(f"""
                {top}:
                s_mov_b32 s{sSPIN}, 0
                v_and_b32 v{vT0}, 3, v{vL}
                v_lshlrev_b32 v{vT0}, 6, v{vT0}
                {top}_l:
                """)
                self.spin_check(done)
                k.e(f"""
                buffer_load_dword v{vHS}, v{vT0}, {sr(SDBG, 4)}, 0 offen sc1
                s_waitcnt vmcnt(0)
                v_cmp_gt_u32 vcc, 64, v{vHS}
                s_cbranch_vccnz {top}_l
                s_branch {done}
                """)
            elif item[0] == "g":
                _, top, join, vm, lg = item
                k.vm, k.lg = vm, lg
                k.e(f"{top}:")
                self.g_block()
                k.e(f"s_branch {join}")
            elif item[0] == "glate":
                _, top, join, vm, lg, self.wo_next = item
                k.vm, k.lg = vm, lg
                k.e(f"{top}:")
                self.glate_block(join)
            elif item[0] == "exfix":
                _, top, ok, PK, T, A = item
                k.e(f"{top}:")
                for i in range(2):
                    k.e(f"v_and_b32 v{A + 2 * i}, 0xffff, v{PK + i}")
                    k.e(f"v_lshrrev_b32 v{A + 2 * i + 1}, 16, v{PK + i}")
                for i in range(4):
                    k.e(f"v_or_b32 v{A + i}, 0x80000000, v{A + i}")
                for i in range(4):
                    k.e(f"v_cndmask_b32 v{T + i}, v{T + i}, v{A + i}, vcc")
                k.e(f"s_branch {ok}")
            elif item[0] == "pollx":
                _, retry, ok, back, loads = item
                real = retry + "_r"
                k.e(f"""
                {retry}:
                v_cmp_eq_u32 vcc, -1, v{vT0}
                s_cbranch_vccnz {real}
                s_mov_b32 s{sA}, 1
                s_branch {ok}
                {real}:
                """)
                self.spin_check(ok)
                loads(False)
                k.e(f"s_waitcnt vmcnt(0)\ns_branch {back}")
            elif item[0] == "exslow":
                _, top, ok, CB, FR, Z, vFRD = item
                k.e(f"{top}:\ns_mov_b32 s{sA}, {f32(CT)}\ns_waitcnt lgkmcnt(0)")
                for r in range(8):
                    for hf in range(2):
                        k.e(f"ds_read_b128 {vr(FR + 8 * r + 4 * hf, 4)}, v{vFRD} offset:{FS + r * 256 + hf * 64}")
                k.e("s_waitcnt lgkmcnt(0)")
                for i in range(64):
                    for src, t in ((CB + i, Z), (FR + i, Z + 2)):
                        k.e(f"""
                        v_cmp_gt_i32 vcc, 0, v{src}
                        v_log_f32 v{t + 1}, v{src}
                        v_lshlrev_b32 v{t}, 16, v{src}
                        v_mul_f32 v{t}, s{sA}, v{t}
                        v_cndmask_b32 v{t}, v{t + 1}, v{t}, vcc
                        """)
                    k.e(f"""
                    v_add_f32 v{Z}, v{Z}, v{Z + 2}
                    s_nop 0
                    v_exp_f32 v{CB + i}, v{Z}
                    """)
                for i in range(4):
                    k.e(f"v_mov_b32 v{Z + 4 + i}, 1.0")
                for j in range(2):
                    k.e(f"ds_write_b128 v{vLIN}, {vr(Z + 4, 4)} offset:{FS + j * 1024}")
                k.e(f"s_branch {ok}")
            elif item[0] == "smp":
                _, top, done, vaddr, sbase = item
                k.e(f"{top}:\ns_mov_b32 s{sSPIN}, 0\n{top}_l:")
                self.spin_check(done)
                k.e(f"""
                buffer_load_dword v{vHS}, v{vaddr}, {sr(SWS, 4)}, s{sbase} offen sc1
                s_waitcnt vmcnt(0)
                v_cmp_eq_u32 vcc, -1, v{vHS}
                s_cbranch_vccnz {top}_l
                s_branch {done}
                """)
            else:
                kind, retry, ok, back, loads = item
                k.e(f"{retry}:")
                self.spin_check(ok)
                if kind == "bulk":
                    loads(False, True)
                else:
                    loads(False)
                k.e(f"s_waitcnt vmcnt(0)\ns_branch {back}")
        k.e("L_last:\ns_endpgm" + ("\nL_textend:" if self.o.get("warm") else ""))

    def build(self):
        k = self.k
        stop = self.stop_after
        self.prologue()
        self.stage1()
        self.w2_finish()
        if stop != "s1":
            self.stage2()
            self.stage2_tail()
            if stop not in ("s2", "ge"):
                self.stage3()
                if stop != "s3":
                    self.stage4()
        self.epilogue()
        return self.text()

    def text(self):
        head = f"""; RNN-T joint network: two stride-2 conv stems, w_f / w_g projections, tanh, w_o.
; @launch grid=(256,1,1) block=(256,1,1) lds={LDS_BYTES}
.amdgcn_target "amdgcn-amd-amdhsa--gfx950"
.text
.globl {NAME}
.p2align 8
.type {NAME},@function
{NAME}:
"""
        tail = f"""
.section .rodata,"a"
.p2align 6
.amdhsa_kernel {NAME}
  .amdhsa_next_free_vgpr 512
  .amdhsa_next_free_sgpr 102
  .amdhsa_accum_offset 256
  .amdhsa_group_segment_fixed_size 0
  .amdhsa_kernarg_size 80
  .amdhsa_user_sgpr_count 2
  .amdhsa_user_sgpr_kernarg_segment_ptr 1
  .amdhsa_system_sgpr_workgroup_id_x 1
.end_amdhsa_kernel
"""
        return head + self.k.text() + tail


if __name__ == "__main__":
    out = sys.argv[1] if len(sys.argv) > 1 else "cdna_kernels/" + NAME.replace("_kernel", "") + ".s"
    g = Gen2(stamps=False)
    open(out, "w").write(g.build())
    print("wrote", out)
```

```python
import math
import sys
from kb import K, vr, ar, sr, f32

NAME = "standalone__seq2seq_rnn_t_joint__speech_kernel"

H_OFF = 65536
F_OFF = H_OFF + (1 << 20)
FE_OFF = F_OFF + (1 << 19)
GE_OFF = FE_OFF + (1 << 20)
P_OFF = GE_OFF + 65536
WS_REC = 4 << 20
STAMP_OFF = 8 << 20
OOB = 0x80000000
SPIN_MAX = 4096

RW = 40960
RB = 17408
LDS_BYTES = 163840
T4 = [RB + 4096 * t for t in range(5)]
XS = [4096 * t for t in range(4)]
GS = RB + 20480
FS = GS + 1024

SX, SW1, SW2, SG, SWF, SWG, SWO, SOUT, SDBG, SWS = 24, 28, 32, 36, 40, 44, 48, 52, 56, 60
sW, sM, sN, sB, sMT, sRW, sML, sJN = 64, 65, 66, 67, 68, 69, 70, 71
sKI, sKC = 72, 3
sT0, sT1, sT2, sT3 = 73, 74, 75, 76
sSPIN = 77
STAMP0 = 78
sH, sFL, sFS, sFE, sGL, sGS, sHS, sA, sB2 = 4, 5, 6, 7, 8, 9, 10, 11, 12
sR4 = [13, 14, 15, 16]
sNH = 17
sFES, sWQ = 18, 19

vL, vT0, vT1, vT2, vT3, vLIN, vRD = 1, 2, 3, 4, 5, 6, 7
vXW = 8
vXA, vXZ, vQ0 = 12, 13, 14
vWA0, vWA1, vTR0, vTR1 = 15, 16, 17, 18
vXB = 19
vBA = 22
vW2 = 24
vT16 = 28
vONES = 32
vHS = 36
AF, BFR, ACC1, R1 = 40, 56, 64, 96
vLIN16, vH0, vSMP, vST, vRD2, vKC3, vSV, vFSM, vGST = 8, 9, 10, 11, 12, 13, 14, 19, 20
HB, ACC2, R2 = 128, 176, 192
vPF = 37
vGP = 21
vFST = 19

C1 = 2 * math.log2(math.e) * math.sqrt(2 / math.pi)
C3 = C1 * 0.044715
CT = 2 * math.log2(math.e)
EX_MAX = 125.0

DEFAULT_STAMPS = ("start", "iss", "x0", "s1mfma", "hst", "w2done", "hpoll", "s2mfma", "fst", "s3mfma", "fest", "end")
S1_STAMPS = ("start", "karg", "iss0", "iss", "x0", "u5", "u11", "u17", "s1mfma", "hst", "w2done", "end")
R4_STAMPS = ("start", "fepoll", "j01", "s4r0", "s4r1", "s4r2", "s4r3", "s4r4", "s4r5", "s4r6", "s4r7", "end")
R5_STAMPS = ("start", "fepoll2", "j01", "s4r0", "s4r1", "s4r2", "s4r3", "s4r4", "s4r5", "s4r6", "s4r7", "end")
G_STAMPS = ("start", "hst", "g0", "gdma", "gw2", "gwg", "gld", "gmf", "gend", "w2done", "hpoll", "end")
GL_STAMPS = ("start", "fst", "gdma", "gwg", "gld", "gmf", "gend", "fpoll", "s3mfma", "fest", "fepoll", "end")
S2_STAMPS = ("start", "s1mfma", "hst", "w2done", "hpoll", "s2mfma", "fst", "fpoll", "s3mfma", "fest", "fepoll", "end")
P_STAMPS = ("start", "karg", "probe", "iss0", "iss", "x0", "u5", "u11", "u17", "s1mfma", "hst", "end")
S4_STAMPS = ("start", "hst", "s2mfma", "fst", "fpoll", "s3mfma", "fest", "cb", "fepoll", "s4r3", "s4mfma", "end")


class Gen2:
    def __init__(self, stop_after=None, stamps=True, opts=None):
        self.k = K()
        self.stop_after = stop_after
        self.stamps = stamps
        self.nst = 0
        self.names = []
        self.o = dict(prefetch=False, rot=True, hplain=True, fplain=False, x2=1, x3=2,
                      b1B=4, b2C=4, trb3="loop", s4bar=3, w2in=3, w2mid=0, glate=0, g4=1,
                      fdirect=1, hdirect=3, ex=1, feat=-1, b3loop=4, b3pre=4, ltr0=2,
                      geplain=1, hbar=1, hearly=1, otr=1, outsc=1, xsplit=1, clrw=1, fepos='hld', groleA=1)
        self.o.update(opts or {})
        self.rot = 0
        self.ool = []

    def stamp(self, name):
        names = self.o.get("stamps", DEFAULT_STAMPS)
        if not self.stamps or name not in names:
            return
        self.names = list(names)
        self.nst = len(names)
        r = STAMP0 + 2 * names.index(name)
        self.k.e(f"{'s_memtime' if self.o.get('memtime') else 's_memrealtime'} s[{r}:{r + 1}]")

    def tmp(self):
        self.rot = (self.rot + 1) % 4
        return sT0 + self.rot

    def tile(self, key, dst):
        self.k.e(f"s_xor_b32 s{dst}, s{sN}, {self.o[key]}")

    def srd(self, d, ptr, off, nrec):
        k = self.k
        if off is None:
            k.e(f"s_mov_b32 s{d}, s{ptr}\ns_mov_b32 s{d + 1}, s{ptr + 1}")
        else:
            k.e(f"s_add_u32 s{d}, s{ptr}, s{off}\ns_addc_u32 s{d + 1}, s{ptr + 1}, 0")
        k.e(f"s_mov_b32 s{d + 2}, {nrec}\ns_mov_b32 s{d + 3}, 0x20000")

    def nt(self, srd):
        key = {SW1: "ntw1", SW2: "ntw2", SWF: "ntwf", SWG: "ntwg", SWO: "ntwo", SX: "ntx"}[srd]
        return " nt" if self.o.get(key) else ""

    def dma2k(self, srd, lds_off, soff, tag):
        k = self.k
        nt = self.nt(srd)
        k.e(f"s_add_u32 m0, s{sRW}, {lds_off}")
        k.e("s_nop 0")
        k.vmem(f"buffer_load_dwordx4 v{vWA0}, {sr(srd, 4)}, {soff} offen{nt} lds", tag)
        k.vmem(f"buffer_load_dwordx4 v{vWA1}, {sr(srd, 4)}, {soff} offen offset:1024{nt} lds", tag)

    def dma4k_ops(self, srd, lds_off, soff_fn, tag):
        k = self.k
        st = {}

        def op(q):
            if q == 0:
                st["s"] = soff_fn()
                k.e(f"s_add_u32 m0, s{sRW}, {lds_off}")
                k.e("s_nop 0")
            o = f" offset:{q * 1024}" if q else ""
            k.vmem(f"buffer_load_dwordx4 v{vW2 + q}, {sr(srd, 4)}, {st['s']} offen{o}{self.nt(srd)} lds", tag)
        return [lambda q=q: op(q) for q in range(4)]

    def dma4k(self, srd, lds_off, soff_fn, tag):
        for op in self.dma4k_ops(srd, lds_off, soff_fn, tag):
            op()

    def tr32(self, lds_off, dst, kind, tag):
        k = self.k
        for ct, a in enumerate((vTR0, vTR1)):
            k.ds(f"ds_read_b64_tr_b16 {vr(dst + 4 * ct, 2, kind)}, v{a} offset:{lds_off}", tag)
            k.ds(f"ds_read_b64_tr_b16 {vr(dst + 4 * ct + 2, 2, kind)}, v{a} offset:{lds_off + 512}", tag)

    def tr16(self, lds_off, dst, kind, tag):
        k = self.k
        for ct in range(4):
            k.ds(f"ds_read_b64_tr_b16 {vr(dst + 4 * ct, 2, kind)}, v{vT16 + ct} offset:{lds_off}", tag)
            k.ds(f"ds_read_b64_tr_b16 {vr(dst + 4 * ct + 2, 2, kind)}, v{vT16 + ct} offset:{lds_off + 512}", tag)

    def mfma32(self, d, a, b, first, ak="v"):
        c = "0" if first else vr(d, 16)
        self.k.e(f"v_mfma_f32_32x32x16_bf16 {vr(d, 16)}, {vr(a, 4, ak)}, {vr(b, 4)}, {c}")

    def mfma16(self, d, a, b, first, ak="a"):
        c = "0" if first else vr(d, 4)
        self.k.e(f"v_mfma_f32_16x16x32_bf16 {vr(d, 4)}, {vr(a, 4, ak)}, {vr(b, 4)}, {c}")

    def gelu(self, xs, tmp, kc3):
        k = self.k
        ts = [tmp + i for i in range(len(xs))]
        for x, t in zip(xs, ts):
            k.e(f"v_mul_f32 v{t}, v{x}, v{x}")
        for x, t in zip(xs, ts):
            k.e(f"v_fmaak_f32 v{t}, v{t}, v{kc3}, {f32(-C1)}")
        for x, t in zip(xs, ts):
            k.e(f"v_mul_f32 v{t}, v{t}, v{x}")
        for x, t in zip(xs, ts):
            k.e(f"v_exp_f32 v{t}, v{t}")
        for x, t in zip(xs, ts):
            k.e(f"v_add_f32 v{t}, 1.0, v{t}")
        for x, t in zip(xs, ts):
            k.e(f"v_rcp_f32 v{t}, v{t}")
        for x, t in zip(xs, ts):
            k.e(f"v_mul_f32 v{x}, v{x}, v{t}")

    def spin_check(self, done_label):
        self.k.e(f"s_add_u32 s{sSPIN}, s{sSPIN}, 1\ns_cmp_ge_u32 s{sSPIN}, {SPIN_MAX}\ns_cbranch_scc1 {done_label}")

    def prologue(self):
        k = self.k
        rot = self.o["rot"]
        k.e("""
        s_cmp_ge_u32 s2, 256
        s_cbranch_scc1 L_end
        s_load_dwordx16 s[4:19], s[0:1], 0
        s_load_dwordx4 s[20:23], s[0:1], 64
        """)
        if self.o.get("warm"):
            k.e(f"""
            s_cmp_ge_u32 s2, {8 * self.o["warm"]}
            s_cbranch_scc1 L_nowarm
            s_getpc_b64 s[24:25]
            L_pc:
            v_lshlrev_b32 v38, 7, v0
            v_cmp_gt_u32 vcc, L_textend-L_pc, v38
            s_and_saveexec_b64 s[26:27], vcc
            s_cbranch_execz L_nowarm2
            v_mov_b32 v39, s25
            v_add_co_u32 v38, vcc, s24, v38
            s_nop 1
            v_addc_co_u32 v39, vcc, 0, v39, vcc
            global_load_dword v38, v[38:39], off
            L_nowarm2:
            s_mov_b64 exec, s[26:27]
            L_nowarm:
            """)
        self.stamp("start")
        k.e(f"""
        v_lshrrev_b32 v{vT0}, 6, v0
        v_and_b32 v{vL}, 63, v0
        v_readfirstlane_b32 s{sW}, v{vT0}
        s_and_b32 s{sT0}, s2, 7
        s_lshr_b32 s{sT1}, s2, 3
        s_add_u32 s{sJN}, s{sT1}, {self.o.get("jnrot", 0)}
        s_and_b32 s{sJN}, s{sJN}, 3
        s_lshr_b32 s{sML}, s{sT1}, 2
        s_and_b32 s{sT2}, s{sT0}, 1
        s_lshl_b32 s{sN}, s{sT2}, 2
        s_add_u32 s{sN}, s{sN}, s{sJN}
        s_lshr_b32 s{sT0}, s{sT0}, 1
        s_lshl_b32 s{sM}, s{sT0}, 3
        s_add_u32 s{sM}, s{sM}, s{sML}
        """)
        xs = self.o.get("xsplit", 0)
        if xs == 1:
            k.e(f"""
            s_and_b32 s{sT0}, s2, 3
            s_lshl_b32 s{sT0}, s{sT0}, 1
            s_and_b32 s{sT2}, s{sT1}, 1
            s_add_u32 s{sN}, s{sT0}, s{sT2}
            s_and_b32 s{sJN}, s{sN}, 3
            s_bfe_u32 s{sT0}, s2, 0x10002
            s_lshl_b32 s{sT0}, s{sT0}, 4
            s_lshr_b32 s{sT2}, s{sT1}, 1
            s_add_u32 s{sM}, s{sT0}, s{sT2}
            s_and_b32 s{sML}, s{sM}, 7
            """)
        elif xs == 2:
            k.e(f"""
            s_and_b32 s{sN}, s{sT1}, 7
            s_and_b32 s{sJN}, s{sN}, 3
            s_and_b32 s{sT0}, s2, 7
            s_lshl_b32 s{sT0}, s{sT0}, 2
            s_lshr_b32 s{sT2}, s{sT1}, 3
            s_add_u32 s{sM}, s{sT0}, s{sT2}
            s_and_b32 s{sML}, s{sM}, 7
            """)
        self.gR, self.gM = sN, sM
        if self.o.get("groleA") and not self.stamps:
            assert xs == 1 and self.o["clrw"] and not self.o.get("aclr")
            self.gR, self.gM = 78, 79
            k.e(f"""
            s_and_b32 s78, s{sN}, 5
            s_and_b32 s79, s2, 4
            s_or_b32 s78, s78, s79
            s_lshl_b32 s79, s{sN}, 3
            s_add_u32 s79, s79, s{sM}
            s_and_b32 s79, s79, 31
            """)
        k.e(f"""
        s_lshr_b32 s{sB}, s{sM}, 4
        s_and_b32 s{sMT}, s{sM}, 15
        s_mul_i32 s{sRW}, s{sW}, {RW}
        v_lshrrev_b32 v{vT0}, 4, v{vL}
        v_lshrrev_b32 v{vT1}, 5, v{vL}
        v_and_b32 v{vT2}, 15, v{vL}
        v_xor_b32 v{vT2}, v{vT2}, v{vT1}
        v_lshlrev_b32 v{vT2}, 4, v{vT2}
        v_lshl_add_u32 v{vXW}, v{vT0}, 10, v{vT2}
        """)
        for e in range(1, 4):
            k.e(f"v_xor_b32 v{vXW + e}, {e * 32}, v{vXW}")
            k.e(f"v_add_u32 v{vXW + e}, {e * 3072}, v{vXW + e}")
        k.e(f"""
        v_cmp_gt_u32 vcc, 16, v{vL}
        v_bfrev_b32 v{vT0}, 1
        v_lshrrev_b32 v{vT1}, 3, v{vL}
        v_cndmask_b32 v{vQ0}, 0, v{vT0}, vcc
        v_bfe_u32 v{vT2}, v{vT1}, 1, 1
        v_lshlrev_b32 v{vT2}, 2, v{vT2}
        v_and_b32 v{vT3}, 7, v{vL}
        v_xor_b32 v{vT2}, v{vT2}, v{vT3}
        v_lshlrev_b32 v{vT2}, 4, v{vT2}
        v_lshl_add_u32 v{vWA0}, v{vT1}, 10, v{vT2}
        v_add_u32 v{vWA1}, 7168, v{vWA0}
        s_lshl_b32 s{sT0}, s{sW}, 17
        s_lshl_b32 s{sT1}, s{sN}, 7
        s_add_u32 s3, s{sT0}, s{sT1}
        s_mul_i32 s{sT0}, s{sB}, 1000
        s_lshl_b32 s{sT1}, s{sMT}, 6
        s_add_u32 s{sT0}, s{sT0}, s{sT1}
        s_sub_u32 s{sT0}, s{sT0}, 1
        s_lshl_b32 s{sT0}, s{sT0}, 10
        s_lshl_b32 s{sT2}, s{sW}, 8
        s_add_u32 s{sT0}, s{sT0}, s{sT2}
        s_ashr_i32 s{sT3}, s{sT0}, 31
        s_sub_u32 s{sT1}, 1001, s{sT1}
        s_lshl_b32 s{sT1}, s{sT1}, 10
        s_sub_u32 s{SX + 2}, s{sT1}, s{sT2}
        s_mov_b32 s{SX + 3}, 0x20000
        s_sub_u32 s{SW1 + 2}, 1572864, s3
        s_mov_b32 s{SW1 + 3}, 0x20000
        """)
        if rot:
            k.e(f"s_lshl_b32 s{sKI}, s{sML}, 14")
        else:
            k.e(f"s_mov_b32 s{sKI}, 0")
        k.e("s_waitcnt lgkmcnt(0)")
        self.stamp("karg")
        k.e(f"""
        s_add_u32 s{SX}, s4, s{sT0}
        s_addc_u32 s{SX + 1}, s5, s{sT3}
        s_add_u32 s{SW1}, s6, s3
        s_addc_u32 s{SW1 + 1}, s7, 0
        """)

    def code_prefetch(self):
        k = self.k
        mode = self.o.get("cpf", 0)
        if not mode:
            return
        lab = k.label("pf")
        k.e(f"""
        s_cmp_lg_u32 s{sW}, {self.o.get("cpfw", 3)}
        s_cbranch_scc1 {lab}
        s_getpc_b64 s[{sT0 + 1}:{sT0 + 2}]
        L_pc:
        s_lshr_b32 s{sT0}, s2, 3
        s_lshl_b32 s{sT0}, s{sT0}, 11
        v_lshlrev_b32 v{vT0}, 7, v{vL}
        v_add_u32 v{vT0}, s{sT0}, v{vT0}
        v_min_u32 v{vT0}, L_last-L_pc, v{vT0}
        s_mov_b64 exec, 0xffff
        global_load_dword v{vPF}, v{vT0}, s[{sT0 + 1}:{sT0 + 2}]
        s_mov_b64 exec, -1
        {lab}:
        """)

    def g_prefetch(self):
        k = self.k
        k.e(f"""
        s_lshr_b32 s{sT0}, s2, 3
        s_lshl_b32 s{sT1}, s{sT0}, 12
        v_lshlrev_b32 v{vT0}, 10, v{vL}
        v_add_u32 v{vT0}, s{sT1}, v{vT0}
        s_lshr_b32 s{sT1}, s{sT0}, 1
        s_lshl_b32 s{sT1}, s{sT1}, 10
        s_and_b32 s{sT0}, s{sT0}, 1
        s_lshl_b32 s{sT0}, s{sT0}, 7
        s_add_u32 s{sT0}, s{sT0}, s{sT1}
        v_mov_b32 v{vT1}, s{sT0}
        s_mov_b64 exec, 15
        """)
        k.vmem(f"buffer_load_dword v{vPF}, v{vT0}, {sr(SWG, 4)}, 0 offen", "pf")
        k.e("s_mov_b64 exec, 1")
        k.vmem(f"buffer_load_dword v{vPF + 1}, v{vT1}, {sr(SG, 4)}, 0 offen", "pf")
        k.e("s_mov_b64 exec, -1")

    def l2pf(self, pos):
        k = self.k
        for key, srd, lanes in (("pfw2", SW2, 48), ("pfwf", SWF, 16), ("pfwo", SWO, 16)):
            if self.o.get(key) != pos:
                continue
            if srd == SWO:
                k.e(f"s_lshr_b32 s{sT0}, s2, 3\ns_lshl_b32 s{sT0}, s{sT0}, 14")
            else:
                k.e(f"s_lshl_b32 s{sT0}, s{sML}, 14")
            k.e(f"""
            v_and_b32 v{vT1}, 15, v{vL}
            v_lshlrev_b32 v{vT1}, 10, v{vT1}
            v_lshrrev_b32 v{vT2}, 4, v{vL}
            v_lshl_add_u32 v{vT1}, v{vT2}, 19, v{vT1}
            s_bfm_b64 exec, {lanes}, 0
            """)
            k.vmem(f"buffer_load_dword v{vPF}, v{vT1}, {sr(srd, 4)}, s{sT0} offen", "pf")
            k.e("s_mov_b64 exec, -1")

    def x_quarter(self, qq):
        k = self.k
        a, z = sT0, sT1
        if self.o["rot"]:
            k.e(f"s_add_u32 s{a}, s{sJN}, {qq}\ns_and_b32 s{a}, s{a}, 3")
        else:
            k.e(f"s_mov_b32 s{a}, {qq}")
        k.e(f"""
        s_lshl_b32 s{sT2}, s{a}, 12
        s_add_u32 m0, s{sT2}, s{sRW}
        s_or_b32 s{z}, s{a}, s{sMT}
        s_cmp_eq_u32 s{z}, 0
        s_cselect_b32 s{z}, -1, 0
        s_and_b32 s{sT3}, s{a}, 1
        s_lshl_b32 s{sT3}, s{sT3}, 7
        s_lshl_b32 s{a}, s{a}, 14
        s_or_b32 s{a}, s{a}, s{sT3}
        """)
        for e in range(4):
            t = vXA if e % 2 == 0 else vXZ
            k.e(f"v_xor_b32 v{t}, s{a}, v{vXW + e}")
            if e == 0:
                k.e(f"v_and_or_b32 v{t}, v{vQ0}, s{z}, v{t}")
            o = f" offset:{e * 1024}" if e else ""
            k.vmem(f"buffer_load_dwordx4 v{t}, {sr(SX, 4)}, 0 offen{o}{self.nt(SX)} lds", "x")
            if qq == 0 and self.o.get("probe") == e + 1:
                k.e("s_waitcnt vmcnt(0)")
                self.stamp("probe")

    def x_tail(self):
        k = self.k
        k.e(f"""
        v_lshlrev_b32 v{vXA}, 4, v{vL}
        v_add_u32 v{vXA}, 65536, v{vXA}
        s_add_u32 m0, s{sRW}, 16384
        s_mov_b64 exec, 0xffff
        """)
        k.vmem(f"buffer_load_dwordx4 v{vXA}, {sr(SX, 4)}, 0 offen{self.nt(SX)} lds", "x")
        k.e("s_mov_b64 exec, -1")

    def w1_issue(self, u):
        k = self.k
        i = u % 3
        if i == 0 and u:
            k.e(f"s_add_u32 s{sKI}, s{sKI}, 16384\ns_and_b32 s{sKI}, s{sKI}, 0x1c000")
        if i:
            t = self.tmp()
            k.e(f"s_add_u32 s{t}, s{sKI}, {i * 524288}")
            so = f"s{t}"
        else:
            so = f"s{sKI}"
        self.dma2k(SW1, RB + 2048 * (u % 10), so, ("w1", u))

    def rot4(self):
        k = self.k
        for j in range(4):
            if self.o["rot"]:
                k.e(f"s_add_u32 s{sR4[j]}, s{sML}, {j}\ns_and_b32 s{sR4[j]}, s{sR4[j]}, 3\ns_lshl_b32 s{sR4[j]}, s{sR4[j]}, 10")
            else:
                k.e(f"s_mov_b32 s{sR4[j]}, {j * 1024}")

    def w32_soff(self, j, tap):
        def fn():
            t = self.tmp()
            self.k.e(f"s_lshl_b32 s{t}, s{sR4[j]}, 5")
            if tap:
                self.k.e(f"s_add_u32 s{t}, s{t}, {tap * 524288}")
            return f"s{t}"
        return fn

    def w2_slot(self, v):
        xs = [XS[2], XS[3], XS[0], XS[1]] if self.o["w2in"] + self.o["w2mid"] > 5 else XS
        return [T4[2], T4[3], T4[4], T4[0], T4[1], xs[0], xs[1], xs[2], xs[3], T4[2], T4[3], T4[4]][v]

    def w2_ops(self, v):
        return self.dma4k_ops(SW2, self.w2_slot(v), self.w32_soff(v // 3, v % 3), ("w2", v))

    def clears(self):
        k = self.k
        self.srd(SWS, 22, None, WS_REC)
        k.e(f"""
        v_mov_b32 v{vONES}, -1
        v_mov_b32 v{vONES + 1}, -1
        v_mov_b32 v{vONES + 2}, -1
        v_mov_b32 v{vONES + 3}, -1
        v_lshlrev_b32 v{vT0}, 4, v{vL}
        """)
        if self.o.get("aclr"):
            assert self.o["xsplit"] == 1 and self.o["clrw"] and self.o.get("fpos") is None and self.o.get("fepos")
            skip = k.label("aclr")
            k.e(f"s_bitcmp1_b32 s2, 2\ns_cbranch_scc1 {skip}")
            vm = k.vmem
            k.vmem = lambda text, tag: k.e(text)
            self.clear_body()
            k.e(f"s_xor_b32 s{sM}, s{sM}, 16")
            self.clear_body()
            k.e(f"s_xor_b32 s{sM}, s{sM}, 16\n{skip}:")
            k.vmem = vm
        else:
            self.clear_body()

    def clear_body(self):
        k = self.k
        k.e(f"""
        s_lshl_b32 s{sT0}, s{sM}, 14
        s_lshl_b32 s{sT2}, s{sW}, 9
        s_add_u32 s{sT0}, s{sT0}, s{sT2}
        """)
        self.tile("x2", sT1)
        k.e(f"""
        s_lshl_b32 s{sT1}, s{sT1}, 11
        s_add_u32 s{sT2}, s{sT0}, {F_OFF}
        s_add_u32 s{sT2}, s{sT2}, s{sT1}
        """)
        self.tile("x3", sT1)
        ex = self.o["ex"]
        if ex:
            k.e(f"""
            s_lshl_b32 s{sT1}, s{sT1}, 11
            s_add_u32 s{sT3}, s{sT0}, s{sT1}
            s_lshl_b32 s{sT3}, s{sT3}, 1
            s_add_u32 s{sT3}, s{sT3}, {FE_OFF}
            """)
            if self.o.get("noclr"):
                k.e("s_mov_b64 exec, 1")
            if self.o.get("fepos") is None:
                k.vmem(f"buffer_store_dwordx4 {vr(vONES, 4)}, v{vT0}, {sr(SWS, 4)}, s{sT3} offen sc1", "clr")
            if self.o.get("fpos") is None:
                k.e("s_mov_b32 exec_hi, 0")
                k.vmem(f"buffer_store_dwordx4 {vr(vONES, 4)}, v{vT0}, {sr(SWS, 4)}, s{sT2} offen sc1", "clr")
        else:
            k.e(f"""
            s_lshl_b32 s{sT1}, s{sT1}, 11
            s_add_u32 s{sT3}, s{sT0}, {FE_OFF}
            s_add_u32 s{sT3}, s{sT3}, s{sT1}
            s_mov_b32 exec_hi, 0
            """)
            k.vmem(f"buffer_store_dwordx4 {vr(vONES, 4)}, v{vT0}, {sr(SWS, 4)}, s{sT2} offen sc1", "clr")
            k.vmem(f"buffer_store_dwordx4 {vr(vONES, 4)}, v{vT0}, {sr(SWS, 4)}, s{sT3} offen sc1", "clr")
        lab = k.label("c0")
        if self.o.get("clrw"):
            assert self.o["g4"] and ex
            k.e(f"""
            s_mov_b64 exec, -1
            s_lshl_b32 s{sT0}, s{sM}, 15
            s_lshl_b32 s{sT1}, s{sN}, 11
            s_add_u32 s{sT0}, s{sT0}, s{sT1}
            s_lshr_b32 s{sT1}, s{sW}, 1
            s_lshl_b32 s{sT1}, s{sT1}, 14
            s_add_u32 s{sT0}, s{sT0}, s{sT1}
            s_and_b32 s{sT1}, s{sW}, 1
            s_lshl_b32 s{sT1}, s{sT1}, 10
            s_add_u32 s{sT0}, s{sT0}, s{sT1}
            s_add_u32 s{sT0}, s{sT0}, {H_OFF}
            """)
            k.vmem(f"buffer_store_dwordx4 {vr(vONES, 4)}, v{vT0}, {sr(SWS, 4)}, s{sT0} offen sc1", "clr")
            k.e(f"""
            s_cmp_lg_u32 s{self.gR}, 0
            s_cbranch_scc1 {lab}
            s_and_b32 s{sT0}, s{self.gM}, 7
            s_lshr_b32 s{sT1}, s{self.gM}, 3
            s_lshl_b32 s{sT2}, s{sT0}, 14
            s_lshl_b32 s{sT3}, s{sT1}, 12
            s_add_u32 s{sT2}, s{sT2}, s{sT3}
            s_lshl_b32 s{sT3}, s{sW}, 10
            s_add_u32 s{sT2}, s{sT2}, s{sT3}
            s_add_u32 s{sT2}, s{sT2}, {P_OFF}
            buffer_store_dwordx4 {vr(vONES, 4)}, v{vT0}, {sr(SWS, 4)}, s{sT2} offen sc1
            s_cmp_ge_u32 s{sW}, 2
            s_cbranch_scc1 {lab}
            s_lshl_b32 s{sT0}, s{sT0}, {10 + ex}
            s_lshl_b32 s{sT1}, s{sT1}, {8 + ex}
            s_add_u32 s{sT0}, s{sT0}, s{sT1}
            s_lshl_b32 s{sT1}, s{sW}, {13 + ex}
            s_add_u32 s{sT0}, s{sT0}, s{sT1}
            s_add_u32 s{sT0}, s{sT0}, {GE_OFF}
            s_bfm_b64 exec, {16 << ex}, 0
            buffer_store_dwordx4 {vr(vONES, 4)}, v{vT0}, {sr(SWS, 4)}, s{sT0} offen sc1
            s_mov_b64 exec, -1
            {lab}:
            """)
            return
        k.e(f"""
        s_mov_b64 exec, -1
        s_cmp_lg_u32 s{sW}, 0
        s_cbranch_scc1 {lab}
        s_lshl_b32 s{sT0}, s{sM}, 15
        s_lshl_b32 s{sT1}, s{sN}, 11
        s_add_u32 s{sT0}, s{sT0}, s{sT1}
        s_add_u32 s{sT0}, s{sT0}, {H_OFF}
        s_add_u32 s{sT1}, s{sT0}, 16384
        {"s_mov_b64 exec, 1" if self.o.get("noclr") else ""}
        buffer_store_dwordx4 {vr(vONES, 4)}, v{vT0}, {sr(SWS, 4)}, s{sT0} offen sc1
        buffer_store_dwordx4 {vr(vONES, 4)}, v{vT0}, {sr(SWS, 4)}, s{sT0} offen offset:1024 sc1
        buffer_store_dwordx4 {vr(vONES, 4)}, v{vT0}, {sr(SWS, 4)}, s{sT1} offen sc1
        buffer_store_dwordx4 {vr(vONES, 4)}, v{vT0}, {sr(SWS, 4)}, s{sT1} offen offset:1024 sc1
        {"s_mov_b64 exec, -1" if self.o.get("noclr") else ""}
        """)
        if self.o["g4"]:
            k.e(f"""
            s_cmp_lg_u32 s{self.gR}, 0
            s_cbranch_scc1 {lab}
            s_and_b32 s{sT0}, s{self.gM}, 7
            s_lshr_b32 s{sT1}, s{self.gM}, 3
            s_lshl_b32 s{sT2}, s{sT0}, 14
            s_lshl_b32 s{sT3}, s{sT1}, 12
            s_add_u32 s{sT2}, s{sT2}, s{sT3}
            s_add_u32 s{sT2}, s{sT2}, {P_OFF}
            s_lshl_b32 s{sT0}, s{sT0}, {10 + ex}
            s_lshl_b32 s{sT1}, s{sT1}, {8 + ex}
            s_add_u32 s{sT0}, s{sT0}, s{sT1}
            s_add_u32 s{sT0}, s{sT0}, {GE_OFF}
            s_add_u32 s{sT1}, s{sT0}, {8192 << ex}
            buffer_store_dwordx4 {vr(vONES, 4)}, v{vT0}, {sr(SWS, 4)}, s{sT2} offen sc1
            buffer_store_dwordx4 {vr(vONES, 4)}, v{vT0}, {sr(SWS, 4)}, s{sT2} offen offset:1024 sc1
            buffer_store_dwordx4 {vr(vONES, 4)}, v{vT0}, {sr(SWS, 4)}, s{sT2} offen offset:2048 sc1
            buffer_store_dwordx4 {vr(vONES, 4)}, v{vT0}, {sr(SWS, 4)}, s{sT2} offen offset:3072 sc1
            s_bfm_b64 exec, {16 << ex}, 0
            buffer_store_dwordx4 {vr(vONES, 4)}, v{vT0}, {sr(SWS, 4)}, s{sT0} offen sc1
            buffer_store_dwordx4 {vr(vONES, 4)}, v{vT0}, {sr(SWS, 4)}, s{sT1} offen sc1
            s_mov_b64 exec, -1
            {lab}:
            """)
            return
        k.e(f"""
        s_cmp_ge_u32 s2, 8
        s_cbranch_scc1 {lab}
        s_lshl_b32 s{sT0}, s2, 10
        s_add_u32 s{sT0}, s{sT0}, {GE_OFF}
        s_add_u32 s{sT1}, s{sT0}, 8192
        buffer_store_dwordx4 {vr(vONES, 4)}, v{vT0}, {sr(SWS, 4)}, s{sT0} offen sc1
        buffer_store_dwordx4 {vr(vONES, 4)}, v{vT0}, {sr(SWS, 4)}, s{sT1} offen sc1
        {lab}:
        """)

    def late_clear(self, which):
        k = self.k
        A = 38
        a, b = self.tmp(), self.tmp()
        k.e(f"s_lshl_b32 s{a}, s{sM}, 14\ns_lshl_b32 s{b}, s{sW}, 9\ns_add_u32 s{a}, s{a}, s{b}")
        self.tile("x2" if which == "f" else "x3", b)
        k.e(f"s_lshl_b32 s{b}, s{b}, 11\ns_add_u32 s{a}, s{a}, s{b}")
        if which == "fe":
            k.e(f"s_lshl_b32 s{a}, s{a}, 1")
        k.e(f"s_add_u32 s{a}, s{a}, {F_OFF if which == 'f' else FE_OFF}")
        k.e(f"v_lshlrev_b32 v{A}, 4, v{vL}")
        if which == "f":
            k.e("s_mov_b32 exec_hi, 0")
        k.vmem(f"buffer_store_dwordx4 {vr(vONES, 4)}, v{A}, {sr(SWS, 4)}, s{a} offen sc1", "clr" + which)
        if which == "f":
            k.e("s_mov_b32 exec_hi, -1")

    def clear_at(self, pos):
        for which, key in (("f", "fpos"), ("fe", "fepos")):
            if self.o.get(key) == pos:
                self.late_clear(which)

    def prologue2(self):
        k = self.k
        for key, d, ptr, size in (("x2", SW2, 8, 1572864), ("x3", SWF, 12, 524288), (None, SWG, 14, 524288)):
            if key is None and self.o["g4"]:
                k.e(f"""
                s_and_b32 s{sT0}, s{self.gM}, 7
                s_lshl_b32 s{sT0}, s{sT0}, 7
                s_lshr_b32 s{sT1}, s{self.gM}, 3
                s_lshl_b32 s{sT1}, s{sT1}, 17
                s_add_u32 s{sT0}, s{sT0}, s{sT1}
                s_lshl_b32 s{sT1}, s{sW}, 15
                s_add_u32 s{sT0}, s{sT0}, s{sT1}
                s_sub_u32 s{sT1}, {size}, s{sT0}
                """)
                self.srd(d, ptr, sT0, f"s{sT1}")
                continue
            if key:
                self.tile(key, sT0)
            else:
                k.e(f"s_and_b32 s{sT0}, s2, 7")
            k.e(f"""
            s_lshl_b32 s{sT0}, s{sT0}, 7
            s_lshl_b32 s{sT1}, s{sW}, 17
            s_add_u32 s{sT0}, s{sT0}, s{sT1}
            s_sub_u32 s{sT1}, {size}, s{sT0}
            """)
            self.srd(d, ptr, sT0, f"s{sT1}")
        if self.o["g4"]:
            k.e(f"""
            s_lshr_b32 s{sT0}, s{self.gM}, 3
            s_lshl_b32 s{sT0}, s{sT0}, 8
            s_lshl_b32 s{sT1}, s{sW}, 6
            s_add_u32 s{sT0}, s{sT0}, s{sT1}
            s_sub_u32 s{sT1}, 16384, s{sT0}
            """)
        else:
            k.e(f"""
            s_lshl_b32 s{sT0}, s{sW}, 8
            s_sub_u32 s{sT1}, 16384, s{sT0}
            """)
        self.srd(SG, 10, sT0, f"s{sT1}")
        k.e(f"""
        s_lshr_b32 s{sT2}, s{sN}, 2
        s_lshl_b32 s{sT0}, s{sT2}, 9
        s_lshl_b32 s{sT1}, s{sW}, 7
        s_add_u32 s{sT0}, s{sT0}, s{sT1}
        s_sub_u32 s{sT1}, 524288, s{sT0}
        """)
        self.srd(SWO, 16, sT0, f"s{sT1}")
        k.e(f"s_mul_i32 s{sT0}, s{sB}, 2048000")
        self.srd(SOUT, 18, sT0, 2048000)
        self.srd(SDBG, 20, None, 256)
        k.e(f"s_lshr_b32 s{sNH}, s{sN}, 2")
        self.rot4()
        k.e(f"""
        v_lshlrev_b32 v{vT0}, 4, v{vL}
        v_add_u32 v{vLIN}, s{sRW}, v{vT0}
        v_bfe_u32 v{vT0}, v{vL}, 2, 2
        v_lshrrev_b32 v{vT1}, 5, v{vL}
        v_lshl_add_u32 v{vT1}, v{vT1}, 3, v{vT0}
        v_lshlrev_b32 v{vT1}, 7, v{vT1}
        v_lshrrev_b32 v{vT2}, 1, v{vT0}
        v_lshl_add_u32 v{vT1}, v{vT2}, 6, v{vT1}
        v_bfe_u32 v{vT2}, v{vL}, 4, 1
        v_lshl_add_u32 v{vT1}, v{vT2}, 5, v{vT1}
        v_and_b32 v{vT2}, 3, v{vL}
        v_lshl_add_u32 v{vT1}, v{vT2}, 3, v{vT1}
        v_add_u32 v{vTR0}, s{sRW}, v{vT1}
        v_xor_b32 v{vT1}, 64, v{vT1}
        v_add_u32 v{vTR1}, s{sRW}, v{vT1}
        """)
        k.e(f"""
        v_and_b32 v{vT0}, 31, v{vL}
        v_lshrrev_b32 v{vT1}, 5, v{vL}
        v_and_b32 v{vT2}, 15, v{vT0}
        v_xor_b32 v{vT2}, v{vT2}, v{vT1}
        v_lshlrev_b32 v{vT2}, 4, v{vT2}
        v_lshl_add_u32 v{vT2}, v{vT0}, 9, v{vT2}
        v_add_u32 v{vXB}, s{sRW}, v{vT2}
        v_add_u32 v{vXB + 1}, 256, v{vXB}
        v_add_u32 v{vT2}, 1, v{vT0}
        v_and_b32 v{vT2}, 15, v{vT2}
        v_xor_b32 v{vT2}, v{vT2}, v{vT1}
        v_lshlrev_b32 v{vT2}, 4, v{vT2}
        v_lshl_add_u32 v{vT2}, v{vT0}, 9, v{vT2}
        v_add_u32 v{vT2}, 512, v{vT2}
        v_add_u32 v{vXB + 2}, s{sRW}, v{vT2}
        """)
        k.e(f"""
        v_lshrrev_b32 v{vT0}, 3, v{vL}
        v_bfe_u32 v{vT1}, v{vT0}, 1, 1
        v_lshlrev_b32 v{vT1}, 1, v{vT1}
        v_and_b32 v{vT2}, 7, v{vL}
        v_xor_b32 v{vT1}, v{vT1}, v{vT2}
        v_lshlrev_b32 v{vT1}, 4, v{vT1}
        v_lshl_add_u32 v{vW2}, v{vT0}, 10, v{vT1}
        v_xor_b32 v{vT1}, 64, v{vW2}
        v_add_u32 v{vW2 + 1}, 7168, v{vT1}
        v_add_u32 v{vW2 + 2}, {2 * 7168}, v{vW2}
        v_add_u32 v{vW2 + 3}, {3 * 7168}, v{vT1}
        v_lshrrev_b32 v{vT0}, 4, v{vL}
        v_bfe_u32 v{vT1}, v{vL}, 2, 2
        v_lshl_add_u32 v{vT2}, v{vT0}, 3, v{vT1}
        v_lshlrev_b32 v{vT2}, 7, v{vT2}
        v_lshrrev_b32 v{vT1}, 1, v{vT1}
        v_and_b32 v{vT0}, 1, v{vT0}
        v_lshl_add_u32 v{vT1}, v{vT0}, 1, v{vT1}
        v_lshl_add_u32 v{vT2}, v{vT1}, 5, v{vT2}
        v_and_b32 v{vT1}, 3, v{vL}
        v_lshl_add_u32 v{vT2}, v{vT1}, 3, v{vT2}
        v_add_u32 v{vT16}, s{sRW}, v{vT2}
        """)
        for ct in range(1, 4):
            k.e(f"v_xor_b32 v{vT0}, {ct * 32}, v{vT2}\nv_add_u32 v{vT16 + ct}, s{sRW}, v{vT0}")
        k.e(f"""
        v_and_b32 v{vT0}, 15, v{vL}
        v_bfe_u32 v{vT1}, v{vL}, 4, 1
        v_lshl_add_u32 v{vT0}, v{vT0}, 1, v{vT1}
        v_lshlrev_b32 v{vT0}, 4, v{vT0}
        v_lshrrev_b32 v{vT1}, 5, v{vL}
        v_lshl_add_u32 v{vT0}, v{vT1}, 10, v{vT0}
        s_lshl_b32 s{sT0}, s{sW}, 11
        v_add_u32 v{vRD}, s{sT0}, v{vT0}
        """)
        if self.o["rot"]:
            k.e(f"s_lshl_b32 s{sKC}, s{sML}, 5")
        else:
            k.e(f"s_mov_b32 s{sKC}, 0")

    def stage1(self):
        k = self.k
        if self.o.get("cpf") == 1:
            self.code_prefetch()
        self.x_quarter(0)
        for u in range(3):
            self.w1_issue(u)
        if self.o.get("cpf") == 2:
            self.code_prefetch()
        cp = self.o.get("clrpos", 0)
        if cp == 0:
            self.clears()
        for qq in range(1, 4):
            self.x_quarter(qq)
        self.x_tail()
        if cp == 1:
            self.clears()
        self.stamp("iss0")
        self.prologue2()
        if self.o.get("gpf", 1) and not self.o["g4"]:
            self.g_prefetch()
        self.l2pf("iss0")
        for u in range(3, 10):
            self.w1_issue(u)
            if cp == 3 and u == 6:
                self.clears()
        if cp == 2:
            self.clears()
        self.l2pf("iss")
        self.stamp("iss")
        k.wait(vm="x")
        self.stamp("x0")

        def arrive():
            lab = k.label("hs")
            if self.o.get("aclr"):
                k.e(f"s_bitcmp1_b32 s2, 2\ns_cbranch_scc1 {lab}")
            if self.o.get("clrw"):
                k.e("s_barrier")
            k.e(f"""
            s_cmp_lg_u32 s{sW}, 0
            s_cbranch_scc1 {lab}
            s_and_b32 s{sT0}, s2, 3
            s_lshl_b32 s{sT0}, s{sT0}, 6
            v_mov_b32 v{vT0}, s{sT0}
            v_mov_b32 v{vT1}, 1
            s_mov_b64 exec, 1
            buffer_atomic_add v{vT1}, v{vT0}, {sr(SDBG, 4)}, 0 offen sc1
            s_mov_b64 exec, -1
            {lab}:
            """)
        atom_u = {0: None, 1: 3, 2: 10, 3: 7}[cp]
        if atom_u is None:
            arrive()

        def mm(u):
            a, b = AF + 8 * (u & 1), BFR + 4 * (u & 1)
            self.mfma32(ACC1, a, b, u == 0)
            self.mfma32(ACC1 + 16, a + 4, b, u == 0)

        def refill(u):
            if u + 10 < 24:
                self.w1_issue(u + 10)
            elif u >= 15 and u % 2 == 1 and (u - 15) // 2 < self.o["w2in"]:
                for op in self.w2_ops((u - 15) // 2):
                    op()
            self.l2pf(u)
            self.clear_at(u)
            if u == self.o.get("hsu", 17):
                k.e(f"v_and_b32 v{vT0}, 3, v{vL}\nv_lshlrev_b32 v{vT0}, 6, v{vT0}")
                k.vmem(f"buffer_load_dword v{vHS}, v{vT0}, {sr(SDBG, 4)}, 0 offen sc1", "hs")

        for u in range(24):
            i = u % 3
            if i == 0 and u:
                k.e(f"s_add_u32 s{sKC}, s{sKC}, 32\ns_and_b32 s{sKC}, s{sKC}, 0xe0")
            k.e(f"v_xor_b32 v{vBA + (u & 1)}, s{sKC}, v{vXB + i}")
            k.wait(vm=("w1", u))
            if u == atom_u:
                arrive()
            self.tr32(RB + 2048 * (u % 10), AF + 8 * (u & 1), "v", ("u", u))
            k.ds(f"ds_read_b128 {vr(BFR + 4 * (u & 1), 4)}, v{vBA + (u & 1)}", ("u", u))
            if u:
                k.wait(lg=("u", u - 1))
                mm(u - 1)
                refill(u - 1)
            if u in (5, 11, 17):
                self.stamp(f"u{u}")
        k.wait(lg=("u", 23))
        mm(23)
        refill(23)
        self.stamp("s1mfma")
        if self.o["g4"]:
            self.g4_issue()
        self.l2pf("s1end")
        k.e(f"v_mov_b32 v{vKC3}, {f32(-C3)}")
        k.e(f"v_add_u32 v{vT3}, {2 * RW}, v{vRD}")
        k.nop(10)
        for blk in range(8):
            k.ds(f"ds_write_b128 v{vLIN}, {vr(ACC1 + 4 * blk, 4)} offset:{blk * 1024}")
        k.wait(vm="clrf")
        k.wait(lg="all")
        k.e("s_barrier")
        for sw in range(4):
            a = vRD if sw < 2 else vT3
            for j in range(2):
                k.ds(f"ds_read_b128 {vr(R1 + 8 * sw + 4 * j, 4)}, v{a} offset:{(sw & 1) * RW + j * 512}", ("r", sw))
        def h_addr():
            k.e(f"""
            v_and_b32 v{vT0}, 15, v{vL}
            v_lshlrev_b32 v{vT0}, 4, v{vT0}
            v_bfe_u32 v{vT1}, v{vL}, 4, 1
            v_lshl_add_u32 v{vT0}, v{vT1}, 14, v{vT0}
            v_lshrrev_b32 v{vT1}, 5, v{vL}
            v_lshl_add_u32 v{vT0}, v{vT1}, 8, v{vT0}
            s_lshl_b32 s{sT0}, s{sM}, 15
            s_lshl_b32 s{sT1}, s{sN}, 11
            s_add_u32 s{sT0}, s{sT0}, s{sT1}
            s_lshl_b32 s{sT1}, s{sW}, 9
            s_add_u32 s{sT0}, s{sT0}, s{sT1}
            s_add_u32 s{sT0}, s{sT0}, {H_OFF}
            """)
        if self.o.get("aclr"):
            self.hs_check()
        if self.o.get("hearly"):
            h_addr()
        assert self.o["w2in"] + self.o["w2mid"] <= 7
        for v in range(self.o["w2in"], self.o["w2in"] + self.o["w2mid"]):
            for op in self.w2_ops(v):
                op()
        k.wait(lg=("r", 1))
        for i in range(8):
            k.e(f"v_add_f32 v{R1 + i}, v{R1 + i}, v{R1 + 8 + i}")
        k.wait(lg=("r", 3))
        for i in range(8):
            k.e(f"v_add_f32 v{R1 + 16 + i}, v{R1 + 16 + i}, v{R1 + 24 + i}")
        for i in range(8):
            k.e(f"v_add_f32 v{R1 + i}, v{R1 + i}, v{R1 + 16 + i}")
        self.gelu([R1 + i for i in range(8)], R1 + 8, vKC3)
        for i in range(4):
            k.e(f"v_cvt_pk_bf16_f32 v{R1 + 16 + i}, v{R1 + 2 * i}, v{R1 + 2 * i + 1}")
        if not self.o.get("hearly"):
            h_addr()
        k.vmem(f"buffer_store_dwordx4 {vr(R1 + 16, 4)}, v{vT0}, {sr(SWS, 4)}, s{sT0} offen sc1", "hst")
        self.stamp("hst")
        self.clear_at("hst")
        if not self.o.get("hbar"):
            k.e("s_barrier")

    def setup2(self):
        k = self.k
        k.e(f"""
        v_lshlrev_b32 v{vLIN16}, 4, v{vL}
        v_and_b32 v{vT0}, 15, v{vL}
        v_lshrrev_b32 v{vT1}, 4, v{vL}
        v_add_u32 v{vH0}, {32768 - 16}, v{vLIN16}
        v_lshlrev_b32 v{vT2}, 8, v{vT1}
        v_add_u32 v{vT2}, 240, v{vT2}
        s_cmp_eq_u32 s{sMT}, 0
        s_cselect_b32 s{sT0}, {OOB}, 0
        v_add_u32 v{vT2}, s{sT0}, v{vT2}
        v_cmp_eq_u32 vcc, 0, v{vT0}
        v_and_b32 v{vT3}, 7, v{vL}
        v_lshlrev_b32 v{vT3}, 9, v{vT3}
        v_cndmask_b32 v{vH0}, v{vH0}, v{vT2}, vcc
        v_add_u32 v{vFSM}, {256 + 240 + 12}, v{vT3}
        v_add_u32 v{vSMP}, 16384, v{vFSM}
        v_add_u32 v{vT2}, 32768, v{vSMP}
        v_add_u32 v{vT3}, s{sT0}, v{vSMP}
        v_cmp_gt_u32 vcc, 8, v{vL}
        v_bfrev_b32 v{vSV}, 1
        s_nop 0
        v_cndmask_b32 v{vSMP}, v{vT3}, v{vT2}, vcc
        v_cndmask_b32 v{vFSM}, v{vSV}, v{vFSM}, vcc
        v_cmp_gt_u32 vcc, 16, v{vL}
        v_lshrrev_b32 v{vT2}, 1, v{vT1}
        v_lshlrev_b32 v{vT2}, 8, v{vT2}
        v_cndmask_b32 v{vSMP}, v{vSV}, v{vSMP}, vcc
        v_lshl_add_u32 v{vT2}, v{vT0}, 4, v{vT2}
        v_and_b32 v{vT1}, 1, v{vT1}
        v_lshl_add_u32 v{vST}, v{vT1}, 3, v{vT2}
        s_lshl_b32 s{sT0}, s{sW}, 10
        v_add_u32 v{vRD2}, s{sT0}, v{vLIN16}
        s_lshl_b32 s{sT0}, s{sM}, 15
        s_lshl_b32 s{sT1}, s{sW}, 12
        s_add_u32 s{sH}, s{sT0}, s{sT1}
        s_add_u32 s{sH}, s{sH}, {H_OFF}
        s_sub_u32 s{sHS}, s{sH}, 32768
        s_lshl_b32 s{sT0}, s{sM}, 14
        s_add_u32 s{sFL}, s{sT0}, s{sT1}
        s_add_u32 s{sFL}, s{sFL}, {F_OFF}
        s_lshl_b32 s{sT1}, s{sW}, 9
        s_add_u32 s{sT0}, s{sT0}, s{sT1}
        s_xor_b32 s{sT1}, s{sN}, {self.o["x2"]}
        s_lshl_b32 s{sT1}, s{sT1}, 11
        s_add_u32 s{sFS}, s{sT0}, s{sT1}
        s_add_u32 s{sFS}, s{sFS}, {F_OFF}
        s_xor_b32 s{sT1}, s{sN}, {self.o["x3"]}
        s_lshl_b32 s{sT1}, s{sT1}, 11
        s_add_u32 s{sFES}, s{sT0}, s{sT1}
        {f"s_lshl_b32 s{sFES}, s{sFES}, 1" if self.o["ex"] else ""}
        s_add_u32 s{sFES}, s{sFES}, {FE_OFF}
        v_bfrev_b32 v{vGST}, 1
        s_lshl_b32 s{sWQ}, s{sML}, 16
        s_sub_u32 s{sWQ}, s{sWQ}, 16384
        """)
        if self.o["ex"]:
            assert self.o["fdirect"] and self.o["g4"]
            k.e(f"""
            v_lshrrev_b32 v{vT0}, 5, v{vL}
            v_lshlrev_b32 v{vT0}, 9, v{vT0}
            v_bfe_u32 v{vT1}, v{vL}, 2, 2
            v_lshl_add_u32 v{vT0}, v{vT1}, 7, v{vT0}
            v_bfe_u32 v{vT1}, v{vL}, 4, 1
            v_lshl_add_u32 v{vT0}, v{vT1}, 6, v{vT0}
            v_and_b32 v{vT1}, 3, v{vL}
            v_lshl_add_u32 v{vFST}, v{vT1}, 4, v{vT0}
            """)
        if self.o["g4"]:
            ex = self.o["ex"]
            k.e(f"""
            s_or_b32 s{sT0}, s{self.gR}, s{sW}
            s_cmp_eq_u32 s{sT0}, 0
            s_cselect_b32 s{sT2}, 0, {OOB}
            s_and_b32 s{sT0}, s{self.gM}, 7
            s_lshr_b32 s{sT1}, s{self.gM}, 3
            s_lshl_b32 s{sT3}, s{sT0}, 14
            s_add_u32 s{sT3}, s{sT3}, s{sT2}
            s_lshl_b32 s{sA}, s{sT1}, 10
            s_add_u32 s{sT3}, s{sT3}, s{sA}
            s_add_u32 s{sT3}, s{sT3}, {P_OFF}
            v_add_u32 v{vGP}, s{sT3}, v{vLIN16}
            v_bfe_u32 v{vT0}, v{vL}, 3, 1
            v_lshlrev_b32 v{vT0}, {13 + ex}, v{vT0}
            v_and_b32 v{vT1}, 7, v{vL}
            v_lshl_add_u32 v{vT0}, v{vT1}, 4, v{vT0}
            v_lshrrev_b32 v{vT1}, 5, v{vL}
            v_lshl_add_u32 v{vT0}, v{vT1}, {7 + ex}, v{vT0}
            v_bfe_u32 v{vT1}, v{vL}, 4, 1
            v_lshl_add_u32 v{vT0}, v{vT1}, {7 if ex else 3}, v{vT0}
            s_lshl_b32 s{sT0}, s{sT0}, {10 + ex}
            s_lshl_b32 s{sT1}, s{sT1}, {8 + ex}
            s_add_u32 s{sT0}, s{sT0}, s{sT1}
            s_add_u32 s{sT0}, s{sT0}, s{sT2}
            s_add_u32 s{sT0}, s{sT0}, {GE_OFF}
            v_add_u32 v{vGST}, s{sT0}, v{vT0}
            """)

    def hs_check(self):
        k = self.k
        top, done = k.label("hsw"), k.label("hsd")
        k.wait(vm="hs")
        k.e(f"""
        v_cmp_gt_u32 vcc, {32 if self.o.get("aclr") else 64}, v{vHS}
        s_cbranch_vccnz {top}
        {done}:
        """)
        self.ool.append(("hs", top, done))

    def w2_finish(self):
        k = self.k
        for v in range(self.o["w2in"] + self.o["w2mid"], 9):
            if self.o.get("hbar") and v == 5:
                assert self.o["w2in"] + self.o["w2mid"] <= 5
                k.e("s_barrier")
            if v == 8 and self.o["g4"]:
                self.g4_partial()
            for op in self.w2_ops(v):
                op()
        self.setup2()
        for v in range(3):
            k.wait(vm=("w2", v))
            self.tr16(self.w2_slot(v), 16 * v, "a", ("t2", v))
        for v in range(3):
            k.wait(lg=("t2", v))
            for op in self.w2_ops(9 + v):
                op()
        if not self.o.get("aclr"):
            self.hs_check()
        hd = self.o.get("hdirect", 0)
        if not hd:
            k.vmem(f"buffer_load_dword v{vHS}, v{vSMP}, {sr(SWS, 4)}, s{sHS} offen sc1", "smp")
        for v in range(3, 8):
            k.wait(vm=("w2", v))
            self.tr16(self.w2_slot(v), 16 * v, "a", ("t2", v))
            if hd and v == hd + 2 and v < 8:
                self.h_loads(True, not self.o["hplain"])
                self.clear_at("hld")
        if self.o["glate"] or self.o["g4"]:
            self.w2_last()
        else:
            gtop, gjoin = k.label("gblk"), k.label("gjoin")
            k.e(f"s_cmp_lt_u32 s2, 8\ns_cbranch_scc1 {gtop}")
            self.ool.append(("g", gtop, gjoin, list(k.vm), list(k.lg)))
            self.w2_last()
            k.e(f"{gjoin}:")
        self.clear_at("w2d")
        self.stamp("w2done")

    def w2_last(self):
        k = self.k
        for v in range(8, 12):
            k.wait(vm=("w2", v))
            self.tr16(self.w2_slot(v), 16 * v, "a", ("t2", v))

    def g4_issue(self):
        k = self.k
        lab = k.label("g4i")
        k.e(f"""
        s_cmp_lg_u32 s{self.gR}, 0
        s_cbranch_scc1 {lab}
        s_add_u32 m0, s{sRW}, {XS[3]}
        v_and_b32 v{vT0}, 15, v{vL}
        v_lshlrev_b32 v{vT0}, 10, v{vT0}
        v_lshrrev_b32 v{vT1}, 4, v{vL}
        v_lshl_add_u32 v{vT0}, v{vT1}, 4, v{vT0}
        """)
        for q in range(4):
            o = f" offset:{q * 1024}" if q else ""
            k.e(f"buffer_load_dwordx4 v{vW2 + q}, {sr(SWG, 4)}, 0 offen{o} lds")
        k.e(f"""
        s_add_u32 m0, s{sRW}, {GS}
        s_nop 0
        buffer_load_dwordx4 v{vT0}, {sr(SG, 4)}, 0 offen lds
        {lab}:
        """)
        self.g4_mark = k.nvm

    def g4_partial(self):
        k = self.k
        A, B, D = 128, 144, 160
        lab = k.label("g4p")
        k.e(f"""
        s_cmp_lg_u32 s{self.gR}, 0
        s_cbranch_scc1 {lab}
        v_subrev_u32 v{vT0}, s{sRW}, v{vT16}
        s_lshl_b32 s{sT0}, s{sW}, 5
        v_xor_b32 v{vT0}, s{sT0}, v{vT0}
        v_add_u32 v{vT1}, {2 * RW}, v{vT0}
        v_lshlrev_b32 v{vT2}, 4, v{vL}
        v_add_u32 v{vT2}, {GS}, v{vT2}
        v_add_u32 v{vT3}, {2 * RW}, v{vT2}
        s_waitcnt vmcnt({k.nvm - self.g4_mark}) lgkmcnt(0)
        s_barrier
        """)
        for j in range(4):
            a, b = (vT0, vT2) if j < 2 else (vT1, vT3)
            o = (j & 1) * RW
            k.e(f"ds_read_b64_tr_b16 {vr(A + 4 * j, 2)}, v{a} offset:{o + XS[3]}")
            k.e(f"ds_read_b64_tr_b16 {vr(A + 4 * j + 2, 2)}, v{a} offset:{o + XS[3] + 512}")
            k.e(f"ds_read_b128 {vr(B + 4 * j, 4)}, v{b} offset:{o}")
        k.e(f"""
        s_and_b32 s{sT0}, s{self.gM}, 7
        s_lshl_b32 s{sT0}, s{sT0}, 14
        s_lshr_b32 s{sT1}, s{self.gM}, 3
        s_lshl_b32 s{sT1}, s{sT1}, 12
        s_add_u32 s{sT0}, s{sT0}, s{sT1}
        s_lshl_b32 s{sT1}, s{sW}, 10
        s_add_u32 s{sT0}, s{sT0}, s{sT1}
        s_add_u32 s{sT0}, s{sT0}, {P_OFF}
        s_waitcnt lgkmcnt(0)
        s_barrier
        v_lshlrev_b32 v{vT0}, 4, v{vL}
        """)
        for j in range(4):
            self.mfma16(D, A + 4 * j, B + 4 * j, j == 0, ak="v")
        k.nop(12)
        k.e(f"buffer_store_dwordx4 {vr(D, 4)}, v{vT0}, {sr(SWS, 4)}, s{sT0} offen sc1\n{lab}:")

    def g4_loads(self, counted):
        k = self.k
        for q in range(4):
            t = self.tmp()
            k.e(f"s_mov_b32 s{t}, {q * 4096}")
            ins = f"buffer_load_dwordx4 {vr(160 + 4 * q, 4)}, v{vGP}, {sr(SWS, 4)}, s{t} offen sc1"
            if counted:
                k.vmem(ins, "gp")
            else:
                k.e(ins)

    def g4_final(self):
        k = self.k
        P = 160
        k.e(f"s_mov_b32 s{sSPIN}, 0")
        k.wait(vm="gp")
        retry, ok, again = k.label("gpr"), k.label("gpk"), k.label("gpa")
        k.e(f"{again}:")
        k.e(f"v_max_u32 v{vT0}, v{P}, v{P + 1}")
        for i in range(2, 16, 2):
            k.e(f"v_max3_u32 v{vT0}, v{vT0}, v{P + i}, v{P + i + 1}")
        k.e(f"v_cmp_eq_u32 vcc, -1, v{vT0}\ns_cbranch_vccnz {retry}\n{ok}:")
        self.ool.append(("poll", retry, ok, again, self.g4_loads))
        for i in range(4):
            k.e(f"v_add_f32 v{P + i}, v{P + i}, v{P + 4 + i}")
            k.e(f"v_add_f32 v{P + 8 + i}, v{P + 8 + i}, v{P + 12 + i}")
        for i in range(4):
            k.e(f"v_add_f32 v{P + i}, v{P + i}, v{P + 8 + i}")
        if self.o["ex"]:
            self.ex_tail(P, P + 4, P + 8, P + 12, P + 16)
            k.vmem(f"buffer_store_dwordx4 {vr(P + 12, 4)}, v{vGST}, {sr(SWS, 4)}, 0 offen sc1", "gest")
            return
        k.e(f"v_cvt_pk_bf16_f32 v{P + 4}, v{P}, v{P + 1}")
        k.e(f"v_cvt_pk_bf16_f32 v{P + 5}, v{P + 2}, v{P + 3}")
        k.vmem(f"buffer_store_dwordx2 {vr(P + 4, 2)}, v{vGST}, {sr(SWS, 4)}, 0 offen sc1", "gest")

    def ex_tail(self, S, PK, B, T, A):
        k = self.k
        k.e(f"v_cvt_pk_bf16_f32 v{PK}, v{S}, v{S + 1}")
        k.e(f"v_cvt_pk_bf16_f32 v{PK + 1}, v{S + 2}, v{S + 3}")
        for i in range(2):
            k.e(f"v_lshlrev_b32 v{B + 2 * i}, 16, v{PK + i}")
            k.e(f"v_and_b32 v{B + 2 * i + 1}, 0xffff0000, v{PK + i}")
        for i in range(4):
            k.e(f"v_mul_f32 v{T + i}, {f32(CT)}, v{B + i}")
        for i in range(4):
            k.e(f"v_and_b32 v{A + i}, 0x7fffffff, v{T + i}")
        for i in range(4):
            k.e(f"v_exp_f32 v{T + i}, v{T + i}")
        fix, ok = k.label("exf"), k.label("exk")
        k.e(f"""
        v_max3_u32 v{A}, v{A}, v{A + 1}, v{A + 2}
        v_max_u32 v{A}, v{A}, v{A + 3}
        v_cmp_lt_u32 vcc, {f32(EX_MAX)}, v{A}
        s_cbranch_vccnz {fix}
        {ok}:
        """)
        self.ool.append(("exfix", fix, ok, PK, T, A))

    def g_loads(self, GF):
        k = self.k
        k.e(f"""
        v_and_b32 v{vT0}, 15, v{vL}
        v_lshlrev_b32 v{vT0}, 10, v{vT0}
        v_lshrrev_b32 v{vT1}, 4, v{vL}
        v_lshl_add_u32 v{vT0}, v{vT1}, 4, v{vT0}
        """)
        for j in range(4):
            t = self.tmp()
            k.e(f"s_lshr_b32 s{t}, s{sR4[j]}, 4")
            k.e(f"v_add_u32 v{vT1}, s{t}, v{vT0}")
            k.vmem(f"buffer_load_dwordx4 {vr(GF + 4 * j, 4)}, v{vT1}, {sr(SG, 4)}, 0 offen", "g")

    def g_addr(self):
        k = self.k
        k.e(f"""
        v_bfe_u32 v{vT0}, v{vL}, 3, 1
        v_lshlrev_b32 v{vT0}, 13, v{vT0}
        v_and_b32 v{vT1}, 7, v{vL}
        v_lshl_add_u32 v{vT0}, v{vT1}, 4, v{vT0}
        v_lshrrev_b32 v{vT1}, 5, v{vL}
        v_lshl_add_u32 v{vT0}, v{vT1}, 7, v{vT0}
        v_bfe_u32 v{vT1}, v{vL}, 4, 1
        v_lshl_add_u32 v{vT0}, v{vT1}, 3, v{vT0}
        s_lshl_b32 s{sT0}, s2, 10
        s_lshl_b32 s{sT1}, s{sW}, 8
        s_add_u32 s{sT0}, s{sT0}, s{sT1}
        s_add_u32 s{sT0}, s{sT0}, {GE_OFF}
        v_add_u32 v{vGST}, s{sT0}, v{vT0}
        """)

    def g_block(self):
        k = self.k
        GF = HB
        slots = [T4[0], T4[1], XS[2], XS[3]] if self.o["w2mid"] else [T4[0], T4[1], XS[1], XS[2]]
        k.wait(lg=("t2", 7))
        self.stamp("g0")
        for j in range(4):
            self.dma4k(SWG, slots[j], self.w32_soff(j, 0), ("wg", j))
        self.g_loads(GF)
        self.stamp("gdma")
        self.w2_last()
        self.stamp("gw2")
        self.g_addr()
        for j in range(4):
            k.wait(vm=("wg", j))
            self.tr16(slots[j], 192 + 16 * j, "a", ("twg", j))
        self.stamp("gwg")
        k.wait(vm="all")
        self.stamp("gld")
        for j in range(4):
            k.wait(lg=("twg", j))
            for ct in range(4):
                self.mfma16(ACC2 + 4 * ct, 192 + 16 * j + 4 * ct, GF + 4 * j, j == 0)
        self.stamp("gmf")
        self.reduce16(ACC2, False, None, None, None)
        k.e("s_barrier")
        self.stamp("gend")

    def poll_sample(self, stem, vaddr, sbase):
        k = self.k
        top, done = k.label(stem + "p"), k.label(stem + "d")
        k.wait(vm="smp")
        k.e(f"""
        v_cmp_eq_u32 vcc, -1, v{vHS}
        s_cbranch_vccnz {top}
        {done}:
        """)
        self.ool.append(("smp", top, done, vaddr, sbase))

    def reduce16(self, acc, act, vst, sst, tag, mid=None, ex=False):
        k = self.k
        k.e(f"v_add_u32 v{vT3}, {2 * RW}, v{vRD2}")
        k.nop(8)
        for ct in range(4):
            k.ds(f"ds_write_b128 v{vLIN}, {vr(acc + 4 * ct, 4)} offset:{ct * 1024}")
        if tag == "fst":
            k.wait(vm="clrfe")
        k.wait(lg="all")
        k.e("s_barrier")
        for sw in range(4):
            a = vRD2 if sw < 2 else vT3
            k.ds(f"ds_read_b128 {vr(R2 + 4 * sw, 4)}, v{a} offset:{(sw & 1) * RW}", ("r", sw))
        if mid:
            mid()
        k.wait(lg=("r", 1))
        for i in range(4):
            k.e(f"v_add_f32 v{R2 + i}, v{R2 + i}, v{R2 + 4 + i}")
        k.wait(lg=("r", 3))
        for i in range(4):
            k.e(f"v_add_f32 v{R2 + 8 + i}, v{R2 + 8 + i}, v{R2 + 12 + i}")
        for i in range(4):
            k.e(f"v_add_f32 v{R2 + i}, v{R2 + i}, v{R2 + 8 + i}")
        if act:
            self.gelu([R2 + i for i in range(4)], R2 + 4, vKC3)
        if ex:
            self.ex_tail(R2, R2 + 4, R2 + 8, R2 + 12, R2 + 16)
            k.vmem(f"buffer_store_dwordx4 {vr(R2 + 12, 4)}, v{vFST}, {sr(SWS, 4)}, s{sst} offen sc1", tag)
            return
        k.e(f"v_cvt_pk_bf16_f32 v{R2 + 8}, v{R2}, v{R2 + 1}")
        k.e(f"v_cvt_pk_bf16_f32 v{R2 + 9}, v{R2 + 2}, v{R2 + 3}")
        if vst is not None:
            k.vmem(f"buffer_store_dwordx2 {vr(R2 + 8, 2)}, v{vst}, {sr(SWS, 4)}, s{sst} offen sc1", tag)

    def h_loads(self, counted, sc):
        k = self.k
        for v in range(12):
            j, i = v // 3, v % 3
            t = self.tmp()
            k.e(f"s_add_u32 s{t}, s{sH}, s{sR4[j]}")
            if i == 0:
                k.e(f"s_sub_u32 s{t}, s{t}, 16384")
            elif i == 2:
                k.e(f"s_add_u32 s{t}, s{t}, 16384")
            ins = (f"buffer_load_dwordx4 {vr(HB + 4 * v, 4)}, v{vH0 if i == 0 else vLIN16}, "
                   f"{sr(SWS, 4)}, s{t} offen" + (" sc1" if sc else ""))
            if counted:
                k.vmem(ins, ("h", v))
            else:
                k.e(ins)

    def stage2(self):
        k = self.k
        hd = self.o.get("hdirect", 0)
        if not hd:
            self.poll_sample("h", vSMP, sHS)
        self.stamp("hpoll")
        loads = self.h_loads
        k.e(f"s_mov_b32 s{sSPIN}, 0")
        if not hd:
            loads(True, not self.o["hplain"])
        if not self.o["glate"] and not self.o["g4"]:
            k.vmem(f"buffer_store_dwordx2 {vr(R2 + 8, 2)}, v{vGST}, {sr(SWS, 4)}, 0 offen sc1", "gest")
        k.wait(lg="all")
        fill = []
        for j in range(4):
            fill += self.dma4k_ops(SWF, T4[j], self.w32_soff(j, 0), ("wf", j))
        for _ in range(self.o.get("wfpre", 4)):
            fill.pop(0)()
        mf, retry, ok = k.label("s2m"), k.label("s2r"), k.label("s2k")
        k.e(f"{mf}:")
        for v in range(12):
            k.wait(vm=("h", v))
            f = HB + 4 * v
            if v == 0:
                k.e(f"v_mov_b32 v{vT0}, v{f + 3}")
            elif v % 2 == 0:
                k.e(f"v_max3_u32 v{vT0}, v{vT0}, v{f - 1}, v{f + 3}")
            for ct in range(4):
                self.mfma16(ACC2 + 4 * ct, 16 * v + 4 * ct, f, v == 0)
            if v < self.o.get("wfloop", 12) and fill:
                fill.pop(0)()
        k.e(f"v_max_u32 v{vT0}, v{vT0}, v{HB + 47}")
        k.e(f"v_cmp_eq_u32 vcc, -1, v{vT0}\ns_cbranch_vccnz {retry}\n{ok}:")
        self.ool.append(("bulk", retry, ok, mf, loads))
        self.stamp("s2mfma")
        if self.o["g4"]:
            self.g4_loads(True)
        self.wf_rest = fill

    def wo_slot(self, bb, e):
        if bb % 2 == 0:
            base = [T4[4], XS[1], XS[2], XS[3]]
        else:
            base = [T4[0], T4[1], T4[2], T4[3]]
        return base[e // 2] + 2048 * (e & 1)

    def wo_issue(self, bb, e0, e1):
        k = self.k
        for e in range(e0, e1):
            assert self.wo_next == 8 * bb + e
            self.wo_next += 1
            k.e(f"s_add_u32 s{sWQ}, s{sWQ}, 16384\ns_and_b32 s{sWQ}, s{sWQ}, 0x7c000")
            self.dma2k(SWO, self.wo_slot(bb, e), f"s{sWQ}", ("wo", bb, e))

    def wo_tr_ops(self, bb):
        ops = []
        for e in range(8):
            for ct, a in enumerate((vTR0, vTR1)):
                for hf in range(2):
                    off = self.wo_slot(bb, e) + 512 * hf
                    dst = 8 * (8 * bb + e) + 4 * ct + 2 * hf
                    ops.append(("ds", f"ds_read_b64_tr_b16 {vr(dst, 2, 'a')}, v{a} offset:{off}", ("two", bb)))
        return ops

    def wo_tr(self, bb):
        k = self.k
        for e in range(8):
            k.wait(vm=("wo", bb, e))
            self.tr32(self.wo_slot(bb, e), 8 * (8 * bb + e), "a", ("two", bb))

    def stage2_tail(self):
        k = self.k
        self.wo_next = 0

        def mid():
            for _ in range(self.o.get("wfmid", 0)):
                if self.wf_rest:
                    self.wf_rest.pop(0)()
        self.reduce16(ACC2, True, vST, sFS, "fst", mid=mid)
        self.stamp("fst")
        while self.wf_rest:
            self.wf_rest.pop(0)()
        k.e("s_barrier")
        if self.o["glate"]:
            gtop, self.gjoin = k.label("gl"), k.label("glj")
            k.e(f"s_cmp_lt_u32 s2, 8\ns_cbranch_scc1 {gtop}")
            self.ool.append(("glate", gtop, self.gjoin, list(k.vm), list(k.lg), self.wo_next))
        self.wo_issue(0, 0, 8)
        self.wo_pattern()
        k.wait(vm=("wf", 3))
        for j in range(4):
            self.tr16(T4[j], 192 + 16 * j, "a", "twf")
        if self.o["g4"]:
            self.g4_final()
        if self.o["b1B"]:
            k.wait(lg="twf")
            self.wo_issue(1, 0, self.o["b1B"])
        if self.o["glate"] and self.stop_after in ("s2", "ge"):
            k.e(f"s_waitcnt vmcnt(0) lgkmcnt(0)\n{self.gjoin}:")

    def glate_block(self, join):
        k = self.k
        GF = HB + 16
        slots = [self.wo_slot(0, 2 * j) for j in range(4)]
        for j in range(4):
            self.dma4k(SWG, slots[j], self.w32_soff(j, 0), ("wg", j))
        self.g_loads(GF)
        self.stamp("gdma")
        self.wo_pattern()
        self.g_addr()
        k.wait(vm=("wf", 3))
        for j in range(4):
            self.tr16(T4[j], 192 + 16 * j, "a", "twf")
        for j in range(4):
            k.wait(vm=("wg", j))
            self.tr16(slots[j], 128 + 16 * j, "a", ("twg", j))
        self.stamp("gwg")
        k.wait(lg="all")
        self.wo_issue(0, 0, 8)
        k.vmem(f"buffer_load_dword v{vHS}, v{vFSM}, {sr(SWS, 4)}, s{sFL} offen sc1", "smp")
        k.wait(vm="g")
        self.stamp("gld")
        for j in range(4):
            for ct in range(4):
                self.mfma16(ACC2 + 4 * ct, 128 + 16 * j + 4 * ct, GF + 4 * j, j == 0)
        self.stamp("gmf")
        self.reduce16(ACC2, False, None, None, None)
        k.vmem(f"buffer_store_dwordx2 {vr(R2 + 8, 2)}, v{vGST}, {sr(SWS, 4)}, 0 offen sc1", "gest")
        k.e("s_barrier")
        self.stamp("gend")
        if self.stop_after in ("s2", "ge"):
            k.e(f"s_waitcnt vmcnt(0) lgkmcnt(0)\ns_branch {join}")
            return
        self.stage3(gpath=True)
        k.wait(vm=("wo", 1, 7))
        k.e(f"s_branch {join}")

    def wo_pattern(self):
        k = self.k
        k.e(f"""
        v_bfe_u32 v{vT0}, v{vL}, 2, 2
        v_lshrrev_b32 v{vT1}, 5, v{vL}
        v_lshl_add_u32 v{vT1}, v{vT1}, 3, v{vT0}
        v_lshlrev_b32 v{vT1}, 7, v{vT1}
        v_lshrrev_b32 v{vT2}, 1, v{vT0}
        v_lshl_add_u32 v{vT1}, v{vT2}, 6, v{vT1}
        v_bfe_u32 v{vT2}, v{vL}, 4, 1
        v_lshl_add_u32 v{vT1}, v{vT2}, 5, v{vT1}
        v_and_b32 v{vT2}, 1, v{vL}
        v_lshl_add_u32 v{vT1}, v{vT2}, 4, v{vT1}
        v_bfe_u32 v{vT2}, v{vL}, 1, 1
        v_lshl_add_u32 v{vT1}, v{vT2}, 3, v{vT1}
        v_add_u32 v{vTR0}, s{sRW}, v{vT1}
        v_xor_b32 v{vT1}, 64, v{vT1}
        v_add_u32 v{vTR1}, s{sRW}, v{vT1}
        """)

    def stage3(self, gpath=False):
        k = self.k
        FB = HB
        b1B = 0 if gpath else self.o["b1B"]

        def loads(counted, sc):
            for j in range(4):
                t = self.tmp()
                k.e(f"s_add_u32 s{t}, s{sFL}, s{sR4[j]}")
                ins = (f"buffer_load_dwordx4 {vr(FB + 4 * j, 4)}, v{vLIN16}, {sr(SWS, 4)}, s{t} offen"
                       + (" sc1" if sc else ""))
                if counted:
                    k.vmem(ins, ("f", j))
                else:
                    k.e(ins)
        fd = self.o.get("fdirect", 0)
        if fd:
            k.e(f"s_mov_b32 s{sSPIN}, 0")
            loads(True, fd != 2)
            self.wo_tr(0)
            k.wait(vm=("f", 3))
            again, retry0, ok0 = k.label("fda"), k.label("fdr"), k.label("fdk")
            k.e(f"{again}:")
            k.e(f"v_max_u32 v{vT0}, v{FB + 1}, v{FB + 3}")
            for j in range(1, 4):
                k.e(f"v_max3_u32 v{vT0}, v{vT0}, v{FB + 4 * j + 1}, v{FB + 4 * j + 3}")
            k.e(f"v_cmp_eq_u32 vcc, -1, v{vT0}\ns_cbranch_vccnz {retry0}\n{ok0}:")
            self.ool.append(("poll", retry0, ok0, again, lambda counted: loads(counted, True)))
            self.stamp("fpoll")
            k.wait(lg="all")
            self.wo_issue(1, b1B, 8)
            for j in range(4):
                for ct in range(4):
                    self.mfma16(ACC2 + 4 * ct, 192 + 16 * j + 4 * ct, FB + 4 * j, j == 0)
            self.stamp("s3mfma")
            self.reduce16(ACC2, False, vST, sFES, "fest", mid=lambda: self.wo_issue(2, 0, self.o["b2C"]),
                          ex=self.o["ex"])
            self.stamp("fest")
            k.e("s_barrier")
            return
        if not gpath:
            k.vmem(f"buffer_load_dword v{vHS}, v{vFSM}, {sr(SWS, 4)}, s{sFL} offen sc1", "smp")
        self.wo_tr(0)
        self.poll_sample("f", vFSM, sFL)
        self.stamp("fpoll")
        k.e(f"s_mov_b32 s{sSPIN}, 0")
        loads(True, not self.o["fplain"])
        k.wait(lg="all")
        mf, retry, ok = k.label("s3m"), k.label("s3r"), k.label("s3k")
        self.wo_issue(1, b1B, 8)
        k.e(f"{mf}:")
        for j in range(4):
            k.wait(vm=("f", j))
            f = FB + 4 * j
            if j == 0:
                k.e(f"v_max_u32 v{vT0}, v{f + 1}, v{f + 3}")
            else:
                k.e(f"v_max3_u32 v{vT0}, v{vT0}, v{f + 1}, v{f + 3}")
            for ct in range(4):
                self.mfma16(ACC2 + 4 * ct, 192 + 16 * j + 4 * ct, f, j == 0)
        k.e(f"v_cmp_eq_u32 vcc, -1, v{vT0}\ns_cbranch_vccnz {retry}\n{ok}:")
        self.ool.append(("bulk", retry, ok, mf, loads))
        self.stamp("s3mfma")
        self.reduce16(ACC2, False, vST, sFES, "fest", mid=lambda: self.wo_issue(2, 0, self.o["b2C"]),
                          ex=self.o["ex"])
        self.stamp("fest")
        if gpath:
            return
        if self.o["glate"]:
            k.e(f"{self.gjoin}:")
        k.e("s_barrier")

    def stage4(self):
        k = self.k
        CB, FR, Z, JP, BF, ACC, OUT = 32, 96, 128, 144, 160, 192, 224
        vGA, vFA, vJ0, vJ2 = 8, 9, 10, 11
        RAW = 160
        ex = self.o["ex"]
        if ex:
            Z, JP = 224, 240
            late_tr, fr_read = self.s4_head_ex(CB, FR, Z)
        else:
            late_tr, fr_read = self.s4_head(CB, FR, RAW), None
        self.stamp("fepoll")
        self.s4_loop(CB, FR, Z, JP, BF, ACC, OUT, late_tr, fr_read)

    def s4_head(self, CB, FR, RAW):
        k = self.k
        ex = 0
        vGA, vFA, vJ0, vJ2 = 8, 9, 10, 11
        k.e(f"""
        v_and_b32 v{vT0}, 7, v{vL}
        v_lshlrev_b32 v{vT0}, 4, v{vT0}
        v_lshrrev_b32 v{vT1}, 5, v{vL}
        v_lshl_add_u32 v{vGA}, v{vT1}, {7 + ex}, v{vT0}
        v_bfe_u32 v{vT0}, v{vL}, 3, 2
        v_lshlrev_b32 v{vT0}, 4, v{vT0}
        v_lshl_add_u32 v{vFA}, v{vT1}, {8 + ex}, v{vT0}
        v_lshlrev_b32 v{vJ0}, 4, v{vL}
        v_add_u32 v{vJ2}, {2 * RW}, v{vJ0}
        s_lshl_b32 s{sGL}, s{sB}, {13 + ex}
        s_lshl_b32 s{sT0}, s{sW}, {8 + ex}
        s_add_u32 s{sGL}, s{sGL}, s{sT0}
        s_add_u32 s{sGL}, s{sGL}, {GE_OFF}
        s_lshl_b32 s{sFE}, s{sM}, {14 + ex}
        s_lshl_b32 s{sT0}, s{sW}, {9 + ex}
        s_add_u32 s{sFE}, s{sFE}, s{sT0}
        s_lshl_b32 s{sT0}, s{sJN}, 6
        s_add_u32 s{sFE}, s{sFE}, s{sT0}
        s_add_u32 s{sFE}, s{sFE}, {FE_OFF}
        """)

        def np_off(r, shift):
            t = self.tmp()
            if self.o["rot"]:
                k.e(f"s_add_u32 s{t}, s{sML}, {r}\ns_and_b32 s{t}, s{t}, 7\ns_lshl_b32 s{t}, s{t}, {shift}")
            else:
                k.e(f"s_mov_b32 s{t}, {r << shift}")
            return t

        def ge_loads(counted):
            for r in range(8):
                t = np_off(r, 10 + ex)
                k.e(f"s_add_u32 s{t}, s{t}, s{sGL}")
                for hf in range(1 + ex):
                    d, o = RAW + (4 << ex) * r + 4 * hf, f" offset:{128 * hf}" if hf else ""
                    sc = "" if counted and self.o.get("geplain") else " sc1"
                    ins = f"buffer_load_dwordx4 {vr(d, 4)}, v{vGA}, {sr(SWS, 4)}, s{t} offen{o}{sc}"
                    if counted:
                        k.vmem(ins, "ge")
                    else:
                        k.e(ins)

        def fe_loads(counted):
            for r in range(8):
                t = np_off(r, 11 + ex)
                k.e(f"s_add_u32 s{t}, s{t}, s{sFE}")
                for hf in range(1 + ex):
                    d, o = FR + (4 << ex) * r + 4 * hf, f" offset:{256 * hf}" if hf else ""
                    ins = f"buffer_load_dwordx4 {vr(d, 4)}, v{vFA}, {sr(SWS, 4)}, s{t} offen{o} sc1"
                    if counted:
                        k.vmem(ins, ("fe", r))
                    else:
                        k.e(ins)

        def check(base, n, dst):
            if ex:
                k.e(f"v_max_u32 v{dst}, v{base + 3}, v{base + 7}")
                for g in range(2, 2 * n, 2):
                    k.e(f"v_max3_u32 v{dst}, v{dst}, v{base + 4 * g + 3}, v{base + 4 * g + 7}")
                return
            k.e(f"v_max_u32 v{dst}, v{base + 1}, v{base + 3}")
            for r in range(1, n):
                k.e(f"v_max3_u32 v{dst}, v{dst}, v{base + 4 * r + 1}, v{base + 4 * r + 3}")

        ge_loads(True)
        self.wo_issue(2, self.o["b2C"], 8)
        self.wo_tr(1)
        k.wait(lg="all")
        self.wo_issue(3, 0, 8)
        k.e(f"s_mov_b32 s{sSPIN}, 0")
        if ex:
            k.e(f"s_mov_b32 s{sA}, 0")
        k.wait(vm="ge")
        retry, ok = k.label("ger"), k.label("gek")
        again = k.label("gea")
        k.e(f"{again}:")
        test = "v_cmp_gt_i32 vcc, 0," if ex else "v_cmp_eq_u32 vcc, -1,"
        check(RAW, 8, vT0)
        k.e(f"{test} v{vT0}\ns_cbranch_vccnz {retry}\n{ok}:")
        self.ool.append(("pollx" if ex else "poll", retry, ok, again, ge_loads))
        if ex:
            fe_loads(True)
        else:
            k.e(f"s_mov_b32 s{sA}, {f32(CT)}")
            fe_loads(True)
            for r in range(8):
                for i in range(4):
                    src = RAW + 4 * r + i
                    k.e(f"v_lshlrev_b32 v{CB + 8 * r + 2 * i}, 16, v{src}")
                    k.e(f"v_and_b32 v{CB + 8 * r + 2 * i + 1}, 0xffff0000, v{src}")
            for i in range(64):
                k.e(f"v_mul_f32 v{CB + i}, s{sA}, v{CB + i}")
        self.stamp("cb")
        self.wo_tr(2)
        late_tr = []
        if self.o["trb3"] == "pre":
            self.wo_tr(3)
        else:
            late_tr = self.wo_tr_ops(3)
        k.e(f"s_mov_b32 s{sSPIN}, 0")
        k.wait(vm=("fe", 7))
        retry, ok = k.label("fer"), k.label("fek")
        again = k.label("fea")
        k.e(f"{again}:")
        check(FR, 8, vT0)
        k.e(f"{test} v{vT0}\ns_cbranch_vccnz {retry}\n{ok}:")
        self.ool.append(("poll", retry, ok, again, fe_loads))
        return late_tr

    def s4_head_ex(self, CB, FR, Z):
        k = self.k
        vGG, vFG, vCRD, vFRD, vJ0, vJ2 = [8, 12, 13, 14], [9, 20], 21, 22, 10, 11
        GR, FB = 160, 176
        k.e(f"""
        v_and_b32 v{vT0}, 7, v{vL}
        v_lshlrev_b32 v{vT0}, 4, v{vT0}
        v_bfe_u32 v{vT1}, v{vL}, 3, 1
        v_lshl_add_u32 v{vT2}, v{vT1}, 8, v{vT0}
        v_lshl_add_u32 v{vT3}, v{vT1}, 9, v{vT0}
        v_bfe_u32 v{vT1}, v{vL}, 4, 1
        v_lshl_add_u32 v{vT2}, v{vT1}, 7, v{vT2}
        v_lshrrev_b32 v{vT1}, 5, v{vL}
        v_lshl_add_u32 v{vCRD}, v{vT1}, 7, v{vT0}
        v_add_u32 v{vCRD}, s{sRW}, v{vCRD}
        v_add_u32 v{vT1}, s{sML}, v{vT1}
        """)
        for j in range(4):
            k.e(f"""
            v_add_u32 v{vT0}, {2 * j}, v{vT1}
            v_and_b32 v{vT0}, 7, v{vT0}
            v_lshl_add_u32 v{vGG[j]}, v{vT0}, 11, v{vT2}
            """)
        k.e(f"""
        s_lshl_b32 s{sGL}, s{sB}, 14
        s_lshl_b32 s{sT0}, s{sW}, 9
        s_add_u32 s{sGL}, s{sGL}, s{sT0}
        s_add_u32 s{sGL}, s{sGL}, {GE_OFF}
        """)

        def ge_loads(counted):
            for j in range(4):
                sc = "" if counted and self.o.get("geplain") else " sc1"
                ins = f"buffer_load_dwordx4 {vr(GR + 4 * j, 4)}, v{vGG[j]}, {sr(SWS, 4)}, s{sGL} offen{sc}"
                if counted:
                    k.vmem(ins, "ge")
                else:
                    k.e(ins)

        def fe_loads(counted):
            for j in range(2):
                ins = f"buffer_load_dwordx4 {vr(FB + 4 * j, 4)}, v{vFG[j]}, {sr(SWS, 4)}, s{sFE} offen sc1"
                if counted:
                    k.vmem(ins, "fe")
                else:
                    k.e(ins)
        ge_loads(True)
        k.e(f"""
        v_lshrrev_b32 v{vT1}, 4, v{vL}
        v_add_u32 v{vT1}, s{sML}, v{vT1}
        v_and_b32 v{vT0}, 7, v{vT1}
        v_lshl_add_u32 v{vFG[0]}, v{vT0}, 12, v{vT3}
        v_xor_b32 v{vFG[1]}, 16384, v{vFG[0]}
        v_lshrrev_b32 v{vT1}, 5, v{vL}
        v_bfe_u32 v{vT0}, v{vL}, 3, 2
        v_lshlrev_b32 v{vT0}, 4, v{vT0}
        v_lshl_add_u32 v{vFRD}, v{vT1}, 7, v{vT0}
        v_add_u32 v{vFRD}, s{sRW}, v{vFRD}
        v_lshlrev_b32 v{vJ0}, 4, v{vL}
        v_add_u32 v{vJ2}, {2 * RW}, v{vJ0}
        s_lshl_b32 s{sFE}, s{sM}, 15
        s_lshl_b32 s{sT0}, s{sW}, 10
        s_add_u32 s{sFE}, s{sFE}, s{sT0}
        s_lshl_b32 s{sT0}, s{sJN}, 7
        s_add_u32 s{sFE}, s{sFE}, s{sT0}
        s_add_u32 s{sFE}, s{sFE}, {FE_OFF}
        """)
        self.wo_issue(2, self.o["b2C"], 8)
        self.wo_tr(1)
        k.wait(lg="all")
        if self.o.get("feat", 0) == -2:
            fe_loads(True)
        if not self.o.get("b3late"):
            self.wo_issue(3, 0, self.o.get("b3pre", 0) if self.o.get("b3loop") else 8)
        if self.o.get("feat", 0) == -1:
            fe_loads(True)
        k.e(f"s_mov_b32 s{sSPIN}, 0\ns_mov_b32 s{sA}, 0")
        k.wait(vm="ge")
        retry, ok, again = k.label("ger"), k.label("gek"), k.label("gea")
        k.e(f"""
        {again}:
        v_max_u32 v{vT0}, v{GR + 3}, v{GR + 7}
        v_max3_u32 v{vT0}, v{vT0}, v{GR + 11}, v{GR + 15}
        v_cmp_gt_i32 vcc, 0, v{vT0}
        s_cbranch_vccnz {retry}
        {ok}:
        """)
        self.ool.append(("pollx", retry, ok, again, ge_loads))
        if self.o.get("feat", 0) == 0:
            fe_loads(True)
        for j in range(4):
            k.ds(f"ds_write_b128 v{vLIN}, {vr(GR + 4 * j, 4)} offset:{j * 1024}", "gw")
        if self.o.get("b3late"):
            self.wo_issue(3, 0, 8)
        k.wait(lg="gw")
        for r in range(8):
            for hf in range(2):
                k.ds(f"ds_read_b128 {vr(CB + 8 * r + 4 * hf, 4)}, v{vCRD} offset:{r * 512 + hf * 256}", "cb")
        if self.o.get("feat", 0) == 1:
            fe_loads(True)
        self.stamp("cb")
        self.wo_tr(2)
        if self.o.get("feat", 0) == 2:
            fe_loads(True)
        late_tr = self.wo_tr_ops(3)
        k.e(f"s_mov_b32 s{sSPIN}, 0")
        k.wait(vm="fe")
        retry, ok, again = k.label("fer"), k.label("fek"), k.label("fea")
        k.e(f"""
        {again}:
        v_max_u32 v{vT0}, v{FB + 3}, v{FB + 7}
        v_cmp_gt_i32 vcc, 0, v{vT0}
        s_cbranch_vccnz {retry}
        {ok}:
        """)
        self.ool.append(("pollx", retry, ok, again, fe_loads))
        for j in range(2):
            k.ds(f"ds_write_b128 v{vLIN}, {vr(FB + 4 * j, 4)} offset:{FS + j * 1024}", "fw")

        def fr_read(r):
            for hf in range(2):
                k.ds(f"ds_read_b128 {vr(FR + 8 * r + 4 * hf, 4)}, v{vFRD} offset:{FS + r * 256 + hf * 64}", ("fr", r))
        slow, fast = k.label("exs"), k.label("exq")
        k.e(f"s_cmp_lg_u32 s{sA}, 0\ns_cbranch_scc1 {slow}\n{fast}:")
        self.ool.append(("exslow", slow, fast, CB, FR, Z, vFRD))
        k.wait(lg="all")
        for r in range(4):
            fr_read(r)
        return late_tr, fr_read

    def s4_loop(self, CB, FR, Z, JP, BF, ACC, OUT, late_tr, fr_read):
        k = self.k
        ex = self.o["ex"]
        vJ0, vJ2 = 10, 11

        def j_ops(r):
            ops = []
            z = Z + 8 * (r & 1)
            jp = JP + 4 * (r & 1)
            if ex:
                for i in range(8):
                    ops.append((f"v_fma_f32 v{z + i}, v{FR + 8 * r + i}, v{CB + 8 * r + i}, 1.0", 4))
                for i in range(8):
                    ops.append((f"v_rcp_f32 v{z + i}, v{z + i}", 8))
                for i in range(8):
                    ops.append((f"v_fma_f32 v{z + i}, v{z + i}, -2.0, 1.0", 4))
                for i in range(4):
                    ops.append((f"v_cvt_pk_bf16_f32 v{jp + i}, v{z + 2 * i}, v{z + 2 * i + 1}", 4))
                ops.append(("ds", f"ds_write_b128 v{vLIN}, {vr(jp, 4)} offset:{r * 1024}", ("jw", r)))
                return ops
            for i in range(4):
                ops.append((f"v_lshlrev_b32 v{z + 2 * i}, 16, v{FR + 4 * r + i}", 4))
                ops.append((f"v_and_b32 v{z + 2 * i + 1}, 0xffff0000, v{FR + 4 * r + i}", 4))
            for i in range(8):
                ops.append((f"v_fma_f32 v{z + i}, v{z + i}, s{sA}, v{CB + 8 * r + i}", 4))
            for i in range(8):
                ops.append((f"v_exp_f32 v{z + i}, v{z + i}", 8))
            for i in range(8):
                ops.append((f"v_add_f32 v{z + i}, 1.0, v{z + i}", 4))
            for i in range(8):
                ops.append((f"v_rcp_f32 v{z + i}, v{z + i}", 8))
            for i in range(8):
                ops.append((f"v_fma_f32 v{z + i}, v{z + i}, -2.0, 1.0", 4))
            for i in range(4):
                ops.append((f"v_cvt_pk_bf16_f32 v{jp + i}, v{z + 2 * i}, v{z + 2 * i + 1}", 4))
            ops.append(("ds", f"ds_write_b128 v{vLIN}, {vr(jp, 4)} offset:{r * 1024}", ("jw", r)))
            return ops

        dbg = self.o.get("s4dbg", "")

        def emit(op):
            if op[0] == "ds":
                k.ds(op[1], op[2])
                return 4
            t = op[0]
            if "notrans" in dbg:
                t = t.replace("v_exp_f32", "v_mov_b32").replace("v_rcp_f32", "v_mov_b32")
            if "novalu" not in dbg and not ("nofma" in dbg and t.startswith("v_fma")):
                k.e(t)
            return op[1]

        def read1(r, jj):
            b = BF + 16 * (r & 1)
            a = vJ0 if jj < 2 else vJ2
            k.ds(f"ds_read_b128 {vr(b + 4 * jj, 4)}, v{a} offset:{(jj & 1) * RW + r * 1024}", ("jr", r, jj))

        def reads(r):
            for jj in range(4):
                read1(r, jj)

        k.wait(lg=("fr", 0) if ex else "all")
        if "twice" in dbg:
            k.e(f"s_mov_b32 s{sSPIN}, 0\nL_twice:\ns_waitcnt lgkmcnt(0)\ns_barrier")
            self.stamp("fepoll2")
        b3 = self.o.get("b3loop", 0)
        b3q = list(range(self.o.get("b3pre", 0), 8)) if b3 else []

        def b3_issue(n):
            for _ in range(n):
                if b3q:
                    e = b3q.pop(0)
                    self.wo_issue(3, e, e + 1)
        b3_issue(self.o.get("b3j0", 1))
        for op in j_ops(0):
            emit(op)
        b3_issue(self.o.get("b3j1", 1))
        o1 = j_ops(1)
        n1 = 8 if ex else 16
        if ex:
            k.wait(lg=("fr", 1))
        for op in o1[:n1]:
            emit(op)
        k.wait(lg=("jw", 0))
        k.e("s_barrier")
        reads(0)
        for op in o1[n1:]:
            emit(op)
        self.stamp("j01")
        for r in range(8):
            ops = j_ops(r + 2) if r + 2 < 8 else []
            total = sum(op[1] if op[0] != "ds" else 4 for op in ops)
            spread = self.o.get("s4spread", 0)
            if not spread:
                k.wait(lg=("jr", r, 3))
            b = BF + 16 * (r & 1)
            spent = 0
            bar_at = self.o["s4bar"] + (self.o.get("s4bar0", 2) if r == 0 else 0)
            assert bar_at + 3 * spread <= 7
            for i in range(8):
                jj, ct = i // 2, i % 2
                q = 4 * r + jj
                if r == 6 and i == 0:
                    k.wait(lg=("two", 3))
                if spread and ct == 0:
                    k.wait(lg=("jr", r, jj))
                if "nomfma" not in dbg:
                    self.mfma32(ACC + 16 * ct, 8 * q + 4 * ct, b + 4 * jj, r == 0 and jj == 0, ak="a")
                if ex and r < 2 and i < 2:
                    fr_read(4 + 2 * r + i)
                if b3 and i % b3 == b3 - 1:
                    b3_issue(1)
                if i == bar_at and r + 1 < 8:
                    self.stamp(f"ba{r}")
                    k.wait(lg=("jw", r + 1))
                    self.stamp(f"bb{r}")
                    if "nobar" not in dbg:
                        k.e("s_barrier")
                    self.stamp(f"bc{r}")
                    if not spread:
                        reads(r + 1)
                if spread and r + 1 < 8 and 0 <= (i - bar_at) < 4 * spread and (i - bar_at) % spread == 0:
                    read1(r + 1, (i - bar_at) // spread)
                if late_tr and i > bar_at and r >= self.o.get("ltr0", 2 if ex else 0):
                    if (self.o.get("b3late") or self.o.get("feat", 0) == -2) and len(late_tr) == 32:
                        k.wait(vm=("wo", 3, 7))
                    left = sum(7 - self.o["s4bar"] for rr in range(r + 1, 6)) + (8 - i)
                    for _ in range(max(2, -(-len(late_tr) // max(left, 1)))):
                        if late_tr:
                            if b3 and len(late_tr) % 4 == 0:
                                e = 8 - len(late_tr) // 4
                                assert e not in b3q
                                k.wait(vm=("wo", 3, e))
                            emit(late_tr.pop(0))
                while ops and spent < total * (i + 1) / 8:
                    spent += emit(ops.pop(0))
            while ops:
                emit(ops.pop(0))
            if r == 6 and self.o.get("otr"):
                self.out_addr()
            self.stamp(f"s4r{r}")
        assert not late_tr
        if "twice" in dbg:
            k.e(f"s_add_u32 s{sSPIN}, s{sSPIN}, 1\ns_cmp_lt_u32 s{sSPIN}, 2\ns_cbranch_scc1 L_twice")
        self.stamp("s4mfma")
        if self.o.get("otr"):
            self.out_rows(ACC, OUT)
            return
        k.e(f"""
        s_lshl_b32 s{sT0}, s{sMT}, 7
        s_lshl_b32 s{sT1}, s{sJN}, 5
        s_add_u32 s{sT0}, s{sT0}, s{sT1}
        s_lshl_b32 s{sT0}, s{sT0}, 10
        s_lshl_b32 s{sT1}, s{sNH}, 9
        s_add_u32 s{sT0}, s{sT0}, s{sT1}
        s_lshl_b32 s{sT1}, s{sW}, 7
        s_add_u32 s{sT0}, s{sT0}, s{sT1}
        v_and_b32 v{vT0}, 31, v{vL}
        v_lshlrev_b32 v{vT0}, 10, v{vT0}
        v_lshrrev_b32 v{vT1}, 5, v{vL}
        v_lshl_add_u32 v{vT0}, v{vT1}, 4, v{vT0}
        v_add_u32 v{vT0}, s{sT0}, v{vT0}
        """)
        k.nop(2)
        for ct in range(2):
            for a in range(2):
                src = ACC + 16 * ct + 8 * a
                dst = OUT + 8 * ct + 4 * a
                for i in range(4):
                    k.e(f"v_cvt_pk_bf16_f32 v{dst + i}, v{src + 2 * i}, v{src + 2 * i + 1}")
                o = ct * 64 + a * 32
                os_ = f" offset:{o}" if o else ""
                k.vmem(f"buffer_store_dwordx4 {vr(dst, 4)}, v{vT0}, {sr(SOUT, 4)}, 0 offen{os_}" + self.outpol(), "out")

    def outpol(self):
        return {0: "", 1: " sc1", 2: " nt", 3: " sc0 sc1", 4: " sc1 nt", 5: " sc0 sc1 nt"}[self.o.get("outsc", 0)]

    def out_addr(self):
        k = self.k
        k.e(f"""
        s_lshl_b32 s{sT0}, s{sMT}, 7
        s_lshl_b32 s{sT1}, s{sJN}, 5
        s_add_u32 s{sT0}, s{sT0}, s{sT1}
        s_lshl_b32 s{sT0}, s{sT0}, 10
        s_lshl_b32 s{sT1}, s{sNH}, 9
        s_add_u32 s{sT0}, s{sT0}, s{sT1}
        s_lshl_b32 s{sT1}, s{sW}, 7
        s_add_u32 s{sA}, s{sT0}, s{sT1}
        v_and_b32 v{vT1}, 31, v{vL}
        v_lshrrev_b32 v{vT0}, 5, v{vL}
        v_xor_b32 v{vT0}, v{vT0}, v{vT1}
        v_and_b32 v{vT0}, 7, v{vT0}
        v_lshlrev_b32 v{vT0}, 4, v{vT0}
        v_lshl_add_u32 v{vT0}, v{vT1}, 7, v{vT0}
        v_add_u32 v{vT0}, s{sRW}, v{vT0}
        v_lshrrev_b32 v{vT1}, 3, v{vL}
        v_and_b32 v{vT3}, 7, v{vL}
        v_xor_b32 v{vT2}, v{vT1}, v{vT3}
        v_lshlrev_b32 v{vT2}, 4, v{vT2}
        v_lshl_add_u32 v{vT2}, v{vT1}, 7, v{vT2}
        v_add_u32 v{vT2}, s{sRW}, v{vT2}
        v_lshlrev_b32 v{vT3}, 4, v{vT3}
        v_lshl_add_u32 v{vT3}, v{vT1}, 10, v{vT3}
        """)

    def out_rows(self, ACC, OUT):
        k = self.k
        k.nop(12)
        for ct in range(2):
            for a in range(2):
                src = ACC + 16 * ct + 8 * a
                dst = OUT + 8 * ct + 4 * a
                for i in range(4):
                    k.e(f"v_cvt_pk_bf16_f32 v{dst + i}, v{src + 2 * i}, v{src + 2 * i + 1}")
                p2 = 4 * ct + 2 * a
                if p2:
                    k.e(f"v_xor_b32 v{vT1}, {p2 * 16}, v{vT0}")
                k.ds(f"ds_write_b128 v{vT1 if p2 else vT0}, {vr(dst, 4)} offset:{T4[0]}", "ow")
        k.wait(lg="ow")
        for i in range(4):
            k.ds(f"ds_read_b128 {vr(OUT + 4 * i, 4)}, v{vT2} offset:{T4[0] + i * 1024}", ("or", i))
        for i in range(4):
            t = self.tmp()
            k.e(f"s_add_u32 s{t}, s{sA}, {i * 8192}")
            k.wait(lg=("or", i))
            k.vmem(f"buffer_store_dwordx4 {vr(OUT + 4 * i, 4)}, v{vT3}, {sr(SOUT, 4)}, s{t} offen"
                   + self.outpol(), "out")

    def epilogue(self):
        k = self.k
        if self.stamps:
            if self.o.get("endwait"):
                k.e("s_waitcnt vmcnt(0)")
            self.stamp("end")
            n = self.nst
            k.e("s_waitcnt vmcnt(0) lgkmcnt(0)")
            for i in range(n):
                k.e(f"v_writelane_b32 v{vT1}, s{STAMP0 + 2 * i}, {i}")
            k.e(f"""
            s_lshl_b32 s{sT0}, s2, 2
            s_add_u32 s{sT0}, s{sT0}, s{sW}
            s_lshl_b32 s{sT0}, s{sT0}, 6
            s_add_u32 s{sT0}, s{sT0}, {STAMP_OFF}
            s_mov_b32 s{SWS + 2}, {STAMP_OFF + (1 << 20)}
            v_lshlrev_b32 v{vT0}, 2, v{vL}
            s_mov_b64 exec, 0xffff
            buffer_store_dword v{vT1}, v{vT0}, {sr(SWS, 4)}, s{sT0} offen
            """)
        k.e("s_waitcnt vmcnt(0)\nL_end:\ns_endpgm")
        for item in self.ool:
            if item[0] == "hs":
                _, top, done = item
                k.e(f"""
                {top}:
                s_mov_b32 s{sSPIN}, 0
                v_and_b32 v{vT0}, 3, v{vL}
                v_lshlrev_b32 v{vT0}, 6, v{vT0}
                {top}_l:
                """)
                self.spin_check(done)
                k.e(f"""
                buffer_load_dword v{vHS}, v{vT0}, {sr(SDBG, 4)}, 0 offen sc1
                s_waitcnt vmcnt(0)
                v_cmp_gt_u32 vcc, {32 if self.o.get("aclr") else 64}, v{vHS}
                s_cbranch_vccnz {top}_l
                s_branch {done}
                """)
            elif item[0] == "g":
                _, top, join, vm, lg = item
                k.vm, k.lg = vm, lg
                k.e(f"{top}:")
                self.g_block()
                k.e(f"s_branch {join}")
            elif item[0] == "glate":
                _, top, join, vm, lg, self.wo_next = item
                k.vm, k.lg = vm, lg
                k.e(f"{top}:")
                self.glate_block(join)
            elif item[0] == "exfix":
                _, top, ok, PK, T, A = item
                k.e(f"{top}:")
                for i in range(2):
                    k.e(f"v_and_b32 v{A + 2 * i}, 0xffff, v{PK + i}")
                    k.e(f"v_lshrrev_b32 v{A + 2 * i + 1}, 16, v{PK + i}")
                for i in range(4):
                    k.e(f"v_or_b32 v{A + i}, 0x80000000, v{A + i}")
                for i in range(4):
                    k.e(f"v_cndmask_b32 v{T + i}, v{T + i}, v{A + i}, vcc")
                k.e(f"s_branch {ok}")
            elif item[0] == "pollx":
                _, retry, ok, back, loads = item
                real = retry + "_r"
                k.e(f"""
                {retry}:
                v_cmp_eq_u32 vcc, -1, v{vT0}
                s_cbranch_vccnz {real}
                s_mov_b32 s{sA}, 1
                s_branch {ok}
                {real}:
                """)
                self.spin_check(ok)
                loads(False)
                k.e(f"s_waitcnt vmcnt(0)\ns_branch {back}")
            elif item[0] == "exslow":
                _, top, ok, CB, FR, Z, vFRD = item
                k.e(f"{top}:\ns_mov_b32 s{sA}, {f32(CT)}\ns_waitcnt lgkmcnt(0)")
                for r in range(8):
                    for hf in range(2):
                        k.e(f"ds_read_b128 {vr(FR + 8 * r + 4 * hf, 4)}, v{vFRD} offset:{FS + r * 256 + hf * 64}")
                k.e("s_waitcnt lgkmcnt(0)")
                for i in range(64):
                    for src, t in ((CB + i, Z), (FR + i, Z + 2)):
                        k.e(f"""
                        v_cmp_gt_i32 vcc, 0, v{src}
                        v_log_f32 v{t + 1}, v{src}
                        v_lshlrev_b32 v{t}, 16, v{src}
                        v_mul_f32 v{t}, s{sA}, v{t}
                        v_cndmask_b32 v{t}, v{t + 1}, v{t}, vcc
                        """)
                    k.e(f"""
                    v_add_f32 v{Z}, v{Z}, v{Z + 2}
                    s_nop 0
                    v_exp_f32 v{CB + i}, v{Z}
                    """)
                for i in range(4):
                    k.e(f"v_mov_b32 v{Z + 4 + i}, 1.0")
                for j in range(2):
                    k.e(f"ds_write_b128 v{vLIN}, {vr(Z + 4, 4)} offset:{FS + j * 1024}")
                k.e(f"s_branch {ok}")
            elif item[0] == "smp":
                _, top, done, vaddr, sbase = item
                k.e(f"{top}:\ns_mov_b32 s{sSPIN}, 0\n{top}_l:")
                self.spin_check(done)
                k.e(f"""
                buffer_load_dword v{vHS}, v{vaddr}, {sr(SWS, 4)}, s{sbase} offen sc1
                s_waitcnt vmcnt(0)
                v_cmp_eq_u32 vcc, -1, v{vHS}
                s_cbranch_vccnz {top}_l
                s_branch {done}
                """)
            else:
                kind, retry, ok, back, loads = item
                k.e(f"{retry}:")
                self.spin_check(ok)
                if kind == "bulk":
                    loads(False, True)
                else:
                    loads(False)
                k.e(f"s_waitcnt vmcnt(0)\ns_branch {back}")
        k.e("L_last:\ns_endpgm" + ("\nL_textend:" if self.o.get("warm") else ""))

    def build(self):
        k = self.k
        stop = self.stop_after
        self.prologue()
        self.stage1()
        self.w2_finish()
        if stop != "s1":
            self.stage2()
            self.stage2_tail()
            if stop not in ("s2", "ge"):
                self.stage3()
                if stop != "s3":
                    self.stage4()
        self.epilogue()
        return self.text()

    def text(self):
        head = f"""; RNN-T joint network: two stride-2 conv stems, w_f / w_g projections, tanh, w_o.
; @launch grid=(256,1,1) block=(256,1,1) lds={LDS_BYTES}
.amdgcn_target "amdgcn-amd-amdhsa--gfx950"
.text
.globl {NAME}
.p2align 8
.type {NAME},@function
{NAME}:
"""
        tail = f"""
.section .rodata,"a"
.p2align 6
.amdhsa_kernel {NAME}
  .amdhsa_next_free_vgpr 512
  .amdhsa_next_free_sgpr 102
  .amdhsa_accum_offset 256
  .amdhsa_group_segment_fixed_size 0
  .amdhsa_kernarg_size 80
  .amdhsa_user_sgpr_count 2
  .amdhsa_user_sgpr_kernarg_segment_ptr 1
  .amdhsa_system_sgpr_workgroup_id_x 1
.end_amdhsa_kernel
"""
        return head + self.k.text() + tail


if __name__ == "__main__":
    out = sys.argv[1] if len(sys.argv) > 1 else "cdna_kernels/" + NAME.replace("_kernel", "") + ".s"
    g = Gen2(stamps=False)
    open(out, "w").write(g.build())
    print("wrote", out)
```
